```python
import torch

def _softmax(x, axis=-1):
    return torch.softmax(x, dim=axis)
def _gelu(x):
    return torch.nn.functional.gelu(x, approximate="tanh")
def _silu(x):
    return torch.nn.functional.silu(x)
def _sigmoid(x):
    return torch.sigmoid(x)
def _layernorm(x, axis=-1, eps=1e-5):
    m = x.mean(dim=axis, keepdim=True)
    v = x.var(dim=axis, keepdim=True, unbiased=False)
    return (x - m) / torch.sqrt(v + eps)
def _scatter_add(tgt, idx, src, axis=0):
    return tgt.clone().index_add_(axis, idx, src)
def _segment_sum(src, seg, n):
    out = torch.zeros((n,) + src.shape[1:], dtype=src.dtype)
    return out.index_add_(0, seg, src)
def _pad(x, pw):
    flat = tuple(v for pair in reversed(pw) for v in pair)
    return torch.nn.functional.pad(x, flat)

kernel_name = 'sequential_preLN__compressed_kv_cla__dense_activation_silu__decode'

def setup_inputs():

    _w = (lambda a: (lambda t: t.to(torch.bfloat16) if t.is_floating_point() else t)(torch.as_tensor(a)))
    def _A_setup():
        B, H, Sq, Sk, D, M = 4, 32, 1, 4096, 128, 640
        Dc = 4 * D
        return {
            "x": _w((lambda *s: torch.randn(*s, dtype=torch.bfloat16) * 0.05)(B, Sq, M)),
            "c_kv": _w((lambda *s: torch.randn(*s, dtype=torch.bfloat16) * 0.8)(B, Sk, Dc)),
            "w_q": _w((lambda *s: torch.randn(*s, dtype=torch.bfloat16) * 3.2)(M, H, D) * (M ** -0.5)),
            "w_uk": _w((lambda *s: torch.randn(*s, dtype=torch.bfloat16) * 3.2)(Dc, H, D) * (Dc ** -0.5)),
            "w_uv": _w((lambda *s: torch.randn(*s, dtype=torch.bfloat16) * 0.8)(Dc, H, D) * (Dc ** -0.5)),
            "w_o": _w((lambda *s: torch.randn(*s, dtype=torch.bfloat16) * 0.8)(H, D, M) * ((H * D) ** -0.5)),
        }
    _A_in = _A_setup()

    def _B_setup():
        B, S, D, F = 4, 1, 640, 1728
        return {
            "x": _w((lambda *s: torch.randn(*s, dtype=torch.bfloat16) * 0.05)(B, S, D)),
            "w1": _w((lambda *s: torch.randn(*s, dtype=torch.bfloat16) * 3.2)(D, F) * (D ** -0.5)),
            "w2": _w((lambda *s: torch.randn(*s, dtype=torch.bfloat16) * 0.8)(F, D) * (F ** -0.5)),
        }
    _B_in = _B_setup()

    return {
        "A_x": _A_in["x"],
        "A_c_kv": _A_in["c_kv"],
        "A_w_q": _A_in["w_q"],
        "A_w_uk": _A_in["w_uk"],
        "A_w_uv": _A_in["w_uv"],
        "A_w_o": _A_in["w_o"],
        "B_x": _B_in["x"],
        "B_w1": _B_in["w1"],
        "B_w2": _B_in["w2"],
    }

def reference(A_x, A_c_kv, A_w_q, A_w_uk, A_w_uv, A_w_o, B_x, B_w1, B_w2):
    def _A_ref(x, c_kv, w_q, w_uk, w_uv, w_o):
        B, Sq, M = x.shape[0], x.shape[1], x.shape[2]
        Sk = c_kv.shape[1]
        H, D = w_q.shape[1], w_q.shape[2]
        q = torch.einsum("bqm,mhd->bhqd", x, w_q)
        k = torch.einsum("bkc,chd->bhkd", c_kv, w_uk)
        v = torch.einsum("bkc,chd->bhkd", c_kv, w_uv)
        scores = torch.einsum("bhqd,bhkd->bhqk", q, k) * (D ** -0.5)
        off = Sk - Sq
        qi = torch.arange(Sq)[:, None]
        kj = torch.arange(Sk)[None, :]
        cmask = kj <= (qi + off)
        scores = torch.where(cmask[None, None], scores, -1e9)
        p = _softmax(scores, axis=-1)
        ctx = torch.einsum("bhqk,bhkd->bhqd", p, v)
        return torch.einsum("bhqd,hdm->bqm", ctx, w_o)

    def _B_ref(x, w1, w2):
        h = torch.einsum("bsd,df->bsf", x, w1)
        h = _silu(h)
        out = torch.einsum("bsf,fd->bsd", h, w2)
        return out

    x = A_x
    h = x + _A_ref(_layernorm(x, axis=-1), A_c_kv, A_w_q, A_w_uk, A_w_uv, A_w_o)
    h2 = h + _B_ref(_layernorm(h, axis=-1), B_w1, B_w2)
    return h2
```

```python
import sys, re, argparse, math, struct

NAME = "sequential_preLN__compressed_kv_cla__dense_activation_silu__decode"
HDR = open(f"cdna_kernels/{NAME}.s.ref").read().split("; Override launch")[0]

ap = argparse.ArgumentParser()
ap.add_argument("-o", default=f"cdna_kernels/{NAME}.s")
ap.add_argument("--stamps", action="store_true")
ap.add_argument("--nofast", action="store_true")
opt = ap.parse_args()

W_EPOCH = 0x0
W_XT = 0x1000
W_H1 = 0x10000
W_H2 = 0x20000
W_ST3 = 0x60000
W_LSE = 0x70000
W_H3B = 0x80000
W_H4 = 0x100000
W_H5B = 0x110000
W_H5C = 0x130000
W_H6 = 0x150000
W_H3A = 0x200000
W_STAMP = 0x800000
WS_SIZE = 0x1000000

ROWB = 1056
L_CKV = 0
L_Q = 128 * ROWB
L_P = L_Q + 16 * ROWB
L_MX = L_P + 4096
L_SM = L_MX + 512
L_RED = L_SM + 512
L_RS = L_RED + 4096
L_CS = L_RS + 256
LDS_BYTES = 163840

S_X, S_CKV, S_WQ, S_WUK, S_WUV, S_WO, S_W1, S_W2, S_OUT, S_WS = (28, 32, 36, 40, 44, 48, 52, 56, 60, 64)
sX, sR, sW = 68, 69, 70
sFAST = 71
sT0, sT1 = 72, 73
sPLO, sPHI = 74, 75
sCNT = 76
sH = 77

POLL_LIMIT = 400000


def f32(x):
    return "0x%08x" % struct.unpack("<I", struct.pack("<f", x))[0]


class Asm:
    def __init__(self):
        self.l = []
        self.nlab = 0
        self.nstamp = 0
        self.stampnames = []

    def __call__(self, s):
        m = re.search(r"offset:(\d+)", s)
        if m:
            lim = 65536 if s.lstrip().startswith("ds_") else 4096
            assert int(m.group(1)) < lim, s
        self.l.append("    " + s)

    def lab(self, n):
        self.l.append(n + ":")

    def newlab(self, p="L"):
        self.nlab += 1
        return f"{p}_{self.nlab}"

    def c(self, s):
        self.l.append("    ; " + s)

    def stamp(self, name):
        if not opt.stamps:
            return
        if name in self.stampnames:
            i = self.stampnames.index(name)
        else:
            i = len(self.stampnames)
            self.stampnames.append(name)
        assert i < 12
        self(f"s_memrealtime s[{4+2*i}:{5+2*i}]")


A = Asm()


def srd(n):
    return f"s[{n}:{n+3}]"


def vr(a, n):
    return f"v[{a}:{a+n-1}]" if n > 1 else f"v{a}"


def execmask(m):
    A(f"s_mov_b32 exec_lo, 0x{m & 0xffffffff:x}")
    A(f"s_mov_b32 exec_hi, 0x{m >> 32:x}")


def execall():
    A("s_mov_b64 exec, -1")


M_N4 = 0x000F000F000F000F


def store_local(instr):
    if opt.nofast:
        for i in instr:
            A(i + " sc1")
        return
    l1, l2 = A.newlab("Lsl"), A.newlab("Lsl")
    A(f"s_cmp_eq_u32 s{sFAST}, 0")
    A(f"s_cbranch_scc1 {l1}")
    for i in instr:
        A(i)
    A(f"s_branch {l2}")
    A.lab(l1)
    for i in instr:
        A(i + " sc1")
    A.lab(l2)


def poll(loads, tagregs, pre=None):
    lp = A.newlab("Lpoll")
    A.lab(lp)
    for i in loads:
        A(i + " sc1")
    A(f"s_add_u32 s{sCNT}, s{sCNT}, 1")
    A(f"s_cmp_gt_u32 s{sCNT}, {POLL_LIMIT}")
    A("s_cbranch_scc1 L_end")
    A("s_waitcnt vmcnt(0)")
    for k, t in enumerate(tagregs):
        if k == 0:
            A(f"v_cmp_ne_u64 vcc, s[{sT0}:{sT1}], v[{t}:{t+1}]")
        else:
            A(f"v_cmp_ne_u64 s[98:99], s[{sT0}:{sT1}], v[{t}:{t+1}]")
            A("s_or_b64 vcc, vcc, s[98:99]")
    A(f"s_cbranch_vccnz {lp}")


def transpose(dst, rows, ndw):
    nr = len(rows) // 2
    for jj in range(2 * ndw):
        sel = sPHI if jj & 1 else sPLO
        for p in range(nr):
            A(f"v_perm_b32 v{dst + jj*nr + p}, v{rows[2*p+1] + (jj >> 1)}, v{rows[2*p] + (jj >> 1)}, s{sel}")


def dppsum(dsts, ds):
    assert len(dsts) >= 3
    for step in (1, 2, 3):
        for t, d in zip(dsts, ds):
            src1 = d if step == 1 else t
            A(f"v_add_f32_dpp v{t}, v{d+step}, v{src1} row_shl:{4*step} row_mask:0xf bank_mask:0xf")


def unpack(dlo, dhi, s):
    A(f"v_lshlrev_b32 v{dlo}, 16, v{s}")
    A(f"v_and_b32 v{dhi}, 0xffff0000, v{s}")


A.stamp("entry")
A("s_cmp_ge_u32 s2, 256")
A("s_cbranch_scc1 L_end")
ptr = {S_X: 0, S_CKV: 8, S_WQ: 16, S_WUK: 24, S_WUV: 32, S_WO: 40, S_W1: 56, S_W2: 64, S_OUT: 72, S_WS: 88}
size = {S_X: 5120, S_CKV: 16777216, S_WQ: 5242880, S_WUK: 4194304, S_WUV: 4194304, S_WO: 5242880,
        S_W1: 2211840, S_W2: 2211840, S_OUT: 5120, S_WS: WS_SIZE}
for s in (S_CKV, S_WQ, S_X, S_WUK, S_WS, S_WUV, S_WO, S_W1, S_W2, S_OUT):
    A(f"s_load_dwordx2 s[{s}:{s+1}], s[0:1], {ptr[s]}")
for s in ptr:
    A(f"s_mov_b32 s{s+2}, {size[s]}")
    A(f"s_mov_b32 s{s+3}, 0x00020000")
A(f"s_and_b32 s{sX}, s2, 7")
A(f"s_lshr_b32 s{sR}, s2, 3")
A("v_lshrrev_b32 v1, 6, v0")
A("v_and_b32 v0, 63, v0")
A(f"v_readfirstlane_b32 s{sW}, v1")
A(f"s_mov_b32 s{sPLO}, 0x05040100")
A(f"s_mov_b32 s{sPHI}, 0x07060302")
A(f"s_mov_b32 s{sCNT}, 0")
A(f"s_mov_b32 s{sFAST}, 0")
A(f"s_and_b32 s78, s{sR}, 3")
A(f"s_lshl_b32 s{sH}, s{sX}, 2")
A(f"s_add_u32 s{sH}, s{sH}, s78")
A("v_lshrrev_b32 v1, 4, v0")
A("v_and_b32 v2, 15, v0")
A("v_bfe_u32 v3, v0, 2, 2")
A("v_and_b32 v4, 3, v0")
A("v_lshrrev_b32 v5, 2, v0")
A("v_lshlrev_b32 v6, 4, v0")
A("v_lshlrev_b32 v7, 6, v1")
A("v_lshl_add_u32 v7, v4, 4, v7")
A(f"s_lshl_b32 s80, s{sX}, 21")
A(f"s_and_b32 s81, s{sR}, 15")
A("s_lshl_b32 s81, s81, 17")
A("s_add_u32 s80, s80, s81")
A(f"s_lshl_b32 s81, s{sW}, 14")
A("s_add_u32 s80, s80, s81")
A(f"s_mul_i32 s81, s{sW}, {16*ROWB}")
A("s_waitcnt lgkmcnt(0)")
A(f"s_load_dwordx2 s[82:83], s[{S_WS}:{S_WS+1}], {W_EPOCH}")
A(f"s_cmp_lt_u32 s{sR}, 16")
A("s_cbranch_scc1 L_frontA")


def tag_setup():
    A("s_waitcnt lgkmcnt(0)")
    A(f"s_mul_i32 s{sT0}, s82, 0x9E3779B1")
    A(f"s_add_u32 s{sT0}, s{sT0}, 0x7F4A7C15")
    A(f"s_mul_i32 s{sT1}, s83, 0x2C9277B5")
    A(f"s_add_u32 s{sT1}, s{sT1}, 0xAC564B05")


def xt_publish():
    if opt.nofast:
        return
    A("s_getreg_b32 s84, hwreg(HW_REG_XCC_ID)")
    A("s_and_b32 s84, s84, 15")
    A(f"s_lshl_b32 s85, s{sX}, 9")
    A(f"s_lshl_b32 s86, s{sR}, 4")
    A("s_add_u32 s85, s85, s86")
    A(f"s_add_u32 s85, s85, {W_XT}")
    A("v_mov_b32 v8, s84")
    A("v_mov_b32 v9, 0")
    A(f"v_mov_b32 v10, s{sT0}")
    A(f"v_mov_b32 v11, s{sT1}")
    A("v_mov_b32 v12, s85")
    A("s_mov_b64 exec, 1")
    A(f"buffer_store_dwordx4 v[8:11], v12, {srd(S_WS)}, 0 offen sc1")
    execall()


def xt_addr(t, peers4):
    if peers4:
        A(f"v_lshlrev_b32 v{t}, 6, v4")
        A(f"s_and_b32 s84, s{sR}, 3")
        A("s_lshl_b32 s84, s84, 4")
        A(f"v_add_u32 v{t}, s84, v{t}")
    else:
        A(f"v_and_b32 v{t}, 0x1ff, v6")
    A(f"s_lshl_b32 s85, s{sX}, 9")
    A(f"s_add_u32 s85, s85, {W_XT}")


def xt_decide(t):
    A("s_getreg_b32 s84, hwreg(HW_REG_XCC_ID)")
    A("s_and_b32 s84, s84, 15")
    A(f"v_cmp_ne_u32 vcc, s84, v{t}")
    A("s_cmp_eq_u64 vcc, 0")
    A(f"s_cselect_b32 s{sFAST}, 1, 0")


def ckv_dma(rev):
    order = range(15, -1, -1) if rev else range(16)
    for i in order:
        A(f"s_add_u32 m0, s81, {i*ROWB}")
        A(f"s_add_u32 s86, s80, {i*1024}")
        A(f"buffer_load_dwordx4 v6, {srd(S_CKV)}, s86 offen nt lds")


A.c("B-CU front: stream ckv")
l = A.newlab()
A(f"s_cmp_lg_u32 s{sW}, 0")
A(f"s_cbranch_scc1 {l}")
tag_setup()
xt_publish()
A.lab(l)
ckv_dma(False)
tag_setup()
A("s_branch L_qgather")

A.lab("L_frontA")
A.c("A-CU front: S1 (waves 0..4), S2 (waves 0..3)")
A(f"s_lshr_b32 s87, s{sR}, 2")
A(f"s_lshl_b32 s88, s{sH}, 8")
A(f"s_cmp_gt_u32 s{sW}, 4")
A("s_cbranch_scc1 L_A_idle")
A("v_mul_u32_u24 v8, 1280, v3")
A("v_add_u32 v8, v8, v7")
A(f"s_mov_b32 s89, s{sW}")
for i in range(5):
    A("s_lshl_b32 s90, s89, 8")
    A(f"buffer_load_dwordx4 v[{16+4*i}:{19+4*i}], v8, {srd(S_X)}, s90 offen")
    if i < 4:
        A("s_add_u32 s89, s89, 1")
        A("s_cmp_eq_u32 s89, 5")
        A("s_cselect_b32 s89, 0, s89")
A("v_lshlrev_b32 v9, 16, v5")
A("v_lshl_add_u32 v9, v4, 4, v9")
A(f"s_lshl_b32 s89, s{sW}, 20")
A("s_add_u32 s89, s89, s88")
A("s_lshl_b32 s90, s87, 6")
A("s_add_u32 s89, s89, s90")
for i in range(8):
    A(f"buffer_load_dwordx4 v[{40+4*i}:{43+4*i}], v9, {srd(S_WQ)}, s89 offen nt")
    if i < 7:
        A("s_add_u32 s89, s89, 8192")
lskip = A.newlab()
A(f"s_cmp_gt_u32 s{sW}, 3")
A(f"s_cbranch_scc1 {lskip}")
A("v_lshl_add_u32 v10, v3, 15, v7")
A("s_lshl_b32 s89, s87, 7")
A(f"s_lshl_b32 s90, s{sW}, 5")
A("s_add_u32 s89, s89, s90")
A("s_lshl_b32 s89, s89, 13")
A("s_add_u32 s89, s89, s88")
for t in range(8):
    A(f"s_add_u32 s90, s89, {(16*(t>>2) + (t&3))*8192}")
    A(f"buffer_load_dwordx4 v[{112+4*t}:{115+4*t}], v10, {srd(S_WUK)}, s90 offen nt")
A("s_waitcnt vmcnt(16)")
lj = A.newlab()
A(f"s_branch {lj}")
A.lab(lskip)
A("s_waitcnt vmcnt(8)")
A.lab(lj)
tag_setup()
A("v_mov_b32 v38, 0x3f803f80")
A("v_mov_b32 v36, 0")
A("v_mov_b32 v37, 0")
for i in range(20):
    A(f"v_dot2_f32_bf16 v36, v{16+i}, v38, v36")
    A(f"v_dot2_f32_bf16 v37, v{16+i}, v{16+i}, v37")
A("s_nop 2")
for q in ("quad_perm:[1,0,3,2]", "quad_perm:[2,3,0,1]"):
    A(f"v_add_f32_dpp v36, v36, v36 {q} row_mask:0xf bank_mask:0xf")
    A(f"v_add_f32_dpp v37, v37, v37 {q} row_mask:0xf bank_mask:0xf")
    A("s_nop 0")
for sw in ("v_permlane16_swap_b32", "v_permlane32_swap_b32"):
    A("v_mov_b32 v38, v36")
    A("v_mov_b32 v39, v37")
    A("s_nop 1")
    A(f"{sw} v36, v38")
    A(f"{sw} v37, v39")
    A("s_nop 0")
    A("v_add_f32 v36, v36, v38")
    A("v_add_f32 v37, v37, v39")
A(f"v_mul_f32 v36, {f32(1/640)}, v36")
A(f"v_mul_f32 v37, {f32(1/640)}, v37")
A("v_fma_f32 v37, -v36, v36, v37")
A("v_max_f32 v37, 0, v37")
A(f"v_add_f32 v37, {f32(1e-5)}, v37")
A("v_rsq_f32 v37, v37")
A("s_nop 0")
A("v_mul_f32 v36, v36, v37")
for i in range(4):
    unpack(20 + 2 * i, 21 + 2 * i, 16 + i)
for i in range(8):
    A(f"v_fma_f32 v{20+i}, v{20+i}, v37, -v36")
for i in range(4):
    A(f"v_cvt_pk_bf16_f32 v{16+i}, v{20+2*i}, v{21+2*i}")
lskip = A.newlab(); lj = A.newlab()
A(f"s_cmp_gt_u32 s{sW}, 3")
A(f"s_cbranch_scc1 {lskip}")
A("s_waitcnt vmcnt(8)")
A(f"s_branch {lj}")
A.lab(lskip)
A("s_waitcnt vmcnt(0)")
A.lab(lj)
A.stamp("wq")
transpose(72, [40 + 4 * i for i in range(8)], 4)
A("s_nop 1")
for jj in range(8):
    A(f"v_mfma_f32_16x16x32_bf16 v[{40+4*jj}:{43+4*jj}], v[16:19], v[{72+4*jj}:{75+4*jj}], 0")
A("s_nop 7")
dppsum([20 + jj for jj in range(8)], [40 + 4 * jj for jj in range(8)])
A("v_lshlrev_b32 v11, 1, v7")
A(f"s_lshl_b32 s89, s{sW}, 9")
A(f"s_add_u32 s89, s89, {L_RED}")
A("v_add_u32 v11, s89, v11")
execmask(M_N4)
A("ds_write_b128 v11, v[20:23]")
A("ds_write_b128 v11, v[24:27] offset:16")
execall()
A("s_waitcnt lgkmcnt(0)")
A("s_branch L_A_bar")
A.lab("L_A_idle")
tag_setup()
l = A.newlab()
A(f"s_cmp_lg_u32 s{sW}, 5")
A(f"s_cbranch_scc1 {l}")
xt_publish()
if not opt.nofast:
    xt_addr(20, True)
    poll([f"buffer_load_dwordx4 v[16:19], v20, {srd(S_WS)}, s85 offen"], [18])
    xt_decide(16)
A.lab(l)
A.lab("L_A_bar")
A("s_barrier")
A(f"s_cmp_lg_u32 s{sW}, 5")
A("s_cbranch_scc1 L_A_s2")
A("v_lshlrev_b32 v11, 7, v4")
A("v_lshl_add_u32 v11, v3, 5, v11")
A("v_and_b32 v12, 1, v1")
A("v_lshl_add_u32 v11, v12, 4, v11")
A(f"v_add_u32 v11, {L_RED}, v11")
for s in range(5):
    A(f"ds_read_b128 v[{16+4*s}:{19+4*s}], v11 offset:{512*s}")
A("v_lshlrev_b32 v13, 10, v12")
A("v_lshl_add_u32 v13, v2, 4, v13")
A(f"s_lshl_b32 s89, s{sH}, 11")
A("s_lshl_b32 s90, s87, 8")
A("s_add_u32 s89, s89, s90")
A(f"s_add_u32 s89, s89, {W_H1}")
A("s_waitcnt lgkmcnt(0)")
for s in range(1, 5):
    A(f"v_pk_add_f32 v[16:17], v[16:17], v[{16+4*s}:{17+4*s}]")
    A(f"v_pk_add_f32 v[18:19], v[18:19], v[{18+4*s}:{19+4*s}]")
A("v_cvt_pk_bf16_f32 v16, v16, v17")
A("v_cvt_pk_bf16_f32 v17, v18, v19")
A(f"v_mov_b32 v18, s{sT0}")
A(f"v_mov_b32 v19, s{sT1}")
execmask(0xFFFFFFFF)
store_local([f"buffer_store_dwordx4 v[16:19], v13, {srd(S_WS)}, s89 offen"])
execall()
A.lab("L_A_s2")
A(f"s_cmp_gt_u32 s{sW}, 3")
A("s_cbranch_scc1 L_A_dma")
A(f"s_lshl_b32 s89, s{sH}, 11")
A(f"s_add_u32 s89, s89, {W_H1}")
poll([f"buffer_load_dwordx4 v[16:19], v6, {srd(S_WS)}, s89 offen",
      f"buffer_load_dwordx4 v[20:23], v6, {srd(S_WS)}, s89 offen offset:1024"], [18, 22])
A.stamp("h1")
A("v_mov_b32 v18, v20")
A("v_mov_b32 v19, v21")
A("s_nop 1")
for t in range(8):
    A(f"v_mfma_f32_16x16x32_bf16 v[{40+4*t}:{43+4*t}], v[{112+4*t}:{115+4*t}], v[16:19], 0")
A("v_bfe_u32 v12, v0, 2, 1")
A("v_bfe_u32 v13, v0, 3, 2")
A("v_lshlrev_b32 v14, 4, v4")
A("v_lshl_add_u32 v14, v12, 2, v14")
A("v_add_u32 v14, v14, v13")
A("v_lshlrev_b32 v14, 2, v14")
A("v_and_b32 v15, 7, v0")
A("v_lshlrev_b32 v15, 4, v15")
A("v_lshl_add_u32 v15, v13, 16, v15")
for t in range(4):
    A(f"v_add_f32_dpp v{24+t}, v{40+4*t+1}, v{40+4*t} row_shl:4 row_mask:0xf bank_mask:0x1")
for t in range(4):
    d = 56 + 4 * t
    A(f"v_add_f32_dpp v{24+t}, v{d}, v{d+1} row_shr:4 row_mask:0xf bank_mask:0x2")
for t in range(4):
    A(f"v_add_f32_dpp v{24+t}, v{40+4*t+2}, v{24+t} row_shl:8 row_mask:0xf bank_mask:0x1")
for t in range(4):
    A(f"v_add_f32_dpp v{24+t}, v{56+4*t+2}, v{24+t} row_shl:4 row_mask:0xf bank_mask:0x2")
for t in range(4):
    A(f"v_add_f32_dpp v{24+t}, v{40+4*t+3}, v{24+t} row_shl:12 row_mask:0xf bank_mask:0x1")
for t in range(4):
    A(f"v_add_f32_dpp v{24+t}, v{56+4*t+3}, v{24+t} row_shl:8 row_mask:0xf bank_mask:0x2")
SC = (128 ** -0.5) * math.log2(math.e)
for t in range(4):
    A(f"v_mul_f32 v{24+t}, {f32(SC)}, v{24+t}")
A("v_cvt_pk_bf16_f32 v28, v24, v25")
A("v_cvt_pk_bf16_f32 v29, v26, v27")
A("ds_bpermute_b32 v16, v14, v28")
A("ds_bpermute_b32 v17, v14, v29")
A(f"v_mov_b32 v18, s{sT0}")
A(f"v_mov_b32 v19, s{sT1}")
A(f"s_lshl_b32 s89, s{sH}, 11")
A("s_lshl_b32 s90, s87, 9")
A("s_add_u32 s89, s89, s90")
A(f"s_lshl_b32 s90, s{sW}, 7")
A("s_add_u32 s89, s89, s90")
A(f"s_add_u32 s89, s89, {W_H2}")
A("s_waitcnt lgkmcnt(0)")
execmask(0xFFFFFFFF)
A(f"buffer_store_dwordx4 v[16:19], v15, {srd(S_WS)}, s89 offen sc1")
execall()
A.stamp("qpub")
A.lab("L_A_dma")
A("s_barrier")
ckv_dma(True)

A.lab("L_qgather")
A(f"s_lshr_b32 s89, s{sX}, 1")
A("s_lshl_b32 s89, s89, 5")
A(f"s_and_b32 s90, s{sR}, 16")
A("s_add_u32 s89, s89, s90")
A(f"s_lshl_b32 s90, s{sW}, 1")
A("s_add_u32 s89, s89, s90")
A("s_lshl_b32 s89, s89, 11")
A(f"s_add_u32 s89, s89, {W_H2}")
A.stamp("ckv")
ql = [f"buffer_load_dwordx4 v[{80+4*i}:{83+4*i}], v6, {srd(S_WS)}, s89 offen offset:{1024*i}" for i in range(4)]
qt = [82 + 4 * i for i in range(4)]
if not opt.nofast:
    xt_addr(100, False)
    ql.append(f"buffer_load_dwordx4 v[96:99], v100, {srd(S_WS)}, s85 offen")
    qt.append(98)
poll(ql, qt)
if not opt.nofast:
    xt_decide(96)
A.stamp("qgot")
A("v_lshlrev_b32 v8, 3, v0")
A(f"s_mul_i32 s90, s{sW}, {2*ROWB}")
A(f"s_add_u32 s90, s90, {L_Q}")
A("v_add_u32 v8, s90, v8")
for i in range(4):
    A(f"ds_write_b64 v8, v[{80+4*i}:{81+4*i}] offset:{(i>>1)*ROWB + (i&1)*512}")
A("v_lshrrev_b32 v9, 3, v0")
A("v_lshlrev_b32 v9, 10, v9")
A("v_and_b32 v10, 7, v0")
A("v_lshl_add_u32 v9, v10, 4, v9")
A(f"s_lshl_b32 s91, s{sX}, 5")
A(f"s_add_u32 s91, s91, s{sR}")
A("s_lshl_b32 s91, s91, 14")
A(f"s_lshl_b32 s90, s{sW}, 7")
A("s_add_u32 s91, s91, s90")
A(f"s_add_u32 s91, s91, {W_H3A}")
A("s_add_u32 s92, s91, 8192")
if not opt.nofast:
    A(f"buffer_load_dwordx4 v[208:211], v9, {srd(S_WS)}, s91 offen sc1 nt")
    A(f"buffer_load_dwordx4 v[212:215], v9, {srd(S_WS)}, s92 offen sc1 nt")
A("v_bfe_u32 v10, v0, 2, 3")
A("v_lshlrev_b32 v10, 1, v10")
A("v_lshrrev_b32 v11, 5, v0")
A("v_add_u32 v10, v10, v11")
A("v_lshlrev_b32 v10, 13, v10")
A("v_lshl_add_u32 v10, v4, 3, v10")
A(f"s_lshl_b32 s93, s{sW}, 19")
A(f"s_lshl_b32 s90, s{sH}, 8")
A("s_add_u32 s93, s93, s90")
A(f"s_lshr_b32 s90, s{sR}, 2")
A("s_lshl_b32 s90, s90, 5")
A("s_add_u32 s93, s93, s90")
for e in range(4):
    A(f"buffer_load_dwordx2 v[{216+2*e}:{217+2*e}], v10, {srd(S_WUV)}, s93 offen nt")
    if e < 3:
        A(f"s_add_u32 s93, s93, {16*8192}")
A(f"v_mul_u32_u24 v12, {ROWB}, v2")
A("v_lshl_add_u32 v12, v1, 4, v12")
A("v_add_u32 v11, s81, v12")
for ks in range(16):
    A(f"ds_read_b128 v[{16+4*ks}:{19+4*ks}], v11 offset:{64*ks}")
A(f"v_add_u32 v12, {L_Q}, v12")
A("s_waitcnt lgkmcnt(0)")
A("s_barrier")
for ks in range(16):
    A(f"ds_read_b128 v[{80+4*ks}:{83+4*ks}], v12 offset:{64*ks}")
A(f"v_mul_u32_u24 v13, {ROWB}, v5")
A("v_lshl_add_u32 v13, v4, 3, v13")
A(f"s_lshl_b32 s90, s{sW}, 7")
A("v_add_u32 v13, s90, v13")
A(f"v_add_u32 v14, {64*ROWB}, v13")
for ks in range(16):
    A(f"s_waitcnt lgkmcnt({15-ks})")
    c = "0" if ks == 0 else "v[224:227]"
    A(f"v_mfma_f32_16x16x32_bf16 v[224:227], v[{16+4*ks}:{19+4*ks}], v[{80+4*ks}:{83+4*ks}], {c}")
for ks in range(4):
    for t in range(4):
        for hf in range(2):
            base = 14 if ks >= 2 else 13
            off = ((ks & 1) * 32 + 16 * hf) * ROWB + 32 * t
            d = 144 + (ks * 4 + t) * 4 + 2 * hf
            A(f"ds_read_b64_tr_b16 v[{d}:{d+1}], v{base} offset:{off}")
A(f"s_cmp_lt_u32 s{sR}, 20")
A("s_cbranch_scc0 L_ld67")
A("v_mul_u32_u24 v15, 5120, v5")
A("v_lshl_add_u32 v15, v4, 4, v15")
A(f"s_lshl_b32 s93, s{sX}, 3")
A(f"s_add_u32 s93, s93, s{sW}")
A(f"s_mul_i32 s93, s93, {64*1280}")
A(f"s_lshl_b32 s90, s{sR}, 6")
A("s_add_u32 s93, s93, s90")
for e in range(4):
    A(f"buffer_load_dwordx4 v[{16+4*e}:{19+4*e}], v15, {srd(S_WO)}, s93 offen offset:{1280*e} nt")
A("s_branch L_ldone")
A.lab("L_ld67")
A(f"s_sub_u32 s94, s{sR}, 20")
A("s_lshl_b32 s94, s94, 3")
A(f"s_add_u32 s94, s94, s{sX}")
A("s_cmp_lt_u32 s94, 54")
A("s_cbranch_scc0 L_ldone")
A(f"s_cmp_lt_u32 s{sW}, 5")
A("s_cbranch_scc0 L_ldone")
A("v_mul_u32_u24 v15, 13824, v5")
A("v_lshl_add_u32 v15, v4, 4, v15")
A(f"s_mul_i32 s93, s{sW}, {128*3456}")
A("s_lshl_b32 s90, s94, 6")
A("s_add_u32 s93, s93, s90")
for i in range(8):
    A(f"s_add_u32 s90, s93, {((i & 3) + 64*(i >> 2))*3456}")
    A(f"buffer_load_dwordx4 v[{16+4*i}:{19+4*i}], v15, {srd(S_W1)}, s90 offen nt")
A("v_mul_u32_u24 v15, 10240, v1")
A("v_lshl_add_u32 v15, v2, 4, v15")
A(f"s_mul_i32 s93, s94, {32*1280}")
A(f"s_lshl_b32 s90, s{sW}, 8")
A("s_add_u32 s93, s93, s90")
A("s_add_u32 s90, s93, 5120")
for i in range(8):
    so = "s93" if i < 4 else "s90"
    A(f"buffer_load_dwordx4 v[{48+4*i}:{51+4*i}], v15, {srd(S_W2)}, {so} offen offset:{1280*(i&3)} nt")
A.lab("L_ldone")
A.stamp("qk")
A("s_nop 4")
A("v_max_f32 v228, v224, v225")
A("v_max3_f32 v228, v226, v227, v228")
for sw in ("v_permlane16_swap_b32", "v_permlane32_swap_b32"):
    A("v_mov_b32 v229, v228")
    A("s_nop 1")
    A(f"{sw} v228, v229")
    A("s_nop 0")
    A("v_max_f32 v228, v228, v229")
A("v_lshlrev_b32 v8, 5, v2")
A(f"v_add_u32 v8, {L_MX}, v8")
A(f"s_lshl_b32 s90, s{sW}, 2")
A("v_add_u32 v11, s90, v8")
A("ds_write_b32 v11, v228")
A("s_waitcnt lgkmcnt(0)")
A("s_barrier")
A("ds_read_b128 v[232:235], v8")
A("ds_read_b128 v[236:239], v8 offset:16")
A(f"s_lshr_b32 s90, s{sW}, 1")
A("s_lshl_b32 s90, s90, 10")
A(f"s_and_b32 s93, s{sW}, 1")
A("s_lshl_b32 s93, s93, 3")
A("s_add_u32 s90, s90, s93")
A(f"s_add_u32 s90, s90, {L_P}")
A("v_add_u32 v12, s90, v6")
A("s_waitcnt lgkmcnt(0)")
A("v_max3_f32 v228, v232, v233, v234")
A("v_max3_f32 v229, v235, v236, v237")
A("v_max3_f32 v228, v228, v238, v239")
A("v_max_f32 v228, v228, v229")
for i in range(4):
    A(f"v_sub_f32 v{224+i}, v{224+i}, v228")
for i in range(4):
    A(f"v_exp_f32 v{224+i}, v{224+i}")
A("s_nop 0")
A("v_cvt_pk_bf16_f32 v230, v224, v225")
A("v_cvt_pk_bf16_f32 v231, v226, v227")
A("ds_write_b64 v12, v[230:231]")
A("v_add_f32 v224, v224, v225")
A("v_add_f32 v226, v226, v227")
A("v_add_f32 v224, v224, v226")
for sw in ("v_permlane16_swap_b32", "v_permlane32_swap_b32"):
    A("v_mov_b32 v229, v224")
    A("s_nop 1")
    A(f"{sw} v224, v229")
    A("s_nop 0")
    A("v_add_f32 v224, v224, v229")
A(f"ds_write_b32 v11, v224 offset:{L_SM-L_MX}")
A(f"v_add_u32 v12, {L_P}, v6")
A("s_waitcnt lgkmcnt(0)")
A("s_barrier")
for ks in range(4):
    A(f"ds_read_b128 v[{80+4*ks}:{83+4*ks}], v12 offset:{1024*ks}")
A(f"ds_read_b128 v[232:235], v8 offset:{L_SM-L_MX}")
A(f"ds_read_b128 v[236:239], v8 offset:{L_SM-L_MX+16}")
for ks in range(4):
    A(f"s_waitcnt lgkmcnt({5-ks})")
    for t in range(4):
        c = "0" if ks == 0 else f"v[{96+4*t}:{99+4*t}]"
        bb = 144 + (ks * 4 + t) * 4
        A(f"v_mfma_f32_16x16x32_bf16 v[{96+4*t}:{99+4*t}], v[{80+4*ks}:{83+4*ks}], v[{bb}:{bb+3}], {c}")
A("v_lshlrev_b32 v11, 16, v1")
A("v_lshl_add_u32 v11, v2, 3, v11")
A(f"s_lshl_b32 s93, s{sX}, 5")
A(f"s_and_b32 s90, s{sR}, 16")
A("s_add_u32 s93, s93, s90")
A("s_lshl_b32 s95, s93, 8")
A("s_lshl_b32 s93, s93, 14")
A(f"s_and_b32 s90, s{sR}, 15")
A("s_lshl_b32 s96, s90, 4")
A("s_add_u32 s95, s95, s96")
A(f"s_add_u32 s95, s95, {W_ST3}")
A("s_lshl_b32 s90, s90, 10")
A("s_add_u32 s93, s93, s90")
A(f"s_lshl_b32 s90, s{sW}, 7")
A("s_add_u32 s93, s93, s90")
A(f"s_add_u32 s93, s93, {W_H3A}")
A("s_add_u32 s78, s93, 16384")
A("s_add_u32 s79, s93, 32768")
A("s_add_u32 s96, s93, 49152")
A("s_waitcnt lgkmcnt(0)")
A("v_add_f32 v232, v232, v233")
A("v_add_f32 v234, v234, v235")
A("v_add_f32 v236, v236, v237")
A("v_add_f32 v238, v238, v239")
A("v_add_f32 v232, v232, v234")
A("v_add_f32 v236, v236, v238")
A("v_add_f32 v229, v232, v236")
A(f"v_mov_b32 v230, s{sT0}")
A(f"v_mov_b32 v231, s{sT1}")
for r_ in range(4):
    A(f"v_cvt_pk_bf16_f32 v{112+2*r_}, v{96+r_}, v{100+r_}")
    A(f"v_cvt_pk_bf16_f32 v{113+2*r_}, v{104+r_}, v{108+r_}")
so = ["s93", "s78", "s79", "s96"]
store_local([f"buffer_store_dwordx2 v[{112+2*r_}:{113+2*r_}], v11, {srd(S_WS)}, {so[r_]} offen" for r_ in range(4)])
A("v_lshlrev_b32 v12, 8, v2")
A("s_waitcnt vmcnt(0)")
A("s_barrier")
l = A.newlab()
A(f"s_cmp_lg_u32 s{sW}, 0")
A(f"s_cbranch_scc1 {l}")
execmask(0xFFFF)
store_local([f"buffer_store_dwordx4 v[228:231], v12, {srd(S_WS)}, s95 offen"])
execall()
A.lab(l)
A.stamp("s3")

A("v_lshrrev_b32 v12, 3, v0")
A("v_lshlrev_b32 v12, 4, v12")
A(f"s_lshl_b32 s95, s{sX}, 5")
A(f"s_add_u32 s95, s95, s{sR}")
A("s_lshl_b32 s95, s95, 8")
A(f"s_add_u32 s95, s95, {W_ST3}")
transpose(240, [216, 218, 220, 222], 2)
poll([f"buffer_load_dwordx4 v[224:227], v12, {srd(S_WS)}, s95 offen",
      f"buffer_load_dwordx4 v[228:231], v12, {srd(S_WS)}, s95 offen offset:128"], [226, 230])
A(f"buffer_load_dwordx4 v[208:211], v9, {srd(S_WS)}, s91 offen sc1")
A(f"buffer_load_dwordx4 v[212:215], v9, {srd(S_WS)}, s92 offen sc1")
A("v_max_f32 v232, v224, v228")
A("s_nop 1")
A("v_max_f32_dpp v232, v232, v232 row_ror:8 row_mask:0xf bank_mask:0xf")
for sw in ("v_permlane16_swap_b32", "v_permlane32_swap_b32"):
    A("v_mov_b32 v233, v232")
    A("s_nop 1")
    A(f"{sw} v232, v233")
    A("s_nop 0")
    A("v_max_f32 v232, v232, v233")
A("v_sub_f32 v224, v224, v232")
A("v_sub_f32 v228, v228, v232")
A("v_exp_f32 v224, v224")
A("v_exp_f32 v228, v228")
A("s_nop 0")
A("v_mul_f32 v234, v224, v225")
A("v_fma_f32 v234, v228, v229, v234")
A("s_nop 1")
A("v_add_f32_dpp v234, v234, v234 row_ror:8 row_mask:0xf bank_mask:0xf")
for sw in ("v_permlane16_swap_b32", "v_permlane32_swap_b32"):
    A("v_mov_b32 v233, v234")
    A("s_nop 1")
    A(f"{sw} v234, v233")
    A("s_nop 0")
    A("v_add_f32 v234, v234, v233")
A("v_rcp_f32 v235, v234")
A("v_log_f32 v236, v234")
A("s_nop 0")
A("v_mul_f32 v224, v224, v235")
A("v_mul_f32 v228, v228, v235")
A("v_add_f32 v236, v236, v232")
A("v_mov_b32 v237, 0")
A(f"v_mov_b32 v238, s{sT0}")
A(f"v_mov_b32 v239, s{sT1}")
A(f"s_lshl_b32 s95, s{sR}, 3")
A(f"s_add_u32 s95, s95, s{sX}")
A("s_lshl_b32 s96, s95, 7")
A(f"s_add_u32 s96, s96, {W_LSE}")
l = A.newlab()
A(f"s_cmp_lg_u32 s{sW}, 7")
A(f"s_cbranch_scc1 {l}")
A("s_mov_b64 exec, 1")
A(f"buffer_store_dwordx4 v[236:239], v237, {srd(S_WS)}, s96 offen sc1")
execall()
A("s_waitcnt vmcnt(1)")
l2 = A.newlab()
A(f"s_branch {l2}")
A.lab(l)
A("s_waitcnt vmcnt(0)")
A.lab(l2)
A("s_lshl_b32 s95, s95, 11")
A(f"s_lshl_b32 s90, s{sW}, 8")
A("s_add_u32 s95, s95, s90")
A(f"s_add_u32 s95, s95, {W_H3B}")
for i in range(4):
    unpack(144 + 2 * i, 145 + 2 * i, 208 + i)
    unpack(152 + 2 * i, 153 + 2 * i, 212 + i)
for e in range(8):
    A(f"v_mul_f32 v{144+e}, v224, v{144+e}")
for e in range(8):
    A(f"v_fma_f32 v{144+e}, v228, v{152+e}, v{144+e}")
A("v_lshrrev_b32 v12, 5, v0")
A("v_lshlrev_b32 v12, 7, v12")
for e in range(4):
    A(f"v_permlane32_swap_b32 v{144+e}, v{148+e}")
A("v_and_b32 v13, 7, v0")
for e in range(4):
    A(f"v_add_f32 v{144+e}, v{144+e}, v{148+e}")
A("v_lshl_add_u32 v12, v13, 4, v12")
A("s_nop 0")
A("v_permlane16_swap_b32 v144, v146")
A("v_permlane16_swap_b32 v145, v147")
A("s_nop 0")
A("v_add_f32 v144, v144, v146")
A("v_add_f32 v145, v145, v147")
A("s_nop 1")
A("v_add_f32_dpp v144, v144, v144 row_ror:8 row_mask:0xf bank_mask:0xf")
A("v_add_f32_dpp v145, v145, v145 row_ror:8 row_mask:0xf bank_mask:0xf")
A("s_nop 0")
A("v_cvt_pk_bf16_f32 v236, v144, v145")
A("v_cvt_pk_bf16_f32 v237, v144, v145")
A("s_nop 1")
A("v_permlane16_swap_b32 v236, v237")
execmask(0x000000FF000000FF)
A(f"buffer_store_dwordx4 v[236:239], v12, {srd(S_WS)}, s95 offen sc1")
execall()
A.stamp("comb")

A("v_lshl_add_u32 v12, v3, 12, v7")
A(f"s_lshl_b32 s95, s{sH}, 14")
A(f"s_lshl_b32 s90, s{sW}, 8")
A("s_add_u32 s95, s95, s90")
A(f"s_add_u32 s95, s95, {W_H3B}")
A("v_lshlrev_b32 v13, 8, v1")
A(f"s_lshl_b32 s96, s{sH}, 10")
A(f"s_add_u32 s96, s96, {W_LSE}")
A(f"s_cmp_lt_u32 s{sR}, 20")
A("s_cbranch_scc0 L_tr67")
transpose(32, [16, 20, 24, 28], 4)
A("s_branch L_trdone")
A.lab("L_tr67")
transpose(80, [16 + 4 * i for i in range(8)], 4)
transpose(112, [48 + 4 * i for i in range(8)], 4)
A("v_mov_b32 v48, 0x3f803f80")
A("v_mov_b32 v49, 0x3f803f80")
A("v_mov_b32 v50, 0x3f803f80")
A("v_mov_b32 v51, 0x3f803f80")
A("s_nop 1")
for jj in range(8):
    A(f"v_mfma_f32_16x16x32_bf16 v[{16+4*jj}:{19+4*jj}], v[48:51], v[{80+4*jj}:{83+4*jj}], 0")
A("s_nop 7")
dppsum([56 + jj for jj in range(8)], [16 + 4 * jj for jj in range(8)])
A("v_lshlrev_b32 v14, 5, v4")
A(f"s_lshl_b32 s90, s{sW}, 7")
A(f"s_add_u32 s90, s90, {L_CS}")
A("v_add_u32 v14, s90, v14")
A("s_mov_b64 exec, 15")
A("ds_write_b128 v14, v[56:59]")
A("ds_write_b128 v14, v[60:63] offset:16")
execall()
A.lab("L_trdone")
poll([f"buffer_load_dwordx4 v[208:211], v12, {srd(S_WS)}, s95 offen",
      f"buffer_load_dwordx4 v[212:215], v12, {srd(S_WS)}, s95 offen offset:2048",
      f"buffer_load_dwordx4 v[216:219], v13, {srd(S_WS)}, s96 offen",
      f"buffer_load_dwordx4 v[220:223], v13, {srd(S_WS)}, s96 offen offset:128"], [210, 214, 218, 222])
A.stamp("h3b")
for kh in range(2):
    for jj in range(4):
        d = 144 + (kh * 4 + jj) * 4
        A(f"v_mfma_f32_16x16x16_bf16 v[{d}:{d+3}], v[{208+4*kh}:{209+4*kh}], v[{240+2*jj}:{241+2*jj}], 0")
A("v_sub_f32 v224, v220, v216")
A("v_exp_f32 v224, v224")
A(f"s_lshl_b32 s90, s{sW}, 8")
A("v_add_f32 v224, 1.0, v224")
A("v_rcp_f32 v224, v224")
A(f"s_add_u32 s90, s90, {L_RED}")
A("v_sub_f32 v225, 1.0, v224")
A("v_add_u32 v14, s90, v7")
A("s_nop 1")
dppsum([176 + i for i in range(8)], [144 + 4 * i for i in range(8)])
for jj in range(4):
    A(f"v_mul_f32 v{176+jj}, v224, v{176+jj}")
for jj in range(4):
    A(f"v_fma_f32 v{176+jj}, v225, v{180+jj}, v{176+jj}")
execmask(M_N4)
A("ds_write_b128 v14, v[176:179]")
execall()
A("s_waitcnt lgkmcnt(0)")
A("s_barrier")
A(f"s_cmp_lg_u32 s{sW}, 7")
A("s_cbranch_scc1 L_s4done")
A("v_lshlrev_b32 v14, 4, v2")
A(f"v_add_u32 v14, {L_RED}, v14")
for s in range(8):
    A(f"ds_read_b128 v[{144+4*s}:{147+4*s}], v14 offset:{256*s}")
A("v_lshlrev_b32 v15, 11, v3")
A("v_lshl_add_u32 v15, v4, 4, v15")
A(f"s_lshl_b32 s95, s{sX}, 13")
A(f"s_and_b32 s90, s{sR}, 3")
A("s_lshl_b32 s90, s90, 9")
A("s_add_u32 s95, s95, s90")
A(f"s_lshr_b32 s90, s{sR}, 2")
A("s_lshl_b32 s90, s90, 6")
A("s_add_u32 s95, s95, s90")
A(f"s_add_u32 s95, s95, {W_H4}")
A("s_waitcnt lgkmcnt(0)")
for s in range(1, 8):
    A(f"v_pk_add_f32 v[144:145], v[144:145], v[{144+4*s}:{145+4*s}]")
    A(f"v_pk_add_f32 v[146:147], v[146:147], v[{146+4*s}:{147+4*s}]")
A("v_cvt_pk_bf16_f32 v236, v144, v145")
A("v_cvt_pk_bf16_f32 v237, v146, v147")
execmask(0xFFFF)
store_local([f"buffer_store_dwordx4 v[236:239], v15, {srd(S_WS)}, s95 offen"])
execall()
A.lab("L_s4done")
A.stamp("s4")
A(f"s_cmp_lt_u32 s{sR}, 20")
A("s_cbranch_scc0 L_s67")

A("v_lshl_add_u32 v12, v3, 11, v7")
A(f"s_lshl_b32 s95, s{sX}, 13")
A(f"s_lshl_b32 s90, s{sW}, 8")
A("s_add_u32 s95, s95, s90")
A(f"s_add_u32 s95, s95, {W_H4}")
A("v_lshlrev_b32 v14, 1, v7")
A(f"s_lshl_b32 s90, s{sW}, 9")
A(f"s_add_u32 s90, s90, {L_P}")
A("v_add_u32 v14, s90, v14")
poll([f"buffer_load_dwordx4 v[208:211], v12, {srd(S_WS)}, s95 offen"], [210])
for jj in range(8):
    d = 144 + 4 * jj
    A(f"v_mfma_f32_16x16x16_bf16 v[{d}:{d+3}], v[208:209], v[{32+2*jj}:{33+2*jj}], 0")
A("s_nop 7")
dppsum([176 + i for i in range(8)], [144 + 4 * i for i in range(8)])
execmask(M_N4)
A("ds_write_b128 v14, v[176:179]")
A("ds_write_b128 v14, v[180:183] offset:16")
execall()
A("s_waitcnt lgkmcnt(0)")
A("s_barrier")
A(f"s_cmp_eq_u32 s{sW}, 1")
A("s_cbranch_scc1 L_red")
A(f"s_cmp_eq_u32 s{sW}, 2")
A("s_cbranch_scc1 L_s8")
A(f"s_cmp_lg_u32 s{sW}, 0")
A("s_cbranch_scc1 L_fin")
A("v_and_b32 v14, 0x1ff, v6")
A(f"v_add_u32 v15, {L_P}, v14")
for s in range(8):
    A(f"ds_read_b128 v[{144+4*s}:{147+4*s}], v15 offset:{512*s}")
A(f"s_lshl_b32 s95, s{sR}, 3")
A(f"s_add_u32 s95, s95, s{sX}")
A("s_lshl_b32 s95, s95, 9")
A(f"s_add_u32 s95, s95, {W_H5B}")
A("s_waitcnt lgkmcnt(0)")
for s in range(1, 8):
    A(f"v_pk_add_f32 v[144:145], v[144:145], v[{144+4*s}:{145+4*s}]")
    A(f"v_pk_add_f32 v[146:147], v[146:147], v[{146+4*s}:{147+4*s}]")
A("v_cvt_pk_bf16_f32 v236, v144, v145")
A("v_cvt_pk_bf16_f32 v237, v146, v147")
execmask(0xFFFFFFFF)
A(f"buffer_store_dwordx4 v[236:239], v14, {srd(S_WS)}, s95 offen sc1")
execall()
A.stamp("s5")
A("s_branch L_fin")

A.lab("L_red")
A("v_bfe_u32 v12, v0, 3, 2")
A("v_mul_u32_u24 v13, 1280, v12")
A("v_and_b32 v14, 7, v0")
A("v_lshl_add_u32 v13, v14, 3, v13")
A("v_lshrrev_b32 v15, 5, v0")
A("v_lshl_add_u32 v13, v15, 2, v13")
A(f"s_lshl_b32 s90, s{sR}, 6")
A(f"buffer_load_dword v200, v13, {srd(S_X)}, s90 offen")
A("v_mul_u32_u24 v13, 2560, v12")
A("v_lshl_add_u32 v13, v14, 4, v13")
A(f"s_mul_i32 s96, s{sX}, 10240")
A(f"s_lshl_b32 s90, s{sR}, 7")
A("s_add_u32 s96, s96, s90")
A(f"s_add_u32 s96, s96, {W_H5C}")
A(f"s_lshl_b32 s95, s{sR}, 12")
A(f"s_add_u32 s95, s95, {W_H5B}")
poll([f"buffer_load_dwordx4 v[{144+4*i}:{147+4*i}], v6, {srd(S_WS)}, s95 offen offset:{1024*i}" for i in range(4)],
     [146 + 4 * i for i in range(4)])
for i in range(4):
    unpack(160 + 4 * i, 161 + 4 * i, 144 + 4 * i)
    unpack(162 + 4 * i, 163 + 4 * i, 145 + 4 * i)
unpack(202, 203, 200)
for i in range(1, 4):
    A(f"v_pk_add_f32 v[160:161], v[160:161], v[{160+4*i}:{161+4*i}]")
    A(f"v_pk_add_f32 v[162:163], v[162:163], v[{162+4*i}:{163+4*i}]")
A("s_nop 1")
A("v_permlane32_swap_b32 v160, v162")
A("v_permlane32_swap_b32 v161, v163")
A("s_nop 0")
A("v_pk_add_f32 v[160:161], v[160:161], v[162:163]")
A("v_pk_add_f32 v[160:161], v[160:161], v[202:203]")
A("v_cvt_pk_bf16_f32 v236, v160, v161")
A("v_cvt_pk_bf16_f32 v237, v160, v161")
A("s_nop 1")
A("v_permlane32_swap_b32 v236, v237")
execmask(0xFFFFFFFF)
store_local([f"buffer_store_dwordx4 v[236:239], v13, {srd(S_WS)}, s96 offen"])
execall()
A.stamp("s5")
A("s_branch L_fin")

A.lab("L_s8")
A(f"s_lshl_b32 s94, s{sR}, 3")
A(f"s_add_u32 s94, s94, s{sX}")
A("s_mul_i32 s90, s94, 1639")
A("s_lshr_b32 s90, s90, 16")
A("s_mul_i32 s93, s90, 40")
A("s_sub_u32 s93, s94, s93")
A("s_lshr_b32 s95, s93, 3")
A("s_lshl_b32 s95, s95, 5")
A("s_bfe_u32 s96, s93, 0x10002")
A("s_add_u32 s95, s95, s96")
A("s_and_b32 s96, s93, 3")
A("s_lshl_b32 s96, s96, 3")
A("s_add_u32 s95, s95, s96")
A("v_mul_u32_u24 v12, 10240, v5")
A("v_lshl_add_u32 v12, v4, 4, v12")
A("s_lshl_b32 s78, s94, 6")
A(f"s_add_u32 s78, s78, {W_H6}")
A(f"s_add_u32 s79, s78, {16*10240}")
A(f"s_add_u32 s80, s78, {32*10240}")
A(f"s_add_u32 s81, s78, {48*10240}")
A("v_add_u32 v13, s81, v12")
A(f"s_lshl_b32 s82, s{sX}, 2")
A("s_add_u32 s82, s82, s90")
A("s_mul_i32 s82, s82, 160")
A("s_add_u32 s82, s82, s95")
A("s_lshl_b32 s82, s82, 4")
A(f"s_add_u32 s82, s82, {W_H5C}")
A("v_lshlrev_b32 v14, 5, v4")
A("v_add_u32 v14, s82, v14")
A("v_cmp_gt_u32 vcc, 6, v5")
A("s_nop 1")
A("v_cndmask_b32 v13, v14, v13, vcc")
A("s_mul_i32 s83, s90, 1280")
A("s_lshl_b32 s84, s95, 3")
A("s_add_u32 s83, s83, s84")
A("v_lshlrev_b32 v15, 4, v4")
A("v_lshl_add_u32 v15, v1, 1, v15")
poll([f"buffer_load_dwordx4 v[144:147], v12, {srd(S_WS)}, s78 offen",
      f"buffer_load_dwordx4 v[148:151], v12, {srd(S_WS)}, s79 offen",
      f"buffer_load_dwordx4 v[152:155], v12, {srd(S_WS)}, s80 offen",
      f"buffer_load_dwordx4 v[156:159], v13, {srd(S_WS)}, 0 offen"], [146, 150, 154, 158])
A("v_cmp_gt_u32 vcc, 7, v5")
A("s_nop 1")
A("v_cndmask_b32 v156, 0, v156, vcc")
A("v_cndmask_b32 v157, 0, v157, vcc")
for i in range(4):
    unpack(160 + 4 * i, 161 + 4 * i, 144 + 4 * i)
    unpack(162 + 4 * i, 163 + 4 * i, 145 + 4 * i)
for i in range(1, 4):
    A(f"v_pk_add_f32 v[160:161], v[160:161], v[{160+4*i}:{161+4*i}]")
    A(f"v_pk_add_f32 v[162:163], v[162:163], v[{162+4*i}:{163+4*i}]")
A("s_nop 1")
A("v_permlane32_swap_b32 v160, v162")
A("v_permlane32_swap_b32 v161, v163")
A("s_nop 0")
A("v_pk_add_f32 v[160:161], v[160:161], v[162:163]")
A("s_nop 1")
A("v_permlane16_swap_b32 v160, v161")
A("s_nop 0")
A("v_add_f32 v160, v160, v161")
A("s_nop 1")
A("v_add_f32_dpp v160, v160, v160 row_ror:8 row_mask:0xf bank_mask:0xf")
A("s_nop 1")
A("v_add_f32_dpp v160, v160, v160 row_ror:4 row_mask:0xf bank_mask:0xf")
A("s_nop 0")
A("v_cvt_pk_bf16_f32 v160, v160, v160")
execmask(M_N4)
A(f"buffer_store_short v160, v15, {srd(S_OUT)}, s83 offen")
execall()
A("s_cmp_lg_u32 s2, 0")
A("s_cbranch_scc1 L_s8x")
A("v_mov_b32 v12, 0")
A("s_mov_b64 exec, 1")
A(f"buffer_store_dwordx2 v[238:239], v12, {srd(S_WS)}, 0 offen sc1")
execall()
A.lab("L_s8x")
A.stamp("s5")
A("s_branch L_fin")

A.lab("L_s67")
A("s_cmp_lt_u32 s94, 54")
A("s_cbranch_scc0 L_fin")
A(f"s_cmp_lt_u32 s{sW}, 5")
A("s_cbranch_scc0 L_fin")
A("v_lshrrev_b32 v14, 1, v7")
A(f"v_add_u32 v15, {L_CS}, v14")
for s in range(5):
    A(f"ds_read_b64 v[{16+2*s}:{17+2*s}], v15 offset:{128*s}")
A("v_mul_u32_u24 v12, 2560, v3")
A("v_add_u32 v12, v12, v7")
A(f"s_mul_i32 s95, s{sX}, 10240")
A(f"s_lshl_b32 s90, s{sW}, 9")
A("s_add_u32 s95, s95, s90")
A(f"s_add_u32 s95, s95, {W_H5C}")
A("v_lshlrev_b32 v13, 1, v7")
A(f"s_add_u32 s90, s90, {L_P}")
A("v_add_u32 v13, s90, v13")
A("v_lshlrev_b32 v10, 3, v1")
A(f"s_lshl_b32 s90, s{sW}, 5")
A(f"s_add_u32 s90, s90, {L_RS}")
A("v_add_u32 v10, s90, v10")
A("v_lshl_add_u32 v14, v3, 7, v14")
A(f"v_add_u32 v14, {L_P}, v14")
A("v_lshlrev_b32 v11, 3, v3")
A(f"v_add_u32 v11, {L_RS}, v11")
A("v_mul_u32_u24 v9, 2560, v1")
A("v_lshl_add_u32 v9, v2, 4, v9")
A("s_mul_i32 s96, s94, 10240")
A(f"s_lshl_b32 s90, s{sW}, 9")
A("s_add_u32 s96, s96, s90")
A(f"s_add_u32 s96, s96, {W_H6}")
A(f"v_mov_b32 v234, s{sT0}")
A(f"v_mov_b32 v235, s{sT1}")
A("s_waitcnt lgkmcnt(0)")
for s in range(1, 5):
    A(f"v_pk_add_f32 v[16:17], v[16:17], v[{16+2*s}:{17+2*s}]")
poll([f"buffer_load_dwordx4 v[208:211], v12, {srd(S_WS)}, s95 offen",
      f"buffer_load_dwordx4 v[212:215], v12, {srd(S_WS)}, s95 offen offset:256"], [210, 214])
A("v_mov_b32 v210, v212")
A("v_mov_b32 v211, v213")
A("s_nop 1")
A("v_mfma_f32_16x16x32_bf16 v[184:187], v[208:211], v[48:51], 0")
A("v_mfma_f32_16x16x32_bf16 v[188:191], v[208:211], v[208:211], 0")
for jj in range(8):
    d = 144 + 4 * jj
    A(f"v_mfma_f32_16x16x32_bf16 v[{d}:{d+3}], v[208:211], v[{80+4*jj}:{83+4*jj}], 0")
A("v_add_f32 v192, v184, v185")
A("v_add_f32_dpp v193, v189, v188 row_shl:1 row_mask:0xf bank_mask:0xf")
A("v_add_f32 v194, v186, v187")
A("s_nop 0")
A("v_add_f32_dpp v193, v190, v193 row_shl:2 row_mask:0xf bank_mask:0xf")
A("v_add_f32 v192, v192, v194")
A("s_nop 0")
A("v_add_f32_dpp v193, v191, v193 row_shl:3 row_mask:0xf bank_mask:0xf")
execmask(0x1000010000100001)
A("ds_write_b64 v10, v[192:193]")
execall()
dppsum([176 + i for i in range(8)], [144 + 4 * i for i in range(8)])
execmask(M_N4)
A("ds_write_b128 v13, v[176:179]")
A("ds_write_b128 v13, v[180:183] offset:16")
execall()
A("s_waitcnt lgkmcnt(0)")
A("s_barrier")
for s in range(5):
    A(f"ds_read_b64 v[{160+2*s}:{161+2*s}], v11 offset:{32*s}")
for s in range(5):
    A(f"ds_read_b64 v[{144+2*s}:{145+2*s}], v14 offset:{512*s}")
A("s_waitcnt lgkmcnt(5)")
for s in range(1, 5):
    A(f"v_pk_add_f32 v[160:161], v[160:161], v[{160+2*s}:{161+2*s}]")
A(f"v_mul_f32 v160, {f32(1/640)}, v160")
A(f"v_mul_f32 v161, {f32(1/640)}, v161")
A("v_fma_f32 v161, -v160, v160, v161")
A("v_max_f32 v161, 0, v161")
A(f"v_add_f32 v161, {f32(1e-5)}, v161")
A("v_rsq_f32 v161, v161")
A("s_waitcnt lgkmcnt(0)")
for s in range(1, 5):
    A(f"v_pk_add_f32 v[144:145], v[144:145], v[{144+2*s}:{145+2*s}]")
A("v_fma_f32 v144, -v160, v16, v144")
A("v_fma_f32 v145, -v160, v17, v145")
A("v_mul_f32 v144, v144, v161")
A("v_mul_f32 v145, v145, v161")
A(f"v_mul_f32 v146, {f32(-math.log2(math.e))}, v144")
A(f"v_mul_f32 v147, {f32(-math.log2(math.e))}, v145")
A("v_exp_f32 v146, v146")
A("v_exp_f32 v147, v147")
A("s_nop 0")
A("v_add_f32 v146, 1.0, v146")
A("v_add_f32 v147, 1.0, v147")
A("v_rcp_f32 v146, v146")
A("v_rcp_f32 v147, v147")
A("s_nop 0")
A("v_mul_f32 v144, v144, v146")
A("v_mul_f32 v145, v145, v147")
A("v_cvt_pk_bf16_f32 v148, v144, v145")
A("s_nop 1")
for i in range(4):
    A(f"v_mov_b32_dpp v{208+i}, v148 quad_perm:[{i},{i},{i},{i}] row_mask:0xf bank_mask:0xf")
A("s_nop 1")
for jj in range(8):
    d = 144 + 4 * jj
    A(f"v_mfma_f32_16x16x32_bf16 v[{d}:{d+3}], v[208:211], v[{112+4*jj}:{115+4*jj}], 0")
A("s_nop 3")
A("v_cvt_pk_bf16_f32 v232, v144, v148")
A("v_cvt_pk_bf16_f32 v233, v152, v156")
A(f"buffer_store_dwordx4 v[232:235], v9, {srd(S_WS)}, s96 offen sc1")
A("s_nop 1")
A("v_cvt_pk_bf16_f32 v236, v160, v164")
A("v_cvt_pk_bf16_f32 v237, v168, v172")
A(f"buffer_store_dwordx4 v[236:239], v9, {srd(S_WS)}, s96 offen offset:256 sc1")
A.stamp("s5")

A.lab("L_fin")
if opt.stamps:
    A("s_waitcnt vmcnt(0) lgkmcnt(0)")
    A(f"s_lshl_b32 s90, s2, 3")
    A(f"s_add_u32 s90, s90, s{sW}")
    A("s_lshl_b32 s90, s90, 6")
    A(f"s_add_u32 s90, s90, {W_STAMP}")
    A("v_mov_b32 v8, 0")
    A("s_mov_b64 exec, 1")
    for i in range(len(A.stampnames)):
        A(f"v_mov_b32 v9, s{4+2*i}")
        A(f"buffer_store_dword v9, v8, {srd(S_WS)}, s90 offen offset:{4*i}")
    A(f"v_mov_b32 v9, s{sCNT}")
    A(f"buffer_store_dword v9, v8, {srd(S_WS)}, s90 offen offset:56")
    A(f"v_mov_b32 v9, s{sFAST}")
    A(f"buffer_store_dword v9, v8, {srd(S_WS)}, s90 offen offset:60")
A.lab("L_end")

body = "\n".join(A.l)
if opt.stamps:
    init = "\n".join(f"    s_mov_b32 s{4+2*i}, 0" for i in range(1, 12))
    body = init + "\n" + body
out = HDR + f"""; @launch grid=(256,1,1) block=(512,1,1) lds={LDS_BYTES}
.amdgcn_target "amdgcn-amd-amdhsa--gfx950"
.text
.globl {NAME}_kernel
.p2align 8
.type {NAME}_kernel,@function
{NAME}_kernel:
{body}
    s_endpgm
.section .rodata,"a"
.p2align 6
.amdhsa_kernel {NAME}_kernel
  .amdhsa_next_free_vgpr 256
  .amdhsa_next_free_sgpr 102
  .amdhsa_accum_offset 256
  .amdhsa_group_segment_fixed_size 0
  .amdhsa_kernarg_size 96
  .amdhsa_user_sgpr_count 2
  .amdhsa_user_sgpr_kernarg_segment_ptr 1
  .amdhsa_system_sgpr_workgroup_id_x 1
.end_amdhsa_kernel
"""
open(opt.o, "w").write(out)
if opt.stamps:
    open(opt.o.replace(".s", ".stamps"), "w").write(",".join(A.stampnames))
print("wrote", opt.o, "lines", len(A.l), file=sys.stderr)
```

```python
import sys, re, argparse, math, struct

NAME = "sequential_preLN__compressed_kv_cla__dense_activation_silu__decode"
HDR = open(f"cdna_kernels/{NAME}.s.ref").read().split("; Override launch")[0]

ap = argparse.ArgumentParser()
ap.add_argument("-o", default=f"cdna_kernels/{NAME}.s")
ap.add_argument("--stamps", action="store_true")
ap.add_argument("--early", type=int, default=4)
ap.add_argument("--early67", type=int, default=16)
ap.add_argument("--pw", default="sc1")
ap.add_argument("--noh3bt", action="store_true")
ap.add_argument("--earlyA", type=int, default=4)
ap.add_argument("--nocodepf", action="store_true")
ap.add_argument("--nobar2", action="store_true")
ap.add_argument("--nouvpf", action="store_true")
ap.add_argument("--noukpf", action="store_true")
ap.add_argument("--kb0", type=int, default=2)
ap.add_argument("--kb", type=int, default=0)
ap.add_argument("--ka", type=int, default=0)
ap.add_argument("--kf", type=int, default=16)
ap.add_argument("--arev", action="store_true")
ap.add_argument("--grp", type=int, default=0)
ap.add_argument("--ntr0", type=int, default=32)
ap.add_argument("--qsleep", type=int, default=2)
opt = ap.parse_args()

W_EPOCH = 0x0
W_XT = 0x1000
W_H1 = 0x10000
W_H1B = 0x380000
W_H2 = 0x100000
W_ST3 = 0x140000
W_STX = 0x150000
W_H4 = 0x160000
W_H5B = 0x180000
W_H5C = 0x1A0000
W_H3B = 0x200000
W_H6 = 0x280000
W_H3A = 0x400000
W_STAMP = 0x800000
WS_SIZE = 0x1000000

ROWB = 1056
L_Q = 128 * ROWB
L_P = L_Q + 16 * ROWB
L_MX = L_P + 4096
L_SM = L_MX + 512
L_QV = L_SM + 512
LDS_BYTES = 163840
L_S1 = 0 * ROWB
L_RED = 0
L_RED2 = 16384
L_RS = 32768
L_CS = 33792

S_X, S_CKV, S_WQ, S_WUK, S_WUV, S_WO, S_W1, S_W2, S_OUT, S_WS = (28, 32, 36, 40, 44, 48, 52, 56, 60, 64)
sX, sR, sW = 68, 69, 70
sFAST = 71
sT0, sT1 = 72, 73
sPLO, sPHI = 74, 75
sCNT = 76
sH = 77
POLL_LIMIT = 400000


def f32(x):
    return "0x%08x" % struct.unpack("<I", struct.pack("<f", x))[0]


class Asm:
    def __init__(self):
        self.l = []
        self.nlab = 0

    def __call__(self, s):
        m = re.search(r"offset:(\d+)", s)
        if m:
            lim = 65536 if s.lstrip().startswith("ds_") else 4096
            assert int(m.group(1)) < lim, s
        self.l.append("    " + s)

    def lab(self, n):
        self.l.append(n + ":")

    def newlab(self, p="L"):
        self.nlab += 1
        return f"{p}_{self.nlab}"

    def c(self, s):
        self.l.append("    ; " + s)

    def stamp(self, i, grp=None):
        if grp is not None and grp != opt.grp:
            return
        if opt.stamps:
            self(f"s_memrealtime s[{4+2*i}:{5+2*i}]")


A = Asm()
DPPM = "row_mask:0xf bank_mask:0xf"


def srd(n):
    return f"s[{n}:{n+3}]"


def execmask(m):
    A(f"s_mov_b32 exec_lo, 0x{m & 0xffffffff:x}")
    A(f"s_mov_b32 exec_hi, 0x{m >> 32:x}")


def execall():
    A("s_mov_b64 exec, -1")


M_N4 = 0x000F000F000F000F
M_N8 = 0x00FF00FF00FF00FF


def store_local(instr):
    l1, l2 = A.newlab("Lsl"), A.newlab("Lsl")
    A(f"s_cmp_eq_u32 s{sFAST}, 0")
    A(f"s_cbranch_scc1 {l1}")
    for i in instr:
        A(i)
    A(f"s_branch {l2}")
    A.lab(l1)
    for i in instr:
        A(i + " sc1")
    A.lab(l2)


def poll(loads, tagregs, sleep=0, alt=None):
    lp = A.newlab("Lpoll")
    if alt:
        sr, sm, so_ = alt
        lf = A.newlab("Lpf")
        A(f"s_mov_b32 {sr}, {sm}")
        A(f"s_branch {lf}")
        A.lab(lp)
        A(f"s_and_b32 s98, s{sCNT}, 31")
        A("s_cmp_eq_u32 s98, 31")
        A(f"s_cselect_b32 {sr}, {so_}, {sm}")
        A.lab(lf)
    elif sleep:
        lf = A.newlab("Lpf")
        A(f"s_branch {lf}")
        A.lab(lp)
        A(f"s_sleep {sleep}")
        A.lab(lf)
    else:
        A.lab(lp)
    for i in loads:
        A(i + " sc1")
    A(f"s_add_u32 s{sCNT}, s{sCNT}, 1")
    A(f"s_cmp_gt_u32 s{sCNT}, {POLL_LIMIT}")
    A("s_cbranch_scc1 L_end")
    A("s_waitcnt vmcnt(0)")
    for k, t in enumerate(tagregs):
        if k == 0:
            A(f"v_cmp_ne_u64 vcc, s[{sT0}:{sT1}], v[{t}:{t+1}]")
        else:
            A(f"v_cmp_ne_u64 s[98:99], s[{sT0}:{sT1}], v[{t}:{t+1}]")
            A("s_or_b64 vcc, vcc, s[98:99]")
    A(f"s_cbranch_vccnz {lp}")


def transpose(dst, rows, ndw, dup=False):
    nr = len(rows) // 2
    st = 2 * nr if dup else nr
    for jj in range(2 * ndw):
        sel = sPHI if jj & 1 else sPLO
        for rep in range(2 if dup else 1):
            for p in range(nr):
                A(f"v_perm_b32 v{dst + jj*st + rep*nr + p}, v{rows[2*p+1] + (jj >> 1)}, v{rows[2*p] + (jj >> 1)}, s{sel}")


def dppsum(dsts, ds):
    assert len(dsts) >= 3
    for step in (1, 2, 3):
        for t, d in zip(dsts, ds):
            src1 = d if step == 1 else t
            A(f"v_add_f32_dpp v{t}, v{d+step}, v{src1} row_shl:{4*step} {DPPM}")


def unpack(dlo, dhi, s):
    A(f"v_lshlrev_b32 v{dlo}, 16, v{s}")
    A(f"v_and_b32 v{dhi}, 0xffff0000, v{s}")


def rowall(op, regs):
    for sh in (8, 4, 2, 1):
        if len(regs) < 3:
            A(f"s_nop {2 - len(regs)}")
        for r_ in regs:
            A(f"{op}_dpp v{r_}, v{r_}, v{r_} row_ror:{sh} {DPPM}")


def sum_b128(n, base):
    for s in range(1, n):
        A(f"v_pk_add_f32 v[{base}:{base+1}], v[{base}:{base+1}], v[{base+4*s}:{base+4*s+1}]")
        A(f"v_pk_add_f32 v[{base+2}:{base+3}], v[{base+2}:{base+3}], v[{base+4*s+2}:{base+4*s+3}]")


def tag_setup():
    A("s_waitcnt lgkmcnt(0)")
    A(f"s_mul_i32 s{sT0}, s82, 0x9E3779B1")
    A(f"s_add_u32 s{sT0}, s{sT0}, 0x7F4A7C15")
    A(f"s_mul_i32 s{sT1}, s83, 0x2C9277B5")
    A(f"s_add_u32 s{sT1}, s{sT1}, 0xAC564B05")


def xt_decide(t):
    A("s_getreg_b32 s84, hwreg(HW_REG_XCC_ID)")
    A("s_and_b32 s84, s84, 15")
    A(f"v_cmp_ne_u32 vcc, s84, v{t}")
    A("s_cmp_eq_u64 vcc, 0")
    A(f"s_cselect_b32 s{sFAST}, 1, 0")


def ckv_dma(rows, k=None):
    for i in rows:
        A(f"s_add_u32 m0, s81, {i*ROWB}")
        A(f"s_add_u32 s86, s80, {i*1024}")
        if k:
            A(f"s_waitcnt vmcnt({k-1})")
        A(f"buffer_load_dwordx4 v6, {srd(S_CKV)}, s86 offen nt lds")


A.stamp(0)
A("s_cmp_ge_u32 s2, 256")
A("s_cbranch_scc1 L_end")
ptr = {S_X: 0, S_CKV: 8, S_WQ: 16, S_WUK: 24, S_WUV: 32, S_WO: 40, S_W1: 56, S_W2: 64, S_OUT: 72, S_WS: 88}
size = {S_X: 5120, S_CKV: 16777216, S_WQ: 5242880, S_WUK: 4194304, S_WUV: 4194304, S_WO: 5242880,
        S_W1: 2211840, S_W2: 2211840, S_OUT: 5120, S_WS: WS_SIZE}
for s_ in (S_WQ, S_X, S_CKV, S_WUK, S_WS, S_WUV, S_WO, S_W1, S_W2, S_OUT):
    A(f"s_load_dwordx2 s[{s_}:{s_+1}], s[0:1], {ptr[s_]}")
A(f"s_lshr_b32 s{sR}, s2, 3")
A("v_lshrrev_b32 v1, 6, v0")
A("v_and_b32 v0, 63, v0")
A(f"v_readfirstlane_b32 s{sW}, v1")
A("v_lshlrev_b32 v6, 4, v0")
if not opt.nocodepf:
    A("s_getpc_b64 s[92:93]")
    A.lab("L_pc")
    A(f"s_sub_u32 s92, s92, L_pc-{NAME}_kernel")
    A("s_subb_u32 s93, s93, 0")
    A(f"s_mov_b32 s94, L_codeend-{NAME}_kernel")
    A("s_mov_b32 s95, 0x00020000")
    A(f"s_lshl_b32 s90, s{sR}, 10")
    A(f"s_cmp_lg_u32 s{sW}, 7")
    A("s_cbranch_scc1 L_nopf")
    A("buffer_load_dwordx4 v[252:255], v6, s[92:95], s90 offen")
    A.lab("L_nopf")
for s_ in ptr:
    A(f"s_mov_b32 s{s_+2}, {size[s_]}")
    A(f"s_mov_b32 s{s_+3}, 0x00020000")
A(f"s_and_b32 s{sX}, s2, 7")
A(f"s_mov_b32 s{sPLO}, 0x05040100")
A(f"s_mov_b32 s{sPHI}, 0x07060302")
A(f"s_mov_b32 s{sCNT}, 0")
A(f"s_mov_b32 s{sFAST}, 0")
A(f"s_and_b32 s78, s{sR}, 3")
A(f"s_lshl_b32 s{sH}, s{sX}, 2")
A(f"s_add_u32 s{sH}, s{sH}, s78")
A(f"s_lshl_b32 s88, s{sH}, 8")
A("v_lshrrev_b32 v1, 4, v0")
A("v_and_b32 v2, 15, v0")
A("v_bfe_u32 v3, v0, 2, 2")
A("v_and_b32 v4, 3, v0")
A("v_lshrrev_b32 v5, 2, v0")
A("v_lshlrev_b32 v7, 6, v1")
A("v_lshl_add_u32 v7, v4, 4, v7")
A(f"s_lshl_b32 s80, s{sX}, 21")
A(f"s_and_b32 s81, s{sR}, 15")
A("s_lshl_b32 s81, s81, 17")
A("s_add_u32 s80, s80, s81")
A(f"s_lshl_b32 s81, s{sW}, 14")
A("s_add_u32 s80, s80, s81")
A(f"s_mul_i32 s81, s{sW}, {16*ROWB}")
A(f"s_bfe_u32 s79, s{sR}, 0x20002")
A("s_mul_i32 s87, s79, 160")
A(f"s_lshl_b32 s90, s{sW}, 5")
A("s_add_u32 s87, s87, s90")
A("s_lshl_b32 s89, s87, 13")
A("s_add_u32 s89, s89, s88")
A("v_lshlrev_b32 v9, 16, v1")
A("v_lshl_add_u32 v9, v2, 4, v9")
A("v_mul_u32_u24 v8, 1280, v3")
A("v_lshl_add_u32 v8, v1, 4, v8")
A("s_lshl_b32 s87, s87, 1")
A("v_lshl_add_u32 v10, v3, 15, v7")
A("s_lshl_b32 s91, s79, 7")
A(f"s_and_b32 s90, s{sW}, 3")
A("s_lshl_b32 s90, s90, 5")
A("s_add_u32 s91, s91, s90")
A("s_lshl_b32 s91, s91, 13")
A("s_add_u32 s91, s91, s88")
A(f"s_cmp_lt_u32 s{sR}, 16")
A("s_waitcnt lgkmcnt(0)")
A(f"s_load_dwordx2 s[82:83], s[{S_WS}:{S_WS+1}], {W_EPOCH}")
A("s_cbranch_scc0 L_frontB")


def xt_publish(t):
    A("s_getreg_b32 s84, hwreg(HW_REG_XCC_ID)")
    A("s_and_b32 s84, s84, 15")
    A(f"s_lshl_b32 s85, s{sX}, 9")
    A(f"s_add_u32 s85, s85, {W_XT}")
    A(f"s_lshl_b32 s86, s{sR}, 4")
    A(f"v_mov_b32 v{t}, s84")
    A(f"v_mov_b32 v{t+1}, 0")
    A(f"v_mov_b32 v{t+2}, s{sT0}")
    A(f"v_mov_b32 v{t+3}, s{sT1}")
    A("v_mov_b32 v12, s86")
    A("s_mov_b64 exec, 1")
    A(f"buffer_store_dwordx4 v[{t}:{t+3}], v12, {srd(S_WS)}, s85 offen sc1")
    execall()


A(f"s_cmp_gt_u32 s{sW}, 4")
A("s_cbranch_scc1 L_notS1")
for i in range(8):
    A(f"buffer_load_dwordx4 v[{24+4*i}:{27+4*i}], v9, {srd(S_WQ)}, s89 offen nt")
    if i < 7:
        A("s_add_u32 s89, s89, 8192")
    if i == 3:
        A(f"buffer_load_dwordx4 v[16:19], v8, {srd(S_X)}, s87 offen")
        A("s_barrier")
A("s_barrier")
A(f"s_cmp_gt_u32 s{sW}, 3")
A("s_cbranch_scc1 L_nouk")
for t in range(4):
    A(f"s_add_u32 s90, s91, {(16*(t>>2) + (t&3))*8192}")
    A(f"buffer_load_dwordx4 v[{112+4*t}:{115+4*t}], v10, {srd(S_WUK)}, s90 offen nt")
A("s_waitcnt vmcnt(4)")
A("s_branch L_uk1")
A.lab("L_nouk")
A("s_waitcnt vmcnt(0)")
A.lab("L_uk1")
A.stamp(1, 0)
A("v_cmp_eq_u32 vcc, 1, v4")
A("v_mov_b32 v11, 0x3f803f80")
A(f"s_lshl_b32 s90, s{sW}, 12")
A(f"s_add_u32 s90, s90, {L_S1}")
A("v_lshlrev_b32 v12, 3, v0")
A("v_add_u32 v12, s90, v12")
for i in range(4):
    A(f"v_cndmask_b32 v{16+i}, v{16+i}, v11, vcc")
for jj in range(8):
    sel = sPHI if jj & 1 else sPLO
    for p in range(4):
        A(f"v_perm_b32 v{56+4*jj+p}, v{24+4*(2*p+1)+(jj>>1)}, v{24+4*(2*p)+(jj>>1)}, s{sel}")
    if jj >= 1:
        j1 = jj - 1
        A(f"v_mfma_f32_16x16x32_bf16 v[{144+4*j1}:{147+4*j1}], v[16:19], v[{56+4*j1}:{59+4*j1}], 0")
A("s_nop 0")
A(f"v_mfma_f32_16x16x32_bf16 v[172:175], v[16:19], v[84:87], 0")
A("s_nop 1")
for jj in range(8):
    A(f"ds_write_b64 v12, v[{144+4*jj}:{145+4*jj}] offset:{512*jj}")
tag_setup()
A.stamp(9, 1)
A("s_barrier")
A(f"s_cmp_gt_u32 s{sW}, 3")
A("s_cbranch_scc1 L_A_dma")
for t in range(4, 8):
    A(f"s_add_u32 s90, s91, {(16*(t>>2) + (t&3))*8192}")
    A(f"buffer_load_dwordx4 v[{112+4*t}:{115+4*t}], v10, {srd(S_WUK)}, s90 offen nt")
A("s_branch L_h1")

A.lab("L_notS1")
A(f"s_cmp_eq_u32 s{sW}, 7")
A("s_cbranch_scc0 L_w56")
A("s_barrier")
A("s_barrier")
tag_setup()
xt_publish(20)
A("s_barrier")
A("s_branch L_A_dma")

A.lab("L_frontB")
A(f"s_cmp_gt_u32 s{sW}, 4")
A("s_cbranch_scc1 L_B1")
A("s_add_u32 s89, s89, 32768")
for i in range(4):
    A(f"buffer_load_dwordx4 v[16:19], v9, {srd(S_WQ)}, s89 offen nt")
    if i < 3:
        A("s_add_u32 s89, s89, 8192")
A("s_branch L_B2")
A.lab("L_B1")
A(f"s_cmp_eq_u32 s{sW}, 5")
A("s_cbranch_scc0 L_B2")
A(f"s_lshl_b32 s89, s{sH}, 14")
A("s_lshl_b32 s90, s79, 12")
A("s_add_u32 s89, s89, s90")
A(f"s_add_u32 s89, s89, {W_H1}")
for i in range(4):
    A(f"buffer_load_dwordx4 v[16:19], v6, {srd(S_WS)}, s89 offen offset:{1024*i} sc1")
A.lab("L_B2")
A("s_barrier")
A(f"s_cmp_gt_u32 s{sW}, 3")
A("s_cbranch_scc1 L_B3")
for t in range(4, 8):
    A(f"s_add_u32 s90, s91, {(16*(t>>2) + (t&3))*8192}")
    A(f"buffer_load_dwordx4 v[16:19], v10, {srd(S_WUK)}, s90 offen nt")
A.lab("L_B3")
A(f"s_lshl_b32 s100, s{sH}, 14")
A(f"s_and_b32 s90, s{sR}, 8")
A("s_lshl_b32 s90, s90, 7")
A("s_add_u32 s100, s100, s90")
A(f"s_add_u32 s100, s100, {W_H3B}")
A(f"s_lshl_b32 s101, s{sH}, 10")
A(f"s_add_u32 s101, s101, {W_STX}")
A("s_barrier")
if not opt.noh3bt:
    A(f"s_lshl_b32 s90, s{sW}, 11")
    A("s_add_u32 s90, s90, s100")
    A(f"buffer_load_dwordx4 v[16:19], v6, {srd(S_WS)}, s90 offen sc1")
A(f"s_lshl_b32 s90, s{sW}, 7")
A("s_add_u32 s100, s100, s90")
ckv_dma(range(16), opt.kb)
tag_setup()
A(f"s_cmp_lg_u32 s{sW}, 0")
A("s_cbranch_scc1 L_qgather")
xt_publish(16)
if not opt.noh3bt:
    A(f"buffer_load_dwordx4 v[16:19], v6, {srd(S_WS)}, s101 offen sc1")
A(f"s_and_b32 s90, s{sR}, 15")
A("s_lshl_b32 s90, s90, 10")
A(f"s_lshl_b32 s89, s{sX}, 14")
A("s_add_u32 s89, s89, s90")
A(f"s_add_u32 s89, s89, {W_H4}")
A(f"buffer_load_dwordx4 v[16:19], v6, {srd(S_WS)}, s89 offen sc1")
A(f"s_lshl_b32 s89, s{sX}, 13")
A("s_and_b32 s91, s90, 0x1c00")
A("s_add_u32 s89, s89, s91")
A(f"s_add_u32 s89, s89, {W_ST3}")
A(f"buffer_load_dwordx4 v[16:19], v6, {srd(S_WS)}, s89 offen sc1")
A(f"s_mul_i32 s89, s{sX}, 10240")
A("s_min_u32 s90, s90, 9216")
A("s_add_u32 s89, s89, s90")
A(f"s_add_u32 s89, s89, {W_H5C}")
A(f"buffer_load_dwordx4 v[16:19], v6, {srd(S_WS)}, s89 offen sc1")
A("s_branch L_qgather")

A.lab("L_w56")
A("s_setprio 3")
A("v_mul_u32_u24 v8, 1280, v1")
A("v_lshl_add_u32 v8, v2, 4, v8")
for i in range(5):
    A(f"buffer_load_dwordx4 v[{16+4*i}:{19+4*i}], v8, {srd(S_X)}, 0 offen offset:{256*i}")
A("s_barrier")
A("s_barrier")
tag_setup()
A("v_mov_b32 v38, 0x3f803f80")
A("v_mov_b32 v36, 0")
A("v_mov_b32 v37, 0")
A("v_lshrrev_b32 v13, 5, v0")
A("v_lshlrev_b32 v13, 11, v13")
A("v_and_b32 v14, 0x1ff, v6")
A("v_add_u32 v13, v13, v14")
A(f"s_sub_u32 s91, s{sW}, 5")
A(f"s_lshl_b32 s89, s{sH}, 14")
A("s_lshl_b32 s90, s91, 13")
A("s_add_u32 s89, s89, s90")
A(f"s_lshr_b32 s90, s{sR}, 2")
A("s_lshl_b32 s90, s90, 9")
A("s_add_u32 s89, s89, s90")
A(f"s_add_u32 s89, s89, {W_H1}")
A("s_add_u32 s90, s89, 4096")
A(f"s_add_u32 s92, s89, {W_H1B - W_H1}")
A(f"s_add_u32 s93, s90, {W_H1B - W_H1}")
A("s_lshl_b32 s91, s91, 11")
A(f"s_add_u32 s91, s91, {L_S1}")
A("v_lshlrev_b32 v11, 3, v0")
A("v_add_u32 v11, s91, v11")
A(f"v_mov_b32 v42, s{sT0}")
A(f"v_mov_b32 v43, s{sT1}")
A(f"v_mov_b32 v46, s{sT0}")
A(f"v_mov_b32 v47, s{sT1}")
A("s_waitcnt vmcnt(0)")
for i in range(20):
    A(f"v_dot2_f32_bf16 v36, v{16+i}, v38, v36")
    A(f"v_dot2_f32_bf16 v37, v{16+i}, v{16+i}, v37")
A("s_nop 1")
rowall("v_add_f32", [36, 37])
A(f"v_mul_f32 v36, {f32(1/640)}, v36")
A(f"v_mul_f32 v37, {f32(1/640)}, v37")
A("v_fma_f32 v37, -v36, v36, v37")
A("v_max_f32 v37, 0, v37")
A(f"v_add_f32 v37, {f32(1e-5)}, v37")
A("v_rsq_f32 v37, v37")
A("s_barrier")
for s_ in range(5):
    for jj in range(4):
        d = 48 + (s_ * 4 + jj) * 2
        A(f"ds_read_b64 v[{d}:{d+1}], v11 offset:{4096*s_ + 512*jj}")
for s_ in range(1, 5):
    A(f"s_waitcnt lgkmcnt({16 - 4*s_})")
    for jj in range(4):
        d = 48 + (s_ * 4 + jj) * 2
        A(f"v_pk_add_f32 v[{48+2*jj}:{49+2*jj}], v[{48+2*jj}:{49+2*jj}], v[{d}:{d+1}]")
for jj in range(4):
    A(f"v_fma_f32 v{48+2*jj}, -v36, v{49+2*jj}, v{48+2*jj}")
A("v_mul_f32 v40, v48, v37")
A("v_mul_f32 v41, v50, v37")
A("v_mul_f32 v44, v52, v37")
A("v_mul_f32 v45, v54, v37")
A(f"buffer_store_dwordx4 v[40:43], v13, {srd(S_WS)}, s89 offen")
A(f"buffer_store_dwordx4 v[44:47], v13, {srd(S_WS)}, s90 offen")
A.stamp(2)
A(f"buffer_store_dwordx4 v[40:43], v13, {srd(S_WS)}, s92 offen sc1")
A(f"buffer_store_dwordx4 v[44:47], v13, {srd(S_WS)}, s93 offen sc1")
A("s_setprio 0")
A("s_branch L_A_dma")

A.lab("L_h1")
if opt.grp == 1:
    A("s_waitcnt vmcnt(4)")
    A.stamp(2, 1)
    A("s_waitcnt vmcnt(0)")
    A.stamp(10, 1)
A(f"s_lshl_b32 s89, s{sH}, 14")
A(f"s_lshl_b32 s90, s{sW}, 12")
A("s_add_u32 s89, s89, s90")
A(f"s_add_u32 s89, s89, {W_H1}")
A(f"s_add_u32 s91, s89, {W_H1B - W_H1}")
A("v_and_b32 v11, 1, v1")
A("v_mul_u32_u24 v11, 272, v11")
A("v_lshl_add_u32 v11, v2, 4, v11")
A("v_lshrrev_b32 v12, 5, v0")
A("v_lshl_add_u32 v11, v12, 1, v11")
A(f"s_lshl_b32 s90, s{sW}, 2")
A(f"s_add_u32 s90, s90, {L_QV}")
A("v_add_u32 v11, s90, v11")
A("v_mul_u32_u24 v12, 272, v4")
A("v_lshl_add_u32 v12, v5, 4, v12")
A(f"v_add_u32 v12, {L_QV}, v12")
poll([f"buffer_load_dwordx4 v[{16+4*i}:{19+4*i}], v6, {srd(S_WS)}, s94 offen offset:{1024*i}" for i in range(4)],
     [18, 22, 26, 30], alt=("s94", "s89", "s91"))
A.stamp(3)
A("v_pk_add_f32 v[16:17], v[16:17], v[20:21]")
A("v_pk_add_f32 v[24:25], v[24:25], v[28:29]")
A("s_nop 0")
A("v_permlane32_swap_b32 v16, v17")
A("v_permlane32_swap_b32 v24, v25")
A("v_add_f32 v16, v16, v17")
A("v_add_f32 v24, v24, v25")
A("v_cvt_pk_bf16_f32 v16, v16, v16")
A("v_cvt_pk_bf16_f32 v24, v24, v24")
A("ds_write_b16 v11, v16")
A("ds_write_b16 v11, v24 offset:544")
A("s_waitcnt lgkmcnt(0)")
A("s_barrier")
A("ds_read_b128 v[16:19], v12")
A("v_bfe_u32 v12, v0, 2, 1")
A("v_bfe_u32 v13, v0, 3, 2")
A("v_lshlrev_b32 v14, 4, v4")
A("v_lshl_add_u32 v14, v12, 2, v14")
A("v_add_u32 v14, v14, v13")
A("v_lshlrev_b32 v14, 2, v14")
A("v_and_b32 v15, 7, v0")
A("v_lshlrev_b32 v15, 4, v15")
A("v_lshl_add_u32 v15, v13, 16, v15")
A("s_waitcnt lgkmcnt(0)")
for t in range(8):
    A(f"v_mfma_f32_16x16x32_bf16 v[{40+4*t}:{43+4*t}], v[{112+4*t}:{115+4*t}], v[16:19], 0")
A(f"s_lshl_b32 s89, s{sH}, 11")
A(f"s_lshr_b32 s90, s{sR}, 2")
A("s_lshl_b32 s90, s90, 9")
A("s_add_u32 s89, s89, s90")
A(f"s_lshl_b32 s90, s{sW}, 7")
A("s_add_u32 s89, s89, s90")
A(f"s_add_u32 s89, s89, {W_H2}")
for t in range(4):
    A(f"v_add_f32_dpp v{24+t}, v{40+4*t+1}, v{40+4*t} row_shl:4 row_mask:0xf bank_mask:0x1")
for t in range(4):
    d = 56 + 4 * t
    A(f"v_add_f32_dpp v{24+t}, v{d}, v{d+1} row_shr:4 row_mask:0xf bank_mask:0x2")
for t in range(4):
    A(f"v_add_f32_dpp v{24+t}, v{40+4*t+2}, v{24+t} row_shl:8 row_mask:0xf bank_mask:0x1")
for t in range(4):
    A(f"v_add_f32_dpp v{24+t}, v{56+4*t+2}, v{24+t} row_shl:4 row_mask:0xf bank_mask:0x2")
for t in range(4):
    A(f"v_add_f32_dpp v{24+t}, v{40+4*t+3}, v{24+t} row_shl:12 row_mask:0xf bank_mask:0x1")
for t in range(4):
    A(f"v_add_f32_dpp v{24+t}, v{56+4*t+3}, v{24+t} row_shl:8 row_mask:0xf bank_mask:0x2")
SC = (128 ** -0.5) * math.log2(math.e)
for t in range(4):
    A(f"v_mul_f32 v{24+t}, {f32(SC)}, v{24+t}")
A("v_cvt_pk_bf16_f32 v28, v24, v25")
A("v_cvt_pk_bf16_f32 v29, v26, v27")
A("ds_bpermute_b32 v16, v14, v28")
A("ds_bpermute_b32 v17, v14, v29")
A(f"v_mov_b32 v18, s{sT0}")
A(f"v_mov_b32 v19, s{sT1}")
A("s_waitcnt lgkmcnt(0)")
execmask(0xFFFFFFFF)
A(f"buffer_store_dwordx4 v[16:19], v15, {srd(S_WS)}, s89 offen sc1")
execall()
A.stamp(4)
A("s_barrier")
ckv_dma(range(15, -1, -1))
A("s_branch L_qgather")
A.lab("L_A_dma")
A("s_barrier")
ckv_dma(range(15, 15 - opt.earlyA, -1))
A("s_barrier")
ckv_dma(range(15 - opt.earlyA, -1, -1))

A.lab("L_qgather")
A(f"s_lshr_b32 s89, s{sX}, 1")
A("s_lshl_b32 s89, s89, 5")
A(f"s_and_b32 s90, s{sR}, 16")
A("s_add_u32 s89, s89, s90")
A(f"s_lshl_b32 s90, s{sW}, 1")
A("s_add_u32 s89, s89, s90")
A("s_lshl_b32 s89, s89, 11")
A(f"s_add_u32 s89, s89, {W_H2}")
A(f"s_lshl_b32 s85, s{sX}, 9")
A(f"s_add_u32 s85, s85, {W_XT}")
A("v_and_b32 v100, 0x1ff, v6")
A("v_lshrrev_b32 v244, 1, v2")
A("v_lshlrev_b32 v247, 7, v244")
A("v_lshlrev_b32 v244, 11, v244")
A("v_lshl_add_u32 v244, v1, 5, v244")
A("v_and_b32 v13, 1, v0")
A("v_lshl_add_u32 v244, v13, 4, v244")
A("v_lshlrev_b32 v248, 2, v2")
A(f"v_add_u32 v248, {L_MX}, v248")
A("v_mov_b32 v249, 0xff800000")
A("ds_write_b32 v248, v249")
A.stamp(5)
A("s_barrier")
ql = [f"buffer_load_dwordx4 v[{80+4*i}:{83+4*i}], v6, {srd(S_WS)}, s89 offen offset:{1024*i}" for i in range(4)]
ql.append(f"buffer_load_dwordx4 v[96:99], v100, {srd(S_WS)}, s85 offen")
qt = [82, 86, 90, 94, 98]
for i in ql:
    A(i + " sc1")
A(f"s_cmp_lt_u32 s{sR}, 16")
A("s_cbranch_scc1 L_tlF")
A("v_lshrrev_b32 v10, 3, v0")
A("v_lshlrev_b32 v10, 14, v10")
A("v_and_b32 v14, 0x70, v6")
A("v_add_u32 v10, v10, v14")
A(f"s_and_b32 s93, s{sR}, 8")
A("s_lshl_b32 s93, s93, 5")
A(f"s_and_b32 s90, s{sW}, 4")
A("s_lshl_b32 s90, s90, 5")
A("s_add_u32 s93, s93, s90")
A(f"s_and_b32 s90, s{sW}, 1")
A("s_lshl_b32 s90, s90, 6")
A("s_add_u32 s93, s93, s90")
A(f"s_bfe_u32 s90, s{sW}, 0x10001")
A("s_add_u32 s93, s93, s90")
A("s_lshl_b32 s93, s93, 13")
A("s_add_u32 s93, s93, s88")
A(f"s_and_b32 s90, s{sR}, 4")
A("s_lshl_b32 s90, s90, 5")
A("s_add_u32 s93, s93, s90")
A("s_barrier")
for e in range(4):
    A(f"buffer_load_dwordx4 v[{212+4*e}:{215+4*e}], v10, {srd(S_WUV)}, s93 offen nt")
    if e < 3:
        A(f"s_add_u32 s93, s93, {16*8192}")
A("s_branch L_tlD")
A.lab("L_tlF")
A(f"s_lshl_b32 s91, s{sX}, 4")
A(f"s_add_u32 s91, s91, s{sR}")
A("s_lshl_b32 s91, s91, 15")
A(f"s_lshl_b32 s90, s{sW}, 12")
A("s_add_u32 s91, s91, s90")
A(f"s_add_u32 s91, s91, {W_H3A}")
A("s_barrier")
for i in range(4):
    A(f"buffer_load_dwordx4 v[208:211], v6, {srd(S_WS)}, s91 offen offset:{1024*i} {opt.pw}")
A.lab("L_tlD")
A("s_waitcnt vmcnt(9)")
A(f"v_mul_u32_u24 v12, {ROWB}, v2")
A("v_lshl_add_u32 v12, v1, 4, v12")
A("v_add_u32 v11, s81, v12")
for ks in range(16):
    A(f"ds_read_b128 v[{16+4*ks}:{19+4*ks}], v11 offset:{64*ks}")
A(f"v_mul_u32_u24 v13, {ROWB}, v5")
A("v_lshl_add_u32 v13, v4, 3, v13")
A(f"s_lshl_b32 s90, s{sW}, 7")
A("v_add_u32 v13, s90, v13")
A(f"v_add_u32 v14, {64*ROWB}, v13")
A("v_lshlrev_b32 v8, 3, v0")
A(f"s_mul_i32 s90, s{sW}, {2*ROWB}")
A(f"s_add_u32 s90, s90, {L_Q}")
A("v_add_u32 v8, s90, v8")
A(f"v_add_u32 v12, {L_Q}, v12")
A("s_barrier")
trl = []
for ks in range(4):
    for t in range(4):
        for hf in range(2):
            base = 14 if ks >= 2 else 13
            off = ((ks & 1) * 32 + 16 * hf) * ROWB + 32 * t
            d = 144 + (ks * 4 + t) * 4 + 2 * hf
            trl.append(f"ds_read_b64_tr_b16 v[{d}:{d+1}], v{base} offset:{off}")
NTR0 = opt.ntr0
for i in trl[:NTR0]:
    A(i)
A("s_waitcnt vmcnt(4)")
for k, t in enumerate(qt):
    if k == 0:
        A(f"v_cmp_ne_u64 vcc, s[{sT0}:{sT1}], v[{t}:{t+1}]")
    else:
        A(f"v_cmp_ne_u64 s[98:99], s[{sT0}:{sT1}], v[{t}:{t+1}]")
        A("s_or_b64 vcc, vcc, s[98:99]")
A("s_cbranch_vccz L_qok")
poll(ql, qt, sleep=opt.qsleep)
A.lab("L_qok")
A.stamp(6)
for i in range(4):
    A(f"ds_write_b64 v8, v[{80+4*i}:{81+4*i}] offset:{(i>>1)*ROWB + (i&1)*512}")
xt_decide(96)
A("s_waitcnt lgkmcnt(0)")
A("s_barrier")
for ks in range(16):
    A(f"ds_read_b128 v[{80+4*ks}:{83+4*ks}], v12 offset:{64*ks}")
S = 228
for ks in range(16):
    A(f"s_waitcnt lgkmcnt({15-ks})")
    c = "0" if ks == 0 else f"v[{S}:{S+3}]"
    A(f"v_mfma_f32_16x16x32_bf16 v[{S}:{S+3}], v[{16+4*ks}:{19+4*ks}], v[{80+4*ks}:{83+4*ks}], {c}")
for i in trl[NTR0:]:
    A(i)
A(f"s_lshr_b32 s90, s{sW}, 1")
A("s_lshl_b32 s90, s90, 10")
A(f"s_and_b32 s93, s{sW}, 1")
A("s_lshl_b32 s93, s93, 3")
A("s_add_u32 s90, s90, s93")
A(f"s_add_u32 s90, s90, {L_P}")
A("v_add_u32 v12, s90, v6")
A.stamp(7)
A(f"v_max_f32 v232, v{S}, v{S+1}")
A(f"v_max3_f32 v232, v{S+2}, v{S+3}, v232")
A("ds_max_f32 v248, v232")
A("v_lshlrev_b32 v13, 16, v1")
A("v_lshl_add_u32 v13, v2, 3, v13")
A(f"s_lshl_b32 s93, s{sX}, 5")
A(f"s_and_b32 s90, s{sR}, 16")
A("s_add_u32 s93, s93, s90")
A("s_lshl_b32 s95, s93, 8")
A("s_lshl_b32 s93, s93, 14")
A("s_waitcnt lgkmcnt(0)")
A("s_barrier")
A("ds_read_b32 v232, v248")
A(f"s_and_b32 s90, s{sR}, 15")
A("s_lshl_b32 s96, s90, 4")
A("s_add_u32 s95, s95, s96")
A(f"s_add_u32 s95, s95, {W_ST3}")
A("s_lshl_b32 s90, s90, 10")
A("s_add_u32 s93, s93, s90")
A(f"s_lshl_b32 s90, s{sW}, 7")
A("s_add_u32 s93, s93, s90")
A(f"s_add_u32 s93, s93, {W_H3A}")
A(f"v_add_u32 v11, {L_P}, v6")
A("s_waitcnt lgkmcnt(0)")
for i in range(4):
    A(f"v_sub_f32 v{S+i}, v{S+i}, v232")
for i in range(4):
    A(f"v_exp_f32 v{S+i}, v{S+i}")
A("s_nop 0")
A(f"v_cvt_pk_bf16_f32 v234, v{S}, v{S+1}")
A(f"v_cvt_pk_bf16_f32 v235, v{S+2}, v{S+3}")
A("ds_write_b64 v12, v[234:235]")
A("s_add_u32 s78, s93, 16384")
A("s_add_u32 s79, s93, 32768")
A("s_add_u32 s96, s93, 49152")
A("s_waitcnt lgkmcnt(0)")
A("s_barrier")
for ks in range(4):
    A(f"ds_read_b128 v[{80+4*ks}:{83+4*ks}], v11 offset:{1024*ks}")
A(f"v_mov_b32 v234, s{sT0}")
A(f"v_mov_b32 v235, s{sT1}")
for i in range(4):
    A(f"v_mov_b32 v{240+i}, 0x3f803f80")


def pv(ks):
    A(f"s_waitcnt lgkmcnt({3-ks})")
    for t in range(4):
        c = "0" if ks == 0 else f"v[{96+4*t}:{99+4*t}]"
        bb = 144 + (ks * 4 + t) * 4
        A(f"v_mfma_f32_16x16x32_bf16 v[{96+4*t}:{99+4*t}], v[{80+4*ks}:{83+4*ks}], v[{bb}:{bb+3}], {c}")


pv(0)
pv(1)
pv(2)
pv(3)
A("v_lshlrev_b32 v12, 8, v2")
A(f"v_mov_b32 v238, s{sT0}")
A(f"v_mov_b32 v239, s{sT1}")
A("s_nop 4")
for r_ in range(4):
    A(f"v_cvt_pk_bf16_f32 v{112+2*r_}, v{96+r_}, v{100+r_}")
    A(f"v_cvt_pk_bf16_f32 v{113+2*r_}, v{104+r_}, v{108+r_}")
so = ["s93", "s78", "s79", "s96"]
store_local([f"buffer_store_dwordx2 v[{112+2*r_}:{113+2*r_}], v13, {srd(S_WS)}, {so[r_]} offen" for r_ in range(4)])
A.stamp(1, 2)
for ks in range(4):
    c = "0" if ks == 0 else "v[228:231]"
    A(f"v_mfma_f32_16x16x32_bf16 v[228:231], v[240:243], v[{80+4*ks}:{83+4*ks}], {c}")
A(f"s_cmp_lt_u32 s{sR}, 16")
A("s_cbranch_scc1 L_F")

A("v_lshlrev_b32 v9, 10, v1")
A("v_lshl_add_u32 v9, v2, 4, v9")
A(f"s_and_b32 s87, s{sR}, 15")
A("s_lshl_b32 s87, s87, 1")
A(f"s_lshr_b32 s90, s{sW}, 2")
A("s_add_u32 s87, s87, s90")
A(f"s_lshl_b32 s91, s{sX}, 5")
A("s_add_u32 s91, s91, s87")
A("s_lshl_b32 s86, s91, 8")
A(f"s_add_u32 s86, s86, {W_ST3}")
A("s_lshl_b32 s91, s91, 14")
A(f"s_and_b32 s90, s{sW}, 3")
A("s_lshl_b32 s90, s90, 8")
A("s_add_u32 s91, s91, s90")
A(f"s_add_u32 s91, s91, {W_H3A}")
A("s_add_u32 s92, s91, 4096")
A("s_add_u32 s94, s91, 8192")
A("s_add_u32 s97, s91, 12288")
A("v_add_u32 v14, v1, v2")
A("v_and_b32 v14, 15, v14")
A("v_lshlrev_b32 v14, 4, v14")
A("v_lshrrev_b32 v15, 5, v0")
A("v_lshlrev_b32 v15, 8, v15")
A("v_lshl_add_u32 v15, v2, 4, v15")
A("s_lshl_b32 s93, s87, 3")
A(f"s_add_u32 s93, s93, s{sX}")
A("s_lshl_b32 s96, s93, 7")
A(f"s_add_u32 s96, s96, {W_STX}")
A("s_lshl_b32 s93, s93, 11")
A(f"s_and_b32 s90, s{sW}, 3")
A("s_lshl_b32 s90, s90, 9")
A("s_add_u32 s93, s93, s90")
A(f"s_add_u32 s93, s93, {W_H3B}")
A("s_waitcnt vmcnt(0)")
A("s_barrier")
l = A.newlab()
A(f"s_cmp_lg_u32 s{sW}, 1")
A(f"s_cbranch_scc1 {l}")
A("v_mov_b32 v233, v228")
execmask(0xFFFF)
store_local([f"buffer_store_dwordx4 v[232:235], v12, {srd(S_WS)}, s95 offen"])
execall()
A.lab(l)
A.stamp(8)
poll([f"buffer_load_dwordx4 v[16:19], v14, {srd(S_WS)}, s86 offen"], [18])
for i, so in enumerate(("s91", "s92", "s94", "s97")):
    A(f"buffer_load_dwordx4 v[{32+4*i}:{35+4*i}], v9, {srd(S_WS)}, {so} offen sc1")
A.stamp(3)
A("v_mov_b32 v24, v16")
rowall("v_max_f32", [24])
A("v_sub_f32 v16, v16, v24")
A("v_exp_f32 v16, v16")
A("s_nop 0")
A("v_mul_f32 v25, v16, v17")
rowall("v_add_f32", [25])
A("v_rcp_f32 v26, v25")
A("v_log_f32 v232, v25")
A("v_mov_b32 v233, 0")
A("v_mul_f32 v16, v16, v26")
A("v_add_f32 v232, v232, v24")
l = A.newlab()
A(f"s_and_b32 s90, s{sW}, 3")
A(f"s_cbranch_scc1 {l}")
A("s_mov_b64 exec, 1")
A(f"buffer_store_dwordx4 v[232:235], v233, {srd(S_WS)}, s96 offen sc1")
execall()
A("s_waitcnt vmcnt(1)")
A.lab(l)
for i in range(4):
    A(f"v_mov_b32_dpp v{24+2*i}, v16 row_newbcast:{4*i} {DPPM}")
for i in range(4):
    if i == 3:
        lx = A.newlab()
        A(f"s_cbranch_scc0 {lx}")
        A("s_waitcnt vmcnt(0)")
        A.lab(lx)
    else:
        A(f"s_waitcnt vmcnt({3-i})")
    for d in range(4):
        unpack(56 + 2 * d, 57 + 2 * d, 32 + 4 * i + d)
    for d in range(4):
        if i == 0:
            A(f"v_pk_mul_f32 v[{48+2*d}:{49+2*d}], v[{56+2*d}:{57+2*d}], v[24:25] op_sel_hi:[1,0]")
        else:
            A(f"v_pk_fma_f32 v[{48+2*d}:{49+2*d}], v[{56+2*d}:{57+2*d}], v[{24+2*i}:{25+2*i}], v[{48+2*d}:{49+2*d}] op_sel_hi:[1,0,1]")
A("s_nop 1")
for e in range(4):
    A(f"v_permlane32_swap_b32 v{48+e}, v{52+e}")
A("v_pk_add_f32 v[48:49], v[48:49], v[52:53]")
A("v_pk_add_f32 v[50:51], v[50:51], v[54:55]")
A("s_nop 1")
A("v_permlane16_swap_b32 v48, v50")
A("v_permlane16_swap_b32 v49, v51")
A("s_nop 0")
A("v_pk_add_f32 v[48:49], v[48:49], v[50:51]")
A("v_cvt_pk_bf16_f32 v236, v48, v49")
A("v_cvt_pk_bf16_f32 v237, v48, v49")
A("s_nop 1")
A("v_permlane16_swap_b32 v236, v237")
execmask(0x0000FFFF0000FFFF)
A(f"buffer_store_dwordx4 v[236:239], v15, {srd(S_WS)}, s93 offen sc1")
execall()
A.stamp(4)
A(f"s_and_b32 s91, s{sR}, 15")
A("s_lshl_b32 s91, s91, 3")
A(f"s_add_u32 s91, s91, s{sW}")
A(f"s_mul_i32 s94, s{sX}, 7")
A("s_add_u32 s94, s94, 6")
A("s_cmp_lt_u32 s91, 40")
A("s_cbranch_scc0 L_pf2")
A("v_mul_u32_u24 v15, 3456, v5")
A("v_lshl_add_u32 v15, v4, 4, v15")
A(f"s_mul_i32 s90, s91, {16*3456}")
A("s_lshl_b32 s92, s94, 6")
A("s_add_u32 s90, s90, s92")
A(f"buffer_load_dwordx4 v[208:211], v15, {srd(S_W1)}, s90 offen")
A("s_branch L_pf3")
A.lab("L_pf2")
A("s_cmp_lt_u32 s91, 80")
A("s_cbranch_scc0 L_pf3")
A("s_sub_u32 s90, s91, 40")
A("s_lshl_b32 s90, s90, 10")
A(f"s_mul_i32 s92, s94, {32*1280}")
A("s_add_u32 s90, s90, s92")
A(f"buffer_load_dwordx4 v[208:211], v6, {srd(S_W2)}, s90 offen")
A.lab("L_pf3")

transpose(80, [212, 216, 220, 224], 4, dup=True)
A("v_and_b32 v14, 7, v0")
A("v_lshlrev_b32 v14, 5, v14")
A("v_lshl_add_u32 v14, v1, 8, v14")
A(f"s_lshl_b32 s90, s{sW}, 10")
A(f"s_add_u32 s90, s90, {L_RED}")
A("v_add_u32 v14, s90, v14")
A("v_lshlrev_b32 v15, 11, v1")
A("v_lshl_add_u32 v15, v2, 4, v15")
A(f"s_lshl_b32 s96, s{sX}, 14")
A(f"s_and_b32 s90, s{sR}, 8")
A("s_lshl_b32 s90, s90, 10")
A("s_add_u32 s96, s96, s90")
A(f"s_and_b32 s90, s{sR}, 3")
A("s_lshl_b32 s90, s90, 9")
A("s_add_u32 s96, s96, s90")
A(f"s_and_b32 s90, s{sR}, 4")
A("s_lshl_b32 s90, s90, 6")
A("s_add_u32 s96, s96, s90")
A(f"s_add_u32 s96, s96, {W_H4}")
poll([f"buffer_load_dwordx4 v[208:211], v244, {srd(S_WS)}, s100 offen",
      f"buffer_load_dwordx4 v[216:219], v247, {srd(S_WS)}, s101 offen"], [210, 218])
A.stamp(9)
A(f"v_subrev_f32_dpp v217, v216, v216 quad_perm:[2,3,0,1] {DPPM}")
unpack(220, 221, 208)
A("v_exp_f32 v217, -v217")
unpack(222, 223, 209)
A("v_add_f32 v217, 1.0, v217")
A("v_rcp_f32 v216, v217")
A("s_nop 0")
A("v_pk_mul_f32 v[220:221], v[220:221], v[216:217] op_sel_hi:[1,0]")
A("v_pk_mul_f32 v[222:223], v[222:223], v[216:217] op_sel_hi:[1,0]")
A("v_cvt_pk_bf16_f32 v208, v220, v221")
A("v_cvt_pk_bf16_f32 v209, v222, v223")
A("s_nop 1")
A(f"v_mov_b32_dpp v212, v208 quad_perm:[0,1,0,1] {DPPM}")
A(f"v_mov_b32_dpp v213, v209 quad_perm:[0,1,0,1] {DPPM}")
A(f"v_mov_b32_dpp v214, v208 quad_perm:[2,3,2,3] {DPPM}")
A(f"v_mov_b32_dpp v215, v209 quad_perm:[2,3,2,3] {DPPM}")
A("s_nop 1")
for jj in range(8):
    d = 144 + 4 * jj
    A(f"v_mfma_f32_16x16x32_bf16 v[{d}:{d+3}], v[212:215], v[{80+4*jj}:{83+4*jj}], 0")
A("s_nop 1")
for jj in range(8):
    d = 144 + 4 * jj
    A(f"v_add_f32_dpp v{216+jj}, v{d+1}, v{d} row_shl:8 {DPPM}")
execmask(M_N8)
A("ds_write_b128 v14, v[216:219]")
A("ds_write_b128 v14, v[220:223] offset:16")
execall()
A("s_waitcnt lgkmcnt(0)")
A("s_barrier")
A(f"s_cmp_lt_u32 s{sW}, 2")
A("s_cbranch_scc1 L_red")
A(f"s_cmp_lt_u32 s{sW}, 4")
A("s_cbranch_scc1 L_s8")
A(f"s_cmp_lg_u32 s{sW}, 7")
A("s_cbranch_scc1 L_fin")
for s_ in range(8):
    A(f"ds_read_b128 v[{144+4*s_}:{147+4*s_}], v6 offset:{L_RED + 1024*s_}")
A("s_waitcnt lgkmcnt(0)")
sum_b128(8, 144)
A("v_cvt_pk_bf16_f32 v236, v144, v145")
A("v_cvt_pk_bf16_f32 v237, v146, v147")
store_local([f"buffer_store_dwordx4 v[236:239], v15, {srd(S_WS)}, s96 offen"])
A.stamp(10)
A("s_branch L_fin")

A.lab("L_red")
A(f"s_cmp_lt_u32 s{sR}, 26")
A("s_cbranch_scc0 L_fin")
A(f"s_and_b32 s94, s{sR}, 15")
A("v_and_b32 v12, 1, v1")
A("v_mul_u32_u24 v13, 1280, v12")
A("v_lshl_add_u32 v13, v2, 3, v13")
A("v_lshrrev_b32 v15, 5, v0")
A("v_lshl_add_u32 v13, v15, 2, v13")
A(f"s_mul_i32 s90, s{sW}, 2560")
A("s_lshl_b32 s93, s94, 7")
A("s_add_u32 s90, s90, s93")
A(f"buffer_load_dword v200, v13, {srd(S_X)}, s90 offen")
A("v_mul_u32_u24 v13, 2560, v12")
A("v_lshl_add_u32 v13, v2, 4, v13")
A(f"s_mul_i32 s96, s{sX}, 10240")
A(f"s_mul_i32 s90, s{sW}, 5120")
A("s_add_u32 s96, s96, s90")
A("s_lshl_b32 s90, s94, 8")
A("s_add_u32 s96, s96, s90")
A(f"s_add_u32 s96, s96, {W_H5C}")
A("v_and_b32 v14, 0x1ff, v6")
A("v_lshl_add_u32 v14, v15, 10, v14")
A("s_lshl_b32 s95, s94, 13")
A(f"s_lshl_b32 s90, s{sW}, 9")
A("s_add_u32 s95, s95, s90")
A(f"s_add_u32 s95, s95, {W_H5B}")
A("s_add_u32 s93, s95, 4096")
poll([f"buffer_load_dwordx4 v[{144+4*i}:{147+4*i}], v14, {srd(S_WS)}, {'s95' if i < 2 else 's93'} offen offset:{2048*(i&1)}" for i in range(4)],
     [146 + 4 * i for i in range(4)])
for i in range(4):
    unpack(160 + 4 * i, 161 + 4 * i, 144 + 4 * i)
    unpack(162 + 4 * i, 163 + 4 * i, 145 + 4 * i)
unpack(202, 203, 200)
sum_b128(4, 160)
A("s_nop 1")
A("v_permlane32_swap_b32 v160, v162")
A("v_permlane32_swap_b32 v161, v163")
A("s_nop 0")
A("v_pk_add_f32 v[160:161], v[160:161], v[162:163]")
A("v_pk_add_f32 v[160:161], v[160:161], v[202:203]")
A("v_cvt_pk_bf16_f32 v236, v160, v161")
A("v_cvt_pk_bf16_f32 v237, v160, v161")
A("s_nop 1")
A("v_permlane32_swap_b32 v236, v237")
execmask(0xFFFFFFFF)
store_local([f"buffer_store_dwordx4 v[236:239], v13, {srd(S_WS)}, s96 offen"])
execall()
A.stamp(11)
A("s_branch L_fin")

A.lab("L_s8")
A(f"s_sub_u32 s94, 31, s{sR}")
A("s_lshl_b32 s94, s94, 3")
A(f"s_add_u32 s94, s94, s{sX}")
A(f"s_and_b32 s90, s{sW}, 1")
A("s_lshl_b32 s90, s90, 7")
A("s_add_u32 s94, s94, s90")
A("s_cmp_lt_u32 s94, 160")
A("s_cbranch_scc0 L_fin")
A("s_mul_i32 s90, s94, 1639")
A("s_lshr_b32 s90, s90, 16")
A("s_mul_i32 s93, s90, 40")
A("s_sub_u32 s93, s94, s93")
A("s_lshr_b32 s95, s93, 3")
A("s_lshl_b32 s95, s95, 5")
A("s_bfe_u32 s96, s93, 0x10002")
A("s_add_u32 s95, s95, s96")
A("s_and_b32 s96, s93, 3")
A("s_lshl_b32 s96, s96, 3")
A("s_add_u32 s95, s95, s96")
A("v_mul_u32_u24 v12, 10240, v5")
A("v_lshl_add_u32 v12, v4, 4, v12")
A("s_lshl_b32 s78, s94, 6")
A(f"s_add_u32 s78, s78, {W_H6}")
A(f"s_add_u32 s79, s78, {16*10240}")
A(f"s_add_u32 s80, s78, {32*10240}")
A(f"s_add_u32 s81, s78, {48*10240}")
A("v_add_u32 v13, s81, v12")
A(f"s_lshl_b32 s82, s{sX}, 2")
A("s_add_u32 s82, s82, s90")
A("s_mul_i32 s82, s82, 160")
A("s_add_u32 s82, s82, s95")
A("s_lshl_b32 s82, s82, 4")
A(f"s_add_u32 s82, s82, {W_H5C}")
A("v_lshlrev_b32 v14, 5, v4")
A("v_add_u32 v14, s82, v14")
A("v_cmp_gt_u32 vcc, 6, v5")
A("s_nop 1")
A("v_cndmask_b32 v13, v14, v13, vcc")
A("s_mul_i32 s83, s90, 1280")
A("s_lshl_b32 s84, s95, 3")
A("s_add_u32 s83, s83, s84")
A("v_lshlrev_b32 v15, 4, v4")
A("v_lshl_add_u32 v15, v1, 1, v15")
s8l = [f"buffer_load_dwordx4 v[144:147], v12, {srd(S_WS)}, s78 offen",
       f"buffer_load_dwordx4 v[148:151], v12, {srd(S_WS)}, s79 offen",
       f"buffer_load_dwordx4 v[152:155], v12, {srd(S_WS)}, s80 offen",
       f"buffer_load_dwordx4 v[156:159], v13, {srd(S_WS)}, 0 offen"]
for i in s8l:
    A(i + " sc1")
poll([f"buffer_load_dwordx4 v[164:167], v14, {srd(S_WS)}, 0 offen"], [166], sleep=2)
poll(s8l, [146, 150, 154, 158])
A("v_cmp_gt_u32 vcc, 7, v5")
A("s_nop 1")
A("v_cndmask_b32 v156, 0, v156, vcc")
A("v_cndmask_b32 v157, 0, v157, vcc")
for i in range(4):
    unpack(160 + 4 * i, 161 + 4 * i, 144 + 4 * i)
    unpack(162 + 4 * i, 163 + 4 * i, 145 + 4 * i)
sum_b128(4, 160)
A("s_nop 1")
A("v_permlane32_swap_b32 v160, v162")
A("v_permlane32_swap_b32 v161, v163")
A("s_nop 0")
A("v_pk_add_f32 v[160:161], v[160:161], v[162:163]")
A("s_nop 1")
A("v_permlane16_swap_b32 v160, v161")
A("s_nop 0")
A("v_add_f32 v160, v160, v161")
A("s_nop 1")
A(f"v_add_f32_dpp v160, v160, v160 row_ror:8 {DPPM}")
A("s_nop 1")
A(f"v_add_f32_dpp v160, v160, v160 row_ror:4 {DPPM}")
A("s_nop 0")
A("v_cvt_pk_bf16_f32 v160, v160, v160")
execmask(M_N4)
A(f"buffer_store_short v160, v15, {srd(S_OUT)}, s83 offen")
execall()
A("s_cmp_lg_u32 s94, 0")
A("s_cbranch_scc1 L_s8x")
A("v_mov_b32 v12, 0")
A("s_mov_b64 exec, 1")
A(f"buffer_store_dwordx2 v[238:239], v12, {srd(S_WS)}, 0 offen sc1")
execall()
A.lab("L_s8x")
A.stamp(11)
A("s_branch L_fin")

A.lab("L_F")
A("s_nop 7")
A("s_waitcnt vmcnt(0)")
A("s_barrier")
l = A.newlab()
A(f"s_cmp_lg_u32 s{sW}, 0")
A(f"s_cbranch_scc1 {l}")
A("v_mov_b32 v233, v228")
execmask(0xFFFF)
store_local([f"buffer_store_dwordx4 v[232:235], v12, {srd(S_WS)}, s95 offen"])
execall()
A.lab(l)
A.stamp(8)
A(f"s_sub_u32 s94, 15, s{sR}")
A(f"s_mul_i32 s90, s{sX}, 7")
A("s_add_u32 s94, s94, s90")
A(f"s_cmp_gt_u32 s{sR}, 8")
A("s_cselect_b32 s94, s94, 99")
A(f"s_cmp_lt_u32 s{sW}, 5")
A("s_cselect_b32 s97, s94, 99")
A(f"s_cmp_lt_u32 s{sR}, 10")
A("s_cbranch_scc0 L_F1")
A("v_lshrrev_b32 v15, 3, v0")
A("v_mul_u32_u24 v15, 10240, v15")
A("v_and_b32 v13, 0x70, v6")
A("v_add_u32 v15, v15, v13")
A(f"s_lshl_b32 s93, s{sX}, 3")
A(f"s_add_u32 s93, s93, s{sW}")
A(f"s_mul_i32 s93, s93, {64*1280}")
A(f"s_lshl_b32 s90, s{sR}, 7")
A("s_add_u32 s93, s93, s90")
A("s_add_u32 s90, s93, 5120")
for i in range(8):
    so = "s93" if i < 4 else "s90"
    A(f"s_waitcnt vmcnt({opt.kf-1})")
    A(f"buffer_load_dwordx4 v[{144+4*i}:{147+4*i}], v15, {srd(S_WO)}, {so} offen offset:{1280*(i&3)} nt")
A.lab("L_s5")
A("s_waitcnt vmcnt(0)")
transpose(176, [144 + 4 * i for i in range(8)], 4)
A("v_lshl_add_u32 v12, v3, 11, v7")
A(f"s_lshl_b32 s95, s{sX}, 14")
A(f"s_lshl_b32 s90, s{sW}, 8")
A("s_add_u32 s95, s95, s90")
A(f"s_add_u32 s95, s95, {W_H4}")
A("s_add_u32 s96, s95, 8192")
A("v_and_b32 v14, 7, v0")
A("v_lshlrev_b32 v14, 5, v14")
A("v_lshl_add_u32 v14, v1, 8, v14")
A(f"s_lshl_b32 s90, s{sW}, 10")
A(f"s_add_u32 s90, s90, {L_RED}")
A("v_add_u32 v14, s90, v14")
poll([f"buffer_load_dwordx4 v[208:211], v12, {srd(S_WS)}, s95 offen",
      f"buffer_load_dwordx4 v[212:215], v12, {srd(S_WS)}, s96 offen"], [210, 214], sleep=1)
A.stamp(9, 0)
unpack(216, 217, 208); unpack(218, 219, 209); unpack(220, 221, 212); unpack(222, 223, 213)
A("v_pk_add_f32 v[216:217], v[216:217], v[220:221]")
A("v_pk_add_f32 v[218:219], v[218:219], v[222:223]")
A("v_cvt_pk_bf16_f32 v208, v216, v217")
A("v_cvt_pk_bf16_f32 v209, v218, v219")
A("s_nop 1")
A(f"v_mov_b32_dpp v212, v208 quad_perm:[0,2,0,2] {DPPM}")
A(f"v_mov_b32_dpp v213, v209 quad_perm:[0,2,0,2] {DPPM}")
A(f"v_mov_b32_dpp v214, v208 quad_perm:[1,3,1,3] {DPPM}")
A(f"v_mov_b32_dpp v215, v209 quad_perm:[1,3,1,3] {DPPM}")
A("s_nop 1")
for jj in range(8):
    d = 144 + 4 * jj
    A(f"v_mfma_f32_16x16x32_bf16 v[{d}:{d+3}], v[212:215], v[{176+4*jj}:{179+4*jj}], 0")
A("s_nop 1")
for jj in range(8):
    d = 144 + 4 * jj
    A(f"v_add_f32_dpp v{216+jj}, v{d+1}, v{d} row_shl:8 {DPPM}")
execmask(M_N8)
A("ds_write_b128 v14, v[216:219]")
A("ds_write_b128 v14, v[220:223] offset:16")
execall()
A("s_waitcnt lgkmcnt(0)")
A("s_barrier")
A(f"s_cmp_lg_u32 s{sW}, 7")
A("s_cbranch_scc1 L_F1")
for s in range(8):
    A(f"ds_read_b128 v[{144+4*s}:{147+4*s}], v6 offset:{L_RED + 1024*s}")
A(f"s_lshl_b32 s95, s{sR}, 3")
A(f"s_add_u32 s95, s95, s{sX}")
A("s_lshl_b32 s95, s95, 10")
A(f"s_add_u32 s95, s95, {W_H5B}")
A("s_waitcnt lgkmcnt(0)")
sum_b128(8, 144)
A("v_cvt_pk_bf16_f32 v236, v144, v145")
A("v_cvt_pk_bf16_f32 v237, v146, v147")
A(f"buffer_store_dwordx4 v[236:239], v6, {srd(S_WS)}, s95 offen sc1")
A.stamp(11)
A("s_branch L_fin")

A.lab("L_F1")
A("s_cmp_lt_u32 s97, 54")
A("s_cbranch_scc0 L_fin")
A("v_mul_u32_u24 v15, 13824, v5")
A("v_lshl_add_u32 v15, v4, 4, v15")
A(f"s_mul_i32 s93, s{sW}, {128*3456}")
A("s_lshl_b32 s90, s94, 6")
A("s_add_u32 s93, s93, s90")
for i in range(8):
    A(f"s_add_u32 s90, s93, {((i & 3) + 64*(i >> 2))*3456}")
    A(f"s_waitcnt vmcnt({opt.kf+1})")
    A(f"buffer_load_dwordx4 v[{16+4*i}:{19+4*i}], v15, {srd(S_W1)}, s90 offen nt")
A("v_mul_u32_u24 v15, 10240, v1")
A("v_lshl_add_u32 v15, v2, 4, v15")
A(f"s_mul_i32 s93, s94, {32*1280}")
A(f"s_lshl_b32 s90, s{sW}, 8")
A("s_add_u32 s93, s93, s90")
A("s_add_u32 s90, s93, 5120")
for i in range(8):
    so = "s93" if i < 4 else "s90"
    A(f"s_waitcnt vmcnt({opt.kf+1})")
    A(f"buffer_load_dwordx4 v[{48+4*i}:{51+4*i}], v15, {srd(S_W2)}, {so} offen offset:{1280*(i&3)} nt")
A("s_waitcnt vmcnt(0)")
A.stamp(2, 0)
transpose(80, [16 + 4 * i for i in range(8)], 4)
transpose(112, [48 + 4 * i for i in range(8)], 4)
for i in range(4):
    A(f"v_mov_b32 v{48+i}, 0x3f803f80")
A("s_nop 1")
for jj in range(8):
    A(f"v_mfma_f32_16x16x32_bf16 v[{16+4*jj}:{19+4*jj}], v[48:51], v[{80+4*jj}:{83+4*jj}], 0")
A("s_nop 1")
dppsum([56 + jj for jj in range(8)], [16 + 4 * jj for jj in range(8)])
A("v_lshlrev_b32 v14, 5, v4")
A(f"s_lshl_b32 s90, s{sW}, 7")
A(f"s_add_u32 s90, s90, {L_CS}")
A("v_add_u32 v14, s90, v14")
A("s_mov_b64 exec, 15")
A("ds_write_b128 v14, v[56:59]")
A("ds_write_b128 v14, v[60:63] offset:16")
execall()
A("s_waitcnt lgkmcnt(0)")
A("s_barrier")
A.lab("L_s67")
A("v_lshrrev_b32 v14, 1, v7")
for s in range(5):
    A(f"ds_read_b64 v[{16+2*s}:{17+2*s}], v14 offset:{L_CS + 128*s}")
A("v_mul_u32_u24 v12, 2560, v3")
A("v_add_u32 v12, v12, v7")
A(f"s_mul_i32 s95, s{sX}, 10240")
A(f"s_lshl_b32 s90, s{sW}, 9")
A("s_add_u32 s95, s95, s90")
A(f"s_add_u32 s95, s95, {W_H5C}")
A("v_lshlrev_b32 v13, 1, v7")
A(f"s_add_u32 s90, s90, {L_RED2}")
A("v_add_u32 v13, s90, v13")
A("v_lshlrev_b32 v10, 3, v1")
A(f"s_lshl_b32 s90, s{sW}, 5")
A(f"s_add_u32 s90, s90, {L_RS}")
A("v_add_u32 v10, s90, v10")
A("v_lshl_add_u32 v14, v3, 7, v14")
A("v_lshlrev_b32 v11, 3, v3")
A("v_mul_u32_u24 v9, 2560, v1")
A("v_lshl_add_u32 v9, v2, 4, v9")
A("s_mul_i32 s96, s94, 10240")
A(f"s_lshl_b32 s90, s{sW}, 9")
A("s_add_u32 s96, s96, s90")
A(f"s_add_u32 s96, s96, {W_H6}")
A("s_waitcnt lgkmcnt(0)")
for s in range(1, 5):
    A(f"v_pk_add_f32 v[16:17], v[16:17], v[{16+2*s}:{17+2*s}]")
poll([f"buffer_load_dwordx4 v[208:211], v12, {srd(S_WS)}, s95 offen",
      f"buffer_load_dwordx4 v[212:215], v12, {srd(S_WS)}, s95 offen offset:256"], [210, 214], sleep=1)
A.stamp(10, 0)
A("v_mov_b32 v210, v212")
A("v_mov_b32 v211, v213")
A("s_nop 1")
A("v_mfma_f32_16x16x32_bf16 v[184:187], v[208:211], v[48:51], 0")
A("v_mfma_f32_16x16x32_bf16 v[188:191], v[208:211], v[208:211], 0")
for jj in range(8):
    d = 144 + 4 * jj
    A(f"v_mfma_f32_16x16x32_bf16 v[{d}:{d+3}], v[208:211], v[{80+4*jj}:{83+4*jj}], 0")
A("v_add_f32 v192, v184, v185")
A(f"v_add_f32_dpp v193, v189, v188 row_shl:1 {DPPM}")
A("v_add_f32 v194, v186, v187")
A("s_nop 0")
A(f"v_add_f32_dpp v193, v190, v193 row_shl:2 {DPPM}")
A("v_add_f32 v192, v192, v194")
A("s_nop 0")
A(f"v_add_f32_dpp v193, v191, v193 row_shl:3 {DPPM}")
execmask(0x1000010000100001)
A("ds_write_b64 v10, v[192:193]")
execall()
dppsum([176 + i for i in range(8)], [144 + 4 * i for i in range(8)])
execmask(M_N4)
A("ds_write_b128 v13, v[176:179]")
A("ds_write_b128 v13, v[180:183] offset:16")
execall()
A("s_waitcnt lgkmcnt(0)")
A("s_barrier")
for s in range(5):
    A(f"ds_read_b64 v[{160+2*s}:{161+2*s}], v11 offset:{L_RS + 32*s}")
for s in range(5):
    A(f"ds_read_b64 v[{144+2*s}:{145+2*s}], v14 offset:{L_RED2 + 512*s}")
A("s_waitcnt lgkmcnt(5)")
for s in range(1, 5):
    A(f"v_pk_add_f32 v[160:161], v[160:161], v[{160+2*s}:{161+2*s}]")
A(f"v_mul_f32 v160, {f32(1/640)}, v160")
A(f"v_mul_f32 v161, {f32(1/640)}, v161")
A("v_fma_f32 v161, -v160, v160, v161")
A("v_max_f32 v161, 0, v161")
A(f"v_add_f32 v161, {f32(1e-5)}, v161")
A("v_rsq_f32 v161, v161")
A("s_waitcnt lgkmcnt(0)")
for s in range(1, 5):
    A(f"v_pk_add_f32 v[144:145], v[144:145], v[{144+2*s}:{145+2*s}]")
A("v_fma_f32 v144, -v160, v16, v144")
A("v_fma_f32 v145, -v160, v17, v145")
A("v_mul_f32 v144, v144, v161")
A("v_mul_f32 v145, v145, v161")
A(f"v_mul_f32 v146, {f32(-math.log2(math.e))}, v144")
A(f"v_mul_f32 v147, {f32(-math.log2(math.e))}, v145")
A("v_exp_f32 v146, v146")
A("v_exp_f32 v147, v147")
A("s_nop 0")
A("v_add_f32 v146, 1.0, v146")
A("v_add_f32 v147, 1.0, v147")
A("v_rcp_f32 v146, v146")
A("v_rcp_f32 v147, v147")
A("s_nop 0")
A("v_mul_f32 v144, v144, v146")
A("v_mul_f32 v145, v145, v147")
A("v_cvt_pk_bf16_f32 v148, v144, v145")
A("s_nop 1")
for i in range(4):
    A(f"v_mov_b32_dpp v{208+i}, v148 quad_perm:[{i},{i},{i},{i}] {DPPM}")
A("s_nop 1")
for jj in range(8):
    d = 144 + 4 * jj
    A(f"v_mfma_f32_16x16x32_bf16 v[{d}:{d+3}], v[208:211], v[{112+4*jj}:{115+4*jj}], 0")
A("s_nop 3")
A("v_cvt_pk_bf16_f32 v232, v144, v148")
A("v_cvt_pk_bf16_f32 v233, v152, v156")
A(f"buffer_store_dwordx4 v[232:235], v9, {srd(S_WS)}, s96 offen sc1")
A("s_nop 1")
A("v_cvt_pk_bf16_f32 v236, v160, v164")
A("v_cvt_pk_bf16_f32 v237, v168, v172")
A(f"buffer_store_dwordx4 v[236:239], v9, {srd(S_WS)}, s96 offen offset:256 sc1")
A.stamp(11)

A.lab("L_fin")
if opt.stamps:
    A("s_waitcnt vmcnt(0) lgkmcnt(0)")
    A(f"s_lshl_b32 s90, s2, 3")
    A(f"s_add_u32 s90, s90, s{sW}")
    A("s_lshl_b32 s90, s90, 6")
    A(f"s_add_u32 s90, s90, {W_STAMP}")
    A("v_mov_b32 v8, 0")
    A("s_mov_b64 exec, 1")
    for i in range(12):
        A(f"v_mov_b32 v9, s{4+2*i}")
        A(f"buffer_store_dword v9, v8, {srd(S_WS)}, s90 offen offset:{4*i}")
    A(f"v_mov_b32 v9, s{sCNT}")
    A(f"buffer_store_dword v9, v8, {srd(S_WS)}, s90 offen offset:56")
    A(f"v_mov_b32 v9, s{sFAST}")
    A(f"buffer_store_dword v9, v8, {srd(S_WS)}, s90 offen offset:60")
A.lab("L_end")

body = "\n".join(A.l)
if opt.stamps:
    init = "\n".join(f"    s_mov_b32 s{4+2*i}, 0" for i in range(1, 12))
    body = init + "\n" + body
out = HDR + f"""; @launch grid=(256,1,1) block=(512,1,1) lds={LDS_BYTES}
.amdgcn_target "amdgcn-amd-amdhsa--gfx950"
.text
.globl {NAME}_kernel
.p2align 8
.type {NAME}_kernel,@function
{NAME}_kernel:
{body}
    s_endpgm
L_codeend:
.section .rodata,"a"
.p2align 6
.amdhsa_kernel {NAME}_kernel
  .amdhsa_next_free_vgpr 256
  .amdhsa_next_free_sgpr 102
  .amdhsa_accum_offset 256
  .amdhsa_group_segment_fixed_size 0
  .amdhsa_kernarg_size 96
  .amdhsa_user_sgpr_count 2
  .amdhsa_user_sgpr_kernarg_segment_ptr 1
  .amdhsa_system_sgpr_workgroup_id_x 1
.end_amdhsa_kernel
"""
open(opt.o, "w").write(out)
print("wrote", opt.o, "lines", len(A.l), file=sys.stderr)
```

```python
import sys, re, argparse, math, struct

NAME = "sequential_preLN__compressed_kv_cla__dense_activation_silu__decode"
HDR = open(f"cdna_kernels/{NAME}.s.ref").read().split("; Override launch")[0]

ap = argparse.ArgumentParser()
ap.add_argument("-o", default=f"cdna_kernels/{NAME}.s")
ap.add_argument("--stamps", action="store_true")
ap.add_argument("--early", type=int, default=4)
ap.add_argument("--early67", type=int, default=16)
ap.add_argument("--pw", default="sc1")
ap.add_argument("--noh3bt", action="store_true")
ap.add_argument("--earlyA", type=int, default=4)
ap.add_argument("--nocodepf", action="store_true")
ap.add_argument("--nobar2", action="store_true")
ap.add_argument("--nouvpf", action="store_true")
ap.add_argument("--noukpf", action="store_true")
ap.add_argument("--kb0", type=int, default=2)
ap.add_argument("--kb", type=int, default=0)
ap.add_argument("--ka", type=int, default=0)
ap.add_argument("--kf", type=int, default=16)
ap.add_argument("--arev", action="store_true")
ap.add_argument("--grp", type=int, default=0)
ap.add_argument("--ntr0", type=int, default=32)
ap.add_argument("--padto", type=int, default=0)
ap.add_argument("--forceslow", action="store_true")
ap.add_argument("--wb", action="store_true")
ap.add_argument("--dbgstamps", action="store_true")
ap.add_argument("--qsleep", type=int, default=2)
opt = ap.parse_args()

W_EPOCH = 0x0
W_XT = 0x1000
W_H1 = 0x10000
W_H1B = 0x380000
W_H2 = 0x100000
W_ST3 = 0x140000
W_STX = 0x150000
W_H4 = 0x160000
W_H5B = 0x180000
W_H5C = 0x1A0000
W_H3B = 0x200000
W_H6 = 0x280000
W_H3A = 0x400000
W_STAMP = 0x800000
WS_SIZE = 0x1000000

ROWB = 1056
L_Q = 128 * ROWB
L_P = L_Q + 16 * ROWB
L_MX = L_P + 4096
L_SM = L_MX + 512
L_QV = L_SM + 512
LDS_BYTES = 163840
L_S1 = 0 * ROWB
L_RED = 0
L_RED2 = 16384
L_RS = 32768
L_CS = 33792

S_X, S_CKV, S_WQ, S_WUK, S_WUV, S_WO, S_W1, S_W2, S_OUT, S_WS = (28, 32, 36, 40, 44, 48, 52, 56, 60, 64)
sX, sR, sW = 68, 69, 70
sFAST = 71
sT0, sT1 = 72, 73
sPLO, sPHI = 74, 75
sCNT = 76
sH = 77
POLL_LIMIT = 400000


def f32(x):
    return "0x%08x" % struct.unpack("<I", struct.pack("<f", x))[0]


class Asm:
    def __init__(self):
        self.l = []
        self.nlab = 0

    def __call__(self, s):
        m = re.search(r"offset:(\d+)", s)
        if m:
            lim = 65536 if s.lstrip().startswith("ds_") else 4096
            assert int(m.group(1)) < lim, s
        self.l.append("    " + s)

    def lab(self, n):
        self.l.append(n + ":")

    def newlab(self, p="L"):
        self.nlab += 1
        return f"{p}_{self.nlab}"

    def c(self, s):
        self.l.append("    ; " + s)

    def stamp(self, i, grp=None):
        if grp is not None and grp != opt.grp:
            return
        if opt.stamps:
            self(f"s_memrealtime s[{4+2*i}:{5+2*i}]")


A = Asm()
DPPM = "row_mask:0xf bank_mask:0xf"


def srd(n):
    return f"s[{n}:{n+3}]"


def execmask(m):
    A(f"s_mov_b32 exec_lo, 0x{m & 0xffffffff:x}")
    A(f"s_mov_b32 exec_hi, 0x{m >> 32:x}")


def execall():
    A("s_mov_b64 exec, -1")


M_N4 = 0x000F000F000F000F
M_N8 = 0x00FF00FF00FF00FF


def store_local(instr):
    l1, l2 = A.newlab("Lsl"), A.newlab("Lsl")
    A(f"s_cmp_eq_u32 s{sFAST}, 0")
    A(f"s_cbranch_scc1 {l1}")
    for i in instr:
        A(i)
    A(f"s_branch {l2}")
    A.lab(l1)
    for i in instr:
        A(i + " sc1")
    A.lab(l2)


def poll(loads, tagregs, sleep=0, alt=None):
    lp = A.newlab("Lpoll")
    if alt:
        sr, sm, so_ = alt
        lf = A.newlab("Lpf")
        A(f"s_mov_b32 {sr}, {sm}")
        A(f"s_branch {lf}")
        A.lab(lp)
        A(f"s_and_b32 s98, s{sCNT}, 31")
        A("s_cmp_eq_u32 s98, 31")
        A(f"s_cselect_b32 {sr}, {so_}, {sm}")
        A.lab(lf)
    elif sleep:
        lf = A.newlab("Lpf")
        A(f"s_branch {lf}")
        A.lab(lp)
        A(f"s_sleep {sleep}")
        A.lab(lf)
    else:
        A.lab(lp)
    for i in loads:
        A(i + " sc1")
    A(f"s_add_u32 s{sCNT}, s{sCNT}, 1")
    A(f"s_cmp_gt_u32 s{sCNT}, {POLL_LIMIT}")
    A("s_cbranch_scc1 L_end")
    A("s_waitcnt vmcnt(0)")
    for k, t in enumerate(tagregs):
        if k == 0:
            A(f"v_cmp_ne_u64 vcc, s[{sT0}:{sT1}], v[{t}:{t+1}]")
        else:
            A(f"v_cmp_ne_u64 s[98:99], s[{sT0}:{sT1}], v[{t}:{t+1}]")
            A("s_or_b64 vcc, vcc, s[98:99]")
    A(f"s_cbranch_vccnz {lp}")


def transpose(dst, rows, ndw, dup=False):
    nr = len(rows) // 2
    st = 2 * nr if dup else nr
    for jj in range(2 * ndw):
        sel = sPHI if jj & 1 else sPLO
        for rep in range(2 if dup else 1):
            for p in range(nr):
                A(f"v_perm_b32 v{dst + jj*st + rep*nr + p}, v{rows[2*p+1] + (jj >> 1)}, v{rows[2*p] + (jj >> 1)}, s{sel}")


def dppsum(dsts, ds):
    assert len(dsts) >= 3
    for step in (1, 2, 3):
        for t, d in zip(dsts, ds):
            src1 = d if step == 1 else t
            A(f"v_add_f32_dpp v{t}, v{d+step}, v{src1} row_shl:{4*step} {DPPM}")


def unpack(dlo, dhi, s):
    A(f"v_lshlrev_b32 v{dlo}, 16, v{s}")
    A(f"v_and_b32 v{dhi}, 0xffff0000, v{s}")


def rowall(op, regs):
    for sh in (8, 4, 2, 1):
        if len(regs) < 3:
            A(f"s_nop {2 - len(regs)}")
        for r_ in regs:
            A(f"{op}_dpp v{r_}, v{r_}, v{r_} row_ror:{sh} {DPPM}")


def sum_b128(n, base):
    for s in range(1, n):
        A(f"v_pk_add_f32 v[{base}:{base+1}], v[{base}:{base+1}], v[{base+4*s}:{base+4*s+1}]")
        A(f"v_pk_add_f32 v[{base+2}:{base+3}], v[{base+2}:{base+3}], v[{base+4*s+2}:{base+4*s+3}]")


def tag_setup():
    A("s_waitcnt lgkmcnt(0)")
    A(f"s_mul_i32 s{sT0}, s82, 0x9E3779B1")
    A(f"s_add_u32 s{sT0}, s{sT0}, 0x7F4A7C15")
    A(f"s_mul_i32 s{sT1}, s83, 0x2C9277B5")
    A(f"s_add_u32 s{sT1}, s{sT1}, 0xAC564B05")


def xt_decide(t):
    A("s_getreg_b32 s84, hwreg(HW_REG_XCC_ID)")
    A("s_and_b32 s84, s84, 15")
    A(f"v_cmp_ne_u32 vcc, s84, v{t}")
    A("s_cmp_eq_u64 vcc, 0")
    A(f"s_cselect_b32 s{sFAST}, {0 if opt.forceslow else 1}, 0")


def ckv_dma(rows, k=None):
    for i in rows:
        A(f"s_add_u32 m0, s81, {i*ROWB}")
        A(f"s_add_u32 s86, s80, {i*1024}")
        if k:
            A(f"s_waitcnt vmcnt({k-1})")
        A(f"buffer_load_dwordx4 v6, {srd(S_CKV)}, s86 offen nt lds")


A.stamp(0)
if opt.padto:
    A("s_memrealtime s[4:5]")
A("s_cmp_ge_u32 s2, 256")
A("s_cbranch_scc1 L_end")
ptr = {S_X: 0, S_CKV: 8, S_WQ: 16, S_WUK: 24, S_WUV: 32, S_WO: 40, S_W1: 56, S_W2: 64, S_OUT: 72, S_WS: 88}
size = {S_X: 5120, S_CKV: 16777216, S_WQ: 5242880, S_WUK: 4194304, S_WUV: 4194304, S_WO: 5242880,
        S_W1: 2211840, S_W2: 2211840, S_OUT: 5120, S_WS: WS_SIZE}
for s_ in (S_WQ, S_X, S_CKV, S_WUK, S_WS, S_WUV, S_WO, S_W1, S_W2, S_OUT):
    A(f"s_load_dwordx2 s[{s_}:{s_+1}], s[0:1], {ptr[s_]}")
A(f"s_lshr_b32 s{sR}, s2, 3")
A("v_lshrrev_b32 v1, 6, v0")
A("v_and_b32 v0, 63, v0")
A(f"v_readfirstlane_b32 s{sW}, v1")
A("v_lshlrev_b32 v6, 4, v0")
if not opt.nocodepf:
    A("s_getpc_b64 s[92:93]")
    A.lab("L_pc")
    A(f"s_sub_u32 s92, s92, L_pc-{NAME}_kernel")
    A("s_subb_u32 s93, s93, 0")
    A(f"s_mov_b32 s94, L_codeend-{NAME}_kernel")
    A("s_mov_b32 s95, 0x00020000")
    A(f"s_lshl_b32 s90, s{sR}, 10")
    A(f"s_cmp_lg_u32 s{sW}, 7")
    A("s_cbranch_scc1 L_nopf")
    A("buffer_load_dwordx4 v[252:255], v6, s[92:95], s90 offen")
    A.lab("L_nopf")
for s_ in ptr:
    A(f"s_mov_b32 s{s_+2}, {size[s_]}")
    A(f"s_mov_b32 s{s_+3}, 0x00020000")
A(f"s_and_b32 s{sX}, s2, 7")
A(f"s_mov_b32 s{sPLO}, 0x05040100")
A(f"s_mov_b32 s{sPHI}, 0x07060302")
A(f"s_mov_b32 s{sCNT}, 0")
A(f"s_mov_b32 s{sFAST}, 0")
A(f"s_and_b32 s78, s{sR}, 3")
A(f"s_lshl_b32 s{sH}, s{sX}, 2")
A(f"s_add_u32 s{sH}, s{sH}, s78")
A(f"s_lshl_b32 s88, s{sH}, 8")
A("v_lshrrev_b32 v1, 4, v0")
A("v_and_b32 v2, 15, v0")
A("v_bfe_u32 v3, v0, 2, 2")
A("v_and_b32 v4, 3, v0")
A("v_lshrrev_b32 v5, 2, v0")
A("v_lshlrev_b32 v7, 6, v1")
A("v_lshl_add_u32 v7, v4, 4, v7")
A(f"s_lshl_b32 s80, s{sX}, 21")
A(f"s_and_b32 s81, s{sR}, 15")
A("s_lshl_b32 s81, s81, 17")
A("s_add_u32 s80, s80, s81")
A(f"s_lshl_b32 s81, s{sW}, 14")
A("s_add_u32 s80, s80, s81")
A(f"s_mul_i32 s81, s{sW}, {16*ROWB}")
A(f"s_bfe_u32 s79, s{sR}, 0x20002")
A("s_mul_i32 s87, s79, 160")
A(f"s_lshl_b32 s90, s{sW}, 5")
A("s_add_u32 s87, s87, s90")
A("s_lshl_b32 s89, s87, 13")
A("s_add_u32 s89, s89, s88")
A("v_lshlrev_b32 v9, 16, v1")
A("v_lshl_add_u32 v9, v2, 4, v9")
A("v_mul_u32_u24 v8, 1280, v3")
A("v_lshl_add_u32 v8, v1, 4, v8")
A("s_lshl_b32 s87, s87, 1")
A("v_lshl_add_u32 v10, v3, 15, v7")
A("s_lshl_b32 s91, s79, 7")
A(f"s_and_b32 s90, s{sW}, 3")
A("s_lshl_b32 s90, s90, 5")
A("s_add_u32 s91, s91, s90")
A("s_lshl_b32 s91, s91, 13")
A("s_add_u32 s91, s91, s88")
A(f"s_cmp_lt_u32 s{sR}, 16")
A("s_waitcnt lgkmcnt(0)")
A(f"s_load_dwordx2 s[82:83], s[{S_WS}:{S_WS+1}], {W_EPOCH}")
A("s_cbranch_scc0 L_frontB")


def xt_publish(t):
    A("s_getreg_b32 s84, hwreg(HW_REG_XCC_ID)")
    A("s_and_b32 s84, s84, 15")
    A(f"s_lshl_b32 s85, s{sX}, 9")
    A(f"s_add_u32 s85, s85, {W_XT}")
    A(f"s_lshl_b32 s86, s{sR}, 4")
    A(f"v_mov_b32 v{t}, s84")
    A(f"v_mov_b32 v{t+1}, 0")
    A(f"v_mov_b32 v{t+2}, s{sT0}")
    A(f"v_mov_b32 v{t+3}, s{sT1}")
    A("v_mov_b32 v12, s86")
    A("s_mov_b64 exec, 1")
    A(f"buffer_store_dwordx4 v[{t}:{t+3}], v12, {srd(S_WS)}, s85 offen sc1")
    execall()


A(f"s_cmp_gt_u32 s{sW}, 4")
A("s_cbranch_scc1 L_notS1")
for i in range(8):
    A(f"buffer_load_dwordx4 v[{24+4*i}:{27+4*i}], v9, {srd(S_WQ)}, s89 offen nt")
    if i < 7:
        A("s_add_u32 s89, s89, 8192")
    if i == 3:
        A(f"buffer_load_dwordx4 v[16:19], v8, {srd(S_X)}, s87 offen")
        A("s_barrier")
A("s_barrier")
A(f"s_cmp_gt_u32 s{sW}, 3")
A("s_cbranch_scc1 L_nouk")
for t in range(4):
    A(f"s_add_u32 s90, s91, {(16*(t>>2) + (t&3))*8192}")
    A(f"buffer_load_dwordx4 v[{112+4*t}:{115+4*t}], v10, {srd(S_WUK)}, s90 offen nt")
A("s_waitcnt vmcnt(4)")
A("s_branch L_uk1")
A.lab("L_nouk")
A("s_waitcnt vmcnt(0)")
A.lab("L_uk1")
A.stamp(1, 0)
A("v_cmp_eq_u32 vcc, 1, v4")
A("v_mov_b32 v11, 0x3f803f80")
A(f"s_lshl_b32 s90, s{sW}, 12")
A(f"s_add_u32 s90, s90, {L_S1}")
A("v_lshlrev_b32 v12, 3, v0")
A("v_add_u32 v12, s90, v12")
for i in range(4):
    A(f"v_cndmask_b32 v{16+i}, v{16+i}, v11, vcc")
for jj in range(8):
    sel = sPHI if jj & 1 else sPLO
    for p in range(4):
        A(f"v_perm_b32 v{56+4*jj+p}, v{24+4*(2*p+1)+(jj>>1)}, v{24+4*(2*p)+(jj>>1)}, s{sel}")
    if jj >= 1:
        j1 = jj - 1
        A(f"v_mfma_f32_16x16x32_bf16 v[{144+4*j1}:{147+4*j1}], v[16:19], v[{56+4*j1}:{59+4*j1}], 0")
A("s_nop 0")
A(f"v_mfma_f32_16x16x32_bf16 v[172:175], v[16:19], v[84:87], 0")
A("s_nop 1")
for jj in range(8):
    A(f"ds_write_b64 v12, v[{144+4*jj}:{145+4*jj}] offset:{512*jj}")
tag_setup()
A.stamp(9, 1)
A("s_barrier")
A(f"s_cmp_gt_u32 s{sW}, 3")
A("s_cbranch_scc1 L_A_dma")
for t in range(4, 8):
    A(f"s_add_u32 s90, s91, {(16*(t>>2) + (t&3))*8192}")
    A(f"buffer_load_dwordx4 v[{112+4*t}:{115+4*t}], v10, {srd(S_WUK)}, s90 offen nt")
A("s_branch L_h1")

A.lab("L_notS1")
A(f"s_cmp_eq_u32 s{sW}, 7")
A("s_cbranch_scc0 L_w56")
A("s_barrier")
A("s_barrier")
tag_setup()
xt_publish(20)
A("s_barrier")
A("s_branch L_A_dma")

A.lab("L_frontB")
A(f"s_cmp_gt_u32 s{sW}, 4")
A("s_cbranch_scc1 L_B1")
A("s_add_u32 s89, s89, 32768")
for i in range(4):
    A(f"buffer_load_dwordx4 v[16:19], v9, {srd(S_WQ)}, s89 offen nt")
    if i < 3:
        A("s_add_u32 s89, s89, 8192")
A("s_branch L_B2")
A.lab("L_B1")
A(f"s_cmp_eq_u32 s{sW}, 5")
A("s_cbranch_scc0 L_B2")
A(f"s_lshl_b32 s89, s{sH}, 14")
A("s_lshl_b32 s90, s79, 12")
A("s_add_u32 s89, s89, s90")
A(f"s_add_u32 s89, s89, {W_H1}")
for i in range(4):
    A(f"buffer_load_dwordx4 v[16:19], v6, {srd(S_WS)}, s89 offen offset:{1024*i} sc1")
A.lab("L_B2")
A("s_barrier")
A(f"s_cmp_gt_u32 s{sW}, 3")
A("s_cbranch_scc1 L_B3")
for t in range(4, 8):
    A(f"s_add_u32 s90, s91, {(16*(t>>2) + (t&3))*8192}")
    A(f"buffer_load_dwordx4 v[16:19], v10, {srd(S_WUK)}, s90 offen nt")
A.lab("L_B3")
A(f"s_lshl_b32 s100, s{sH}, 14")
A(f"s_and_b32 s90, s{sR}, 8")
A("s_lshl_b32 s90, s90, 7")
A("s_add_u32 s100, s100, s90")
A(f"s_add_u32 s100, s100, {W_H3B}")
A(f"s_lshl_b32 s101, s{sH}, 10")
A(f"s_add_u32 s101, s101, {W_STX}")
A("s_barrier")
if not opt.noh3bt:
    A(f"s_lshl_b32 s90, s{sW}, 11")
    A("s_add_u32 s90, s90, s100")
    A(f"buffer_load_dwordx4 v[16:19], v6, {srd(S_WS)}, s90 offen sc1")
A(f"s_lshl_b32 s90, s{sW}, 7")
A("s_add_u32 s100, s100, s90")
ckv_dma(range(16), opt.kb)
tag_setup()
A(f"s_cmp_lg_u32 s{sW}, 0")
A("s_cbranch_scc1 L_qgather")
xt_publish(16)
if not opt.noh3bt:
    A(f"buffer_load_dwordx4 v[16:19], v6, {srd(S_WS)}, s101 offen sc1")
A(f"s_and_b32 s90, s{sR}, 15")
A("s_lshl_b32 s90, s90, 10")
A(f"s_lshl_b32 s89, s{sX}, 14")
A("s_add_u32 s89, s89, s90")
A(f"s_add_u32 s89, s89, {W_H4}")
A(f"buffer_load_dwordx4 v[16:19], v6, {srd(S_WS)}, s89 offen sc1")
A(f"s_lshl_b32 s89, s{sX}, 13")
A("s_and_b32 s91, s90, 0x1c00")
A("s_add_u32 s89, s89, s91")
A(f"s_add_u32 s89, s89, {W_ST3}")
A(f"buffer_load_dwordx4 v[16:19], v6, {srd(S_WS)}, s89 offen sc1")
A(f"s_mul_i32 s89, s{sX}, 10240")
A("s_min_u32 s90, s90, 9216")
A("s_add_u32 s89, s89, s90")
A(f"s_add_u32 s89, s89, {W_H5C}")
A(f"buffer_load_dwordx4 v[16:19], v6, {srd(S_WS)}, s89 offen sc1")
A("s_branch L_qgather")

A.lab("L_w56")
A("s_setprio 3")
A("v_mul_u32_u24 v8, 1280, v1")
A("v_lshl_add_u32 v8, v2, 4, v8")
for i in range(5):
    A(f"buffer_load_dwordx4 v[{16+4*i}:{19+4*i}], v8, {srd(S_X)}, 0 offen offset:{256*i}")
A("s_barrier")
A("s_barrier")
tag_setup()
A("v_mov_b32 v38, 0x3f803f80")
A("v_mov_b32 v36, 0")
A("v_mov_b32 v37, 0")
A("v_lshrrev_b32 v13, 5, v0")
A("v_lshlrev_b32 v13, 11, v13")
A("v_and_b32 v14, 0x1ff, v6")
A("v_add_u32 v13, v13, v14")
A(f"s_sub_u32 s91, s{sW}, 5")
A(f"s_lshl_b32 s89, s{sH}, 14")
A("s_lshl_b32 s90, s91, 13")
A("s_add_u32 s89, s89, s90")
A(f"s_lshr_b32 s90, s{sR}, 2")
A("s_lshl_b32 s90, s90, 9")
A("s_add_u32 s89, s89, s90")
A(f"s_add_u32 s89, s89, {W_H1}")
A("s_add_u32 s90, s89, 4096")
A(f"s_add_u32 s92, s89, {W_H1B - W_H1}")
A(f"s_add_u32 s93, s90, {W_H1B - W_H1}")
A("s_lshl_b32 s91, s91, 11")
A(f"s_add_u32 s91, s91, {L_S1}")
A("v_lshlrev_b32 v11, 3, v0")
A("v_add_u32 v11, s91, v11")
A(f"v_mov_b32 v42, s{sT0}")
A(f"v_mov_b32 v43, s{sT1}")
A(f"v_mov_b32 v46, s{sT0}")
A(f"v_mov_b32 v47, s{sT1}")
A("s_waitcnt vmcnt(0)")
for i in range(20):
    A(f"v_dot2_f32_bf16 v36, v{16+i}, v38, v36")
    A(f"v_dot2_f32_bf16 v37, v{16+i}, v{16+i}, v37")
A("s_nop 1")
rowall("v_add_f32", [36, 37])
A(f"v_mul_f32 v36, {f32(1/640)}, v36")
A(f"v_mul_f32 v37, {f32(1/640)}, v37")
A("v_fma_f32 v37, -v36, v36, v37")
A("v_max_f32 v37, 0, v37")
A(f"v_add_f32 v37, {f32(1e-5)}, v37")
A("v_rsq_f32 v37, v37")
A("s_barrier")
for s_ in range(5):
    for jj in range(4):
        d = 48 + (s_ * 4 + jj) * 2
        A(f"ds_read_b64 v[{d}:{d+1}], v11 offset:{4096*s_ + 512*jj}")
for s_ in range(1, 5):
    A(f"s_waitcnt lgkmcnt({16 - 4*s_})")
    for jj in range(4):
        d = 48 + (s_ * 4 + jj) * 2
        A(f"v_pk_add_f32 v[{48+2*jj}:{49+2*jj}], v[{48+2*jj}:{49+2*jj}], v[{d}:{d+1}]")
for jj in range(4):
    A(f"v_fma_f32 v{48+2*jj}, -v36, v{49+2*jj}, v{48+2*jj}")
A("v_mul_f32 v40, v48, v37")
A("v_mul_f32 v41, v50, v37")
A("v_mul_f32 v44, v52, v37")
A("v_mul_f32 v45, v54, v37")
A(f"buffer_store_dwordx4 v[40:43], v13, {srd(S_WS)}, s89 offen")
A(f"buffer_store_dwordx4 v[44:47], v13, {srd(S_WS)}, s90 offen")
A.stamp(2)
A(f"buffer_store_dwordx4 v[40:43], v13, {srd(S_WS)}, s92 offen sc1")
A(f"buffer_store_dwordx4 v[44:47], v13, {srd(S_WS)}, s93 offen sc1")
A("s_setprio 0")
A("s_branch L_A_dma")

A.lab("L_h1")
if opt.grp == 1:
    A("s_waitcnt vmcnt(4)")
    A.stamp(2, 1)
    A("s_waitcnt vmcnt(0)")
    A.stamp(10, 1)
A(f"s_lshl_b32 s89, s{sH}, 14")
A(f"s_lshl_b32 s90, s{sW}, 12")
A("s_add_u32 s89, s89, s90")
A(f"s_add_u32 s89, s89, {W_H1}")
A(f"s_add_u32 s91, s89, {W_H1B - W_H1}")
A("v_and_b32 v11, 1, v1")
A("v_mul_u32_u24 v11, 272, v11")
A("v_lshl_add_u32 v11, v2, 4, v11")
A("v_lshrrev_b32 v12, 5, v0")
A("v_lshl_add_u32 v11, v12, 1, v11")
A(f"s_lshl_b32 s90, s{sW}, 2")
A(f"s_add_u32 s90, s90, {L_QV}")
A("v_add_u32 v11, s90, v11")
A("v_mul_u32_u24 v12, 272, v4")
A("v_lshl_add_u32 v12, v5, 4, v12")
A(f"v_add_u32 v12, {L_QV}, v12")
poll([f"buffer_load_dwordx4 v[{16+4*i}:{19+4*i}], v6, {srd(S_WS)}, s94 offen offset:{1024*i}" for i in range(4)],
     [18, 22, 26, 30], alt=("s94", "s89", "s91"))
A.stamp(3)
A("v_pk_add_f32 v[16:17], v[16:17], v[20:21]")
A("v_pk_add_f32 v[24:25], v[24:25], v[28:29]")
A("s_nop 0")
A("v_permlane32_swap_b32 v16, v17")
A("v_permlane32_swap_b32 v24, v25")
A("v_add_f32 v16, v16, v17")
A("v_add_f32 v24, v24, v25")
A("v_cvt_pk_bf16_f32 v16, v16, v16")
A("v_cvt_pk_bf16_f32 v24, v24, v24")
A("ds_write_b16 v11, v16")
A("ds_write_b16 v11, v24 offset:544")
A("s_waitcnt lgkmcnt(0)")
A("s_barrier")
A("ds_read_b128 v[16:19], v12")
A("v_bfe_u32 v12, v0, 2, 1")
A("v_bfe_u32 v13, v0, 3, 2")
A("v_lshlrev_b32 v14, 4, v4")
A("v_lshl_add_u32 v14, v12, 2, v14")
A("v_add_u32 v14, v14, v13")
A("v_lshlrev_b32 v14, 2, v14")
A("v_and_b32 v15, 7, v0")
A("v_lshlrev_b32 v15, 4, v15")
A("v_lshl_add_u32 v15, v13, 16, v15")
A("s_waitcnt lgkmcnt(0)")
for t in range(8):
    A(f"v_mfma_f32_16x16x32_bf16 v[{40+4*t}:{43+4*t}], v[{112+4*t}:{115+4*t}], v[16:19], 0")
A(f"s_lshl_b32 s89, s{sH}, 11")
A(f"s_lshr_b32 s90, s{sR}, 2")
A("s_lshl_b32 s90, s90, 9")
A("s_add_u32 s89, s89, s90")
A(f"s_lshl_b32 s90, s{sW}, 7")
A("s_add_u32 s89, s89, s90")
A(f"s_add_u32 s89, s89, {W_H2}")
for t in range(4):
    A(f"v_add_f32_dpp v{24+t}, v{40+4*t+1}, v{40+4*t} row_shl:4 row_mask:0xf bank_mask:0x1")
for t in range(4):
    d = 56 + 4 * t
    A(f"v_add_f32_dpp v{24+t}, v{d}, v{d+1} row_shr:4 row_mask:0xf bank_mask:0x2")
for t in range(4):
    A(f"v_add_f32_dpp v{24+t}, v{40+4*t+2}, v{24+t} row_shl:8 row_mask:0xf bank_mask:0x1")
for t in range(4):
    A(f"v_add_f32_dpp v{24+t}, v{56+4*t+2}, v{24+t} row_shl:4 row_mask:0xf bank_mask:0x2")
for t in range(4):
    A(f"v_add_f32_dpp v{24+t}, v{40+4*t+3}, v{24+t} row_shl:12 row_mask:0xf bank_mask:0x1")
for t in range(4):
    A(f"v_add_f32_dpp v{24+t}, v{56+4*t+3}, v{24+t} row_shl:8 row_mask:0xf bank_mask:0x2")
SC = (128 ** -0.5) * math.log2(math.e)
for t in range(4):
    A(f"v_mul_f32 v{24+t}, {f32(SC)}, v{24+t}")
A("v_cvt_pk_bf16_f32 v28, v24, v25")
A("v_cvt_pk_bf16_f32 v29, v26, v27")
A("ds_bpermute_b32 v16, v14, v28")
A("ds_bpermute_b32 v17, v14, v29")
A(f"v_mov_b32 v18, s{sT0}")
A(f"v_mov_b32 v19, s{sT1}")
A("s_waitcnt lgkmcnt(0)")
execmask(0xFFFFFFFF)
A(f"buffer_store_dwordx4 v[16:19], v15, {srd(S_WS)}, s89 offen sc1")
execall()
A.stamp(4)
A("s_barrier")
ckv_dma(range(15, -1, -1))
A("s_branch L_qgather")
A.lab("L_A_dma")
A("s_barrier")
ckv_dma(range(15, 15 - opt.earlyA, -1))
A("s_barrier")
ckv_dma(range(15 - opt.earlyA, -1, -1))

A.lab("L_qgather")
A(f"s_lshr_b32 s89, s{sX}, 1")
A("s_lshl_b32 s89, s89, 5")
A(f"s_and_b32 s90, s{sR}, 16")
A("s_add_u32 s89, s89, s90")
A(f"s_lshl_b32 s90, s{sW}, 1")
A("s_add_u32 s89, s89, s90")
A("s_lshl_b32 s89, s89, 11")
A(f"s_add_u32 s89, s89, {W_H2}")
A(f"s_lshl_b32 s85, s{sX}, 9")
A(f"s_add_u32 s85, s85, {W_XT}")
A("v_and_b32 v100, 0x1ff, v6")
A("v_lshrrev_b32 v244, 1, v2")
A("v_lshlrev_b32 v247, 7, v244")
A("v_lshlrev_b32 v244, 11, v244")
A("v_lshl_add_u32 v244, v1, 5, v244")
A("v_and_b32 v13, 1, v0")
A("v_lshl_add_u32 v244, v13, 4, v244")
A("v_lshlrev_b32 v248, 2, v2")
A(f"v_add_u32 v248, {L_MX}, v248")
A("v_mov_b32 v249, 0xff800000")
A("ds_write_b32 v248, v249")
A.stamp(5)
A("s_barrier")
ql = [f"buffer_load_dwordx4 v[{80+4*i}:{83+4*i}], v6, {srd(S_WS)}, s89 offen offset:{1024*i}" for i in range(4)]
ql.append(f"buffer_load_dwordx4 v[96:99], v100, {srd(S_WS)}, s85 offen")
qt = [82, 86, 90, 94, 98]
for i in ql:
    A(i + " sc1")
A(f"s_cmp_lt_u32 s{sR}, 16")
A("s_cbranch_scc1 L_tlF")
A("v_lshrrev_b32 v10, 3, v0")
A("v_lshlrev_b32 v10, 14, v10")
A("v_and_b32 v14, 0x70, v6")
A("v_add_u32 v10, v10, v14")
A(f"s_and_b32 s93, s{sR}, 8")
A("s_lshl_b32 s93, s93, 5")
A(f"s_and_b32 s90, s{sW}, 4")
A("s_lshl_b32 s90, s90, 5")
A("s_add_u32 s93, s93, s90")
A(f"s_and_b32 s90, s{sW}, 1")
A("s_lshl_b32 s90, s90, 6")
A("s_add_u32 s93, s93, s90")
A(f"s_bfe_u32 s90, s{sW}, 0x10001")
A("s_add_u32 s93, s93, s90")
A("s_lshl_b32 s93, s93, 13")
A("s_add_u32 s93, s93, s88")
A(f"s_and_b32 s90, s{sR}, 4")
A("s_lshl_b32 s90, s90, 5")
A("s_add_u32 s93, s93, s90")
A("s_barrier")
for e in range(4):
    A(f"buffer_load_dwordx4 v[{212+4*e}:{215+4*e}], v10, {srd(S_WUV)}, s93 offen nt")
    if e < 3:
        A(f"s_add_u32 s93, s93, {16*8192}")
A("s_branch L_tlD")
A.lab("L_tlF")
A(f"s_lshl_b32 s91, s{sX}, 4")
A(f"s_add_u32 s91, s91, s{sR}")
A("s_lshl_b32 s91, s91, 15")
A(f"s_lshl_b32 s90, s{sW}, 12")
A("s_add_u32 s91, s91, s90")
A(f"s_add_u32 s91, s91, {W_H3A}")
A("s_barrier")
for i in range(4):
    A(f"buffer_load_dwordx4 v[208:211], v6, {srd(S_WS)}, s91 offen offset:{1024*i} {opt.pw}")
A.lab("L_tlD")
A("s_waitcnt vmcnt(9)")
A(f"v_mul_u32_u24 v12, {ROWB}, v2")
A("v_lshl_add_u32 v12, v1, 4, v12")
A("v_add_u32 v11, s81, v12")
for ks in range(16):
    A(f"ds_read_b128 v[{16+4*ks}:{19+4*ks}], v11 offset:{64*ks}")
A(f"v_mul_u32_u24 v13, {ROWB}, v5")
A("v_lshl_add_u32 v13, v4, 3, v13")
A(f"s_lshl_b32 s90, s{sW}, 7")
A("v_add_u32 v13, s90, v13")
A(f"v_add_u32 v14, {64*ROWB}, v13")
A("v_lshlrev_b32 v8, 3, v0")
A(f"s_mul_i32 s90, s{sW}, {2*ROWB}")
A(f"s_add_u32 s90, s90, {L_Q}")
A("v_add_u32 v8, s90, v8")
A(f"v_add_u32 v12, {L_Q}, v12")
A("s_barrier")
trl = []
for ks in range(4):
    for t in range(4):
        for hf in range(2):
            base = 14 if ks >= 2 else 13
            off = ((ks & 1) * 32 + 16 * hf) * ROWB + 32 * t
            d = 144 + (ks * 4 + t) * 4 + 2 * hf
            trl.append(f"ds_read_b64_tr_b16 v[{d}:{d+1}], v{base} offset:{off}")
NTR0 = opt.ntr0
for i in trl[:NTR0]:
    A(i)
A("s_waitcnt vmcnt(4)")
for k, t in enumerate(qt):
    if k == 0:
        A(f"v_cmp_ne_u64 vcc, s[{sT0}:{sT1}], v[{t}:{t+1}]")
    else:
        A(f"v_cmp_ne_u64 s[98:99], s[{sT0}:{sT1}], v[{t}:{t+1}]")
        A("s_or_b64 vcc, vcc, s[98:99]")
A("s_cbranch_vccz L_qok")
poll(ql, qt, sleep=opt.qsleep)
A.lab("L_qok")
A.stamp(6)
for i in range(4):
    A(f"ds_write_b64 v8, v[{80+4*i}:{81+4*i}] offset:{(i>>1)*ROWB + (i&1)*512}")
xt_decide(96)
A("s_waitcnt lgkmcnt(0)")
A("s_barrier")
for ks in range(16):
    A(f"ds_read_b128 v[{80+4*ks}:{83+4*ks}], v12 offset:{64*ks}")
S = 228
for ks in range(16):
    A(f"s_waitcnt lgkmcnt({15-ks})")
    c = "0" if ks == 0 else f"v[{S}:{S+3}]"
    A(f"v_mfma_f32_16x16x32_bf16 v[{S}:{S+3}], v[{16+4*ks}:{19+4*ks}], v[{80+4*ks}:{83+4*ks}], {c}")
for i in trl[NTR0:]:
    A(i)
A(f"s_lshr_b32 s90, s{sW}, 1")
A("s_lshl_b32 s90, s90, 10")
A(f"s_and_b32 s93, s{sW}, 1")
A("s_lshl_b32 s93, s93, 3")
A("s_add_u32 s90, s90, s93")
A(f"s_add_u32 s90, s90, {L_P}")
A("v_add_u32 v12, s90, v6")
A.stamp(7)
A(f"v_max_f32 v232, v{S}, v{S+1}")
A(f"v_max3_f32 v232, v{S+2}, v{S+3}, v232")
A("ds_max_f32 v248, v232")
A("v_lshlrev_b32 v13, 16, v1")
A("v_lshl_add_u32 v13, v2, 3, v13")
A(f"s_lshl_b32 s93, s{sX}, 5")
A(f"s_and_b32 s90, s{sR}, 16")
A("s_add_u32 s93, s93, s90")
A("s_lshl_b32 s95, s93, 8")
A("s_lshl_b32 s93, s93, 14")
A("s_waitcnt lgkmcnt(0)")
A("s_barrier")
A("ds_read_b32 v232, v248")
A(f"s_and_b32 s90, s{sR}, 15")
A("s_lshl_b32 s96, s90, 4")
A("s_add_u32 s95, s95, s96")
A(f"s_add_u32 s95, s95, {W_ST3}")
A("s_lshl_b32 s90, s90, 10")
A("s_add_u32 s93, s93, s90")
A(f"s_lshl_b32 s90, s{sW}, 7")
A("s_add_u32 s93, s93, s90")
A(f"s_add_u32 s93, s93, {W_H3A}")
A(f"v_add_u32 v11, {L_P}, v6")
A("s_waitcnt lgkmcnt(0)")
for i in range(4):
    A(f"v_sub_f32 v{S+i}, v{S+i}, v232")
for i in range(4):
    A(f"v_exp_f32 v{S+i}, v{S+i}")
A("s_nop 0")
A(f"v_cvt_pk_bf16_f32 v234, v{S}, v{S+1}")
A(f"v_cvt_pk_bf16_f32 v235, v{S+2}, v{S+3}")
A("ds_write_b64 v12, v[234:235]")
A("s_add_u32 s78, s93, 16384")
A("s_add_u32 s79, s93, 32768")
A("s_add_u32 s96, s93, 49152")
A("s_waitcnt lgkmcnt(0)")
A("s_barrier")
for ks in range(4):
    A(f"ds_read_b128 v[{80+4*ks}:{83+4*ks}], v11 offset:{1024*ks}")
A(f"v_mov_b32 v234, s{sT0}")
A(f"v_mov_b32 v235, s{sT1}")
for i in range(4):
    A(f"v_mov_b32 v{240+i}, 0x3f803f80")


def pv(ks):
    A(f"s_waitcnt lgkmcnt({3-ks})")
    for t in range(4):
        c = "0" if ks == 0 else f"v[{96+4*t}:{99+4*t}]"
        bb = 144 + (ks * 4 + t) * 4
        A(f"v_mfma_f32_16x16x32_bf16 v[{96+4*t}:{99+4*t}], v[{80+4*ks}:{83+4*ks}], v[{bb}:{bb+3}], {c}")


pv(0)
pv(1)
pv(2)
pv(3)
A("v_lshlrev_b32 v12, 8, v2")
A(f"v_mov_b32 v238, s{sT0}")
A(f"v_mov_b32 v239, s{sT1}")
A("s_nop 4")
for r_ in range(4):
    A(f"v_cvt_pk_bf16_f32 v{112+2*r_}, v{96+r_}, v{100+r_}")
    A(f"v_cvt_pk_bf16_f32 v{113+2*r_}, v{104+r_}, v{108+r_}")
so = ["s93", "s78", "s79", "s96"]
store_local([f"buffer_store_dwordx2 v[{112+2*r_}:{113+2*r_}], v13, {srd(S_WS)}, {so[r_]} offen" for r_ in range(4)])
A.stamp(1, 2)
for ks in range(4):
    c = "0" if ks == 0 else "v[228:231]"
    A(f"v_mfma_f32_16x16x32_bf16 v[228:231], v[240:243], v[{80+4*ks}:{83+4*ks}], {c}")
A(f"s_cmp_lt_u32 s{sR}, 16")
A("s_cbranch_scc1 L_F")

A("v_lshlrev_b32 v9, 10, v1")
A("v_lshl_add_u32 v9, v2, 4, v9")
A(f"s_and_b32 s87, s{sR}, 15")
A("s_lshl_b32 s87, s87, 1")
A(f"s_lshr_b32 s90, s{sW}, 2")
A("s_add_u32 s87, s87, s90")
A(f"s_lshl_b32 s91, s{sX}, 5")
A("s_add_u32 s91, s91, s87")
A("s_lshl_b32 s86, s91, 8")
A(f"s_add_u32 s86, s86, {W_ST3}")
A("s_lshl_b32 s91, s91, 14")
A(f"s_and_b32 s90, s{sW}, 3")
A("s_lshl_b32 s90, s90, 8")
A("s_add_u32 s91, s91, s90")
A(f"s_add_u32 s91, s91, {W_H3A}")
A("s_add_u32 s92, s91, 4096")
A("s_add_u32 s94, s91, 8192")
A("s_add_u32 s97, s91, 12288")
A("v_add_u32 v14, v1, v2")
A("v_and_b32 v14, 15, v14")
A("v_lshlrev_b32 v14, 4, v14")
A("v_lshrrev_b32 v15, 5, v0")
A("v_lshlrev_b32 v15, 8, v15")
A("v_lshl_add_u32 v15, v2, 4, v15")
A("s_lshl_b32 s93, s87, 3")
A(f"s_add_u32 s93, s93, s{sX}")
A("s_lshl_b32 s96, s93, 7")
A(f"s_add_u32 s96, s96, {W_STX}")
A("s_lshl_b32 s93, s93, 11")
A(f"s_and_b32 s90, s{sW}, 3")
A("s_lshl_b32 s90, s90, 9")
A("s_add_u32 s93, s93, s90")
A(f"s_add_u32 s93, s93, {W_H3B}")
A("s_waitcnt vmcnt(0)")
A("s_barrier")
l = A.newlab()
A(f"s_cmp_lg_u32 s{sW}, 1")
A(f"s_cbranch_scc1 {l}")
A("v_mov_b32 v233, v228")
execmask(0xFFFF)
store_local([f"buffer_store_dwordx4 v[232:235], v12, {srd(S_WS)}, s95 offen"])
execall()
A.lab(l)
A.stamp(8)
poll([f"buffer_load_dwordx4 v[16:19], v14, {srd(S_WS)}, s86 offen"], [18])
for i, so in enumerate(("s91", "s92", "s94", "s97")):
    A(f"buffer_load_dwordx4 v[{32+4*i}:{35+4*i}], v9, {srd(S_WS)}, {so} offen sc1")
A.stamp(3)
A("v_mov_b32 v24, v16")
rowall("v_max_f32", [24])
A("v_sub_f32 v16, v16, v24")
A("v_exp_f32 v16, v16")
A("s_nop 0")
A("v_mul_f32 v25, v16, v17")
rowall("v_add_f32", [25])
A("v_rcp_f32 v26, v25")
A("v_log_f32 v232, v25")
A("v_mov_b32 v233, 0")
A("v_mul_f32 v16, v16, v26")
A("v_add_f32 v232, v232, v24")
l = A.newlab()
A(f"s_and_b32 s90, s{sW}, 3")
A(f"s_cbranch_scc1 {l}")
A("s_mov_b64 exec, 1")
A(f"buffer_store_dwordx4 v[232:235], v233, {srd(S_WS)}, s96 offen sc1")
execall()
A("s_waitcnt vmcnt(1)")
A.lab(l)
for i in range(4):
    A(f"v_mov_b32_dpp v{24+2*i}, v16 row_newbcast:{4*i} {DPPM}")
for i in range(4):
    if i == 3:
        lx = A.newlab()
        A(f"s_cbranch_scc0 {lx}")
        A("s_waitcnt vmcnt(0)")
        A.lab(lx)
    else:
        A(f"s_waitcnt vmcnt({3-i})")
    for d in range(4):
        unpack(56 + 2 * d, 57 + 2 * d, 32 + 4 * i + d)
    for d in range(4):
        if i == 0:
            A(f"v_pk_mul_f32 v[{48+2*d}:{49+2*d}], v[{56+2*d}:{57+2*d}], v[24:25] op_sel_hi:[1,0]")
        else:
            A(f"v_pk_fma_f32 v[{48+2*d}:{49+2*d}], v[{56+2*d}:{57+2*d}], v[{24+2*i}:{25+2*i}], v[{48+2*d}:{49+2*d}] op_sel_hi:[1,0,1]")
A("s_nop 1")
for e in range(4):
    A(f"v_permlane32_swap_b32 v{48+e}, v{52+e}")
A("v_pk_add_f32 v[48:49], v[48:49], v[52:53]")
A("v_pk_add_f32 v[50:51], v[50:51], v[54:55]")
A("s_nop 1")
A("v_permlane16_swap_b32 v48, v50")
A("v_permlane16_swap_b32 v49, v51")
A("s_nop 0")
A("v_pk_add_f32 v[48:49], v[48:49], v[50:51]")
A("v_cvt_pk_bf16_f32 v236, v48, v49")
A("v_cvt_pk_bf16_f32 v237, v48, v49")
A("s_nop 1")
A("v_permlane16_swap_b32 v236, v237")
execmask(0x0000FFFF0000FFFF)
A(f"buffer_store_dwordx4 v[236:239], v15, {srd(S_WS)}, s93 offen sc1")
execall()
A.stamp(4)
A(f"s_and_b32 s91, s{sR}, 15")
A("s_lshl_b32 s91, s91, 3")
A(f"s_add_u32 s91, s91, s{sW}")
A(f"s_mul_i32 s94, s{sX}, 7")
A("s_add_u32 s94, s94, 6")
A("s_cmp_lt_u32 s91, 40")
A("s_cbranch_scc0 L_pf2")
A("v_mul_u32_u24 v15, 3456, v5")
A("v_lshl_add_u32 v15, v4, 4, v15")
A(f"s_mul_i32 s90, s91, {16*3456}")
A("s_lshl_b32 s92, s94, 6")
A("s_add_u32 s90, s90, s92")
A(f"buffer_load_dwordx4 v[208:211], v15, {srd(S_W1)}, s90 offen")
A("s_branch L_pf3")
A.lab("L_pf2")
A("s_cmp_lt_u32 s91, 80")
A("s_cbranch_scc0 L_pf3")
A("s_sub_u32 s90, s91, 40")
A("s_lshl_b32 s90, s90, 10")
A(f"s_mul_i32 s92, s94, {32*1280}")
A("s_add_u32 s90, s90, s92")
A(f"buffer_load_dwordx4 v[208:211], v6, {srd(S_W2)}, s90 offen")
A.lab("L_pf3")

transpose(80, [212, 216, 220, 224], 4, dup=True)
A("v_and_b32 v14, 7, v0")
A("v_lshlrev_b32 v14, 5, v14")
A("v_lshl_add_u32 v14, v1, 8, v14")
A(f"s_lshl_b32 s90, s{sW}, 10")
A(f"s_add_u32 s90, s90, {L_RED}")
A("v_add_u32 v14, s90, v14")
A("v_lshlrev_b32 v15, 11, v1")
A("v_lshl_add_u32 v15, v2, 4, v15")
A(f"s_lshl_b32 s96, s{sX}, 14")
A(f"s_and_b32 s90, s{sR}, 8")
A("s_lshl_b32 s90, s90, 10")
A("s_add_u32 s96, s96, s90")
A(f"s_and_b32 s90, s{sR}, 3")
A("s_lshl_b32 s90, s90, 9")
A("s_add_u32 s96, s96, s90")
A(f"s_and_b32 s90, s{sR}, 4")
A("s_lshl_b32 s90, s90, 6")
A("s_add_u32 s96, s96, s90")
A(f"s_add_u32 s96, s96, {W_H4}")
poll([f"buffer_load_dwordx4 v[208:211], v244, {srd(S_WS)}, s100 offen",
      f"buffer_load_dwordx4 v[216:219], v247, {srd(S_WS)}, s101 offen"], [210, 218])
A.stamp(9)
A(f"v_subrev_f32_dpp v217, v216, v216 quad_perm:[2,3,0,1] {DPPM}")
unpack(220, 221, 208)
A("v_exp_f32 v217, -v217")
unpack(222, 223, 209)
A("v_add_f32 v217, 1.0, v217")
A("v_rcp_f32 v216, v217")
A("s_nop 0")
A("v_pk_mul_f32 v[220:221], v[220:221], v[216:217] op_sel_hi:[1,0]")
A("v_pk_mul_f32 v[222:223], v[222:223], v[216:217] op_sel_hi:[1,0]")
A("v_cvt_pk_bf16_f32 v208, v220, v221")
A("v_cvt_pk_bf16_f32 v209, v222, v223")
A("s_nop 1")
A(f"v_mov_b32_dpp v212, v208 quad_perm:[0,1,0,1] {DPPM}")
A(f"v_mov_b32_dpp v213, v209 quad_perm:[0,1,0,1] {DPPM}")
A(f"v_mov_b32_dpp v214, v208 quad_perm:[2,3,2,3] {DPPM}")
A(f"v_mov_b32_dpp v215, v209 quad_perm:[2,3,2,3] {DPPM}")
A("s_nop 1")
for jj in range(8):
    d = 144 + 4 * jj
    A(f"v_mfma_f32_16x16x32_bf16 v[{d}:{d+3}], v[212:215], v[{80+4*jj}:{83+4*jj}], 0")
A("s_nop 1")
for jj in range(8):
    d = 144 + 4 * jj
    A(f"v_add_f32_dpp v{216+jj}, v{d+1}, v{d} row_shl:8 {DPPM}")
execmask(M_N8)
A("ds_write_b128 v14, v[216:219]")
A("ds_write_b128 v14, v[220:223] offset:16")
execall()
A("s_waitcnt lgkmcnt(0)")
A("s_barrier")
A(f"s_cmp_lt_u32 s{sW}, 2")
A("s_cbranch_scc1 L_red")
A(f"s_cmp_lt_u32 s{sW}, 4")
A("s_cbranch_scc1 L_s8")
if opt.wb:
    A(f"s_cmp_lg_u32 s{sW}, 4")
    A("s_cbranch_scc1 L_nowb")
    A(f"s_cmp_lg_u32 s{sR}, 27")
    A("s_cbranch_scc1 L_fin")
    A("buffer_wbl2 sc1")
    A("s_branch L_fin")
    A.lab("L_nowb")
A(f"s_cmp_lg_u32 s{sW}, 7")
A("s_cbranch_scc1 L_fin")
for s_ in range(8):
    A(f"ds_read_b128 v[{144+4*s_}:{147+4*s_}], v6 offset:{L_RED + 1024*s_}")
A("s_waitcnt lgkmcnt(0)")
sum_b128(8, 144)
A("v_cvt_pk_bf16_f32 v236, v144, v145")
A("v_cvt_pk_bf16_f32 v237, v146, v147")
store_local([f"buffer_store_dwordx4 v[236:239], v15, {srd(S_WS)}, s96 offen"])
A.stamp(10)
A("s_branch L_fin")

A.lab("L_red")
A(f"s_cmp_lt_u32 s{sR}, 26")
A("s_cbranch_scc0 L_fin")
A(f"s_and_b32 s94, s{sR}, 15")
A("v_and_b32 v12, 1, v1")
A("v_mul_u32_u24 v13, 1280, v12")
A("v_lshl_add_u32 v13, v2, 3, v13")
A("v_lshrrev_b32 v15, 5, v0")
A("v_lshl_add_u32 v13, v15, 2, v13")
A(f"s_mul_i32 s90, s{sW}, 2560")
A("s_lshl_b32 s93, s94, 7")
A("s_add_u32 s90, s90, s93")
A(f"buffer_load_dword v200, v13, {srd(S_X)}, s90 offen")
A("v_mul_u32_u24 v13, 2560, v12")
A("v_lshl_add_u32 v13, v2, 4, v13")
A(f"s_mul_i32 s96, s{sX}, 10240")
A(f"s_mul_i32 s90, s{sW}, 5120")
A("s_add_u32 s96, s96, s90")
A("s_lshl_b32 s90, s94, 8")
A("s_add_u32 s96, s96, s90")
A(f"s_add_u32 s96, s96, {W_H5C}")
A("v_and_b32 v14, 0x1ff, v6")
A("v_lshl_add_u32 v14, v15, 10, v14")
A("s_lshl_b32 s95, s94, 13")
A(f"s_lshl_b32 s90, s{sW}, 9")
A("s_add_u32 s95, s95, s90")
A(f"s_add_u32 s95, s95, {W_H5B}")
A("s_add_u32 s93, s95, 4096")
poll([f"buffer_load_dwordx4 v[{144+4*i}:{147+4*i}], v14, {srd(S_WS)}, {'s95' if i < 2 else 's93'} offen offset:{2048*(i&1)}" for i in range(4)],
     [146 + 4 * i for i in range(4)])
for i in range(4):
    unpack(160 + 4 * i, 161 + 4 * i, 144 + 4 * i)
    unpack(162 + 4 * i, 163 + 4 * i, 145 + 4 * i)
unpack(202, 203, 200)
sum_b128(4, 160)
A("s_nop 1")
A("v_permlane32_swap_b32 v160, v162")
A("v_permlane32_swap_b32 v161, v163")
A("s_nop 0")
A("v_pk_add_f32 v[160:161], v[160:161], v[162:163]")
A("v_pk_add_f32 v[160:161], v[160:161], v[202:203]")
A("v_cvt_pk_bf16_f32 v236, v160, v161")
A("v_cvt_pk_bf16_f32 v237, v160, v161")
A("s_nop 1")
A("v_permlane32_swap_b32 v236, v237")
execmask(0xFFFFFFFF)
store_local([f"buffer_store_dwordx4 v[236:239], v13, {srd(S_WS)}, s96 offen"])
execall()
A.stamp(11)
A("s_branch L_fin")

A.lab("L_s8")
A(f"s_sub_u32 s94, 31, s{sR}")
A("s_lshl_b32 s94, s94, 3")
A(f"s_add_u32 s94, s94, s{sX}")
A(f"s_and_b32 s90, s{sW}, 1")
A("s_lshl_b32 s90, s90, 7")
A("s_add_u32 s94, s94, s90")
A("s_cmp_lt_u32 s94, 160")
A("s_cbranch_scc0 L_fin")
A("s_mul_i32 s90, s94, 1639")
A("s_lshr_b32 s90, s90, 16")
A("s_mul_i32 s93, s90, 40")
A("s_sub_u32 s93, s94, s93")
A("s_lshr_b32 s95, s93, 3")
A("s_lshl_b32 s95, s95, 5")
A("s_bfe_u32 s96, s93, 0x10002")
A("s_add_u32 s95, s95, s96")
A("s_and_b32 s96, s93, 3")
A("s_lshl_b32 s96, s96, 3")
A("s_add_u32 s95, s95, s96")
A("v_mul_u32_u24 v12, 10240, v5")
A("v_lshl_add_u32 v12, v4, 4, v12")
A("s_lshl_b32 s78, s94, 6")
A(f"s_add_u32 s78, s78, {W_H6}")
A(f"s_add_u32 s79, s78, {16*10240}")
A(f"s_add_u32 s80, s78, {32*10240}")
A(f"s_add_u32 s81, s78, {48*10240}")
A("v_add_u32 v13, s81, v12")
A(f"s_lshl_b32 s82, s{sX}, 2")
A("s_add_u32 s82, s82, s90")
A("s_mul_i32 s82, s82, 160")
A("s_add_u32 s82, s82, s95")
A("s_lshl_b32 s82, s82, 4")
A(f"s_add_u32 s82, s82, {W_H5C}")
A("v_lshlrev_b32 v14, 5, v4")
A("v_add_u32 v14, s82, v14")
A("v_cmp_gt_u32 vcc, 6, v5")
A("s_nop 1")
A("v_cndmask_b32 v13, v14, v13, vcc")
A("s_mul_i32 s83, s90, 1280")
A("s_lshl_b32 s84, s95, 3")
A("s_add_u32 s83, s83, s84")
A("v_lshlrev_b32 v15, 4, v4")
A("v_lshl_add_u32 v15, v1, 1, v15")
s8l = [f"buffer_load_dwordx4 v[144:147], v12, {srd(S_WS)}, s78 offen",
       f"buffer_load_dwordx4 v[148:151], v12, {srd(S_WS)}, s79 offen",
       f"buffer_load_dwordx4 v[152:155], v12, {srd(S_WS)}, s80 offen",
       f"buffer_load_dwordx4 v[156:159], v13, {srd(S_WS)}, 0 offen"]
for i in s8l:
    A(i + " sc1")
poll([f"buffer_load_dwordx4 v[164:167], v14, {srd(S_WS)}, 0 offen"], [166], sleep=2)
poll(s8l, [146, 150, 154, 158])
A("v_cmp_gt_u32 vcc, 7, v5")
A("s_nop 1")
A("v_cndmask_b32 v156, 0, v156, vcc")
A("v_cndmask_b32 v157, 0, v157, vcc")
for i in range(4):
    unpack(160 + 4 * i, 161 + 4 * i, 144 + 4 * i)
    unpack(162 + 4 * i, 163 + 4 * i, 145 + 4 * i)
sum_b128(4, 160)
A("s_nop 1")
A("v_permlane32_swap_b32 v160, v162")
A("v_permlane32_swap_b32 v161, v163")
A("s_nop 0")
A("v_pk_add_f32 v[160:161], v[160:161], v[162:163]")
A("s_nop 1")
A("v_permlane16_swap_b32 v160, v161")
A("s_nop 0")
A("v_add_f32 v160, v160, v161")
A("s_nop 1")
A(f"v_add_f32_dpp v160, v160, v160 row_ror:8 {DPPM}")
A("s_nop 1")
A(f"v_add_f32_dpp v160, v160, v160 row_ror:4 {DPPM}")
A("s_nop 0")
A("v_cvt_pk_bf16_f32 v160, v160, v160")
execmask(M_N4)
A(f"buffer_store_short v160, v15, {srd(S_OUT)}, s83 offen")
execall()
A("s_cmp_lg_u32 s94, 0")
A("s_cbranch_scc1 L_s8x")
A("v_mov_b32 v12, 0")
A("s_mov_b64 exec, 1")
A(f"buffer_store_dwordx2 v[238:239], v12, {srd(S_WS)}, 0 offen sc1")
execall()
A.lab("L_s8x")
if opt.padto:
    A.lab("L_pad")
    A("s_memrealtime s[6:7]")
    A("s_waitcnt lgkmcnt(0)")
    A("s_sub_u32 s6, s6, s4")
    A(f"s_cmp_lt_u32 s6, {opt.padto*100}")
    A("s_cbranch_scc1 L_pad")
A.stamp(11)
A("s_branch L_fin")

A.lab("L_F")
A("s_nop 7")
A("s_waitcnt vmcnt(0)")
A("s_barrier")
l = A.newlab()
A(f"s_cmp_lg_u32 s{sW}, 0")
A(f"s_cbranch_scc1 {l}")
A("v_mov_b32 v233, v228")
execmask(0xFFFF)
store_local([f"buffer_store_dwordx4 v[232:235], v12, {srd(S_WS)}, s95 offen"])
execall()
A.lab(l)
A.stamp(8)
A(f"s_sub_u32 s94, 15, s{sR}")
A(f"s_mul_i32 s90, s{sX}, 7")
A("s_add_u32 s94, s94, s90")
A(f"s_cmp_gt_u32 s{sR}, 8")
A("s_cselect_b32 s94, s94, 99")
A(f"s_cmp_lt_u32 s{sW}, 5")
A("s_cselect_b32 s97, s94, 99")
A(f"s_cmp_lt_u32 s{sR}, 10")
A("s_cbranch_scc0 L_F1")
A("v_lshrrev_b32 v15, 3, v0")
A("v_mul_u32_u24 v15, 10240, v15")
A("v_and_b32 v13, 0x70, v6")
A("v_add_u32 v15, v15, v13")
A(f"s_lshl_b32 s93, s{sX}, 3")
A(f"s_add_u32 s93, s93, s{sW}")
A(f"s_mul_i32 s93, s93, {64*1280}")
A(f"s_lshl_b32 s90, s{sR}, 7")
A("s_add_u32 s93, s93, s90")
A("s_add_u32 s90, s93, 5120")
for i in range(8):
    so = "s93" if i < 4 else "s90"
    A(f"s_waitcnt vmcnt({opt.kf-1})")
    A(f"buffer_load_dwordx4 v[{144+4*i}:{147+4*i}], v15, {srd(S_WO)}, {so} offen offset:{1280*(i&3)} nt")
A.lab("L_s5")
A("s_waitcnt vmcnt(0)")
transpose(176, [144 + 4 * i for i in range(8)], 4)
A("v_lshl_add_u32 v12, v3, 11, v7")
A(f"s_lshl_b32 s95, s{sX}, 14")
A(f"s_lshl_b32 s90, s{sW}, 8")
A("s_add_u32 s95, s95, s90")
A(f"s_add_u32 s95, s95, {W_H4}")
A("s_add_u32 s96, s95, 8192")
A("v_and_b32 v14, 7, v0")
A("v_lshlrev_b32 v14, 5, v14")
A("v_lshl_add_u32 v14, v1, 8, v14")
A(f"s_lshl_b32 s90, s{sW}, 10")
A(f"s_add_u32 s90, s90, {L_RED}")
A("v_add_u32 v14, s90, v14")
poll([f"buffer_load_dwordx4 v[208:211], v12, {srd(S_WS)}, s95 offen",
      f"buffer_load_dwordx4 v[212:215], v12, {srd(S_WS)}, s96 offen"], [210, 214], sleep=1)
A.stamp(9, 0)
unpack(216, 217, 208); unpack(218, 219, 209); unpack(220, 221, 212); unpack(222, 223, 213)
A("v_pk_add_f32 v[216:217], v[216:217], v[220:221]")
A("v_pk_add_f32 v[218:219], v[218:219], v[222:223]")
A("v_cvt_pk_bf16_f32 v208, v216, v217")
A("v_cvt_pk_bf16_f32 v209, v218, v219")
A("s_nop 1")
A(f"v_mov_b32_dpp v212, v208 quad_perm:[0,2,0,2] {DPPM}")
A(f"v_mov_b32_dpp v213, v209 quad_perm:[0,2,0,2] {DPPM}")
A(f"v_mov_b32_dpp v214, v208 quad_perm:[1,3,1,3] {DPPM}")
A(f"v_mov_b32_dpp v215, v209 quad_perm:[1,3,1,3] {DPPM}")
A("s_nop 1")
for jj in range(8):
    d = 144 + 4 * jj
    A(f"v_mfma_f32_16x16x32_bf16 v[{d}:{d+3}], v[212:215], v[{176+4*jj}:{179+4*jj}], 0")
A("s_nop 1")
for jj in range(8):
    d = 144 + 4 * jj
    A(f"v_add_f32_dpp v{216+jj}, v{d+1}, v{d} row_shl:8 {DPPM}")
execmask(M_N8)
A("ds_write_b128 v14, v[216:219]")
A("ds_write_b128 v14, v[220:223] offset:16")
execall()
A("s_waitcnt lgkmcnt(0)")
A("s_barrier")
A(f"s_cmp_lg_u32 s{sW}, 7")
A("s_cbranch_scc1 L_F1")
for s in range(8):
    A(f"ds_read_b128 v[{144+4*s}:{147+4*s}], v6 offset:{L_RED + 1024*s}")
A(f"s_lshl_b32 s95, s{sR}, 3")
A(f"s_add_u32 s95, s95, s{sX}")
A("s_lshl_b32 s95, s95, 10")
A(f"s_add_u32 s95, s95, {W_H5B}")
A("s_waitcnt lgkmcnt(0)")
sum_b128(8, 144)
A("v_cvt_pk_bf16_f32 v236, v144, v145")
A("v_cvt_pk_bf16_f32 v237, v146, v147")
A(f"buffer_store_dwordx4 v[236:239], v6, {srd(S_WS)}, s95 offen sc1")
A.stamp(11)
A("s_branch L_fin")

A.lab("L_F1")
A("s_cmp_lt_u32 s97, 54")
A("s_cbranch_scc0 L_fin")
A("v_mul_u32_u24 v15, 13824, v5")
A("v_lshl_add_u32 v15, v4, 4, v15")
A(f"s_mul_i32 s93, s{sW}, {128*3456}")
A("s_lshl_b32 s90, s94, 6")
A("s_add_u32 s93, s93, s90")
for i in range(8):
    A(f"s_add_u32 s90, s93, {((i & 3) + 64*(i >> 2))*3456}")
    A(f"s_waitcnt vmcnt({opt.kf+1})")
    A(f"buffer_load_dwordx4 v[{16+4*i}:{19+4*i}], v15, {srd(S_W1)}, s90 offen nt")
A("v_mul_u32_u24 v15, 10240, v1")
A("v_lshl_add_u32 v15, v2, 4, v15")
A(f"s_mul_i32 s93, s94, {32*1280}")
A(f"s_lshl_b32 s90, s{sW}, 8")
A("s_add_u32 s93, s93, s90")
A("s_add_u32 s90, s93, 5120")
for i in range(8):
    so = "s93" if i < 4 else "s90"
    A(f"s_waitcnt vmcnt({opt.kf+1})")
    A(f"buffer_load_dwordx4 v[{48+4*i}:{51+4*i}], v15, {srd(S_W2)}, {so} offen offset:{1280*(i&3)} nt")
A("s_waitcnt vmcnt(0)")
A.stamp(2, 0)
transpose(80, [16 + 4 * i for i in range(8)], 4)
transpose(112, [48 + 4 * i for i in range(8)], 4)
for i in range(4):
    A(f"v_mov_b32 v{48+i}, 0x3f803f80")
A("s_nop 1")
for jj in range(8):
    A(f"v_mfma_f32_16x16x32_bf16 v[{16+4*jj}:{19+4*jj}], v[48:51], v[{80+4*jj}:{83+4*jj}], 0")
A("s_nop 1")
dppsum([56 + jj for jj in range(8)], [16 + 4 * jj for jj in range(8)])
A("v_lshlrev_b32 v14, 5, v4")
A(f"s_lshl_b32 s90, s{sW}, 7")
A(f"s_add_u32 s90, s90, {L_CS}")
A("v_add_u32 v14, s90, v14")
A("s_mov_b64 exec, 15")
A("ds_write_b128 v14, v[56:59]")
A("ds_write_b128 v14, v[60:63] offset:16")
execall()
A("s_waitcnt lgkmcnt(0)")
A("s_barrier")
A.lab("L_s67")
A("v_lshrrev_b32 v14, 1, v7")
for s in range(5):
    A(f"ds_read_b64 v[{16+2*s}:{17+2*s}], v14 offset:{L_CS + 128*s}")
A("v_mul_u32_u24 v12, 2560, v3")
A("v_add_u32 v12, v12, v7")
A(f"s_mul_i32 s95, s{sX}, 10240")
A(f"s_lshl_b32 s90, s{sW}, 9")
A("s_add_u32 s95, s95, s90")
A(f"s_add_u32 s95, s95, {W_H5C}")
A("v_lshlrev_b32 v13, 1, v7")
A(f"s_add_u32 s90, s90, {L_RED2}")
A("v_add_u32 v13, s90, v13")
A("v_lshlrev_b32 v10, 3, v1")
A(f"s_lshl_b32 s90, s{sW}, 5")
A(f"s_add_u32 s90, s90, {L_RS}")
A("v_add_u32 v10, s90, v10")
A("v_lshl_add_u32 v14, v3, 7, v14")
A("v_lshlrev_b32 v11, 3, v3")
A("v_mul_u32_u24 v9, 2560, v1")
A("v_lshl_add_u32 v9, v2, 4, v9")
A("s_mul_i32 s96, s94, 10240")
A(f"s_lshl_b32 s90, s{sW}, 9")
A("s_add_u32 s96, s96, s90")
A(f"s_add_u32 s96, s96, {W_H6}")
A("s_waitcnt lgkmcnt(0)")
for s in range(1, 5):
    A(f"v_pk_add_f32 v[16:17], v[16:17], v[{16+2*s}:{17+2*s}]")
poll([f"buffer_load_dwordx4 v[208:211], v12, {srd(S_WS)}, s95 offen",
      f"buffer_load_dwordx4 v[212:215], v12, {srd(S_WS)}, s95 offen offset:256"], [210, 214], sleep=1)
A.stamp(10, 0)
A("v_mov_b32 v210, v212")
A("v_mov_b32 v211, v213")
A("s_nop 1")
A("v_mfma_f32_16x16x32_bf16 v[184:187], v[208:211], v[48:51], 0")
A("v_mfma_f32_16x16x32_bf16 v[188:191], v[208:211], v[208:211], 0")
for jj in range(8):
    d = 144 + 4 * jj
    A(f"v_mfma_f32_16x16x32_bf16 v[{d}:{d+3}], v[208:211], v[{80+4*jj}:{83+4*jj}], 0")
A("v_add_f32 v192, v184, v185")
A(f"v_add_f32_dpp v193, v189, v188 row_shl:1 {DPPM}")
A("v_add_f32 v194, v186, v187")
A("s_nop 0")
A(f"v_add_f32_dpp v193, v190, v193 row_shl:2 {DPPM}")
A("v_add_f32 v192, v192, v194")
A("s_nop 0")
A(f"v_add_f32_dpp v193, v191, v193 row_shl:3 {DPPM}")
execmask(0x1000010000100001)
A("ds_write_b64 v10, v[192:193]")
execall()
dppsum([176 + i for i in range(8)], [144 + 4 * i for i in range(8)])
execmask(M_N4)
A("ds_write_b128 v13, v[176:179]")
A("ds_write_b128 v13, v[180:183] offset:16")
execall()
A("s_waitcnt lgkmcnt(0)")
A("s_barrier")
for s in range(5):
    A(f"ds_read_b64 v[{160+2*s}:{161+2*s}], v11 offset:{L_RS + 32*s}")
for s in range(5):
    A(f"ds_read_b64 v[{144+2*s}:{145+2*s}], v14 offset:{L_RED2 + 512*s}")
A("s_waitcnt lgkmcnt(5)")
for s in range(1, 5):
    A(f"v_pk_add_f32 v[160:161], v[160:161], v[{160+2*s}:{161+2*s}]")
A(f"v_mul_f32 v160, {f32(1/640)}, v160")
A(f"v_mul_f32 v161, {f32(1/640)}, v161")
A("v_fma_f32 v161, -v160, v160, v161")
A("v_max_f32 v161, 0, v161")
A(f"v_add_f32 v161, {f32(1e-5)}, v161")
A("v_rsq_f32 v161, v161")
A("s_waitcnt lgkmcnt(0)")
for s in range(1, 5):
    A(f"v_pk_add_f32 v[144:145], v[144:145], v[{144+2*s}:{145+2*s}]")
A("v_fma_f32 v144, -v160, v16, v144")
A("v_fma_f32 v145, -v160, v17, v145")
A("v_mul_f32 v144, v144, v161")
A("v_mul_f32 v145, v145, v161")
A(f"v_mul_f32 v146, {f32(-math.log2(math.e))}, v144")
A(f"v_mul_f32 v147, {f32(-math.log2(math.e))}, v145")
A("v_exp_f32 v146, v146")
A("v_exp_f32 v147, v147")
A("s_nop 0")
A("v_add_f32 v146, 1.0, v146")
A("v_add_f32 v147, 1.0, v147")
A("v_rcp_f32 v146, v146")
A("v_rcp_f32 v147, v147")
A("s_nop 0")
A("v_mul_f32 v144, v144, v146")
A("v_mul_f32 v145, v145, v147")
A("v_cvt_pk_bf16_f32 v148, v144, v145")
A("s_nop 1")
for i in range(4):
    A(f"v_mov_b32_dpp v{208+i}, v148 quad_perm:[{i},{i},{i},{i}] {DPPM}")
A("s_nop 1")
for jj in range(8):
    d = 144 + 4 * jj
    A(f"v_mfma_f32_16x16x32_bf16 v[{d}:{d+3}], v[208:211], v[{112+4*jj}:{115+4*jj}], 0")
A("s_nop 3")
A("v_cvt_pk_bf16_f32 v232, v144, v148")
A("v_cvt_pk_bf16_f32 v233, v152, v156")
A(f"buffer_store_dwordx4 v[232:235], v9, {srd(S_WS)}, s96 offen sc1")
A("s_nop 1")
A("v_cvt_pk_bf16_f32 v236, v160, v164")
A("v_cvt_pk_bf16_f32 v237, v168, v172")
A(f"buffer_store_dwordx4 v[236:239], v9, {srd(S_WS)}, s96 offen offset:256 sc1")
A.stamp(11)

A.lab("L_fin")
if opt.dbgstamps:
    A("s_waitcnt vmcnt(0) lgkmcnt(0)")
    A("s_load_dwordx2 s[92:93], s[0:1], 80")
    A("s_mov_b32 s94, 256")
    A("s_mov_b32 s95, 0x00020000")
    A("v_mov_b32 v8, 0")
    A("s_waitcnt lgkmcnt(0)")
    A("s_mov_b64 exec, 1")
    A("s_not_b32 s90, s4")
    A("v_mov_b32 v9, s90")
    A("buffer_atomic_umax v9, v8, s[92:95], 0 offen offset:60")
    A(f"s_cmp_lt_u32 s{sR}, 16")
    for i in range(12):
        A(f"v_mov_b32 v9, s{4+2*i}")
        if i in (3, 4, 9):
            o2 = {3: 48, 4: 52, 9: 56}[i]
            A(f"s_cselect_b32 s91, {4*i}, {o2}")
            A(f"buffer_atomic_umax v9, v8, s[92:95], s91 offen")
        else:
            A(f"buffer_atomic_umax v9, v8, s[92:95], 0 offen offset:{4*i}")
    A("s_branch L_end")
if opt.stamps:
    A("s_waitcnt vmcnt(0) lgkmcnt(0)")
    A(f"s_lshl_b32 s90, s2, 3")
    A(f"s_add_u32 s90, s90, s{sW}")
    A("s_lshl_b32 s90, s90, 6")
    A(f"s_add_u32 s90, s90, {W_STAMP}")
    A("v_mov_b32 v8, 0")
    A("s_mov_b64 exec, 1")
    for i in range(12):
        A(f"v_mov_b32 v9, s{4+2*i}")
        A(f"buffer_store_dword v9, v8, {srd(S_WS)}, s90 offen offset:{4*i}")
    A(f"v_mov_b32 v9, s{sCNT}")
    A(f"buffer_store_dword v9, v8, {srd(S_WS)}, s90 offen offset:56")
    A(f"v_mov_b32 v9, s{sFAST}")
    A(f"buffer_store_dword v9, v8, {srd(S_WS)}, s90 offen offset:60")
A.lab("L_end")

body = "\n".join(A.l)
if opt.stamps:
    init = "\n".join(f"    s_mov_b32 s{4+2*i}, 0" for i in range(1, 12))
    body = init + "\n" + body
out = HDR + f"""; @launch grid=(256,1,1) block=(512,1,1) lds={LDS_BYTES}
.amdgcn_target "amdgcn-amd-amdhsa--gfx950"
.text
.globl {NAME}_kernel
.p2align 8
.type {NAME}_kernel,@function
{NAME}_kernel:
{body}
    s_endpgm
L_codeend:
.section .rodata,"a"
.p2align 6
.amdhsa_kernel {NAME}_kernel
  .amdhsa_next_free_vgpr 256
  .amdhsa_next_free_sgpr 102
  .amdhsa_accum_offset 256
  .amdhsa_group_segment_fixed_size 0
  .amdhsa_kernarg_size 96
  .amdhsa_user_sgpr_count 2
  .amdhsa_user_sgpr_kernarg_segment_ptr 1
  .amdhsa_system_sgpr_workgroup_id_x 1
.end_amdhsa_kernel
"""
open(opt.o, "w").write(out)
print("wrote", opt.o, "lines", len(A.l), file=sys.stderr)
```

```python
import sys, re, argparse, math, struct

NAME = "sequential_preLN__compressed_kv_cla__dense_activation_silu__decode"
HDR = open(f"cdna_kernels/{NAME}.s.ref").read().split("; Override launch")[0]

ap = argparse.ArgumentParser()
ap.add_argument("-o", default=f"cdna_kernels/{NAME}.s")
ap.add_argument("--stamps", action="store_true")
ap.add_argument("--early", type=int, default=4)
ap.add_argument("--early67", type=int, default=16)
ap.add_argument("--pw", default="sc1")
ap.add_argument("--noh3bt", action="store_true")
ap.add_argument("--earlyA", type=int, default=4)
ap.add_argument("--nocodepf", action="store_true")
ap.add_argument("--nobar2", action="store_true")
ap.add_argument("--nouvpf", action="store_true")
ap.add_argument("--noukpf", action="store_true")
ap.add_argument("--kb0", type=int, default=2)
ap.add_argument("--kb", type=int, default=0)
ap.add_argument("--ka", type=int, default=0)
ap.add_argument("--kf", type=int, default=16)
ap.add_argument("--arev", action="store_true")
ap.add_argument("--grp", type=int, default=0)
ap.add_argument("--ntr0", type=int, default=32)
ap.add_argument("--padto", type=int, default=0)
ap.add_argument("--forceslow", action="store_true")
ap.add_argument("--wb", action="store_true")
ap.add_argument("--dbgstamps", action="store_true")
ap.add_argument("--b1", type=int, default=10)
ap.add_argument("--b2", type=int, default=6)
ap.add_argument("--noclean", action="store_true")
ap.add_argument("--pxor", type=int, default=0)
ap.add_argument("--hxor", type=int, default=0)
ap.add_argument("--uv", default="late")
ap.add_argument("--uvsplit", type=int, default=8)
ap.add_argument("--uvw", type=int, default=4)
ap.add_argument("--ssleep", type=int, default=1)
ap.add_argument("--qsleep", type=int, default=0)
opt = ap.parse_args()

W_EPOCH = 0x0
W_XT = 0x1000
W_H1 = 0x10000
W_H1B = 0x380000
W_H2 = 0x100000
W_ST3 = 0x140000
W_STX = 0x150000
W_H4 = 0x160000
W_H5B = 0x180000
W_H5C = 0x1A0000
W_H3B = 0x200000
W_H6 = 0x280000
W_H3A = 0x400000
W_STAMP = 0x800000
WS_SIZE = 0x1000000

ROWB = 1056
L_Q = 128 * ROWB
L_P = L_Q + 16 * ROWB
L_MX = L_P + 4096
L_SM = L_MX + 512
L_QV = L_SM + 512
L_QP = L_Q + 5376
L_XN = L_Q
LDS_BYTES = 163840
L_S1 = 0 * ROWB
L_RED = 0
L_RED2 = 16384
L_RS = 32768
L_CS = 33792
L_OS = 49152
L_UV = 73728

S_X, S_CKV, S_WQ, S_WUK, S_WUV, S_WO, S_W1, S_W2, S_OUT, S_WS = (28, 32, 36, 40, 44, 48, 52, 56, 60, 64)
sX, sR, sW = 68, 69, 70
sFAST = 71
sT0, sT1 = 72, 73
sPLO, sPHI = 74, 75
sCNT = 76
sH = 77
sTL = 3
POLL_LIMIT = 400000


def f32(x):
    return "0x%08x" % struct.unpack("<I", struct.pack("<f", x))[0]


class Asm:
    def __init__(self):
        self.l = []
        self.nlab = 0

    def __call__(self, s):
        m = re.search(r"offset:(\d+)", s)
        if m:
            lim = 65536 if s.lstrip().startswith("ds_") else 4096
            assert int(m.group(1)) < lim, s
        self.l.append("    " + s)

    def lab(self, n):
        self.l.append(n + ":")

    def newlab(self, p="L"):
        self.nlab += 1
        return f"{p}_{self.nlab}"

    def c(self, s):
        self.l.append("    ; " + s)

    def stamp(self, i, grp=None):
        if grp is not None and grp != opt.grp:
            return
        if opt.grp == 4 and grp != 4 and i not in (0, 7, 8):
            return
        if opt.stamps:
            self(f"s_memrealtime s[{4+2*i}:{5+2*i}]")


A = Asm()
DPPM = "row_mask:0xf bank_mask:0xf"


def srd(n):
    return f"s[{n}:{n+3}]"


def execmask(m):
    A(f"s_mov_b32 exec_lo, 0x{m & 0xffffffff:x}")
    A(f"s_mov_b32 exec_hi, 0x{m >> 32:x}")


def execall():
    A("s_mov_b64 exec, -1")


M_N4 = 0x000F000F000F000F
M_N8 = 0x00FF00FF00FF00FF


def store_local(instr):
    l1, l2 = A.newlab("Lsl"), A.newlab("Lsl")
    A(f"s_cmp_eq_u32 s{sFAST}, 0")
    A(f"s_cbranch_scc1 {l1}")
    for i in instr:
        A(i)
    A(f"s_branch {l2}")
    A.lab(l1)
    for i in instr:
        A(i + " sc1")
    A.lab(l2)


def poll(loads, tagregs, sleep=0, alt=None):
    lp = A.newlab("Lpoll")
    if alt:
        sr, sm, so_ = alt
        lf = A.newlab("Lpf")
        A(f"s_mov_b32 {sr}, {sm}")
        A(f"s_branch {lf}")
        A.lab(lp)
        A(f"s_and_b32 s98, s{sCNT}, 31")
        A("s_cmp_eq_u32 s98, 31")
        A(f"s_cselect_b32 {sr}, {so_}, {sm}")
        A.lab(lf)
    elif sleep:
        lf = A.newlab("Lpf")
        A(f"s_branch {lf}")
        A.lab(lp)
        A(f"s_sleep {sleep}")
        A.lab(lf)
    else:
        A.lab(lp)
    for i in loads:
        A(i + " sc1")
    A(f"s_add_u32 s{sCNT}, s{sCNT}, 1")
    A(f"s_cmp_gt_u32 s{sCNT}, {POLL_LIMIT}")
    A("s_cbranch_scc1 L_end")
    A("s_waitcnt vmcnt(0)")
    for k, t in enumerate(tagregs):
        if k == 0:
            A(f"v_cmp_ne_u64 vcc, s[{sT0}:{sT1}], v[{t}:{t+1}]")
        else:
            A(f"v_cmp_ne_u64 s[98:99], s[{sT0}:{sT1}], v[{t}:{t+1}]")
            A("s_or_b64 vcc, vcc, s[98:99]")
    A(f"s_cbranch_vccnz {lp}")


def transpose(dst, rows, ndw, dup=False):
    nr = len(rows) // 2
    st = 2 * nr if dup else nr
    for jj in range(2 * ndw):
        sel = sPHI if jj & 1 else sPLO
        for rep in range(2 if dup else 1):
            for p in range(nr):
                A(f"v_perm_b32 v{dst + jj*st + rep*nr + p}, v{rows[2*p+1] + (jj >> 1)}, v{rows[2*p] + (jj >> 1)}, s{sel}")


def dppsum(dsts, ds):
    assert len(dsts) >= 3
    for step in (1, 2, 3):
        for t, d in zip(dsts, ds):
            src1 = d if step == 1 else t
            A(f"v_add_f32_dpp v{t}, v{d+step}, v{src1} row_shl:{4*step} {DPPM}")


def unpack(dlo, dhi, s):
    A(f"v_lshlrev_b32 v{dlo}, 16, v{s}")
    A(f"v_and_b32 v{dhi}, 0xffff0000, v{s}")


def rowall(op, regs):
    for sh in (8, 4, 2, 1):
        if len(regs) < 3:
            A(f"s_nop {2 - len(regs)}")
        for r_ in regs:
            A(f"{op}_dpp v{r_}, v{r_}, v{r_} row_ror:{sh} {DPPM}")


def sum_b128(n, base, lds=False):
    st = 1
    while st < n:
        for s in range(0, n, 2 * st):
            if lds and st == 1:
                A(f"s_waitcnt lgkmcnt({n - s - 2})")
            x, y = base + 4 * s, base + 4 * (s + st)
            A(f"v_pk_add_f32 v[{x}:{x+1}], v[{x}:{x+1}], v[{y}:{y+1}]")
            A(f"v_pk_add_f32 v[{x+2}:{x+3}], v[{x+2}:{x+3}], v[{y+2}:{y+3}]")
        st *= 2


def tag_setup():
    A("s_waitcnt lgkmcnt(0)")
    A(f"s_mul_i32 s{sT0}, s82, 0x9E3779B1")
    A(f"s_add_u32 s{sT0}, s{sT0}, 0x7F4A7C15")
    A(f"s_mul_i32 s{sT1}, s83, 0x2C9277B5")
    A(f"s_add_u32 s{sT1}, s{sT1}, 0xAC564B05")


def xt_decide(t):
    A("s_getreg_b32 s84, hwreg(HW_REG_XCC_ID)")
    A("s_and_b32 s84, s84, 15")
    A(f"v_cmp_ne_u32 vcc, s84, v{t}")
    A("s_cmp_eq_u64 vcc, 0")
    A(f"s_cselect_b32 s{sFAST}, {0 if opt.forceslow else 1}, 0")


def ckv_dma(rows, k=None):
    for i in rows:
        A(f"s_add_u32 m0, s81, {i*ROWB}")
        A(f"s_add_u32 s86, s80, {i*1024}")
        if k:
            A(f"s_waitcnt vmcnt({k-1})")
        A(f"buffer_load_dwordx4 v6, {srd(S_CKV)}, s86 offen nt lds")


A.stamp(0)
if opt.padto:
    A("s_memrealtime s[4:5]")
A("s_cmp_ge_u32 s2, 256")
A("s_cbranch_scc1 L_end")
ptr = {S_X: 0, S_CKV: 8, S_WQ: 16, S_WUK: 24, S_WUV: 32, S_WO: 40, S_W1: 56, S_W2: 64, S_OUT: 72, S_WS: 88}
size = {S_X: 5120, S_CKV: 16777216, S_WQ: 5242880, S_WUK: 4194304, S_WUV: 4194304, S_WO: 5242880,
        S_W1: 2211840, S_W2: 2211840, S_OUT: 5120, S_WS: WS_SIZE}
for s_ in (S_WQ, S_X, S_CKV, S_WUK, S_WS, S_WUV, S_WO, S_W1, S_W2, S_OUT):
    A(f"s_load_dwordx2 s[{s_}:{s_+1}], s[0:1], {ptr[s_]}")
A(f"s_lshr_b32 s{sR}, s2, 3")
A("v_lshrrev_b32 v1, 6, v0")
A("v_and_b32 v0, 63, v0")
A(f"v_readfirstlane_b32 s{sW}, v1")
A("v_lshlrev_b32 v6, 4, v0")
if not opt.nocodepf:
    A("s_getpc_b64 s[92:93]")
    A.lab("L_pc")
    A(f"s_sub_u32 s92, s92, L_pc-{NAME}_kernel")
    A("s_subb_u32 s93, s93, 0")
    A(f"s_mov_b32 s94, L_codeend-{NAME}_kernel")
    A("s_mov_b32 s95, 0x00020000")
    A(f"s_lshl_b32 s90, s{sR}, 10")
    A(f"s_cmp_lg_u32 s{sW}, 7")
    A("s_cbranch_scc1 L_nopf")
    A("buffer_load_dwordx4 v[252:255], v6, s[92:95], s90 offen")
    A.lab("L_nopf")
for s_ in ptr:
    A(f"s_mov_b32 s{s_+2}, {size[s_]}")
    A(f"s_mov_b32 s{s_+3}, 0x00020000")
A(f"s_and_b32 s{sX}, s2, 7")
A(f"s_mov_b32 s{sPLO}, 0x05040100")
A(f"s_mov_b32 s{sPHI}, 0x07060302")
A(f"s_mov_b32 s{sCNT}, 0")
A(f"s_mov_b32 s{sFAST}, 0")
A(f"s_and_b32 s78, s{sR}, 3")
if opt.hxor:
    A(f"s_xor_b32 s78, s78, {opt.hxor}")
A(f"s_lshl_b32 s{sH}, s{sX}, 2")
A(f"s_add_u32 s{sH}, s{sH}, s78")
A(f"s_lshl_b32 s88, s{sH}, 8")
A("v_lshrrev_b32 v1, 4, v0")
A("v_and_b32 v2, 15, v0")
A("v_bfe_u32 v3, v0, 2, 2")
A("v_and_b32 v4, 3, v0")
A("v_lshrrev_b32 v5, 2, v0")
A("v_lshlrev_b32 v7, 6, v1")
A("v_lshl_add_u32 v7, v4, 4, v7")
A(f"s_bfe_u32 s79, s{sR}, 0x20002")
A("s_lshl_b32 s80, s79, 22")
A(f"s_lshl_b32 s81, s{sH}, 17")
A("s_add_u32 s80, s80, s81")
A(f"s_xor_b32 s{sTL}, s{sW}, 4")
A(f"s_cmp_lt_u32 s{sR}, 16")
A(f"s_cselect_b32 s{sTL}, s{sTL}, s{sW}")
A(f"s_lshl_b32 s81, s{sTL}, 14")
A("s_add_u32 s80, s80, s81")
A(f"s_mul_i32 s81, s{sTL}, {16*ROWB}")
A("s_mul_i32 s87, s79, 160")
A(f"s_lshl_b32 s90, s{sW}, 5")
A("s_add_u32 s87, s87, s90")
A("s_lshl_b32 s89, s87, 13")
A("s_add_u32 s89, s89, s88")
A("v_lshlrev_b32 v9, 16, v1")
A("v_lshl_add_u32 v9, v2, 4, v9")
A("v_lshl_add_u32 v10, v3, 15, v7")
A("s_lshl_b32 s91, s79, 7")
A(f"s_and_b32 s90, s{sW}, 3")
A("s_lshl_b32 s90, s90, 5")
A("s_add_u32 s91, s91, s90")
A("s_lshl_b32 s91, s91, 13")
A("s_add_u32 s91, s91, s88")
A(f"s_cmp_lt_u32 s{sR}, 16")
A("s_waitcnt lgkmcnt(0)")
A(f"s_load_dwordx2 s[82:83], s[{S_WS}:{S_WS+1}], {W_EPOCH}")
A("s_cbranch_scc0 L_frontB")


def xt_publish(t):
    A("s_getreg_b32 s84, hwreg(HW_REG_XCC_ID)")
    A("s_and_b32 s84, s84, 15")
    A(f"s_lshl_b32 s85, s{sX}, 9")
    A(f"s_add_u32 s85, s85, {W_XT}")
    A(f"s_lshl_b32 s86, s{sR}, 4")
    A(f"v_mov_b32 v{t}, s84")
    A(f"v_mov_b32 v{t+1}, 0")
    A(f"v_mov_b32 v{t+2}, s{sT0}")
    A(f"v_mov_b32 v{t+3}, s{sT1}")
    A("v_mov_b32 v12, s86")
    A("s_mov_b64 exec, 1")
    A(f"buffer_store_dwordx4 v[{t}:{t+3}], v12, {srd(S_WS)}, s85 offen sc1")
    execall()


def uk_loads(ts, dst=None):
    for t in ts:
        A(f"s_add_u32 s90, s91, {(16*(t>>2) + (t&3))*8192}")
        d = dst if dst is not None else 208 + 4 * t
        A(f"buffer_load_dwordx4 v[{d}:{d+3}], v10, {srd(S_WUK)}, s90 offen nt")


A(f"s_cmp_gt_u32 s{sW}, 4")
A("s_cbranch_scc1 L_notS1")
RAW = 16


def wq_issue(j):
    for i in range(8):
        d = RAW + 32 * j + 4 * i
        A(f"buffer_load_dwordx4 v[{d}:{d+3}], v9, {srd(S_WQ)}, s89 offen nt")
        if i < 7:
            A("s_add_u32 s89, s89, 8192")
        if j == 0 and i == 3:
            A("s_barrier")
    if j < 3:
        A(f"s_add_u32 s89, s89, {(160-7)*8192}")
        A(f"s_sub_u32 s90, s89, {640*8192}")
        A(f"s_cmp_ge_u32 s89, {640*8192}")
        A("s_cselect_b32 s89, s90, s89")


def wq_proc(j):
    rw = RAW + 32 * j
    for jj in range(8):
        sel = sPHI if jj & 1 else sPLO
        o = 176 + 4 * jj
        for p in range(4):
            A(f"v_perm_b32 v{o+p}, v{rw+4*(2*p+1)+(jj>>1)}, v{rw+4*(2*p)+(jj>>1)}, s{sel}")
        if jj >= 1:
            j1 = jj - 1
            c = "0" if j == 0 else f"v[{144+4*j1}:{147+4*j1}]"
            A(f"v_mfma_f32_16x16x32_bf16 v[{144+4*j1}:{147+4*j1}], v[{240+4*j}:{243+4*j}], v[{176+4*j1}:{179+4*j1}], {c}")
    A("s_nop 0")
    c = "0" if j == 0 else "v[172:175]"
    A(f"v_mfma_f32_16x16x32_bf16 v[172:175], v[{240+4*j}:{243+4*j}], v[204:207], {c}")


wq_issue(0)
wq_issue(1)
A("v_mul_u32_u24 v8, 1296, v3")
A("v_lshl_add_u32 v8, v1, 4, v8")
A(f"v_add_u32 v8, {L_XN}, v8")
A("s_barrier")
for j in range(4):
    A("s_lshl_b32 s90, s87, 1")
    A("v_add_u32 v11, s90, v8")
    A(f"ds_read_b128 v[{240+4*j}:{243+4*j}], v11")
    if j < 3:
        A("s_add_u32 s87, s87, 160")
        A("s_sub_u32 s90, s87, 640")
        A("s_cmp_ge_u32 s87, 640")
        A("s_cselect_b32 s87, s90, s87")
wq_issue(2)
tag_setup()
A("s_waitcnt vmcnt(16)")
wq_proc(0)
wq_issue(3)
A("s_waitcnt vmcnt(16)")
wq_proc(1)
uk_loads(range(8))
A("s_barrier")
A("v_mul_u32_u24 v12, 576, v1")
A("v_lshl_add_u32 v12, v2, 5, v12")
A("v_lshl_add_u32 v12, v3, 4, v12")
A(f"s_mul_i32 s90, s{sW}, 2304")
A(f"s_add_u32 s90, s90, {L_QP}")
A("v_add_u32 v12, s90, v12")
A("s_waitcnt vmcnt(16)")
wq_proc(2)
A("v_mul_u32_u24 v11, 576, v4")
A("v_lshl_add_u32 v11, v5, 5, v11")
A("v_lshl_add_u32 v11, v1, 4, v11")
A(f"v_add_u32 v11, {L_QP}, v11")
A("v_bfe_u32 v8, v0, 2, 1")
A("v_bfe_u32 v13, v0, 3, 2")
A("v_lshlrev_b32 v14, 4, v4")
A("v_lshl_add_u32 v14, v8, 2, v14")
A("v_add_u32 v14, v14, v13")
A("v_lshlrev_b32 v14, 2, v14")
A("v_and_b32 v15, 7, v0")
A("v_lshlrev_b32 v15, 4, v15")
A("v_lshl_add_u32 v15, v13, 16, v15")
A("s_waitcnt vmcnt(8)")
A.stamp(1, 0)
wq_proc(3)
A("s_nop 3")
for jj in range(0, 8, 2):
    A(f"ds_write2_b32 v12, v{144+4*jj}, v{148+4*jj} offset0:{jj} offset1:{jj+1}")
A("s_waitcnt lgkmcnt(0)")
A.stamp(2)
A("s_barrier")
A(f"s_cmp_eq_u32 s{sW}, 4")
A("s_cbranch_scc0 L_s2")
ckv_dma(range(0, opt.b2))
A("s_barrier")
ckv_dma(range(opt.b2, 16))
A("s_branch L_qgather")

A.lab("L_notS1")
A(f"s_cmp_eq_u32 s{sW}, 5")
A("s_cbranch_scc0 L_w67")
A("v_mul_u32_u24 v8, 1280, v1")
A("v_lshl_add_u32 v8, v2, 4, v8")
for i in range(5):
    A(f"buffer_load_dwordx4 v[{16+4*i}:{19+4*i}], v8, {srd(S_X)}, 0 offen offset:{256*i}")
A("s_barrier")
A("v_mov_b32 v38, 0x3f803f80")
A("v_mov_b32 v36, 0")
A("v_mov_b32 v37, 0")
A("v_mul_u32_u24 v8, 1296, v1")
A("v_lshl_add_u32 v8, v2, 4, v8")
A(f"v_add_u32 v8, {L_XN}, v8")
A("s_waitcnt vmcnt(0)")
for i in range(20):
    A(f"v_dot2_f32_bf16 v36, v{16+i}, v38, v36")
    A(f"v_dot2_f32_bf16 v37, v{16+i}, v{16+i}, v37")
A("s_nop 1")
rowall("v_add_f32", [36, 37])
A(f"v_mul_f32 v36, {f32(1/640)}, v36")
A(f"v_mul_f32 v37, {f32(1/640)}, v37")
A("v_fma_f32 v37, -v36, v36, v37")
A("v_max_f32 v37, 0, v37")
A(f"v_add_f32 v37, {f32(1e-5)}, v37")
A("v_rsq_f32 v38, v37")
A("s_nop 0")
A("v_mul_f32 v36, -v36, v38")
for i in range(20):
    unpack(40, 41, 16 + i)
    A("v_pk_fma_f32 v[40:41], v[40:41], v[38:39], v[36:37] op_sel_hi:[1,0,0]")
    A(f"v_cvt_pk_bf16_f32 v{16+i}, v40, v41")
for i in range(5):
    A(f"ds_write_b128 v8, v[{16+4*i}:{19+4*i}] offset:{256*i}")
A("s_branch L_w567")
A.lab("L_w67")
A("s_barrier")
A.lab("L_w567")
tag_setup()
A("s_barrier")
A(f"s_cmp_eq_u32 s{sW}, 7")
A("s_cbranch_scc0 L_w56b")
xt_publish(20)
A.lab("L_w56b")
A("s_barrier")
ckv_dma(range(0, opt.b1))
A("s_barrier")
ckv_dma(range(opt.b1, opt.b1 + opt.b2))
A("s_barrier")
ckv_dma(range(opt.b1 + opt.b2, 16))
A("s_branch L_qgather")

A.lab("L_frontB")
A(f"s_and_b32 s92, s{sR}, 15")
A(f"s_lshl_b32 s93, s{sX}, 10")
A(f"s_cmp_gt_u32 s{sW}, 4")
A("s_cbranch_scc1 L_B2")
A("s_mul_i32 s89, s92, 5")
A(f"s_add_u32 s89, s89, s{sW}")
A("s_lshl_b32 s89, s89, 16")
A("s_add_u32 s89, s89, s93")
A("s_add_u32 s89, s89, 32768")
for i in range(4):
    A(f"buffer_load_dwordx4 v[16:19], v6, {srd(S_WQ)}, s89 offen nt")
    if i < 3:
        A("s_add_u32 s89, s89, 8192")
A.lab("L_B2")
A("s_lshl_b32 s91, s92, 3")
A(f"s_add_u32 s91, s91, s{sW}")
A("s_lshl_b32 s91, s91, 15")
A("s_add_u32 s91, s91, s93")
A("s_barrier")
for i in range(4):
    A(f"buffer_load_dwordx4 v[16:19], v6, {srd(S_WUK)}, s91 offen nt")
    if i < 3:
        A("s_add_u32 s91, s91, 8192")
A.lab("L_B3")
A("s_barrier")
ckv_dma(range(16), opt.kb)
tag_setup()
A(f"s_cmp_lg_u32 s{sW}, 0")
A("s_cbranch_scc1 L_qgather")
xt_publish(16)
A(f"s_lshl_b32 s89, s{sH}, 2")
A("s_add_u32 s89, s89, s79")
A("s_lshl_b32 s89, s89, 11")
A(f"s_add_u32 s89, s89, {W_H3B}")
A(f"buffer_load_dwordx4 v[16:19], v6, {srd(S_WS)}, s89 offen sc1")
A(f"buffer_load_dwordx4 v[16:19], v6, {srd(S_WS)}, s89 offen offset:1024 sc1")
A(f"s_and_b32 s90, s{sR}, 15")
A("s_lshl_b32 s90, s90, 10")
A(f"s_lshl_b32 s89, s{sX}, 14")
A("s_add_u32 s89, s89, s90")
A(f"s_add_u32 s89, s89, {W_H4}")
A(f"buffer_load_dwordx4 v[16:19], v6, {srd(S_WS)}, s89 offen sc1")
A(f"s_mul_i32 s89, s{sX}, 10240")
A("s_min_u32 s90, s90, 9216")
A("s_add_u32 s89, s89, s90")
A(f"s_add_u32 s89, s89, {W_H5C}")
A(f"buffer_load_dwordx4 v[16:19], v6, {srd(S_WS)}, s89 offen sc1")
A("s_branch L_qgather")

A.lab("L_s2")
for s_ in range(5):
    A(f"ds_read_b128 v[{24+8*s_}:{27+8*s_}], v11 offset:{2304*s_}")
    A(f"ds_read_b128 v[{28+8*s_}:{31+8*s_}], v11 offset:{2304*s_+16}")
for s_ in range(1, 5):
    A(f"s_waitcnt lgkmcnt({8-2*s_})")
    for i in range(4):
        A(f"v_pk_add_f32 v[{24+2*i}:{25+2*i}], v[{24+2*i}:{25+2*i}], v[{24+8*s_+2*i}:{25+8*s_+2*i}]")
for i in range(4):
    A(f"v_cvt_pk_bf16_f32 v{16+i}, v{24+2*i}, v{25+2*i}")
A("s_waitcnt vmcnt(0)")
A.stamp(3)
A("s_nop 0")
for t in range(8):
    A(f"v_mfma_f32_16x16x32_bf16 v[{40+4*t}:{43+4*t}], v[{208+4*t}:{211+4*t}], v[16:19], 0")
A(f"s_lshl_b32 s89, s{sH}, 11")
A(f"s_lshr_b32 s90, s{sR}, 2")
A("s_lshl_b32 s90, s90, 9")
A("s_add_u32 s89, s89, s90")
A(f"s_and_b32 s90, s{sW}, 3")
A("s_lshl_b32 s90, s90, 7")
A("s_add_u32 s89, s89, s90")
A(f"s_add_u32 s89, s89, {W_H2}")
for t in range(4):
    A(f"v_add_f32_dpp v{24+t}, v{40+4*t+1}, v{40+4*t} row_shl:4 row_mask:0xf bank_mask:0x1")
for t in range(4):
    d = 56 + 4 * t
    A(f"v_add_f32_dpp v{24+t}, v{d}, v{d+1} row_shr:4 row_mask:0xf bank_mask:0x2")
for t in range(4):
    A(f"v_add_f32_dpp v{24+t}, v{40+4*t+2}, v{24+t} row_shl:8 row_mask:0xf bank_mask:0x1")
for t in range(4):
    A(f"v_add_f32_dpp v{24+t}, v{56+4*t+2}, v{24+t} row_shl:4 row_mask:0xf bank_mask:0x2")
for t in range(4):
    A(f"v_add_f32_dpp v{24+t}, v{40+4*t+3}, v{24+t} row_shl:12 row_mask:0xf bank_mask:0x1")
for t in range(4):
    A(f"v_add_f32_dpp v{24+t}, v{56+4*t+3}, v{24+t} row_shl:8 row_mask:0xf bank_mask:0x2")
SC = (128 ** -0.5) * math.log2(math.e)
for t in range(4):
    A(f"v_mul_f32 v{24+t}, {f32(SC)}, v{24+t}")
A("v_cvt_pk_bf16_f32 v28, v24, v25")
A("v_cvt_pk_bf16_f32 v29, v26, v27")
A("ds_bpermute_b32 v16, v14, v28")
A("ds_bpermute_b32 v17, v14, v29")
A(f"v_mov_b32 v18, s{sT0}")
A(f"v_mov_b32 v19, s{sT1}")
A("s_waitcnt lgkmcnt(0)")
execmask(0xFFFFFFFF)
A(f"buffer_store_dwordx4 v[16:19], v15, {srd(S_WS)}, s89 offen sc1")
execall()
A.stamp(4)
A("s_barrier")
ckv_dma(range(15, -1, -1))

A.lab("L_qgather")
A("s_lshl_b32 s89, s79, 5")
A(f"s_and_b32 s90, s{sR}, 16")
A("s_add_u32 s89, s89, s90")
A(f"s_lshl_b32 s90, s{sW}, 1")
A("s_add_u32 s89, s89, s90")
A("s_lshl_b32 s89, s89, 11")
A(f"s_add_u32 s89, s89, {W_H2}")
A(f"s_lshl_b32 s85, s{sX}, 9")
A(f"s_add_u32 s85, s85, {W_XT}")
A("v_and_b32 v100, 0x1ff, v6")
A("v_lshlrev_b32 v248, 5, v2")
A(f"v_add_u32 v248, {L_MX}, v248")
A(f"s_lshl_b32 s90, s{sW}, 2")
A("v_add_u32 v249, s90, v248")
A(f"s_sub_u32 s94, 15, s{sR}")
A(f"s_mul_i32 s90, s{sX}, 7")
A("s_add_u32 s94, s94, s90")
A(f"s_cmp_gt_u32 s{sR}, 8")
A("s_cselect_b32 s100, s94, 99")
A(f"s_cmp_lt_u32 s{sW}, 5")
A("s_cselect_b32 s101, s100, 99")
A("v_lshrrev_b32 v10, 3, v0")
A("v_and_b32 v245, 0x70, v6")
A("v_mul_u32_u24 v244, 10240, v10")
A("v_add_u32 v244, v244, v245")
A("v_lshl_add_u32 v10, v10, 13, v245")
A("v_mul_u32_u24 v247, 10240, v1")
A("v_lshl_add_u32 v247, v2, 4, v247")
A(f"s_and_b32 s93, s{sR}, 8")
A("s_lshl_b32 s93, s93, 5")
A(f"s_lshr_b32 s90, s{sW}, 1")
A("s_lshl_b32 s90, s90, 6")
A("s_add_u32 s93, s93, s90")
A(f"s_and_b32 s90, s{sW}, 1")
A("s_lshl_b32 s90, s90, 3")
A("s_add_u32 s93, s93, s90")
A("s_lshl_b32 s93, s93, 13")
A("s_add_u32 s93, s93, s88")
A(f"s_and_b32 s90, s{sR}, 4")
A("s_lshl_b32 s90, s90, 5")
A("s_add_u32 s93, s93, s90")
A(f"s_and_b32 s82, s{sT0}, 0x3fffffff")
A(f"s_not_b32 s90, s{sT0}")
A("s_lshl_b32 s90, s90, 2")
A("s_and_b32 s90, s90, 0xc0000000")
A("s_or_b32 s82, s82, s90")
A("s_mov_b32 s83, 0x00010001")


def sym(dst, sh):
    A(f"v_lshrrev_b32 v{dst}, v{sh}, v246")
    A(f"v_lshlrev_b32 v15, 15, v{dst}")
    A(f"v_and_b32 v{dst}, 1, v{dst}")
    A(f"v_and_or_b32 v{dst}, v15, s84, v{dst}")


A("s_waitcnt vmcnt(17)")
A("v_mov_b32 v246, s82")
A("s_mov_b32 s84, 0x10000")
A("v_not_b32 v246, v246")
A("v_lshlrev_b32 v245, 3, v4")
for i in range(4):
    sym(252 + i, 245)
    if i < 3:
        A("v_add_u32 v245, 2, v245")
A.stamp(5)
A("s_barrier")
ql = [f"buffer_load_dwordx4 v[{80+4*i}:{83+4*i}], v6, {srd(S_WS)}, s89 offen offset:{1024*i}" for i in range(4)]
ql.append(f"buffer_load_dwordx4 v[96:99], v100, {srd(S_WS)}, s85 offen")
qt = [82, 86, 90, 94, 98]
for i in ql:
    A(i + " sc1")
A("s_waitcnt vmcnt(5)")
A(f"v_mul_u32_u24 v12, {ROWB}, v2")
A("v_lshl_add_u32 v12, v1, 4, v12")
A("v_add_u32 v11, s81, v12")
for ks in range(16):
    A(f"ds_read_b128 v[{16+4*ks}:{19+4*ks}], v11 offset:{64*ks}")
A(f"v_mul_u32_u24 v13, {ROWB}, v5")
A("v_lshl_add_u32 v13, v4, 3, v13")
A(f"s_lshl_b32 s90, s{sW}, 7")
A("v_add_u32 v13, s90, v13")
A(f"v_add_u32 v14, {64*ROWB}, v13")
A("v_lshlrev_b32 v8, 3, v0")
A(f"s_mul_i32 s90, s{sW}, {2*ROWB}")
A(f"s_add_u32 s90, s90, {L_Q}")
A("v_add_u32 v8, s90, v8")
A(f"v_add_u32 v12, {L_Q}, v12")
A("s_barrier")


def uv_loads():
    for e in range(4):
        A(f"buffer_load_dwordx4 v[{212+4*e}:{215+4*e}], v10, {srd(S_WUV)}, s93 offen nt")
        if e < 3:
            A(f"s_add_u32 s93, s93, {16*8192}")


A(f"s_cmp_lt_u32 s{sR}, 16")
A("s_cbranch_scc1 L_tlF")
A(f"s_cmp_lt_u32 s{sW}, {opt.uvw}")
A("s_cbranch_scc1 L_tlD")
uv_loads()
A("s_branch L_tlD")
A.lab("L_tlF")
A(f"s_cmp_lt_u32 s{sR}, 10")
A("s_cbranch_scc0 L_tlF2")
A(f"s_lshl_b32 s91, s{sX}, 3")
A(f"s_add_u32 s91, s91, s{sW}")
A(f"s_mul_i32 s91, s91, {64*1280}")
A(f"s_lshl_b32 s90, s{sR}, 7")
A("s_add_u32 s91, s91, s90")
for i in range(4):
    A(f"buffer_load_dwordx4 v[{212+4*i}:{215+4*i}], v244, {srd(S_WO)}, s91 offen offset:{1280*i} nt")
A("s_branch L_tlD")
A.lab("L_tlF2")
A(f"s_mul_i32 s91, s101, {32*1280}")
A(f"s_lshl_b32 s90, s{sW}, 8")
A("s_add_u32 s91, s91, s90")
for i in range(4):
    A(f"buffer_load_dwordx4 v[{212+4*i}:{215+4*i}], v247, {srd(S_W2)}, s91 offen offset:{1280*i} nt")
A.lab("L_tlD")
trl = []
for ks in range(4):
    for t in range(4):
        for hf in range(2):
            base = 14 if ks >= 2 else 13
            off = ((ks & 1) * 32 + 16 * hf) * ROWB + 32 * t
            d = 144 + (ks * 4 + t) * 4 + 2 * hf
            trl.append(f"ds_read_b64_tr_b16 v[{d}:{d+1}], v{base} offset:{off}")
NTR0 = opt.ntr0
for i in trl[:NTR0]:
    A(i)
A(f"s_cmp_lt_u32 s{sR}, 16")
A("s_cbranch_scc1 L_qw4")
A(f"s_cmp_lt_u32 s{sW}, {opt.uvw}")
A("s_cbranch_scc0 L_qw4")
A("s_waitcnt vmcnt(0)")
A.lab("L_qw4")
A("s_waitcnt vmcnt(4)")
for k, t in enumerate(qt):
    if k == 0:
        A(f"v_cmp_ne_u64 vcc, s[{sT0}:{sT1}], v[{t}:{t+1}]")
    else:
        A(f"v_cmp_ne_u64 s[98:99], s[{sT0}:{sT1}], v[{t}:{t+1}]")
        A("s_or_b64 vcc, vcc, s[98:99]")
A("s_cbranch_vccz L_qok")
poll(ql, qt, sleep=opt.qsleep)
A.lab("L_qok")
A.stamp(6)
for i in range(4):
    A(f"ds_write_b64 v8, v[{80+4*i}:{81+4*i}] offset:{(i>>1)*ROWB + (i&1)*512}")
xt_decide(96)
A("s_waitcnt lgkmcnt(0)")
A("s_barrier")
for ks in range(16):
    A(f"ds_read_b128 v[{80+4*ks}:{83+4*ks}], v12 offset:{64*ks}")
A(f"s_cmp_lt_u32 s{sR}, 16")
A("s_cbranch_scc1 L_nouv")
A(f"s_cmp_lt_u32 s{sW}, {opt.uvw}")
A("s_cbranch_scc0 L_nouv")
uv_loads()
A.lab("L_nouv")
S = 228
for ks in range(16):
    A(f"s_waitcnt lgkmcnt({15-ks})")
    c = "0" if ks == 0 else f"v[{S}:{S+3}]"
    A(f"v_mfma_f32_16x16x32_bf16 v[{S}:{S+3}], v[{16+4*ks}:{19+4*ks}], v[{80+4*ks}:{83+4*ks}], {c}")
for i in trl[NTR0:]:
    A(i)
A(f"s_lshr_b32 s90, s{sTL}, 1")
A("s_lshl_b32 s90, s90, 10")
A(f"s_and_b32 s93, s{sTL}, 1")
A("s_lshl_b32 s93, s93, 3")
A("s_add_u32 s90, s90, s93")
A(f"s_add_u32 s90, s90, {L_P}")
A("v_add_u32 v12, s90, v6")
A.stamp(7)
A(f"v_max_f32 v232, v{S}, v{S+1}")
A(f"v_max3_f32 v232, v{S+2}, v{S+3}, v232")
for sw in ("v_permlane16_swap_b32", "v_permlane32_swap_b32"):
    A("v_mov_b32 v233, v232")
    A("s_nop 1")
    A(f"{sw} v232, v233")
    A("s_nop 0")
    A("v_max_f32 v232, v232, v233")
A("ds_write_b32 v249, v232")
A("v_lshrrev_b32 v13, 3, v0")
A("v_lshlrev_b32 v13, 16, v13")
A("v_and_b32 v14, 0x70, v6")
A("v_add_u32 v13, v13, v14")
A("s_lshl_b32 s93, s79, 5")
A(f"s_and_b32 s90, s{sR}, 16")
A("s_add_u32 s93, s93, s90")
A("s_lshl_b32 s95, s93, 1")
A(f"s_add_u32 s95, s95, s{sH}")
A("s_lshl_b32 s95, s95, 8")
A("s_lshl_b32 s93, s93, 15")
A("s_waitcnt lgkmcnt(0)")
A("s_barrier")
A.stamp(1, 4)
A("ds_read_b128 v[236:239], v248")
A("ds_read_b128 v[240:243], v248 offset:16")
A(f"s_add_u32 s95, s95, {W_STX}")
A(f"s_lshl_b32 s90, s{sH}, 10")
A("s_add_u32 s93, s93, s90")
A(f"s_lshl_b32 s90, s{sW}, 7")
A("s_add_u32 s93, s93, s90")
A(f"s_add_u32 s93, s93, {W_H3A}")
A(f"v_add_u32 v11, {L_P}, v6")
A("s_waitcnt lgkmcnt(0)")
A("v_max3_f32 v232, v236, v237, v238")
A("v_max3_f32 v233, v239, v240, v241")
A("v_max3_f32 v232, v232, v242, v243")
A("v_max_f32 v232, v232, v233")
for i in range(4):
    A(f"v_sub_f32 v{S+i}, v{S+i}, v232")
for i in range(4):
    A(f"v_exp_f32 v{S+i}, v{S+i}")
A("s_nop 0")
A(f"v_cvt_pk_bf16_f32 v234, v{S}, v{S+1}")
A(f"v_cvt_pk_bf16_f32 v235, v{S+2}, v{S+3}")
A("ds_write_b64 v12, v[234:235]")
A("s_add_u32 s78, s93, 32768")
for i in range(4):
    A(f"v_xor_b32 v{124+i}, s83, v{252+i}")
A("s_waitcnt lgkmcnt(0)")
A("s_barrier")
A.stamp(2, 4)
for ks in range(4):
    A(f"ds_read_b128 v[{80+4*ks}:{83+4*ks}], v11 offset:{1024*ks}")
A(f"v_mov_b32 v234, s{sT0}")
A(f"v_mov_b32 v235, s{sT1}")
for i in range(4):
    A(f"v_mov_b32 v{240+i}, 0x3f803f80")


def pv(ks):
    A(f"s_waitcnt lgkmcnt({3-ks})")
    for t in range(4):
        c = "0" if ks == 0 else f"v[{96+4*t}:{99+4*t}]"
        bb = 144 + (ks * 4 + t) * 4
        A(f"v_mfma_f32_16x16x32_bf16 v[{96+4*t}:{99+4*t}], v[{80+4*ks}:{83+4*ks}], v[{bb}:{bb+3}], {c}")


pv(0)
pv(1)
pv(2)
pv(3)
A(f"v_mov_b32 v238, s{sT0}")
A(f"v_mov_b32 v239, s{sT1}")
A("s_nop 5")
for k in range(2):
    for hi in range(2):
        r_ = k + 2 * hi
        d = 112 + 4 * k + 2 * hi
        A(f"v_perm_b32 v{d}, v{100+r_}, v{96+r_}, s{sPHI}")
        A(f"v_perm_b32 v{d+1}, v{108+r_}, v{104+r_}, s{sPHI}")
        if hi == 0:
            A(f"v_perm_b32 v{120+2*k}, v{100+r_}, v{96+r_}, s{sPHI}")
            A(f"v_perm_b32 v{121+2*k}, v{108+r_}, v{104+r_}, s{sPHI}")
A.stamp(3, 4)
for k in range(2):
    for i in range(2):
        A(f"v_mov_b32_dpp v{112+4*k+i}, v{114+4*k+i} row_ror:8 row_mask:0xf bank_mask:0xc")
for k in range(2):
    for i in range(2):
        A(f"v_mov_b32_dpp v{114+4*k+i}, v{120+2*k+i} row_ror:8 row_mask:0xf bank_mask:0x3")
for k in range(2):
    for i in range(4):
        A(f"v_bfi_b32 v{112+4*k+i}, s83, v{124+i}, v{112+4*k+i}")
    A(f"buffer_store_dwordx4 v[{112+4*k}:{115+4*k}], v13, {srd(S_WS)}, {'s93' if k == 0 else 's78'} offen sc1")
A(f"s_cmp_lg_u32 s{sW}, 7")
A("s_cbranch_scc1 L_nost")
for ks in range(4):
    c = "0" if ks == 0 else "v[228:231]"
    A(f"v_mfma_f32_16x16x32_bf16 v[228:231], v[240:243], v[{80+4*ks}:{83+4*ks}], {c}")
A("s_nop 7")
A("v_mov_b32 v233, v228")
execmask(0xFFFF)
A(f"buffer_store_dwordx4 v[232:235], v6, {srd(S_WS)}, s95 offen sc1")
execall()
A.stamp(8)
A.lab("L_nost")
A(f"s_cmp_lt_u32 s{sR}, 16")
A("s_cbranch_scc1 L_F")

A("v_lshrrev_b32 v13, 3, v0")
A("v_lshl_add_u32 v9, v13, 10, v14")
A("s_lshl_b32 s91, s79, 5")
A(f"s_add_u32 s91, s91, s{sH}")
A("s_lshl_b32 s91, s91, 15")
A(f"s_lshl_b32 s90, s{sW}, 7")
A("s_add_u32 s91, s91, s90")
A(f"s_add_u32 s91, s91, {W_H3A}")
A("s_add_u32 s92, s91, 8192")
A("s_add_u32 s94, s91, 16384")
A("s_add_u32 s97, s91, 24576")
A("v_lshl_add_u32 v12, v4, 3, v13")
A("v_lshlrev_b32 v12, 8, v12")
A("s_lshl_b32 s86, s79, 5")
A(f"s_and_b32 s90, s{sH}, 16")
A("s_add_u32 s86, s86, s90")
A("s_lshl_b32 s86, s86, 9")
A(f"s_and_b32 s90, s{sH}, 15")
A("s_lshl_b32 s90, s90, 4")
A("s_add_u32 s86, s86, s90")
A(f"s_add_u32 s86, s86, {W_STX}")
A("v_lshrrev_b32 v15, 5, v0")
A("v_lshl_add_u32 v15, v15, 7, v14")
A(f"s_lshl_b32 s93, s{sH}, 2")
A("s_add_u32 s93, s93, s79")
A("s_lshl_b32 s93, s93, 11")
A(f"s_lshl_b32 s90, s{sW}, 8")
A("s_add_u32 s93, s93, s90")
A(f"s_add_u32 s93, s93, {W_H3B}")
transpose(80, [212, 216, 220, 224], 4) if False else None
A.stamp(6, 4)
poll([f"buffer_load_dwordx4 v[16:19], v12, {srd(S_WS)}, s86 offen"], [18], sleep=opt.ssleep)
A.stamp(9, 4)
bulk = [f"buffer_load_dwordx4 v[{32+4*i}:{35+4*i}], v9, {srd(S_WS)}, {so} offen sc1" for i, so in enumerate(("s91", "s92", "s94", "s97"))]
for i in bulk:
    A(i)
A.stamp(3)


def all32(op, r_, t):
    for m in ("quad_perm:[1,0,3,2]", "quad_perm:[2,3,0,1]", "row_ror:8"):
        A("s_nop 1")
        A(f"{op}_dpp v{r_}, v{r_}, v{r_} {m} {DPPM}")
    for sw in ("v_permlane16_swap_b32", "v_permlane32_swap_b32"):
        A(f"v_mov_b32 v{t}, v{r_}")
        A("s_nop 1")
        A(f"{sw} v{r_}, v{t}")
        A("s_nop 0")
        A(f"{op} v{r_}, v{r_}, v{t}")


A("v_mov_b32 v24, v16")
all32("v_max_f32", 24, 26)
A("v_sub_f32 v16, v16, v24")
A("v_exp_f32 v16, v16")
A("s_nop 0")
A("v_mul_f32 v25, v16, v17")
all32("v_add_f32", 25, 26)
A("v_rcp_f32 v26, v25")
A("s_nop 0")
A("v_mul_f32 v16, v16, v26")
A("s_nop 1")
for i in range(4):
    A(f"v_mov_b32_dpp v{24+2*i}, v16 quad_perm:[{i},{i},{i},{i}] {DPPM}")
transpose(80, [212, 216, 220, 224], 4)
A("s_branch L_bk1")
A.lab("L_bk0")
for i in bulk:
    A(i)
A(f"s_add_u32 s{sCNT}, s{sCNT}, 1")
A(f"s_cmp_gt_u32 s{sCNT}, {POLL_LIMIT}")
A("s_cbranch_scc1 L_end")
A.lab("L_bk1")
for i in range(4):
    A(f"s_waitcnt vmcnt({3-i})")
    for d in range(4):
        w_ = 32 + 4 * i + d
        A(f"v_xor_b32 v{w_}, v{w_}, v{252+d}")
    w_ = 32 + 4 * i
    if i == 0:
        A(f"v_bitop3_b32 v64, v{w_}, v{w_+1}, s83 bitop3:0x80")
    else:
        A(f"v_bitop3_b32 v64, v64, v{w_}, v{w_+1} bitop3:0x80")
    A(f"v_bitop3_b32 v64, v64, v{w_+2}, v{w_+3} bitop3:0x80")
    if i == 3:
        A("v_cmp_ne_u32 vcc, s83, v64")
        A.stamp(10, 4)
    for d in range(4):
        unpack(56 + 2 * d, 57 + 2 * d, 32 + 4 * i + d)
    if i == 3:
        A("s_cbranch_vccnz L_bk0")
    for d in range(4):
        if i == 0:
            A(f"v_pk_mul_f32 v[{48+2*d}:{49+2*d}], v[{56+2*d}:{57+2*d}], v[24:25] op_sel_hi:[1,0]")
        else:
            A(f"v_pk_fma_f32 v[{48+2*d}:{49+2*d}], v[{56+2*d}:{57+2*d}], v[{24+2*i}:{25+2*i}], v[{48+2*d}:{49+2*d}] op_sel_hi:[1,0,1]")
A("s_nop 1")
for e in range(4):
    A(f"v_permlane32_swap_b32 v{48+e}, v{52+e}")
A("v_pk_add_f32 v[48:49], v[48:49], v[52:53]")
A("v_pk_add_f32 v[50:51], v[50:51], v[54:55]")
A("s_nop 1")
A("v_permlane16_swap_b32 v48, v50")
A("v_permlane16_swap_b32 v49, v51")
A("s_nop 0")
A("v_pk_add_f32 v[48:49], v[48:49], v[50:51]")
A("s_nop 1")
A(f"v_add_f32_dpp v48, v48, v48 row_ror:8 {DPPM}")
A(f"v_add_f32_dpp v49, v49, v49 row_ror:8 {DPPM}")
A("s_nop 0")
A("v_cvt_pk_bf16_f32 v236, v48, v49")
A("v_cvt_pk_bf16_f32 v237, v48, v49")
A("s_nop 1")
A("v_permlane16_swap_b32 v236, v237")
execmask(0x000000FF000000FF)
store_local([f"buffer_store_dwordx4 v[236:239], v15, {srd(S_WS)}, s93 offen"])
execall()
A.stamp(4)
A.stamp(11, 4)

A("v_lshlrev_b32 v12, 11, v3")
A("v_lshl_add_u32 v12, v1, 5, v12")
A("v_and_b32 v13, 1, v0")
A("v_lshl_add_u32 v12, v13, 4, v12")
A(f"s_lshl_b32 s95, s{sH}, 13")
A(f"s_and_b32 s90, s{sR}, 8")
A("s_lshl_b32 s90, s90, 7")
A("s_add_u32 s95, s95, s90")
A(f"s_lshl_b32 s90, s{sW}, 7")
A("s_add_u32 s95, s95, s90")
A(f"s_add_u32 s95, s95, {W_H3B}")
A("v_and_b32 v14, 7, v0")
A("v_lshlrev_b32 v14, 5, v14")
A("v_lshl_add_u32 v14, v1, 8, v14")
A(f"s_lshl_b32 s90, s{sW}, 10")
A(f"s_add_u32 s90, s90, {L_RED}")
A("v_add_u32 v14, s90, v14")
A("v_lshlrev_b32 v15, 11, v1")
A("v_lshl_add_u32 v15, v2, 4, v15")
A(f"s_lshl_b32 s96, s{sX}, 14")
A(f"s_and_b32 s90, s{sR}, 8")
A("s_lshl_b32 s90, s90, 10")
A("s_add_u32 s96, s96, s90")
A(f"s_and_b32 s90, s{sH}, 3")
A("s_lshl_b32 s90, s90, 9")
A("s_add_u32 s96, s96, s90")
A(f"s_and_b32 s90, s{sR}, 4")
A("s_lshl_b32 s90, s90, 6")
A("s_add_u32 s96, s96, s90")
A(f"s_add_u32 s96, s96, {W_H4}")
poll([f"buffer_load_dwordx4 v[208:211], v12, {srd(S_WS)}, s95 offen"], [210])
A.stamp(9)
for jj in range(8):
    d = 144 + 4 * jj
    A(f"v_mfma_f32_16x16x16_bf16 v[{d}:{d+3}], v[208:209], v[{80+2*jj}:{81+2*jj}], 0")
A("s_nop 1")
for jj in range(8):
    d = 144 + 4 * jj
    A(f"v_add_f32_dpp v{216+jj}, v{d+1}, v{d} row_shl:8 {DPPM}")
execmask(M_N8)
A("ds_write_b128 v14, v[216:219]")
A("ds_write_b128 v14, v[220:223] offset:16")
execall()
A("s_waitcnt lgkmcnt(0)")
A("s_barrier")
A(f"s_cmp_lt_u32 s{sW}, 2")
A("s_cbranch_scc1 L_red")
A(f"s_cmp_lt_u32 s{sW}, 4")
A("s_cbranch_scc1 L_s8")
A(f"s_cmp_lg_u32 s{sW}, 7")
A("s_cbranch_scc1 L_clean")
for s_ in range(8):
    A(f"ds_read_b128 v[{144+4*s_}:{147+4*s_}], v6 offset:{L_RED + 1024*s_}")
sum_b128(8, 144, True)
A("v_cvt_pk_bf16_f32 v236, v144, v145")
A("v_cvt_pk_bf16_f32 v237, v146, v147")
store_local([f"buffer_store_dwordx4 v[236:239], v15, {srd(S_WS)}, s96 offen"])
A.stamp(10)
A("s_branch L_fin")

A.lab("L_clean")
A("s_branch L_fin")

A.lab("L_red")
A(f"s_cmp_lt_u32 s{sR}, 26")
A("s_cbranch_scc0 L_fin")
A(f"s_and_b32 s94, s{sR}, 15")
A("v_and_b32 v12, 1, v1")
A("v_mul_u32_u24 v13, 1280, v12")
A("v_lshl_add_u32 v13, v2, 3, v13")
A("v_lshrrev_b32 v15, 5, v0")
A("v_lshl_add_u32 v13, v15, 2, v13")
A(f"s_mul_i32 s90, s{sW}, 2560")
A("s_lshl_b32 s93, s94, 7")
A("s_add_u32 s90, s90, s93")
A(f"buffer_load_dword v200, v13, {srd(S_X)}, s90 offen")
A("v_mul_u32_u24 v13, 2560, v12")
A("v_lshl_add_u32 v13, v2, 4, v13")
A(f"s_mul_i32 s96, s{sX}, 10240")
A(f"s_mul_i32 s90, s{sW}, 5120")
A("s_add_u32 s96, s96, s90")
A("s_lshl_b32 s90, s94, 8")
A("s_add_u32 s96, s96, s90")
A(f"s_add_u32 s96, s96, {W_H5C}")
A("v_and_b32 v14, 0x1ff, v6")
A("v_lshl_add_u32 v14, v15, 10, v14")
A("s_lshl_b32 s95, s94, 13")
A(f"s_lshl_b32 s90, s{sW}, 9")
A("s_add_u32 s95, s95, s90")
A(f"s_add_u32 s95, s95, {W_H5B}")
A("s_add_u32 s93, s95, 4096")
poll([f"buffer_load_dwordx4 v[{144+4*i}:{147+4*i}], v14, {srd(S_WS)}, {'s95' if i < 2 else 's93'} offen offset:{2048*(i&1)}" for i in range(4)],
     [146 + 4 * i for i in range(4)])
for i in range(4):
    unpack(160 + 4 * i, 161 + 4 * i, 144 + 4 * i)
    unpack(162 + 4 * i, 163 + 4 * i, 145 + 4 * i)
unpack(202, 203, 200)
sum_b128(4, 160)
A("s_nop 1")
A("v_permlane32_swap_b32 v160, v162")
A("v_permlane32_swap_b32 v161, v163")
A("s_nop 0")
A("v_pk_add_f32 v[160:161], v[160:161], v[162:163]")
A("v_pk_add_f32 v[160:161], v[160:161], v[202:203]")
A("v_cvt_pk_bf16_f32 v236, v160, v161")
A("v_cvt_pk_bf16_f32 v237, v160, v161")
A("s_nop 1")
A("v_permlane32_swap_b32 v236, v237")
execmask(0xFFFFFFFF)
store_local([f"buffer_store_dwordx4 v[236:239], v13, {srd(S_WS)}, s96 offen"])
execall()
A.stamp(11)
A("s_branch L_fin")

A.lab("L_s8")
A(f"s_sub_u32 s94, 31, s{sR}")
A("s_lshl_b32 s94, s94, 3")
A(f"s_add_u32 s94, s94, s{sX}")
A(f"s_and_b32 s90, s{sW}, 1")
A("s_lshl_b32 s90, s90, 7")
A("s_add_u32 s94, s94, s90")
A("s_cmp_lt_u32 s94, 160")
A("s_cbranch_scc0 L_fin")
A("s_mul_i32 s90, s94, 1639")
A("s_lshr_b32 s90, s90, 16")
A("s_mul_i32 s93, s90, 40")
A("s_sub_u32 s93, s94, s93")
A("s_lshr_b32 s95, s93, 3")
A("s_lshl_b32 s95, s95, 5")
A("s_bfe_u32 s96, s93, 0x10002")
A("s_add_u32 s95, s95, s96")
A("s_and_b32 s96, s93, 3")
A("s_lshl_b32 s96, s96, 3")
A("s_add_u32 s95, s95, s96")
A("v_mul_u32_u24 v12, 10240, v5")
A("v_lshl_add_u32 v12, v4, 4, v12")
A("s_lshl_b32 s78, s94, 6")
A(f"s_add_u32 s78, s78, {W_H6}")
A(f"s_add_u32 s79, s78, {16*10240}")
A(f"s_add_u32 s80, s78, {32*10240}")
A(f"s_add_u32 s81, s78, {48*10240}")
A("v_add_u32 v13, s81, v12")
A(f"s_lshl_b32 s82, s{sX}, 2")
A("s_add_u32 s82, s82, s90")
A("s_mul_i32 s82, s82, 160")
A("s_add_u32 s82, s82, s95")
A("s_lshl_b32 s82, s82, 4")
A(f"s_add_u32 s82, s82, {W_H5C}")
A("v_lshlrev_b32 v14, 5, v4")
A("v_add_u32 v14, s82, v14")
A("v_cmp_gt_u32 vcc, 6, v5")
A("s_nop 1")
A("v_cndmask_b32 v13, v14, v13, vcc")
A("s_mul_i32 s83, s90, 1280")
A("s_lshl_b32 s84, s95, 3")
A("s_add_u32 s83, s83, s84")
A("v_lshlrev_b32 v15, 4, v4")
A("v_lshl_add_u32 v15, v1, 1, v15")
s8l = [f"buffer_load_dwordx4 v[144:147], v12, {srd(S_WS)}, s78 offen",
       f"buffer_load_dwordx4 v[148:151], v12, {srd(S_WS)}, s79 offen",
       f"buffer_load_dwordx4 v[152:155], v12, {srd(S_WS)}, s80 offen",
       f"buffer_load_dwordx4 v[156:159], v13, {srd(S_WS)}, 0 offen"]
for i in s8l:
    A(i + " sc1")
poll([f"buffer_load_dwordx4 v[164:167], v14, {srd(S_WS)}, 0 offen"], [166], sleep=2)
poll(s8l, [146, 150, 154, 158])
A("v_cmp_gt_u32 vcc, 7, v5")
A("s_nop 1")
A("v_cndmask_b32 v156, 0, v156, vcc")
A("v_cndmask_b32 v157, 0, v157, vcc")
for i in range(4):
    unpack(160 + 4 * i, 161 + 4 * i, 144 + 4 * i)
    unpack(162 + 4 * i, 163 + 4 * i, 145 + 4 * i)
sum_b128(4, 160)
A("s_nop 1")
A("v_permlane32_swap_b32 v160, v162")
A("v_permlane32_swap_b32 v161, v163")
A("s_nop 0")
A("v_pk_add_f32 v[160:161], v[160:161], v[162:163]")
A("s_nop 1")
A("v_permlane16_swap_b32 v160, v161")
A("s_nop 0")
A("v_add_f32 v160, v160, v161")
A("s_nop 1")
A(f"v_add_f32_dpp v160, v160, v160 row_ror:8 {DPPM}")
A("s_nop 1")
A(f"v_add_f32_dpp v160, v160, v160 row_ror:4 {DPPM}")
A("s_nop 0")
A("v_cvt_pk_bf16_f32 v160, v160, v160")
execmask(M_N4)
A(f"buffer_store_short v160, v15, {srd(S_OUT)}, s83 offen")
execall()
A("s_cmp_lg_u32 s94, 0")
A("s_cbranch_scc1 L_s8x")
A("v_mov_b32 v12, 0")
A("s_mov_b64 exec, 1")
A(f"buffer_store_dwordx2 v[238:239], v12, {srd(S_WS)}, 0 offen sc1")
execall()
A.lab("L_s8x")
if opt.padto:
    A.lab("L_pad")
    A("s_memrealtime s[6:7]")
    A("s_waitcnt lgkmcnt(0)")
    A("s_sub_u32 s6, s6, s4")
    A(f"s_cmp_lt_u32 s6, {opt.padto*100}")
    A("s_cbranch_scc1 L_pad")
A.stamp(11)
A("s_branch L_fin")

def w1_loads():
    A("v_mul_u32_u24 v15, 13824, v5")
    A("v_lshl_add_u32 v15, v4, 4, v15")
    A(f"s_mul_i32 s93, s{sW}, {128*3456}")
    A("s_lshl_b32 s90, s94, 6")
    A("s_add_u32 s93, s93, s90")
    for i in range(8):
        A(f"s_add_u32 s90, s93, {((i & 3) + 64*(i >> 2))*3456}")
        A(f"buffer_load_dwordx4 v[{16+4*i}:{19+4*i}], v15, {srd(S_W1)}, s90 offen nt")


A.lab("L_F")
A("s_barrier")
A("s_mov_b32 s94, s100")
A("s_mov_b32 s97, s101")
A(f"s_cmp_lt_u32 s{sR}, 10")
A("s_cbranch_scc0 L_F1")
A("s_add_u32 s90, s91, 5120")
for i in range(4):
    A(f"buffer_load_dwordx4 v[{144+4*i}:{147+4*i}], v244, {srd(S_WO)}, s90 offen offset:{1280*i} nt")
A("s_cmp_lt_u32 s97, 54")
A("s_cbranch_scc0 L_s5")
w1_loads()
A.lab("L_s5")
A("s_waitcnt vmcnt(0)")
transpose(176, [212, 216, 220, 224, 144, 148, 152, 156], 4)
A("v_lshl_add_u32 v12, v3, 11, v7")
A(f"s_lshl_b32 s95, s{sX}, 14")
A(f"s_lshl_b32 s90, s{sW}, 8")
A("s_add_u32 s95, s95, s90")
A(f"s_add_u32 s95, s95, {W_H4}")
A("s_add_u32 s96, s95, 8192")
A("v_and_b32 v14, 7, v0")
A("v_lshlrev_b32 v14, 5, v14")
A("v_lshl_add_u32 v14, v1, 8, v14")
A(f"s_lshl_b32 s90, s{sW}, 10")
A(f"s_add_u32 s90, s90, {L_RED}")
A("v_add_u32 v14, s90, v14")
poll([f"buffer_load_dwordx4 v[208:211], v12, {srd(S_WS)}, s95 offen",
      f"buffer_load_dwordx4 v[212:215], v12, {srd(S_WS)}, s96 offen"], [210, 214], sleep=1)
A.stamp(9, 0)
unpack(216, 217, 208); unpack(218, 219, 209); unpack(220, 221, 212); unpack(222, 223, 213)
A("v_pk_add_f32 v[216:217], v[216:217], v[220:221]")
A("v_pk_add_f32 v[218:219], v[218:219], v[222:223]")
A("v_cvt_pk_bf16_f32 v208, v216, v217")
A("v_cvt_pk_bf16_f32 v209, v218, v219")
A("s_nop 1")
A(f"v_mov_b32_dpp v212, v208 quad_perm:[0,2,0,2] {DPPM}")
A(f"v_mov_b32_dpp v213, v209 quad_perm:[0,2,0,2] {DPPM}")
A(f"v_mov_b32_dpp v214, v208 quad_perm:[1,3,1,3] {DPPM}")
A(f"v_mov_b32_dpp v215, v209 quad_perm:[1,3,1,3] {DPPM}")
A("s_nop 1")
for jj in range(8):
    d = 144 + 4 * jj
    A(f"v_mfma_f32_16x16x32_bf16 v[{d}:{d+3}], v[212:215], v[{176+4*jj}:{179+4*jj}], 0")
A("s_nop 1")
for jj in range(8):
    d = 144 + 4 * jj
    A(f"v_add_f32_dpp v{216+jj}, v{d+1}, v{d} row_shl:8 {DPPM}")
execmask(M_N8)
A("ds_write_b128 v14, v[216:219]")
A("ds_write_b128 v14, v[220:223] offset:16")
execall()
A("s_waitcnt lgkmcnt(0)")
A("s_barrier")
A(f"s_cmp_lg_u32 s{sW}, 7")
A("s_cbranch_scc1 L_F1")
for s in range(8):
    A(f"ds_read_b128 v[{144+4*s}:{147+4*s}], v6 offset:{L_RED + 1024*s}")
A(f"s_lshl_b32 s95, s{sR}, 3")
A(f"s_add_u32 s95, s95, s{sX}")
A("s_lshl_b32 s95, s95, 10")
A(f"s_add_u32 s95, s95, {W_H5B}")
sum_b128(8, 144, True)
A("v_cvt_pk_bf16_f32 v236, v144, v145")
A("v_cvt_pk_bf16_f32 v237, v146, v147")
A(f"buffer_store_dwordx4 v[236:239], v6, {srd(S_WS)}, s95 offen sc1")
A.stamp(11)
A("s_branch L_fin")

A.lab("L_F1")
A("s_cmp_lt_u32 s97, 54")
A("s_cbranch_scc0 L_fin")
A(f"s_mul_i32 s91, s94, {32*1280}")
A(f"s_lshl_b32 s90, s{sW}, 8")
A("s_add_u32 s91, s91, s90")
A(f"s_cmp_lt_u32 s{sR}, 10")
A("s_cbranch_scc0 L_F1a")
A("s_sleep 2")
for i in range(4):
    A(f"buffer_load_dwordx4 v[{212+4*i}:{215+4*i}], v247, {srd(S_W2)}, s91 offen offset:{1280*i} nt")
A("s_branch L_F1b")
A.lab("L_F1a")
w1_loads()
A.lab("L_F1b")
A("s_add_u32 s90, s91, 5120")
for i in range(4):
    A(f"buffer_load_dwordx4 v[{64+4*i}:{67+4*i}], v247, {srd(S_W2)}, s90 offen offset:{1280*i} nt")
A("s_waitcnt vmcnt(0)")
A.stamp(2, 0)
transpose(80, [16 + 4 * i for i in range(8)], 4)
transpose(112, [212, 216, 220, 224, 64, 68, 72, 76], 4)
for i in range(4):
    A(f"v_mov_b32 v{48+i}, 0x3f803f80")
A("s_nop 1")
for jj in range(8):
    A(f"v_mfma_f32_16x16x32_bf16 v[{16+4*jj}:{19+4*jj}], v[48:51], v[{80+4*jj}:{83+4*jj}], 0")
A("s_nop 1")
dppsum([56 + jj for jj in range(8)], [16 + 4 * jj for jj in range(8)])
A("v_lshlrev_b32 v14, 5, v4")
A(f"s_lshl_b32 s90, s{sW}, 7")
A(f"s_add_u32 s90, s90, {L_CS}")
A("v_add_u32 v14, s90, v14")
A("s_mov_b64 exec, 15")
A("ds_write_b128 v14, v[56:59]")
A("ds_write_b128 v14, v[60:63] offset:16")
execall()
A("s_waitcnt lgkmcnt(0)")
A("s_barrier")
A.lab("L_s67")
A("v_lshrrev_b32 v14, 1, v7")
for s in range(5):
    A(f"ds_read_b64 v[{16+2*s}:{17+2*s}], v14 offset:{L_CS + 128*s}")
A("v_mul_u32_u24 v12, 2560, v3")
A("v_add_u32 v12, v12, v7")
A(f"s_mul_i32 s95, s{sX}, 10240")
A(f"s_lshl_b32 s90, s{sW}, 9")
A("s_add_u32 s95, s95, s90")
A(f"s_add_u32 s95, s95, {W_H5C}")
A("v_lshlrev_b32 v13, 1, v7")
A(f"s_add_u32 s90, s90, {L_RED2}")
A("v_add_u32 v13, s90, v13")
A("v_lshlrev_b32 v10, 3, v1")
A(f"s_lshl_b32 s90, s{sW}, 5")
A(f"s_add_u32 s90, s90, {L_RS}")
A("v_add_u32 v10, s90, v10")
A("v_lshl_add_u32 v14, v3, 7, v14")
A("v_lshlrev_b32 v11, 3, v3")
A("v_mul_u32_u24 v9, 2560, v1")
A("v_lshl_add_u32 v9, v2, 4, v9")
A("s_mul_i32 s96, s94, 10240")
A(f"s_lshl_b32 s90, s{sW}, 9")
A("s_add_u32 s96, s96, s90")
A(f"s_add_u32 s96, s96, {W_H6}")
A("s_waitcnt lgkmcnt(0)")
for s in range(1, 5):
    A(f"v_pk_add_f32 v[16:17], v[16:17], v[{16+2*s}:{17+2*s}]")
poll([f"buffer_load_dwordx4 v[208:211], v12, {srd(S_WS)}, s95 offen",
      f"buffer_load_dwordx4 v[212:215], v12, {srd(S_WS)}, s95 offen offset:256"], [210, 214], sleep=1)
A.stamp(10, 0)
A("v_mov_b32 v210, v212")
A("v_mov_b32 v211, v213")
A("s_nop 1")
A("v_mfma_f32_16x16x32_bf16 v[184:187], v[208:211], v[48:51], 0")
A("v_mfma_f32_16x16x32_bf16 v[188:191], v[208:211], v[208:211], 0")
for jj in range(8):
    d = 144 + 4 * jj
    A(f"v_mfma_f32_16x16x32_bf16 v[{d}:{d+3}], v[208:211], v[{80+4*jj}:{83+4*jj}], 0")
A("v_add_f32 v192, v184, v185")
A(f"v_add_f32_dpp v193, v189, v188 row_shl:1 {DPPM}")
A("v_add_f32 v194, v186, v187")
A("s_nop 0")
A(f"v_add_f32_dpp v193, v190, v193 row_shl:2 {DPPM}")
A("v_add_f32 v192, v192, v194")
A("s_nop 0")
A(f"v_add_f32_dpp v193, v191, v193 row_shl:3 {DPPM}")
execmask(0x1000010000100001)
A("ds_write_b64 v10, v[192:193]")
execall()
dppsum([176 + i for i in range(8)], [144 + 4 * i for i in range(8)])
execmask(M_N4)
A("ds_write_b128 v13, v[176:179]")
A("ds_write_b128 v13, v[180:183] offset:16")
execall()
A("s_waitcnt lgkmcnt(0)")
A("s_barrier")
for s in range(5):
    A(f"ds_read_b64 v[{160+2*s}:{161+2*s}], v11 offset:{L_RS + 32*s}")
for s in range(5):
    A(f"ds_read_b64 v[{144+2*s}:{145+2*s}], v14 offset:{L_RED2 + 512*s}")
A("s_waitcnt lgkmcnt(5)")
for s in range(1, 5):
    A(f"v_pk_add_f32 v[160:161], v[160:161], v[{160+2*s}:{161+2*s}]")
A(f"v_mul_f32 v160, {f32(1/640)}, v160")
A(f"v_mul_f32 v161, {f32(1/640)}, v161")
A("v_fma_f32 v161, -v160, v160, v161")
A("v_max_f32 v161, 0, v161")
A(f"v_add_f32 v161, {f32(1e-5)}, v161")
A("v_rsq_f32 v161, v161")
A("s_waitcnt lgkmcnt(0)")
for s in range(1, 5):
    A(f"v_pk_add_f32 v[144:145], v[144:145], v[{144+2*s}:{145+2*s}]")
A("v_fma_f32 v144, -v160, v16, v144")
A("v_fma_f32 v145, -v160, v17, v145")
A("v_mul_f32 v144, v144, v161")
A("v_mul_f32 v145, v145, v161")
A(f"v_mul_f32 v146, {f32(-math.log2(math.e))}, v144")
A(f"v_mul_f32 v147, {f32(-math.log2(math.e))}, v145")
A("v_exp_f32 v146, v146")
A("v_exp_f32 v147, v147")
A("s_nop 0")
A("v_add_f32 v146, 1.0, v146")
A("v_add_f32 v147, 1.0, v147")
A("v_rcp_f32 v146, v146")
A("v_rcp_f32 v147, v147")
A("s_nop 0")
A("v_mul_f32 v144, v144, v146")
A("v_mul_f32 v145, v145, v147")
A("v_cvt_pk_bf16_f32 v148, v144, v145")
A("s_nop 1")
for i in range(4):
    A(f"v_mov_b32_dpp v{208+i}, v148 quad_perm:[{i},{i},{i},{i}] {DPPM}")
A("s_nop 1")
for jj in range(8):
    d = 144 + 4 * jj
    A(f"v_mfma_f32_16x16x32_bf16 v[{d}:{d+3}], v[208:211], v[{112+4*jj}:{115+4*jj}], 0")
A("s_nop 3")
A("v_cvt_pk_bf16_f32 v232, v144, v148")
A("v_cvt_pk_bf16_f32 v233, v152, v156")
A(f"buffer_store_dwordx4 v[232:235], v9, {srd(S_WS)}, s96 offen sc1")
A("s_nop 1")
A("v_cvt_pk_bf16_f32 v236, v160, v164")
A("v_cvt_pk_bf16_f32 v237, v168, v172")
A(f"buffer_store_dwordx4 v[236:239], v9, {srd(S_WS)}, s96 offen offset:256 sc1")
A.stamp(11)

A.lab("L_fin")
if opt.dbgstamps:
    A("s_waitcnt vmcnt(0) lgkmcnt(0)")
    A("s_load_dwordx2 s[92:93], s[0:1], 80")
    A("s_mov_b32 s94, 256")
    A("s_mov_b32 s95, 0x00020000")
    A("v_mov_b32 v8, 0")
    A("s_waitcnt lgkmcnt(0)")
    A("s_mov_b64 exec, 1")
    A("s_not_b32 s90, s4")
    A("v_mov_b32 v9, s90")
    A("buffer_atomic_umax v9, v8, s[92:95], 0 offen offset:60")
    A(f"s_cmp_lt_u32 s{sR}, 16")
    for i in range(12):
        A(f"v_mov_b32 v9, s{4+2*i}")
        if i in (3, 4, 9):
            o2 = {3: 48, 4: 52, 9: 56}[i]
            A(f"s_cselect_b32 s91, {4*i}, {o2}")
            A(f"buffer_atomic_umax v9, v8, s[92:95], s91 offen")
        else:
            A(f"buffer_atomic_umax v9, v8, s[92:95], 0 offen offset:{4*i}")
    A("s_branch L_end")
if opt.stamps:
    A("s_waitcnt vmcnt(0) lgkmcnt(0)")
    A(f"s_lshl_b32 s90, s2, 3")
    A(f"s_add_u32 s90, s90, s{sW}")
    A("s_lshl_b32 s90, s90, 6")
    A(f"s_add_u32 s90, s90, {W_STAMP}")
    A("v_mov_b32 v8, 0")
    A("s_mov_b64 exec, 1")
    for i in range(12):
        A(f"v_mov_b32 v9, s{4+2*i}")
        A(f"buffer_store_dword v9, v8, {srd(S_WS)}, s90 offen offset:{4*i}")
    A(f"v_mov_b32 v9, s{sCNT}")
    A(f"buffer_store_dword v9, v8, {srd(S_WS)}, s90 offen offset:56")
    A(f"v_mov_b32 v9, s{sFAST}")
    A(f"buffer_store_dword v9, v8, {srd(S_WS)}, s90 offen offset:60")
A.lab("L_end")

body = "\n".join(A.l)
if opt.stamps:
    init = "\n".join(f"    s_mov_b32 s{4+2*i}, 0" for i in range(1, 12))
    body = init + "\n" + body
out = HDR + f"""; @launch grid=(256,1,1) block=(512,1,1) lds={LDS_BYTES}
.amdgcn_target "amdgcn-amd-amdhsa--gfx950"
.text
.globl {NAME}_kernel
.p2align 8
.type {NAME}_kernel,@function
{NAME}_kernel:
{body}
    s_endpgm
L_codeend:
.section .rodata,"a"
.p2align 6
.amdhsa_kernel {NAME}_kernel
  .amdhsa_next_free_vgpr 256
  .amdhsa_next_free_sgpr 102
  .amdhsa_accum_offset 256
  .amdhsa_group_segment_fixed_size 0
  .amdhsa_kernarg_size 96
  .amdhsa_user_sgpr_count 2
  .amdhsa_user_sgpr_kernarg_segment_ptr 1
  .amdhsa_system_sgpr_workgroup_id_x 1
.end_amdhsa_kernel
"""
open(opt.o, "w").write(out)
print("wrote", opt.o, "lines", len(A.l), file=sys.stderr)
```

```python
import sys, re, argparse, math, struct

NAME = "sequential_preLN__compressed_kv_cla__dense_activation_silu__decode"
HDR = open(f"cdna_kernels/{NAME}.s.ref").read().split("; Override launch")[0]

ap = argparse.ArgumentParser()
ap.add_argument("-o", default=f"cdna_kernels/{NAME}.s")
ap.add_argument("--stamps", action="store_true")
ap.add_argument("--early", type=int, default=4)
ap.add_argument("--early67", type=int, default=16)
ap.add_argument("--pw", default="sc1")
ap.add_argument("--noh3bt", action="store_true")
ap.add_argument("--earlyA", type=int, default=4)
ap.add_argument("--nocodepf", action="store_true")
ap.add_argument("--nobar2", action="store_true")
ap.add_argument("--nouvpf", action="store_true")
ap.add_argument("--noukpf", action="store_true")
ap.add_argument("--kb0", type=int, default=2)
ap.add_argument("--kb", type=int, default=0)
ap.add_argument("--ka", type=int, default=0)
ap.add_argument("--kf", type=int, default=16)
ap.add_argument("--arev", action="store_true")
ap.add_argument("--grp", type=int, default=0)
ap.add_argument("--ntr0", type=int, default=32)
ap.add_argument("--padto", type=int, default=0)
ap.add_argument("--forceslow", action="store_true")
ap.add_argument("--wb", action="store_true")
ap.add_argument("--dbgstamps", action="store_true")
ap.add_argument("--b1", type=int, default=10)
ap.add_argument("--b2", type=int, default=6)
ap.add_argument("--noclean", action="store_true")
ap.add_argument("--pxor", type=int, default=0)
ap.add_argument("--hxor", type=int, default=0)
ap.add_argument("--uv", default="late")
ap.add_argument("--uvsplit", type=int, default=8)
ap.add_argument("--uvw", type=int, default=4)
ap.add_argument("--ssleep", type=int, default=1)
ap.add_argument("--pc", default="nt")
ap.add_argument("--pq", default="nt")
ap.add_argument("--pt", default="nt")
ap.add_argument("--qsleep", type=int, default=0)
opt = ap.parse_args()

W_EPOCH = 0x0
W_XT = 0x1000
W_H1 = 0x10000
W_H1B = 0x380000
W_H2 = 0x100000
W_ST3 = 0x140000
W_STX = 0x150000
W_H4 = 0x160000
W_H5B = 0x180000
W_H5C = 0x1A0000
W_H3B = 0x200000
W_H6 = 0x280000
W_H3A = 0x400000
W_STAMP = 0x800000
WS_SIZE = 0x1000000

ROWB = 1056
L_Q = 128 * ROWB
L_P = L_Q + 16 * ROWB
L_MX = L_P + 4096
L_SM = L_MX + 512
L_QV = L_SM + 512
L_QP = L_Q + 5376
L_XN = L_Q
LDS_BYTES = 163840
L_S1 = 0 * ROWB
L_RED = 0
L_RED2 = 16384
L_RS = 32768
L_CS = 33792
L_OS = 49152
L_UV = 73728

S_X, S_CKV, S_WQ, S_WUK, S_WUV, S_WO, S_W1, S_W2, S_OUT, S_WS = (28, 32, 36, 40, 44, 48, 52, 56, 60, 64)
sX, sR, sW = 68, 69, 70
sFAST = 71
sT0, sT1 = 72, 73
sPLO, sPHI = 74, 75
sCNT = 76
sH = 77
sTL = 3
POLL_LIMIT = 400000


def f32(x):
    return "0x%08x" % struct.unpack("<I", struct.pack("<f", x))[0]


class Asm:
    def __init__(self):
        self.l = []
        self.nlab = 0

    def __call__(self, s):
        m = re.search(r"offset:(\d+)", s)
        if m:
            lim = 65536 if s.lstrip().startswith("ds_") else 4096
            assert int(m.group(1)) < lim, s
        self.l.append("    " + s)

    def lab(self, n):
        self.l.append(n + ":")

    def newlab(self, p="L"):
        self.nlab += 1
        return f"{p}_{self.nlab}"

    def c(self, s):
        self.l.append("    ; " + s)

    def stamp(self, i, grp=None):
        if grp is not None and grp != opt.grp:
            return
        if opt.grp == 4 and grp != 4 and i not in (0, 7, 8):
            return
        if opt.stamps:
            self(f"s_memrealtime s[{4+2*i}:{5+2*i}]")


A = Asm()
DPPM = "row_mask:0xf bank_mask:0xf"


def srd(n):
    return f"s[{n}:{n+3}]"


def execmask(m):
    A(f"s_mov_b32 exec_lo, 0x{m & 0xffffffff:x}")
    A(f"s_mov_b32 exec_hi, 0x{m >> 32:x}")


def execall():
    A("s_mov_b64 exec, -1")


M_N4 = 0x000F000F000F000F
M_N8 = 0x00FF00FF00FF00FF


def store_local(instr):
    l1, l2 = A.newlab("Lsl"), A.newlab("Lsl")
    A(f"s_cmp_eq_u32 s{sFAST}, 0")
    A(f"s_cbranch_scc1 {l1}")
    for i in instr:
        A(i)
    A(f"s_branch {l2}")
    A.lab(l1)
    for i in instr:
        A(i + " sc1")
    A.lab(l2)


def poll(loads, tagregs, sleep=0, alt=None):
    lp = A.newlab("Lpoll")
    if alt:
        sr, sm, so_ = alt
        lf = A.newlab("Lpf")
        A(f"s_mov_b32 {sr}, {sm}")
        A(f"s_branch {lf}")
        A.lab(lp)
        A(f"s_and_b32 s98, s{sCNT}, 31")
        A("s_cmp_eq_u32 s98, 31")
        A(f"s_cselect_b32 {sr}, {so_}, {sm}")
        A.lab(lf)
    elif sleep:
        lf = A.newlab("Lpf")
        A(f"s_branch {lf}")
        A.lab(lp)
        A(f"s_sleep {sleep}")
        A.lab(lf)
    else:
        A.lab(lp)
    for i in loads:
        A(i + " sc1")
    A(f"s_add_u32 s{sCNT}, s{sCNT}, 1")
    A(f"s_cmp_gt_u32 s{sCNT}, {POLL_LIMIT}")
    A("s_cbranch_scc1 L_end")
    A("s_waitcnt vmcnt(0)")
    for k, t in enumerate(tagregs):
        if k == 0:
            A(f"v_cmp_ne_u64 vcc, s[{sT0}:{sT1}], v[{t}:{t+1}]")
        else:
            A(f"v_cmp_ne_u64 s[98:99], s[{sT0}:{sT1}], v[{t}:{t+1}]")
            A("s_or_b64 vcc, vcc, s[98:99]")
    A(f"s_cbranch_vccnz {lp}")


def transpose(dst, rows, ndw, dup=False):
    nr = len(rows) // 2
    st = 2 * nr if dup else nr
    for jj in range(2 * ndw):
        sel = sPHI if jj & 1 else sPLO
        for rep in range(2 if dup else 1):
            for p in range(nr):
                A(f"v_perm_b32 v{dst + jj*st + rep*nr + p}, v{rows[2*p+1] + (jj >> 1)}, v{rows[2*p] + (jj >> 1)}, s{sel}")


def dppsum(dsts, ds):
    assert len(dsts) >= 3
    for step in (1, 2, 3):
        for t, d in zip(dsts, ds):
            src1 = d if step == 1 else t
            A(f"v_add_f32_dpp v{t}, v{d+step}, v{src1} row_shl:{4*step} {DPPM}")


def unpack(dlo, dhi, s):
    A(f"v_lshlrev_b32 v{dlo}, 16, v{s}")
    A(f"v_and_b32 v{dhi}, 0xffff0000, v{s}")


def rowall(op, regs):
    for sh in (8, 4, 2, 1):
        if len(regs) < 3:
            A(f"s_nop {2 - len(regs)}")
        for r_ in regs:
            A(f"{op}_dpp v{r_}, v{r_}, v{r_} row_ror:{sh} {DPPM}")


def sum_b128(n, base, lds=False):
    st = 1
    while st < n:
        for s in range(0, n, 2 * st):
            if lds and st == 1:
                A(f"s_waitcnt lgkmcnt({n - s - 2})")
            x, y = base + 4 * s, base + 4 * (s + st)
            A(f"v_pk_add_f32 v[{x}:{x+1}], v[{x}:{x+1}], v[{y}:{y+1}]")
            A(f"v_pk_add_f32 v[{x+2}:{x+3}], v[{x+2}:{x+3}], v[{y+2}:{y+3}]")
        st *= 2


def tag_setup():
    A("s_waitcnt lgkmcnt(0)")
    A(f"s_mul_i32 s{sT0}, s82, 0x9E3779B1")
    A(f"s_add_u32 s{sT0}, s{sT0}, 0x7F4A7C15")
    A(f"s_mul_i32 s{sT1}, s83, 0x2C9277B5")
    A(f"s_add_u32 s{sT1}, s{sT1}, 0xAC564B05")


def xt_decide(t):
    A("s_getreg_b32 s84, hwreg(HW_REG_XCC_ID)")
    A("s_and_b32 s84, s84, 15")
    A(f"v_cmp_ne_u32 vcc, s84, v{t}")
    A("s_cmp_eq_u64 vcc, 0")
    A(f"s_cselect_b32 s{sFAST}, {0 if opt.forceslow else 1}, 0")


def ckv_dma(rows, k=None):
    for i in rows:
        A(f"s_add_u32 m0, s81, {i*ROWB}")
        A(f"s_add_u32 s86, s80, {i*1024}")
        if k:
            A(f"s_waitcnt vmcnt({k-1})")
        A(f"buffer_load_dwordx4 v6, {srd(S_CKV)}, s86 offen {opt.pc} lds")


A.stamp(0)
if opt.padto:
    A("s_memrealtime s[4:5]")
A("s_cmp_ge_u32 s2, 256")
A("s_cbranch_scc1 L_end")
ptr = {S_X: 0, S_CKV: 8, S_WQ: 16, S_WUK: 24, S_WUV: 32, S_WO: 40, S_W1: 56, S_W2: 64, S_OUT: 72, S_WS: 88}
size = {S_X: 5120, S_CKV: 16777216, S_WQ: 5242880, S_WUK: 4194304, S_WUV: 4194304, S_WO: 5242880,
        S_W1: 2211840, S_W2: 2211840, S_OUT: 5120, S_WS: WS_SIZE}
for s_ in (S_WQ, S_X, S_CKV, S_WUK, S_WS, S_WUV, S_WO, S_W1, S_W2, S_OUT):
    A(f"s_load_dwordx2 s[{s_}:{s_+1}], s[0:1], {ptr[s_]}")
A(f"s_lshr_b32 s{sR}, s2, 3")
A("v_lshrrev_b32 v1, 6, v0")
A("v_and_b32 v0, 63, v0")
A(f"v_readfirstlane_b32 s{sW}, v1")
A("v_lshlrev_b32 v6, 4, v0")
if not opt.nocodepf:
    A("s_getpc_b64 s[92:93]")
    A.lab("L_pc")
    A(f"s_sub_u32 s92, s92, L_pc-{NAME}_kernel")
    A("s_subb_u32 s93, s93, 0")
    A(f"s_mov_b32 s94, L_codeend-{NAME}_kernel")
    A("s_mov_b32 s95, 0x00020000")
    A(f"s_lshl_b32 s90, s{sR}, 10")
    A(f"s_cmp_lg_u32 s{sW}, 7")
    A("s_cbranch_scc1 L_nopf")
    A("buffer_load_dwordx4 v[252:255], v6, s[92:95], s90 offen")
    A.lab("L_nopf")
for s_ in ptr:
    A(f"s_mov_b32 s{s_+2}, {size[s_]}")
    A(f"s_mov_b32 s{s_+3}, 0x00020000")
A(f"s_and_b32 s{sX}, s2, 7")
A(f"s_mov_b32 s{sPLO}, 0x05040100")
A(f"s_mov_b32 s{sPHI}, 0x07060302")
A(f"s_mov_b32 s{sCNT}, 0")
A(f"s_mov_b32 s{sFAST}, 0")
A(f"s_and_b32 s78, s{sR}, 3")
if opt.hxor:
    A(f"s_xor_b32 s78, s78, {opt.hxor}")
A(f"s_lshl_b32 s{sH}, s{sX}, 2")
A(f"s_add_u32 s{sH}, s{sH}, s78")
A(f"s_lshl_b32 s88, s{sH}, 8")
A("v_lshrrev_b32 v1, 4, v0")
A("v_and_b32 v2, 15, v0")
A("v_bfe_u32 v3, v0, 2, 2")
A("v_and_b32 v4, 3, v0")
A("v_lshrrev_b32 v5, 2, v0")
A("v_lshlrev_b32 v7, 6, v1")
A("v_lshl_add_u32 v7, v4, 4, v7")
A(f"s_bfe_u32 s79, s{sR}, 0x20002")
A("s_lshl_b32 s80, s79, 22")
A(f"s_lshl_b32 s81, s{sH}, 17")
A("s_add_u32 s80, s80, s81")
A(f"s_xor_b32 s{sTL}, s{sW}, 4")
A(f"s_cmp_lt_u32 s{sR}, 16")
A(f"s_cselect_b32 s{sTL}, s{sTL}, s{sW}")
A(f"s_lshl_b32 s81, s{sTL}, 14")
A("s_add_u32 s80, s80, s81")
A(f"s_mul_i32 s81, s{sTL}, {16*ROWB}")
A("s_mul_i32 s87, s79, 160")
A(f"s_lshl_b32 s90, s{sW}, 5")
A("s_add_u32 s87, s87, s90")
A("s_lshl_b32 s89, s87, 13")
A("s_add_u32 s89, s89, s88")
A("v_lshlrev_b32 v9, 16, v1")
A("v_lshl_add_u32 v9, v2, 4, v9")
A("v_lshl_add_u32 v10, v3, 15, v7")
A("s_lshl_b32 s91, s79, 7")
A(f"s_and_b32 s90, s{sW}, 3")
A("s_lshl_b32 s90, s90, 5")
A("s_add_u32 s91, s91, s90")
A("s_lshl_b32 s91, s91, 13")
A("s_add_u32 s91, s91, s88")
A(f"s_cmp_lt_u32 s{sR}, 16")
A("s_waitcnt lgkmcnt(0)")
A(f"s_load_dwordx2 s[82:83], s[{S_WS}:{S_WS+1}], {W_EPOCH}")
A("s_cbranch_scc0 L_frontB")


def xt_publish(t):
    A("s_getreg_b32 s84, hwreg(HW_REG_XCC_ID)")
    A("s_and_b32 s84, s84, 15")
    A(f"s_lshl_b32 s85, s{sX}, 9")
    A(f"s_add_u32 s85, s85, {W_XT}")
    A(f"s_lshl_b32 s86, s{sR}, 4")
    A(f"v_mov_b32 v{t}, s84")
    A(f"v_mov_b32 v{t+1}, 0")
    A(f"v_mov_b32 v{t+2}, s{sT0}")
    A(f"v_mov_b32 v{t+3}, s{sT1}")
    A("v_mov_b32 v12, s86")
    A("s_mov_b64 exec, 1")
    A(f"buffer_store_dwordx4 v[{t}:{t+3}], v12, {srd(S_WS)}, s85 offen sc1")
    execall()


def uk_loads(ts, dst=None):
    for t in ts:
        A(f"s_add_u32 s90, s91, {(16*(t>>2) + (t&3))*8192}")
        d = dst if dst is not None else 208 + 4 * t
        A(f"buffer_load_dwordx4 v[{d}:{d+3}], v10, {srd(S_WUK)}, s90 offen {opt.pq}")


A(f"s_cmp_gt_u32 s{sW}, 4")
A("s_cbranch_scc1 L_notS1")
RAW = 16


def wq_issue(j):
    for i in range(8):
        d = RAW + 32 * j + 4 * i
        A(f"buffer_load_dwordx4 v[{d}:{d+3}], v9, {srd(S_WQ)}, s89 offen {opt.pq}")
        if i < 7:
            A("s_add_u32 s89, s89, 8192")
        if j == 0 and i == 3:
            A("s_barrier")
    if j < 3:
        A(f"s_add_u32 s89, s89, {(160-7)*8192}")
        A(f"s_sub_u32 s90, s89, {640*8192}")
        A(f"s_cmp_ge_u32 s89, {640*8192}")
        A("s_cselect_b32 s89, s90, s89")


def wq_proc(j):
    rw = RAW + 32 * j
    for jj in range(8):
        sel = sPHI if jj & 1 else sPLO
        o = 176 + 4 * jj
        for p in range(4):
            A(f"v_perm_b32 v{o+p}, v{rw+4*(2*p+1)+(jj>>1)}, v{rw+4*(2*p)+(jj>>1)}, s{sel}")
        if jj >= 1:
            j1 = jj - 1
            c = "0" if j == 0 else f"v[{144+4*j1}:{147+4*j1}]"
            A(f"v_mfma_f32_16x16x32_bf16 v[{144+4*j1}:{147+4*j1}], v[{240+4*j}:{243+4*j}], v[{176+4*j1}:{179+4*j1}], {c}")
    A("s_nop 0")
    c = "0" if j == 0 else "v[172:175]"
    A(f"v_mfma_f32_16x16x32_bf16 v[172:175], v[{240+4*j}:{243+4*j}], v[204:207], {c}")


wq_issue(0)
wq_issue(1)
A("v_mul_u32_u24 v8, 1296, v3")
A("v_lshl_add_u32 v8, v1, 4, v8")
A(f"v_add_u32 v8, {L_XN}, v8")
A("s_barrier")
for j in range(4):
    A("s_lshl_b32 s90, s87, 1")
    A("v_add_u32 v11, s90, v8")
    A(f"ds_read_b128 v[{240+4*j}:{243+4*j}], v11")
    if j < 3:
        A("s_add_u32 s87, s87, 160")
        A("s_sub_u32 s90, s87, 640")
        A("s_cmp_ge_u32 s87, 640")
        A("s_cselect_b32 s87, s90, s87")
wq_issue(2)
tag_setup()
A("s_waitcnt vmcnt(16)")
wq_proc(0)
wq_issue(3)
A("s_waitcnt vmcnt(16)")
wq_proc(1)
uk_loads(range(8))
A("s_barrier")
A("v_mul_u32_u24 v12, 576, v1")
A("v_lshl_add_u32 v12, v2, 5, v12")
A("v_lshl_add_u32 v12, v3, 4, v12")
A(f"s_mul_i32 s90, s{sW}, 2304")
A(f"s_add_u32 s90, s90, {L_QP}")
A("v_add_u32 v12, s90, v12")
A("s_waitcnt vmcnt(16)")
wq_proc(2)
A("v_mul_u32_u24 v11, 576, v4")
A("v_lshl_add_u32 v11, v5, 5, v11")
A("v_lshl_add_u32 v11, v1, 4, v11")
A(f"v_add_u32 v11, {L_QP}, v11")
A("v_bfe_u32 v8, v0, 2, 1")
A("v_bfe_u32 v13, v0, 3, 2")
A("v_lshlrev_b32 v14, 4, v4")
A("v_lshl_add_u32 v14, v8, 2, v14")
A("v_add_u32 v14, v14, v13")
A("v_lshlrev_b32 v14, 2, v14")
A("v_and_b32 v15, 7, v0")
A("v_lshlrev_b32 v15, 4, v15")
A("v_lshl_add_u32 v15, v13, 16, v15")
A("s_waitcnt vmcnt(8)")
A.stamp(1, 0)
wq_proc(3)
A("s_nop 3")
for jj in range(0, 8, 2):
    A(f"ds_write2_b32 v12, v{144+4*jj}, v{148+4*jj} offset0:{jj} offset1:{jj+1}")
A("s_waitcnt lgkmcnt(0)")
A.stamp(2)
A("s_barrier")
A(f"s_cmp_eq_u32 s{sW}, 4")
A("s_cbranch_scc0 L_s2")
ckv_dma(range(0, opt.b2))
A("s_barrier")
ckv_dma(range(opt.b2, 16))
A("s_branch L_qgather")

A.lab("L_notS1")
A(f"s_cmp_eq_u32 s{sW}, 5")
A("s_cbranch_scc0 L_w67")
A("v_mul_u32_u24 v8, 1280, v1")
A("v_lshl_add_u32 v8, v2, 4, v8")
for i in range(5):
    A(f"buffer_load_dwordx4 v[{16+4*i}:{19+4*i}], v8, {srd(S_X)}, 0 offen offset:{256*i}")
A("s_barrier")
A("v_mov_b32 v38, 0x3f803f80")
A("v_mov_b32 v36, 0")
A("v_mov_b32 v37, 0")
A("v_mul_u32_u24 v8, 1296, v1")
A("v_lshl_add_u32 v8, v2, 4, v8")
A(f"v_add_u32 v8, {L_XN}, v8")
A("s_waitcnt vmcnt(0)")
for i in range(20):
    A(f"v_dot2_f32_bf16 v36, v{16+i}, v38, v36")
    A(f"v_dot2_f32_bf16 v37, v{16+i}, v{16+i}, v37")
A("s_nop 1")
rowall("v_add_f32", [36, 37])
A(f"v_mul_f32 v36, {f32(1/640)}, v36")
A(f"v_mul_f32 v37, {f32(1/640)}, v37")
A("v_fma_f32 v37, -v36, v36, v37")
A("v_max_f32 v37, 0, v37")
A(f"v_add_f32 v37, {f32(1e-5)}, v37")
A("v_rsq_f32 v38, v37")
A("s_nop 0")
A("v_mul_f32 v36, -v36, v38")
for i in range(20):
    unpack(40, 41, 16 + i)
    A("v_pk_fma_f32 v[40:41], v[40:41], v[38:39], v[36:37] op_sel_hi:[1,0,0]")
    A(f"v_cvt_pk_bf16_f32 v{16+i}, v40, v41")
for i in range(5):
    A(f"ds_write_b128 v8, v[{16+4*i}:{19+4*i}] offset:{256*i}")
A("s_branch L_w567")
A.lab("L_w67")
A("s_barrier")
A.lab("L_w567")
tag_setup()
A("s_barrier")
A(f"s_cmp_eq_u32 s{sW}, 7")
A("s_cbranch_scc0 L_w56b")
xt_publish(20)
A.lab("L_w56b")
A("s_barrier")
ckv_dma(range(0, opt.b1))
A("s_barrier")
ckv_dma(range(opt.b1, opt.b1 + opt.b2))
A("s_barrier")
ckv_dma(range(opt.b1 + opt.b2, 16))
A("s_branch L_qgather")

A.lab("L_frontB")
A(f"s_and_b32 s92, s{sR}, 15")
A(f"s_lshl_b32 s93, s{sX}, 10")
A(f"s_cmp_gt_u32 s{sW}, 4")
A("s_cbranch_scc1 L_B2")
A("s_mul_i32 s89, s92, 5")
A(f"s_add_u32 s89, s89, s{sW}")
A("s_lshl_b32 s89, s89, 16")
A("s_add_u32 s89, s89, s93")
A("s_add_u32 s89, s89, 32768")
for i in range(4):
    A(f"buffer_load_dwordx4 v[16:19], v6, {srd(S_WQ)}, s89 offen {opt.pq}")
    if i < 3:
        A("s_add_u32 s89, s89, 8192")
A.lab("L_B2")
A("s_lshl_b32 s91, s92, 3")
A(f"s_add_u32 s91, s91, s{sW}")
A("s_lshl_b32 s91, s91, 15")
A("s_add_u32 s91, s91, s93")
A("s_barrier")
for i in range(4):
    A(f"buffer_load_dwordx4 v[16:19], v6, {srd(S_WUK)}, s91 offen {opt.pq}")
    if i < 3:
        A("s_add_u32 s91, s91, 8192")
A.lab("L_B3")
A("s_barrier")
ckv_dma(range(16), opt.kb)
tag_setup()
A(f"s_cmp_lg_u32 s{sW}, 0")
A("s_cbranch_scc1 L_qgather")
xt_publish(16)
A(f"s_lshl_b32 s89, s{sH}, 2")
A("s_add_u32 s89, s89, s79")
A("s_lshl_b32 s89, s89, 11")
A(f"s_add_u32 s89, s89, {W_H3B}")
A(f"buffer_load_dwordx4 v[16:19], v6, {srd(S_WS)}, s89 offen sc1")
A(f"buffer_load_dwordx4 v[16:19], v6, {srd(S_WS)}, s89 offen offset:1024 sc1")
A(f"s_and_b32 s90, s{sR}, 15")
A("s_lshl_b32 s90, s90, 10")
A(f"s_lshl_b32 s89, s{sX}, 14")
A("s_add_u32 s89, s89, s90")
A(f"s_add_u32 s89, s89, {W_H4}")
A(f"buffer_load_dwordx4 v[16:19], v6, {srd(S_WS)}, s89 offen sc1")
A(f"s_mul_i32 s89, s{sX}, 10240")
A("s_min_u32 s90, s90, 9216")
A("s_add_u32 s89, s89, s90")
A(f"s_add_u32 s89, s89, {W_H5C}")
A(f"buffer_load_dwordx4 v[16:19], v6, {srd(S_WS)}, s89 offen sc1")
A("s_branch L_qgather")

A.lab("L_s2")
for s_ in range(5):
    A(f"ds_read_b128 v[{24+8*s_}:{27+8*s_}], v11 offset:{2304*s_}")
    A(f"ds_read_b128 v[{28+8*s_}:{31+8*s_}], v11 offset:{2304*s_+16}")
for s_ in range(1, 5):
    A(f"s_waitcnt lgkmcnt({8-2*s_})")
    for i in range(4):
        A(f"v_pk_add_f32 v[{24+2*i}:{25+2*i}], v[{24+2*i}:{25+2*i}], v[{24+8*s_+2*i}:{25+8*s_+2*i}]")
for i in range(4):
    A(f"v_cvt_pk_bf16_f32 v{16+i}, v{24+2*i}, v{25+2*i}")
A("s_waitcnt vmcnt(0)")
A.stamp(3)
A("s_nop 0")
for t in range(8):
    A(f"v_mfma_f32_16x16x32_bf16 v[{40+4*t}:{43+4*t}], v[{208+4*t}:{211+4*t}], v[16:19], 0")
A(f"s_lshl_b32 s89, s{sH}, 11")
A(f"s_lshr_b32 s90, s{sR}, 2")
A("s_lshl_b32 s90, s90, 9")
A("s_add_u32 s89, s89, s90")
A(f"s_and_b32 s90, s{sW}, 3")
A("s_lshl_b32 s90, s90, 7")
A("s_add_u32 s89, s89, s90")
A(f"s_add_u32 s89, s89, {W_H2}")
for t in range(4):
    A(f"v_add_f32_dpp v{24+t}, v{40+4*t+1}, v{40+4*t} row_shl:4 row_mask:0xf bank_mask:0x1")
for t in range(4):
    d = 56 + 4 * t
    A(f"v_add_f32_dpp v{24+t}, v{d}, v{d+1} row_shr:4 row_mask:0xf bank_mask:0x2")
for t in range(4):
    A(f"v_add_f32_dpp v{24+t}, v{40+4*t+2}, v{24+t} row_shl:8 row_mask:0xf bank_mask:0x1")
for t in range(4):
    A(f"v_add_f32_dpp v{24+t}, v{56+4*t+2}, v{24+t} row_shl:4 row_mask:0xf bank_mask:0x2")
for t in range(4):
    A(f"v_add_f32_dpp v{24+t}, v{40+4*t+3}, v{24+t} row_shl:12 row_mask:0xf bank_mask:0x1")
for t in range(4):
    A(f"v_add_f32_dpp v{24+t}, v{56+4*t+3}, v{24+t} row_shl:8 row_mask:0xf bank_mask:0x2")
SC = (128 ** -0.5) * math.log2(math.e)
for t in range(4):
    A(f"v_mul_f32 v{24+t}, {f32(SC)}, v{24+t}")
A("v_cvt_pk_bf16_f32 v28, v24, v25")
A("v_cvt_pk_bf16_f32 v29, v26, v27")
A("ds_bpermute_b32 v16, v14, v28")
A("ds_bpermute_b32 v17, v14, v29")
A(f"v_mov_b32 v18, s{sT0}")
A(f"v_mov_b32 v19, s{sT1}")
A("s_waitcnt lgkmcnt(0)")
execmask(0xFFFFFFFF)
A(f"buffer_store_dwordx4 v[16:19], v15, {srd(S_WS)}, s89 offen sc1")
execall()
A.stamp(4)
A("s_barrier")
ckv_dma(range(15, -1, -1))

A.lab("L_qgather")
A("s_lshl_b32 s89, s79, 5")
A(f"s_and_b32 s90, s{sR}, 16")
A("s_add_u32 s89, s89, s90")
A(f"s_lshl_b32 s90, s{sW}, 1")
A("s_add_u32 s89, s89, s90")
A("s_lshl_b32 s89, s89, 11")
A(f"s_add_u32 s89, s89, {W_H2}")
A(f"s_lshl_b32 s85, s{sX}, 9")
A(f"s_add_u32 s85, s85, {W_XT}")
A("v_and_b32 v100, 0x1ff, v6")
A("v_lshlrev_b32 v248, 5, v2")
A(f"v_add_u32 v248, {L_MX}, v248")
A(f"s_lshl_b32 s90, s{sW}, 2")
A("v_add_u32 v249, s90, v248")
A(f"s_sub_u32 s94, 15, s{sR}")
A(f"s_mul_i32 s90, s{sX}, 7")
A("s_add_u32 s94, s94, s90")
A(f"s_cmp_gt_u32 s{sR}, 8")
A("s_cselect_b32 s100, s94, 99")
A(f"s_cmp_lt_u32 s{sW}, 5")
A("s_cselect_b32 s101, s100, 99")
A("v_lshrrev_b32 v10, 3, v0")
A("v_and_b32 v245, 0x70, v6")
A("v_mul_u32_u24 v244, 10240, v10")
A("v_add_u32 v244, v244, v245")
A("v_lshl_add_u32 v10, v10, 13, v245")
A("v_mul_u32_u24 v247, 10240, v1")
A("v_lshl_add_u32 v247, v2, 4, v247")
A(f"s_and_b32 s93, s{sR}, 8")
A("s_lshl_b32 s93, s93, 5")
A(f"s_and_b32 s90, s{sW}, 3")
A("s_lshl_b32 s90, s90, 6")
A("s_add_u32 s93, s93, s90")
A(f"s_and_b32 s90, s{sW}, 4")
A("s_lshl_b32 s90, s90, 1")
A("s_add_u32 s93, s93, s90")
A("s_lshl_b32 s93, s93, 13")
A("s_add_u32 s93, s93, s88")
A(f"s_and_b32 s90, s{sR}, 4")
A("s_lshl_b32 s90, s90, 5")
A("s_add_u32 s93, s93, s90")
A(f"s_and_b32 s82, s{sT0}, 0x3fffffff")
A(f"s_not_b32 s90, s{sT0}")
A("s_lshl_b32 s90, s90, 2")
A("s_and_b32 s90, s90, 0xc0000000")
A("s_or_b32 s82, s82, s90")
A("s_mov_b32 s83, 0x00010001")


def sym(dst, sh):
    A(f"v_lshrrev_b32 v{dst}, v{sh}, v246")
    A(f"v_lshlrev_b32 v15, 15, v{dst}")
    A(f"v_and_b32 v{dst}, 1, v{dst}")
    A(f"v_and_or_b32 v{dst}, v15, s84, v{dst}")


A("s_waitcnt vmcnt(17)")
A("v_mov_b32 v246, s82")
A("s_mov_b32 s84, 0x10000")
A("v_not_b32 v246, v246")
A("v_lshlrev_b32 v245, 3, v4")
for i in range(4):
    sym(252 + i, 245)
    if i < 3:
        A("v_add_u32 v245, 2, v245")
A.stamp(5)
A("s_barrier")
ql = [f"buffer_load_dwordx4 v[{80+4*i}:{83+4*i}], v6, {srd(S_WS)}, s89 offen offset:{1024*i}" for i in range(4)]
ql.append(f"buffer_load_dwordx4 v[96:99], v100, {srd(S_WS)}, s85 offen")
qt = [82, 86, 90, 94, 98]
for i in ql:
    A(i + " sc1")
A("s_waitcnt vmcnt(5)")
A(f"v_mul_u32_u24 v12, {ROWB}, v2")
A("v_lshl_add_u32 v12, v1, 4, v12")
A("v_add_u32 v11, s81, v12")
for ks in range(16):
    A(f"ds_read_b128 v[{16+4*ks}:{19+4*ks}], v11 offset:{64*ks}")
A(f"v_mul_u32_u24 v13, {ROWB}, v5")
A("v_lshl_add_u32 v13, v4, 3, v13")
A(f"s_lshl_b32 s90, s{sW}, 7")
A("v_add_u32 v13, s90, v13")
A(f"v_add_u32 v14, {64*ROWB}, v13")
A("v_lshlrev_b32 v8, 3, v0")
A(f"s_mul_i32 s90, s{sW}, {2*ROWB}")
A(f"s_add_u32 s90, s90, {L_Q}")
A("v_add_u32 v8, s90, v8")
A(f"v_add_u32 v12, {L_Q}, v12")
A("s_barrier")


def uv_loads():
    for e in range(4):
        A(f"buffer_load_dwordx4 v[{212+4*e}:{215+4*e}], v10, {srd(S_WUV)}, s93 offen nt")
        if e < 3:
            A(f"s_add_u32 s93, s93, {16*8192}")


A(f"s_cmp_lt_u32 s{sR}, 16")
A("s_cbranch_scc1 L_tlF")
A(f"s_cmp_lt_u32 s{sW}, {opt.uvw}")
A("s_cbranch_scc1 L_tlD")
uv_loads()
A("s_branch L_tlD")
A.lab("L_tlF")
A(f"s_cmp_lt_u32 s{sR}, 10")
A("s_cbranch_scc0 L_tlF2")
A(f"s_lshl_b32 s91, s{sX}, 3")
A(f"s_add_u32 s91, s91, s{sW}")
A(f"s_mul_i32 s91, s91, {64*1280}")
A(f"s_lshl_b32 s90, s{sR}, 7")
A("s_add_u32 s91, s91, s90")
for i in range(4):
    A(f"buffer_load_dwordx4 v[{212+4*i}:{215+4*i}], v244, {srd(S_WO)}, s91 offen offset:{1280*i} nt")
A("s_branch L_tlD")
A.lab("L_tlF2")
A(f"s_mul_i32 s91, s101, {32*1280}")
A(f"s_lshl_b32 s90, s{sW}, 8")
A("s_add_u32 s91, s91, s90")
for i in range(4):
    A(f"buffer_load_dwordx4 v[{212+4*i}:{215+4*i}], v247, {srd(S_W2)}, s91 offen offset:{1280*i} nt")
A.lab("L_tlD")
trl = []
for ks in range(4):
    for t in range(4):
        for hf in range(2):
            base = 14 if ks >= 2 else 13
            off = ((ks & 1) * 32 + 16 * hf) * ROWB + 32 * t
            d = 144 + (ks * 4 + t) * 4 + 2 * hf
            trl.append(f"ds_read_b64_tr_b16 v[{d}:{d+1}], v{base} offset:{off}")
NTR0 = opt.ntr0
for i in trl[:NTR0]:
    A(i)
A(f"s_cmp_lt_u32 s{sR}, 16")
A("s_cbranch_scc1 L_qw4")
A(f"s_cmp_lt_u32 s{sW}, {opt.uvw}")
A("s_cbranch_scc0 L_qw4")
A("s_waitcnt vmcnt(0)")
A.lab("L_qw4")
A("s_waitcnt vmcnt(4)")
for k, t in enumerate(qt):
    if k == 0:
        A(f"v_cmp_ne_u64 vcc, s[{sT0}:{sT1}], v[{t}:{t+1}]")
    else:
        A(f"v_cmp_ne_u64 s[98:99], s[{sT0}:{sT1}], v[{t}:{t+1}]")
        A("s_or_b64 vcc, vcc, s[98:99]")
A("s_cbranch_vccz L_qok")
poll(ql, qt, sleep=opt.qsleep)
A.lab("L_qok")
A.stamp(6)
for i in range(4):
    A(f"ds_write_b64 v8, v[{80+4*i}:{81+4*i}] offset:{(i>>1)*ROWB + (i&1)*512}")
xt_decide(96)
A("s_waitcnt lgkmcnt(0)")
A("s_barrier")
for ks in range(16):
    A(f"ds_read_b128 v[{80+4*ks}:{83+4*ks}], v12 offset:{64*ks}")
A(f"s_cmp_lt_u32 s{sR}, 16")
A("s_cbranch_scc1 L_nouv")
A(f"s_cmp_lt_u32 s{sW}, {opt.uvw}")
A("s_cbranch_scc0 L_nouv")
uv_loads()
A.lab("L_nouv")
S = 228
for ks in range(16):
    A(f"s_waitcnt lgkmcnt({15-ks})")
    c = "0" if ks == 0 else f"v[{S}:{S+3}]"
    A(f"v_mfma_f32_16x16x32_bf16 v[{S}:{S+3}], v[{16+4*ks}:{19+4*ks}], v[{80+4*ks}:{83+4*ks}], {c}")
for i in trl[NTR0:]:
    A(i)
A(f"s_lshr_b32 s90, s{sTL}, 1")
A("s_lshl_b32 s90, s90, 10")
A(f"s_and_b32 s93, s{sTL}, 1")
A("s_lshl_b32 s93, s93, 3")
A("s_add_u32 s90, s90, s93")
A(f"s_add_u32 s90, s90, {L_P}")
A("v_add_u32 v12, s90, v6")
A.stamp(7)
A(f"v_max_f32 v232, v{S}, v{S+1}")
A(f"v_max3_f32 v232, v{S+2}, v{S+3}, v232")
for sw in ("v_permlane16_swap_b32", "v_permlane32_swap_b32"):
    A("v_mov_b32 v233, v232")
    A("s_nop 1")
    A(f"{sw} v232, v233")
    A("s_nop 0")
    A("v_max_f32 v232, v232, v233")
A("ds_write_b32 v249, v232")
A("v_lshrrev_b32 v13, 3, v0")
A("v_lshlrev_b32 v13, 16, v13")
A("v_and_b32 v14, 0x70, v6")
A("v_add_u32 v13, v13, v14")
A("s_lshl_b32 s93, s79, 5")
A(f"s_and_b32 s90, s{sR}, 16")
A("s_add_u32 s93, s93, s90")
A("s_lshl_b32 s95, s93, 1")
A(f"s_add_u32 s95, s95, s{sH}")
A("s_lshl_b32 s95, s95, 8")
A("s_lshl_b32 s93, s93, 15")
A("s_waitcnt lgkmcnt(0)")
A("s_barrier")
A.stamp(1, 4)
A("ds_read_b128 v[236:239], v248")
A("ds_read_b128 v[240:243], v248 offset:16")
A(f"s_add_u32 s95, s95, {W_STX}")
A(f"s_lshl_b32 s90, s{sH}, 10")
A("s_add_u32 s93, s93, s90")
A(f"s_lshl_b32 s90, s{sW}, 7")
A("s_add_u32 s93, s93, s90")
A(f"s_add_u32 s93, s93, {W_H3A}")
A(f"v_add_u32 v11, {L_P}, v6")
A("s_waitcnt lgkmcnt(0)")
A("v_max3_f32 v232, v236, v237, v238")
A("v_max3_f32 v233, v239, v240, v241")
A("v_max3_f32 v232, v232, v242, v243")
A("v_max_f32 v232, v232, v233")
for i in range(4):
    A(f"v_sub_f32 v{S+i}, v{S+i}, v232")
for i in range(4):
    A(f"v_exp_f32 v{S+i}, v{S+i}")
A("s_nop 0")
A(f"v_cvt_pk_bf16_f32 v234, v{S}, v{S+1}")
A(f"v_cvt_pk_bf16_f32 v235, v{S+2}, v{S+3}")
A("ds_write_b64 v12, v[234:235]")
A("s_add_u32 s78, s93, 32768")
for i in range(4):
    A(f"v_xor_b32 v{124+i}, s83, v{252+i}")
A("s_waitcnt lgkmcnt(0)")
A("s_barrier")
A.stamp(2, 4)
for ks in range(4):
    A(f"ds_read_b128 v[{80+4*ks}:{83+4*ks}], v11 offset:{1024*ks}")
A(f"v_mov_b32 v234, s{sT0}")
A(f"v_mov_b32 v235, s{sT1}")
for i in range(4):
    A(f"v_mov_b32 v{240+i}, 0x3f803f80")


def pv(ks):
    A(f"s_waitcnt lgkmcnt({3-ks})")
    for t in range(4):
        c = "0" if ks == 0 else f"v[{96+4*t}:{99+4*t}]"
        bb = 144 + (ks * 4 + t) * 4
        A(f"v_mfma_f32_16x16x32_bf16 v[{96+4*t}:{99+4*t}], v[{80+4*ks}:{83+4*ks}], v[{bb}:{bb+3}], {c}")


pv(0)
pv(1)
pv(2)
pv(3)
A(f"v_mov_b32 v238, s{sT0}")
A(f"v_mov_b32 v239, s{sT1}")
A("s_nop 5")
for k in range(2):
    for hi in range(2):
        r_ = k + 2 * hi
        d = 112 + 4 * k + 2 * hi
        A(f"v_perm_b32 v{d}, v{100+r_}, v{96+r_}, s{sPHI}")
        A(f"v_perm_b32 v{d+1}, v{108+r_}, v{104+r_}, s{sPHI}")
        if hi == 0:
            A(f"v_perm_b32 v{120+2*k}, v{100+r_}, v{96+r_}, s{sPHI}")
            A(f"v_perm_b32 v{121+2*k}, v{108+r_}, v{104+r_}, s{sPHI}")
A.stamp(3, 4)
for k in range(2):
    for i in range(2):
        A(f"v_mov_b32_dpp v{112+4*k+i}, v{114+4*k+i} row_ror:8 row_mask:0xf bank_mask:0xc")
for k in range(2):
    for i in range(2):
        A(f"v_mov_b32_dpp v{114+4*k+i}, v{120+2*k+i} row_ror:8 row_mask:0xf bank_mask:0x3")
for k in range(2):
    for i in range(4):
        A(f"v_bfi_b32 v{112+4*k+i}, s83, v{124+i}, v{112+4*k+i}")
    A(f"buffer_store_dwordx4 v[{112+4*k}:{115+4*k}], v13, {srd(S_WS)}, {'s93' if k == 0 else 's78'} offen sc1")
A(f"s_cmp_lg_u32 s{sW}, 7")
A("s_cbranch_scc1 L_nost")
for ks in range(4):
    c = "0" if ks == 0 else "v[228:231]"
    A(f"v_mfma_f32_16x16x32_bf16 v[228:231], v[240:243], v[{80+4*ks}:{83+4*ks}], {c}")
A("s_nop 7")
A("v_mov_b32 v233, v228")
execmask(0xFFFF)
A(f"buffer_store_dwordx4 v[232:235], v6, {srd(S_WS)}, s95 offen sc1")
execall()
A.stamp(8)
A.lab("L_nost")
A(f"s_cmp_lt_u32 s{sR}, 16")
A("s_cbranch_scc1 L_F")

L_CB = L_OS
L_CM = L_OS + 8192
A("v_lshrrev_b32 v13, 5, v0")
A("v_and_b32 v9, 0x1ff, v6")
A("v_lshl_add_u32 v9, v13, 10, v9")
A("s_lshl_b32 s91, s79, 5")
A(f"s_add_u32 s91, s91, s{sH}")
A("s_lshl_b32 s91, s91, 15")
A(f"s_lshr_b32 s87, s{sW}, 1")
A("s_lshl_b32 s90, s87, 13")
A("s_add_u32 s91, s91, s90")
A(f"s_and_b32 s90, s{sW}, 1")
A("s_lshl_b32 s90, s90, 9")
A("s_add_u32 s91, s91, s90")
A(f"s_add_u32 s91, s91, {W_H3A}")
A("s_add_u32 s92, s91, 4096")
A("v_lshl_add_u32 v12, v4, 1, v13")
A("v_lshlrev_b32 v12, 8, v12")
A("s_lshl_b32 s86, s79, 5")
A(f"s_and_b32 s90, s{sH}, 16")
A("s_add_u32 s86, s86, s90")
A("s_lshl_b32 s86, s86, 9")
A("s_lshl_b32 s90, s87, 11")
A("s_add_u32 s86, s86, s90")
A(f"s_and_b32 s90, s{sH}, 15")
A("s_lshl_b32 s90, s90, 4")
A("s_add_u32 s86, s86, s90")
A(f"s_add_u32 s86, s86, {W_STX}")
A(f"s_lshl_b32 s90, s{sW}, 10")
A(f"s_add_u32 s90, s90, {L_CB}")
A("v_add_u32 v11, s90, v6")
A("s_lshl_b32 s90, s87, 3")
A(f"s_add_u32 s90, s90, {L_CM}")
A("v_mov_b32 v8, s90")
A(f"s_and_b32 s90, s{sW}, 1")
A("s_lshl_b32 s90, s90, 10")
A(f"s_add_u32 s94, s90, {L_CB}")
A("v_add_u32 v65, s94, v6")
A(f"v_mov_b32 v66, {L_CM}")
A(f"s_lshl_b32 s93, s{sH}, 2")
A("s_add_u32 s93, s93, s79")
A("s_lshl_b32 s93, s93, 11")
A("s_add_u32 s93, s93, s90")
A(f"s_add_u32 s93, s93, {W_H3B}")
A.stamp(6, 4)
execmask(0x0000000F0000000F)
poll([f"buffer_load_dwordx4 v[16:19], v12, {srd(S_WS)}, s86 offen"], [18], sleep=opt.ssleep)
execall()
A.stamp(9, 4)
bulk = [f"buffer_load_dwordx4 v[{32+4*i}:{35+4*i}], v9, {srd(S_WS)}, {'s91' if i < 2 else 's92'} offen offset:{2048*(i&1)} sc1" for i in range(4)]
for i in bulk:
    A(i)
A.stamp(3)


def all8(op, r_, t):
    for m in ("quad_perm:[1,0,3,2]", "quad_perm:[2,3,0,1]"):
        A("s_nop 1")
        A(f"{op}_dpp v{r_}, v{r_}, v{r_} {m} {DPPM}")
    A(f"v_mov_b32 v{t}, v{r_}")
    A("s_nop 1")
    A(f"v_permlane32_swap_b32 v{r_}, v{t}")
    A("s_nop 0")
    A(f"{op} v{r_}, v{r_}, v{t}")


A("v_mov_b32 v20, v16")
all8("v_max_f32", 20, 26)
A("v_sub_f32 v16, v16, v20")
A("v_exp_f32 v16, v16")
A("s_nop 0")
A("v_mul_f32 v21, v16, v17")
all8("v_add_f32", 21, 26)
A("s_mov_b64 exec, 1")
A("ds_write_b64 v8, v[20:21]")
execall()
A("v_mov_b32 v17, v16")
A("s_nop 1")
A("v_permlane16_swap_b32 v16, v17")
A("s_nop 1")
for i in range(4):
    A(f"v_mov_b32_dpp v{24+2*i}, v16 row_newbcast:{i} {DPPM}")
transpose(80, [212, 216, 220, 224], 4)
A("s_branch L_bk1")
A.lab("L_bk0")
for i in bulk:
    A(i)
A(f"s_add_u32 s{sCNT}, s{sCNT}, 1")
A(f"s_cmp_gt_u32 s{sCNT}, {POLL_LIMIT}")
A("s_cbranch_scc1 L_end")
A.lab("L_bk1")
for i in range(4):
    A(f"s_waitcnt vmcnt({3-i})")
    for d in range(4):
        w_ = 32 + 4 * i + d
        A(f"v_xor_b32 v{w_}, v{w_}, v{252+d}")
    w_ = 32 + 4 * i
    if i == 0:
        A(f"v_bitop3_b32 v64, v{w_}, v{w_+1}, s83 bitop3:0x80")
    else:
        A(f"v_bitop3_b32 v64, v64, v{w_}, v{w_+1} bitop3:0x80")
    A(f"v_bitop3_b32 v64, v64, v{w_+2}, v{w_+3} bitop3:0x80")
    if i == 3:
        A("v_cmp_ne_u32 vcc, s83, v64")
        A.stamp(10, 4)
    for d in range(4):
        unpack(56 + 2 * d, 57 + 2 * d, 32 + 4 * i + d)
    if i == 3:
        A("s_cbranch_vccnz L_bk0")
    for d in range(4):
        if i == 0:
            A(f"v_pk_mul_f32 v[{48+2*d}:{49+2*d}], v[{56+2*d}:{57+2*d}], v[24:25] op_sel_hi:[1,0]")
        else:
            A(f"v_pk_fma_f32 v[{48+2*d}:{49+2*d}], v[{56+2*d}:{57+2*d}], v[{24+2*i}:{25+2*i}], v[{48+2*d}:{49+2*d}] op_sel_hi:[1,0,1]")
A("s_nop 1")
for e in range(4):
    A(f"v_permlane32_swap_b32 v{48+e}, v{52+e}")
A("v_pk_add_f32 v[48:49], v[48:49], v[52:53]")
A("v_pk_add_f32 v[50:51], v[50:51], v[54:55]")
A("ds_write_b128 v11, v[48:51]")
A(f"s_cmp_gt_u32 s{sW}, 1")
A("s_waitcnt lgkmcnt(0)")
A("s_barrier")
A("s_cbranch_scc1 L_cbd")
A("ds_read_b128 v[16:19], v66")
A("ds_read_b128 v[20:23], v66 offset:16")
for i in range(4):
    A(f"ds_read_b128 v[{32+4*i}:{35+4*i}], v65 offset:{2048*i}")
A("s_waitcnt lgkmcnt(4)")
A("v_max3_f32 v24, v16, v18, v20")
A("v_max_f32 v24, v24, v22")
for i in range(4):
    A(f"v_sub_f32 v{16+2*i}, v{16+2*i}, v24")
for i in range(4):
    A(f"v_exp_f32 v{16+2*i}, v{16+2*i}")
A("v_mul_f32 v25, v16, v17")
A("v_fmac_f32 v25, v18, v19")
A("v_fmac_f32 v25, v20, v21")
A("v_fmac_f32 v25, v22, v23")
A("v_rcp_f32 v26, v25")
A("s_waitcnt lgkmcnt(0)")
for i in range(4):
    for hh in range(2):
        x = 32 + 4 * i + 2 * hh
        if i == 0:
            A(f"v_pk_mul_f32 v[{48+2*hh}:{49+2*hh}], v[{x}:{x+1}], v[16:17] op_sel_hi:[1,0]")
        else:
            A(f"v_pk_fma_f32 v[{48+2*hh}:{49+2*hh}], v[{x}:{x+1}], v[{16+2*i}:{17+2*i}], v[{48+2*hh}:{49+2*hh}] op_sel_hi:[1,0,1]")
A("v_pk_mul_f32 v[48:49], v[48:49], v[26:27] op_sel_hi:[1,0]")
A("v_pk_mul_f32 v[50:51], v[50:51], v[26:27] op_sel_hi:[1,0]")
A("v_cvt_pk_bf16_f32 v236, v48, v49")
A("v_cvt_pk_bf16_f32 v237, v50, v51")
store_local([f"buffer_store_dwordx4 v[236:239], v6, {srd(S_WS)}, s93 offen"])
A.stamp(4)
A.stamp(11, 4)
A.lab("L_cbd")

A("v_lshlrev_b32 v12, 11, v3")
A("v_lshl_add_u32 v12, v1, 5, v12")
A("v_and_b32 v13, 1, v0")
A("v_lshl_add_u32 v12, v13, 4, v12")
A(f"s_lshl_b32 s95, s{sH}, 13")
A(f"s_and_b32 s90, s{sR}, 8")
A("s_lshl_b32 s90, s90, 7")
A("s_add_u32 s95, s95, s90")
A(f"s_lshl_b32 s90, s{sW}, 7")
A("s_add_u32 s95, s95, s90")
A(f"s_add_u32 s95, s95, {W_H3B}")
A("v_and_b32 v14, 7, v0")
A("v_lshlrev_b32 v14, 5, v14")
A("v_lshl_add_u32 v14, v1, 8, v14")
A(f"s_lshl_b32 s90, s{sW}, 10")
A(f"s_add_u32 s90, s90, {L_RED}")
A("v_add_u32 v14, s90, v14")
A("v_lshlrev_b32 v15, 11, v1")
A("v_lshl_add_u32 v15, v2, 4, v15")
A(f"s_lshl_b32 s96, s{sX}, 14")
A(f"s_and_b32 s90, s{sR}, 8")
A("s_lshl_b32 s90, s90, 10")
A("s_add_u32 s96, s96, s90")
A(f"s_and_b32 s90, s{sH}, 3")
A("s_lshl_b32 s90, s90, 9")
A("s_add_u32 s96, s96, s90")
A(f"s_and_b32 s90, s{sR}, 4")
A("s_lshl_b32 s90, s90, 6")
A("s_add_u32 s96, s96, s90")
A(f"s_add_u32 s96, s96, {W_H4}")
poll([f"buffer_load_dwordx4 v[208:211], v12, {srd(S_WS)}, s95 offen"], [210])
A.stamp(9)
for jj in range(8):
    d = 144 + 4 * jj
    A(f"v_mfma_f32_16x16x16_bf16 v[{d}:{d+3}], v[208:209], v[{80+2*jj}:{81+2*jj}], 0")
A("s_nop 1")
for jj in range(8):
    d = 144 + 4 * jj
    A(f"v_add_f32_dpp v{216+jj}, v{d+1}, v{d} row_shl:8 {DPPM}")
execmask(M_N8)
A("ds_write_b128 v14, v[216:219]")
A("ds_write_b128 v14, v[220:223] offset:16")
execall()
A("s_waitcnt lgkmcnt(0)")
A("s_barrier")
A(f"s_cmp_lt_u32 s{sW}, 2")
A("s_cbranch_scc1 L_red")
A(f"s_cmp_lt_u32 s{sW}, 4")
A("s_cbranch_scc1 L_s8")
A(f"s_cmp_lg_u32 s{sW}, 7")
A("s_cbranch_scc1 L_clean")
for s_ in range(8):
    A(f"ds_read_b128 v[{144+4*s_}:{147+4*s_}], v6 offset:{L_RED + 1024*s_}")
sum_b128(8, 144, True)
A("v_cvt_pk_bf16_f32 v236, v144, v145")
A("v_cvt_pk_bf16_f32 v237, v146, v147")
store_local([f"buffer_store_dwordx4 v[236:239], v15, {srd(S_WS)}, s96 offen"])
A.stamp(10)
A("s_branch L_fin")

A.lab("L_clean")
A("s_branch L_fin")

A.lab("L_red")
A(f"s_cmp_lt_u32 s{sR}, 26")
A("s_cbranch_scc0 L_fin")
A(f"s_and_b32 s94, s{sR}, 15")
A("v_and_b32 v12, 1, v1")
A("v_mul_u32_u24 v13, 1280, v12")
A("v_lshl_add_u32 v13, v2, 3, v13")
A("v_lshrrev_b32 v15, 5, v0")
A("v_lshl_add_u32 v13, v15, 2, v13")
A(f"s_mul_i32 s90, s{sW}, 2560")
A("s_lshl_b32 s93, s94, 7")
A("s_add_u32 s90, s90, s93")
A(f"buffer_load_dword v200, v13, {srd(S_X)}, s90 offen")
A("v_mul_u32_u24 v13, 2560, v12")
A("v_lshl_add_u32 v13, v2, 4, v13")
A(f"s_mul_i32 s96, s{sX}, 10240")
A(f"s_mul_i32 s90, s{sW}, 5120")
A("s_add_u32 s96, s96, s90")
A("s_lshl_b32 s90, s94, 8")
A("s_add_u32 s96, s96, s90")
A(f"s_add_u32 s96, s96, {W_H5C}")
A("v_and_b32 v14, 0x1ff, v6")
A("v_lshl_add_u32 v14, v15, 10, v14")
A("s_lshl_b32 s95, s94, 13")
A(f"s_lshl_b32 s90, s{sW}, 9")
A("s_add_u32 s95, s95, s90")
A(f"s_add_u32 s95, s95, {W_H5B}")
A("s_add_u32 s93, s95, 4096")
poll([f"buffer_load_dwordx4 v[{144+4*i}:{147+4*i}], v14, {srd(S_WS)}, {'s95' if i < 2 else 's93'} offen offset:{2048*(i&1)}" for i in range(4)],
     [146 + 4 * i for i in range(4)])
for i in range(4):
    unpack(160 + 4 * i, 161 + 4 * i, 144 + 4 * i)
    unpack(162 + 4 * i, 163 + 4 * i, 145 + 4 * i)
unpack(202, 203, 200)
sum_b128(4, 160)
A("s_nop 1")
A("v_permlane32_swap_b32 v160, v162")
A("v_permlane32_swap_b32 v161, v163")
A("s_nop 0")
A("v_pk_add_f32 v[160:161], v[160:161], v[162:163]")
A("v_pk_add_f32 v[160:161], v[160:161], v[202:203]")
A("v_cvt_pk_bf16_f32 v236, v160, v161")
A("v_cvt_pk_bf16_f32 v237, v160, v161")
A("s_nop 1")
A("v_permlane32_swap_b32 v236, v237")
execmask(0xFFFFFFFF)
store_local([f"buffer_store_dwordx4 v[236:239], v13, {srd(S_WS)}, s96 offen"])
execall()
A.stamp(11)
A("s_branch L_fin")

A.lab("L_s8")
A(f"s_sub_u32 s94, 31, s{sR}")
A("s_lshl_b32 s94, s94, 3")
A(f"s_add_u32 s94, s94, s{sX}")
A(f"s_and_b32 s90, s{sW}, 1")
A("s_lshl_b32 s90, s90, 7")
A("s_add_u32 s94, s94, s90")
A("s_cmp_lt_u32 s94, 160")
A("s_cbranch_scc0 L_fin")
A("s_mul_i32 s90, s94, 1639")
A("s_lshr_b32 s90, s90, 16")
A("s_mul_i32 s93, s90, 40")
A("s_sub_u32 s93, s94, s93")
A("s_lshr_b32 s95, s93, 3")
A("s_lshl_b32 s95, s95, 5")
A("s_bfe_u32 s96, s93, 0x10002")
A("s_add_u32 s95, s95, s96")
A("s_and_b32 s96, s93, 3")
A("s_lshl_b32 s96, s96, 3")
A("s_add_u32 s95, s95, s96")
A("v_mul_u32_u24 v12, 10240, v5")
A("v_lshl_add_u32 v12, v4, 4, v12")
A("s_lshl_b32 s78, s94, 6")
A(f"s_add_u32 s78, s78, {W_H6}")
A(f"s_add_u32 s79, s78, {16*10240}")
A(f"s_add_u32 s80, s78, {32*10240}")
A(f"s_add_u32 s81, s78, {48*10240}")
A("v_add_u32 v13, s81, v12")
A(f"s_lshl_b32 s82, s{sX}, 2")
A("s_add_u32 s82, s82, s90")
A("s_mul_i32 s82, s82, 160")
A("s_add_u32 s82, s82, s95")
A("s_lshl_b32 s82, s82, 4")
A(f"s_add_u32 s82, s82, {W_H5C}")
A("v_lshlrev_b32 v14, 5, v4")
A("v_add_u32 v14, s82, v14")
A("v_cmp_gt_u32 vcc, 6, v5")
A("s_nop 1")
A("v_cndmask_b32 v13, v14, v13, vcc")
A("s_mul_i32 s83, s90, 1280")
A("s_lshl_b32 s84, s95, 3")
A("s_add_u32 s83, s83, s84")
A("v_lshlrev_b32 v15, 4, v4")
A("v_lshl_add_u32 v15, v1, 1, v15")
s8l = [f"buffer_load_dwordx4 v[144:147], v12, {srd(S_WS)}, s78 offen",
       f"buffer_load_dwordx4 v[148:151], v12, {srd(S_WS)}, s79 offen",
       f"buffer_load_dwordx4 v[152:155], v12, {srd(S_WS)}, s80 offen",
       f"buffer_load_dwordx4 v[156:159], v13, {srd(S_WS)}, 0 offen"]
for i in s8l:
    A(i + " sc1")
poll([f"buffer_load_dwordx4 v[164:167], v14, {srd(S_WS)}, 0 offen"], [166], sleep=2)
poll(s8l, [146, 150, 154, 158])
A("v_cmp_gt_u32 vcc, 7, v5")
A("s_nop 1")
A("v_cndmask_b32 v156, 0, v156, vcc")
A("v_cndmask_b32 v157, 0, v157, vcc")
for i in range(4):
    unpack(160 + 4 * i, 161 + 4 * i, 144 + 4 * i)
    unpack(162 + 4 * i, 163 + 4 * i, 145 + 4 * i)
sum_b128(4, 160)
A("s_nop 1")
A("v_permlane32_swap_b32 v160, v162")
A("v_permlane32_swap_b32 v161, v163")
A("s_nop 0")
A("v_pk_add_f32 v[160:161], v[160:161], v[162:163]")
A("s_nop 1")
A("v_permlane16_swap_b32 v160, v161")
A("s_nop 0")
A("v_add_f32 v160, v160, v161")
A("s_nop 1")
A(f"v_add_f32_dpp v160, v160, v160 row_ror:8 {DPPM}")
A("s_nop 1")
A(f"v_add_f32_dpp v160, v160, v160 row_ror:4 {DPPM}")
A("s_nop 0")
A("v_cvt_pk_bf16_f32 v160, v160, v160")
execmask(M_N4)
A(f"buffer_store_short v160, v15, {srd(S_OUT)}, s83 offen")
execall()
A("s_cmp_lg_u32 s94, 0")
A("s_cbranch_scc1 L_s8x")
A("v_mov_b32 v12, 0")
A("s_mov_b64 exec, 1")
A(f"buffer_store_dwordx2 v[238:239], v12, {srd(S_WS)}, 0 offen sc1")
execall()
A.lab("L_s8x")
if opt.padto:
    A.lab("L_pad")
    A("s_memrealtime s[6:7]")
    A("s_waitcnt lgkmcnt(0)")
    A("s_sub_u32 s6, s6, s4")
    A(f"s_cmp_lt_u32 s6, {opt.padto*100}")
    A("s_cbranch_scc1 L_pad")
A.stamp(11)
A("s_branch L_fin")

def w1_loads():
    A("v_mul_u32_u24 v15, 13824, v5")
    A("v_lshl_add_u32 v15, v4, 4, v15")
    A(f"s_mul_i32 s93, s{sW}, {128*3456}")
    A("s_lshl_b32 s90, s94, 6")
    A("s_add_u32 s93, s93, s90")
    for i in range(8):
        A(f"s_add_u32 s90, s93, {((i & 3) + 64*(i >> 2))*3456}")
        A(f"buffer_load_dwordx4 v[{16+4*i}:{19+4*i}], v15, {srd(S_W1)}, s90 offen {opt.pt}")


A.lab("L_F")
A("s_barrier")
A("s_mov_b32 s94, s100")
A("s_mov_b32 s97, s101")
A(f"s_cmp_lt_u32 s{sR}, 10")
A("s_cbranch_scc0 L_F1")
A("s_add_u32 s90, s91, 5120")
for i in range(4):
    A(f"buffer_load_dwordx4 v[{144+4*i}:{147+4*i}], v244, {srd(S_WO)}, s90 offen offset:{1280*i} nt")
A("s_cmp_lt_u32 s97, 54")
A("s_cbranch_scc0 L_s5")
w1_loads()
A.lab("L_s5")
A("s_waitcnt vmcnt(0)")
transpose(176, [212, 216, 220, 224, 144, 148, 152, 156], 4)
A("v_lshl_add_u32 v12, v3, 11, v7")
A(f"s_lshl_b32 s95, s{sX}, 14")
A(f"s_lshl_b32 s90, s{sW}, 8")
A("s_add_u32 s95, s95, s90")
A(f"s_add_u32 s95, s95, {W_H4}")
A("s_add_u32 s96, s95, 8192")
A("v_and_b32 v14, 7, v0")
A("v_lshlrev_b32 v14, 5, v14")
A("v_lshl_add_u32 v14, v1, 8, v14")
A(f"s_lshl_b32 s90, s{sW}, 10")
A(f"s_add_u32 s90, s90, {L_RED}")
A("v_add_u32 v14, s90, v14")
poll([f"buffer_load_dwordx4 v[208:211], v12, {srd(S_WS)}, s95 offen",
      f"buffer_load_dwordx4 v[212:215], v12, {srd(S_WS)}, s96 offen"], [210, 214], sleep=1)
A.stamp(9, 0)
unpack(216, 217, 208); unpack(218, 219, 209); unpack(220, 221, 212); unpack(222, 223, 213)
A("v_pk_add_f32 v[216:217], v[216:217], v[220:221]")
A("v_pk_add_f32 v[218:219], v[218:219], v[222:223]")
A("v_cvt_pk_bf16_f32 v208, v216, v217")
A("v_cvt_pk_bf16_f32 v209, v218, v219")
A("s_nop 1")
A(f"v_mov_b32_dpp v212, v208 quad_perm:[0,2,0,2] {DPPM}")
A(f"v_mov_b32_dpp v213, v209 quad_perm:[0,2,0,2] {DPPM}")
A(f"v_mov_b32_dpp v214, v208 quad_perm:[1,3,1,3] {DPPM}")
A(f"v_mov_b32_dpp v215, v209 quad_perm:[1,3,1,3] {DPPM}")
A("s_nop 1")
for jj in range(8):
    d = 144 + 4 * jj
    A(f"v_mfma_f32_16x16x32_bf16 v[{d}:{d+3}], v[212:215], v[{176+4*jj}:{179+4*jj}], 0")
A("s_nop 1")
for jj in range(8):
    d = 144 + 4 * jj
    A(f"v_add_f32_dpp v{216+jj}, v{d+1}, v{d} row_shl:8 {DPPM}")
execmask(M_N8)
A("ds_write_b128 v14, v[216:219]")
A("ds_write_b128 v14, v[220:223] offset:16")
execall()
A("s_waitcnt lgkmcnt(0)")
A("s_barrier")
A(f"s_cmp_lg_u32 s{sW}, 7")
A("s_cbranch_scc1 L_F1")
for s in range(8):
    A(f"ds_read_b128 v[{144+4*s}:{147+4*s}], v6 offset:{L_RED + 1024*s}")
A(f"s_lshl_b32 s95, s{sR}, 3")
A(f"s_add_u32 s95, s95, s{sX}")
A("s_lshl_b32 s95, s95, 10")
A(f"s_add_u32 s95, s95, {W_H5B}")
sum_b128(8, 144, True)
A("v_cvt_pk_bf16_f32 v236, v144, v145")
A("v_cvt_pk_bf16_f32 v237, v146, v147")
A(f"buffer_store_dwordx4 v[236:239], v6, {srd(S_WS)}, s95 offen sc1")
A.stamp(11)
A("s_branch L_fin")

A.lab("L_F1")
A("s_cmp_lt_u32 s97, 54")
A("s_cbranch_scc0 L_fin")
A(f"s_mul_i32 s91, s94, {32*1280}")
A(f"s_lshl_b32 s90, s{sW}, 8")
A("s_add_u32 s91, s91, s90")
A(f"s_cmp_lt_u32 s{sR}, 10")
A("s_cbranch_scc0 L_F1a")
A("s_sleep 2")
for i in range(4):
    A(f"buffer_load_dwordx4 v[{212+4*i}:{215+4*i}], v247, {srd(S_W2)}, s91 offen offset:{1280*i} nt")
A("s_branch L_F1b")
A.lab("L_F1a")
w1_loads()
A.lab("L_F1b")
A("s_add_u32 s90, s91, 5120")
for i in range(4):
    A(f"buffer_load_dwordx4 v[{64+4*i}:{67+4*i}], v247, {srd(S_W2)}, s90 offen offset:{1280*i} nt")
A("s_waitcnt vmcnt(0)")
A.stamp(2, 0)
transpose(80, [16 + 4 * i for i in range(8)], 4)
transpose(112, [212, 216, 220, 224, 64, 68, 72, 76], 4)
for i in range(4):
    A(f"v_mov_b32 v{48+i}, 0x3f803f80")
A("s_nop 1")
for jj in range(8):
    A(f"v_mfma_f32_16x16x32_bf16 v[{16+4*jj}:{19+4*jj}], v[48:51], v[{80+4*jj}:{83+4*jj}], 0")
A("s_nop 1")
dppsum([56 + jj for jj in range(8)], [16 + 4 * jj for jj in range(8)])
A("v_lshlrev_b32 v14, 5, v4")
A(f"s_lshl_b32 s90, s{sW}, 7")
A(f"s_add_u32 s90, s90, {L_CS}")
A("v_add_u32 v14, s90, v14")
A("s_mov_b64 exec, 15")
A("ds_write_b128 v14, v[56:59]")
A("ds_write_b128 v14, v[60:63] offset:16")
execall()
A("s_waitcnt lgkmcnt(0)")
A("s_barrier")
A.lab("L_s67")
A("v_lshrrev_b32 v14, 1, v7")
for s in range(5):
    A(f"ds_read_b64 v[{16+2*s}:{17+2*s}], v14 offset:{L_CS + 128*s}")
A("v_mul_u32_u24 v12, 2560, v3")
A("v_add_u32 v12, v12, v7")
A(f"s_mul_i32 s95, s{sX}, 10240")
A(f"s_lshl_b32 s90, s{sW}, 9")
A("s_add_u32 s95, s95, s90")
A(f"s_add_u32 s95, s95, {W_H5C}")
A("v_lshlrev_b32 v13, 1, v7")
A(f"s_add_u32 s90, s90, {L_RED2}")
A("v_add_u32 v13, s90, v13")
A("v_lshlrev_b32 v10, 3, v1")
A(f"s_lshl_b32 s90, s{sW}, 5")
A(f"s_add_u32 s90, s90, {L_RS}")
A("v_add_u32 v10, s90, v10")
A("v_lshl_add_u32 v14, v3, 7, v14")
A("v_lshlrev_b32 v11, 3, v3")
A("v_mul_u32_u24 v9, 2560, v1")
A("v_lshl_add_u32 v9, v2, 4, v9")
A("s_mul_i32 s96, s94, 10240")
A(f"s_lshl_b32 s90, s{sW}, 9")
A("s_add_u32 s96, s96, s90")
A(f"s_add_u32 s96, s96, {W_H6}")
A("s_waitcnt lgkmcnt(0)")
for s in range(1, 5):
    A(f"v_pk_add_f32 v[16:17], v[16:17], v[{16+2*s}:{17+2*s}]")
poll([f"buffer_load_dwordx4 v[208:211], v12, {srd(S_WS)}, s95 offen",
      f"buffer_load_dwordx4 v[212:215], v12, {srd(S_WS)}, s95 offen offset:256"], [210, 214], sleep=1)
A.stamp(10, 0)
A("v_mov_b32 v210, v212")
A("v_mov_b32 v211, v213")
A("s_nop 1")
A("v_mfma_f32_16x16x32_bf16 v[184:187], v[208:211], v[48:51], 0")
A("v_mfma_f32_16x16x32_bf16 v[188:191], v[208:211], v[208:211], 0")
for jj in range(8):
    d = 144 + 4 * jj
    A(f"v_mfma_f32_16x16x32_bf16 v[{d}:{d+3}], v[208:211], v[{80+4*jj}:{83+4*jj}], 0")
A("v_add_f32 v192, v184, v185")
A(f"v_add_f32_dpp v193, v189, v188 row_shl:1 {DPPM}")
A("v_add_f32 v194, v186, v187")
A("s_nop 0")
A(f"v_add_f32_dpp v193, v190, v193 row_shl:2 {DPPM}")
A("v_add_f32 v192, v192, v194")
A("s_nop 0")
A(f"v_add_f32_dpp v193, v191, v193 row_shl:3 {DPPM}")
execmask(0x1000010000100001)
A("ds_write_b64 v10, v[192:193]")
execall()
dppsum([176 + i for i in range(8)], [144 + 4 * i for i in range(8)])
execmask(M_N4)
A("ds_write_b128 v13, v[176:179]")
A("ds_write_b128 v13, v[180:183] offset:16")
execall()
A("s_waitcnt lgkmcnt(0)")
A("s_barrier")
for s in range(5):
    A(f"ds_read_b64 v[{160+2*s}:{161+2*s}], v11 offset:{L_RS + 32*s}")
for s in range(5):
    A(f"ds_read_b64 v[{144+2*s}:{145+2*s}], v14 offset:{L_RED2 + 512*s}")
A("s_waitcnt lgkmcnt(5)")
for s in range(1, 5):
    A(f"v_pk_add_f32 v[160:161], v[160:161], v[{160+2*s}:{161+2*s}]")
A(f"v_mul_f32 v160, {f32(1/640)}, v160")
A(f"v_mul_f32 v161, {f32(1/640)}, v161")
A("v_fma_f32 v161, -v160, v160, v161")
A("v_max_f32 v161, 0, v161")
A(f"v_add_f32 v161, {f32(1e-5)}, v161")
A("v_rsq_f32 v161, v161")
A("s_waitcnt lgkmcnt(0)")
for s in range(1, 5):
    A(f"v_pk_add_f32 v[144:145], v[144:145], v[{144+2*s}:{145+2*s}]")
A("v_fma_f32 v144, -v160, v16, v144")
A("v_fma_f32 v145, -v160, v17, v145")
A("v_mul_f32 v144, v144, v161")
A("v_mul_f32 v145, v145, v161")
A(f"v_mul_f32 v146, {f32(-math.log2(math.e))}, v144")
A(f"v_mul_f32 v147, {f32(-math.log2(math.e))}, v145")
A("v_exp_f32 v146, v146")
A("v_exp_f32 v147, v147")
A("s_nop 0")
A("v_add_f32 v146, 1.0, v146")
A("v_add_f32 v147, 1.0, v147")
A("v_rcp_f32 v146, v146")
A("v_rcp_f32 v147, v147")
A("s_nop 0")
A("v_mul_f32 v144, v144, v146")
A("v_mul_f32 v145, v145, v147")
A("v_cvt_pk_bf16_f32 v148, v144, v145")
A("s_nop 1")
for i in range(4):
    A(f"v_mov_b32_dpp v{208+i}, v148 quad_perm:[{i},{i},{i},{i}] {DPPM}")
A("s_nop 1")
for jj in range(8):
    d = 144 + 4 * jj
    A(f"v_mfma_f32_16x16x32_bf16 v[{d}:{d+3}], v[208:211], v[{112+4*jj}:{115+4*jj}], 0")
A("s_nop 3")
A("v_cvt_pk_bf16_f32 v232, v144, v148")
A("v_cvt_pk_bf16_f32 v233, v152, v156")
A(f"buffer_store_dwordx4 v[232:235], v9, {srd(S_WS)}, s96 offen sc1")
A("s_nop 1")
A("v_cvt_pk_bf16_f32 v236, v160, v164")
A("v_cvt_pk_bf16_f32 v237, v168, v172")
A(f"buffer_store_dwordx4 v[236:239], v9, {srd(S_WS)}, s96 offen offset:256 sc1")
A.stamp(11)

A.lab("L_fin")
if opt.dbgstamps:
    A("s_waitcnt vmcnt(0) lgkmcnt(0)")
    A("s_load_dwordx2 s[92:93], s[0:1], 80")
    A("s_mov_b32 s94, 256")
    A("s_mov_b32 s95, 0x00020000")
    A("v_mov_b32 v8, 0")
    A("s_waitcnt lgkmcnt(0)")
    A("s_mov_b64 exec, 1")
    A("s_not_b32 s90, s4")
    A("v_mov_b32 v9, s90")
    A("buffer_atomic_umax v9, v8, s[92:95], 0 offen offset:60")
    A(f"s_cmp_lt_u32 s{sR}, 16")
    for i in range(12):
        A(f"v_mov_b32 v9, s{4+2*i}")
        if i in (3, 4, 9):
            o2 = {3: 48, 4: 52, 9: 56}[i]
            A(f"s_cselect_b32 s91, {4*i}, {o2}")
            A(f"buffer_atomic_umax v9, v8, s[92:95], s91 offen")
        else:
            A(f"buffer_atomic_umax v9, v8, s[92:95], 0 offen offset:{4*i}")
    A("s_branch L_end")
if opt.stamps:
    A("s_waitcnt vmcnt(0) lgkmcnt(0)")
    A(f"s_lshl_b32 s90, s2, 3")
    A(f"s_add_u32 s90, s90, s{sW}")
    A("s_lshl_b32 s90, s90, 6")
    A(f"s_add_u32 s90, s90, {W_STAMP}")
    A("v_mov_b32 v8, 0")
    A("s_mov_b64 exec, 1")
    for i in range(12):
        A(f"v_mov_b32 v9, s{4+2*i}")
        A(f"buffer_store_dword v9, v8, {srd(S_WS)}, s90 offen offset:{4*i}")
    A(f"v_mov_b32 v9, s{sCNT}")
    A(f"buffer_store_dword v9, v8, {srd(S_WS)}, s90 offen offset:56")
    A(f"v_mov_b32 v9, s{sFAST}")
    A(f"buffer_store_dword v9, v8, {srd(S_WS)}, s90 offen offset:60")
A.lab("L_end")

body = "\n".join(A.l)
if opt.stamps:
    init = "\n".join(f"    s_mov_b32 s{4+2*i}, 0" for i in range(1, 12))
    body = init + "\n" + body
out = HDR + f"""; @launch grid=(256,1,1) block=(512,1,1) lds={LDS_BYTES}
.amdgcn_target "amdgcn-amd-amdhsa--gfx950"
.text
.globl {NAME}_kernel
.p2align 8
.type {NAME}_kernel,@function
{NAME}_kernel:
{body}
    s_endpgm
L_codeend:
.section .rodata,"a"
.p2align 6
.amdhsa_kernel {NAME}_kernel
  .amdhsa_next_free_vgpr 256
  .amdhsa_next_free_sgpr 102
  .amdhsa_accum_offset 256
  .amdhsa_group_segment_fixed_size 0
  .amdhsa_kernarg_size 96
  .amdhsa_user_sgpr_count 2
  .amdhsa_user_sgpr_kernarg_segment_ptr 1
  .amdhsa_system_sgpr_workgroup_id_x 1
.end_amdhsa_kernel
"""
open(opt.o, "w").write(out)
print("wrote", opt.o, "lines", len(A.l), file=sys.stderr)
```

```python
import sys, re, argparse, math, struct

NAME = "sequential_preLN__compressed_kv_cla__dense_activation_silu__decode"
HDR = open(f"cdna_kernels/{NAME}.s.ref").read().split("; Override launch")[0]

ap = argparse.ArgumentParser()
ap.add_argument("-o", default=f"cdna_kernels/{NAME}.s")
ap.add_argument("--stamps", action="store_true")
ap.add_argument("--early", type=int, default=4)
ap.add_argument("--early67", type=int, default=16)
ap.add_argument("--pw", default="sc1")
ap.add_argument("--noh3bt", action="store_true")
ap.add_argument("--earlyA", type=int, default=4)
ap.add_argument("--nocodepf", action="store_true")
ap.add_argument("--nobar2", action="store_true")
ap.add_argument("--nouvpf", action="store_true")
ap.add_argument("--noukpf", action="store_true")
ap.add_argument("--kb0", type=int, default=2)
ap.add_argument("--kb", type=int, default=0)
ap.add_argument("--ka", type=int, default=0)
ap.add_argument("--kf", type=int, default=16)
ap.add_argument("--arev", action="store_true")
ap.add_argument("--grp", type=int, default=0)
ap.add_argument("--ntr0", type=int, default=32)
ap.add_argument("--padto", type=int, default=0)
ap.add_argument("--forceslow", action="store_true")
ap.add_argument("--wb", action="store_true")
ap.add_argument("--dbgstamps", action="store_true")
ap.add_argument("--b1", type=int, default=10)
ap.add_argument("--b2", type=int, default=6)
ap.add_argument("--noclean", action="store_true")
ap.add_argument("--pxor", type=int, default=0)
ap.add_argument("--hxor", type=int, default=0)
ap.add_argument("--uv", default="late")
ap.add_argument("--uvsplit", type=int, default=8)
ap.add_argument("--uvw", type=int, default=4)
ap.add_argument("--ssleep", type=int, default=1)
ap.add_argument("--pc", default="")
ap.add_argument("--pq", default="")
ap.add_argument("--pt", default="")
ap.add_argument("--po", default="nt")
ap.add_argument("--fwait", type=int, default=0)
ap.add_argument("--stearly", action="store_true")
ap.add_argument("--qsleep", type=int, default=0)
opt = ap.parse_args()

W_EPOCH = 0x0
W_XT = 0x1000
W_H1 = 0x10000
W_H1B = 0x380000
W_H2 = 0x100000
W_ST3 = 0x140000
W_STX = 0x150000
W_H4 = 0x160000
W_H5B = 0x180000
W_H5C = 0x1A0000
W_H3B = 0x200000
W_H6 = 0x280000
W_H3A = 0x400000
W_STAMP = 0x800000
WS_SIZE = 0x1000000

ROWB = 1056
L_Q = 128 * ROWB
L_P = L_Q + 16 * ROWB
L_MX = L_P + 4096
L_SM = L_MX + 512
L_QV = L_SM + 512
L_QP = L_Q + 5376
L_XN = L_Q
LDS_BYTES = 163840
L_S1 = 0 * ROWB
L_RED = 0
L_RED2 = 16384
L_RS = 32768
L_CS = 33792
L_OS = 49152
L_UV = 73728

S_X, S_CKV, S_WQ, S_WUK, S_WUV, S_WO, S_W1, S_W2, S_OUT, S_WS = (28, 32, 36, 40, 44, 48, 52, 56, 60, 64)
sX, sR, sW = 68, 69, 70
sFAST = 71
sT0, sT1 = 72, 73
sPLO, sPHI = 74, 75
sCNT = 76
sH = 77
sTL = 3
POLL_LIMIT = 400000


def f32(x):
    return "0x%08x" % struct.unpack("<I", struct.pack("<f", x))[0]


class Asm:
    def __init__(self):
        self.l = []
        self.nlab = 0

    def __call__(self, s):
        m = re.search(r"offset:(\d+)", s)
        if m:
            lim = 65536 if s.lstrip().startswith("ds_") else 4096
            assert int(m.group(1)) < lim, s
        self.l.append("    " + s)

    def lab(self, n):
        self.l.append(n + ":")

    def newlab(self, p="L"):
        self.nlab += 1
        return f"{p}_{self.nlab}"

    def c(self, s):
        self.l.append("    ; " + s)

    def stamp(self, i, grp=None):
        if grp is not None and grp != opt.grp:
            return
        if opt.grp == 4 and grp != 4 and i not in (0, 7, 8):
            return
        if opt.stamps:
            self(f"s_memrealtime s[{4+2*i}:{5+2*i}]")


A = Asm()
DPPM = "row_mask:0xf bank_mask:0xf"


def srd(n):
    return f"s[{n}:{n+3}]"


def execmask(m):
    A(f"s_mov_b32 exec_lo, 0x{m & 0xffffffff:x}")
    A(f"s_mov_b32 exec_hi, 0x{m >> 32:x}")


def execall():
    A("s_mov_b64 exec, -1")


M_N4 = 0x000F000F000F000F
M_N8 = 0x00FF00FF00FF00FF


def store_local(instr):
    l1, l2 = A.newlab("Lsl"), A.newlab("Lsl")
    A(f"s_cmp_eq_u32 s{sFAST}, 0")
    A(f"s_cbranch_scc1 {l1}")
    for i in instr:
        A(i)
    A(f"s_branch {l2}")
    A.lab(l1)
    for i in instr:
        A(i + " sc1")
    A.lab(l2)


def poll(loads, tagregs, sleep=0, alt=None):
    lp = A.newlab("Lpoll")
    if alt:
        sr, sm, so_ = alt
        lf = A.newlab("Lpf")
        A(f"s_mov_b32 {sr}, {sm}")
        A(f"s_branch {lf}")
        A.lab(lp)
        A(f"s_and_b32 s98, s{sCNT}, 31")
        A("s_cmp_eq_u32 s98, 31")
        A(f"s_cselect_b32 {sr}, {so_}, {sm}")
        A.lab(lf)
    elif sleep:
        lf = A.newlab("Lpf")
        A(f"s_branch {lf}")
        A.lab(lp)
        A(f"s_sleep {sleep}")
        A.lab(lf)
    else:
        A.lab(lp)
    for i in loads:
        A(i + " sc1")
    A(f"s_add_u32 s{sCNT}, s{sCNT}, 1")
    A(f"s_cmp_gt_u32 s{sCNT}, {POLL_LIMIT}")
    A("s_cbranch_scc1 L_end")
    A("s_waitcnt vmcnt(0)")
    for k, t in enumerate(tagregs):
        if k == 0:
            A(f"v_cmp_ne_u64 vcc, s[{sT0}:{sT1}], v[{t}:{t+1}]")
        else:
            A(f"v_cmp_ne_u64 s[98:99], s[{sT0}:{sT1}], v[{t}:{t+1}]")
            A("s_or_b64 vcc, vcc, s[98:99]")
    A(f"s_cbranch_vccnz {lp}")


def transpose(dst, rows, ndw, dup=False):
    nr = len(rows) // 2
    st = 2 * nr if dup else nr
    for jj in range(2 * ndw):
        sel = sPHI if jj & 1 else sPLO
        for rep in range(2 if dup else 1):
            for p in range(nr):
                A(f"v_perm_b32 v{dst + jj*st + rep*nr + p}, v{rows[2*p+1] + (jj >> 1)}, v{rows[2*p] + (jj >> 1)}, s{sel}")


def dppsum(dsts, ds):
    assert len(dsts) >= 3
    for step in (1, 2, 3):
        for t, d in zip(dsts, ds):
            src1 = d if step == 1 else t
            A(f"v_add_f32_dpp v{t}, v{d+step}, v{src1} row_shl:{4*step} {DPPM}")


def unpack(dlo, dhi, s):
    A(f"v_lshlrev_b32 v{dlo}, 16, v{s}")
    A(f"v_and_b32 v{dhi}, 0xffff0000, v{s}")


def rowall(op, regs):
    for sh in (8, 4, 2, 1):
        if len(regs) < 3:
            A(f"s_nop {2 - len(regs)}")
        for r_ in regs:
            A(f"{op}_dpp v{r_}, v{r_}, v{r_} row_ror:{sh} {DPPM}")


def sum_b128(n, base, lds=False):
    st = 1
    while st < n:
        for s in range(0, n, 2 * st):
            if lds and st == 1:
                A(f"s_waitcnt lgkmcnt({n - s - 2})")
            x, y = base + 4 * s, base + 4 * (s + st)
            A(f"v_pk_add_f32 v[{x}:{x+1}], v[{x}:{x+1}], v[{y}:{y+1}]")
            A(f"v_pk_add_f32 v[{x+2}:{x+3}], v[{x+2}:{x+3}], v[{y+2}:{y+3}]")
        st *= 2


def tag_setup():
    A("s_waitcnt lgkmcnt(0)")
    A(f"s_mul_i32 s{sT0}, s82, 0x9E3779B1")
    A(f"s_add_u32 s{sT0}, s{sT0}, 0x7F4A7C15")
    A(f"s_mul_i32 s{sT1}, s83, 0x2C9277B5")
    A(f"s_add_u32 s{sT1}, s{sT1}, 0xAC564B05")


def xt_decide(t):
    A("s_getreg_b32 s84, hwreg(HW_REG_XCC_ID)")
    A("s_and_b32 s84, s84, 15")
    A(f"v_cmp_ne_u32 vcc, s84, v{t}")
    A("s_cmp_eq_u64 vcc, 0")
    A(f"s_cselect_b32 s{sFAST}, {0 if opt.forceslow else 1}, 0")


def ckv_dma(rows, k=None):
    for i in rows:
        A(f"s_add_u32 m0, s81, {i*ROWB}")
        A(f"s_add_u32 s86, s80, {i*1024}")
        if k:
            A(f"s_waitcnt vmcnt({k-1})")
        A(f"buffer_load_dwordx4 v6, {srd(S_CKV)}, s86 offen {opt.pc} lds")


A.stamp(0)
if opt.padto:
    A("s_memrealtime s[4:5]")
A("s_cmp_ge_u32 s2, 256")
A("s_cbranch_scc1 L_end")
ptr = {S_X: 0, S_CKV: 8, S_WQ: 16, S_WUK: 24, S_WUV: 32, S_WO: 40, S_W1: 56, S_W2: 64, S_OUT: 72, S_WS: 88}
size = {S_X: 5120, S_CKV: 16777216, S_WQ: 5242880, S_WUK: 4194304, S_WUV: 4194304, S_WO: 5242880,
        S_W1: 2211840, S_W2: 2211840, S_OUT: 5120, S_WS: WS_SIZE}
for s_ in (S_WQ, S_X, S_CKV, S_WUK, S_WS, S_WUV, S_WO, S_W1, S_W2, S_OUT):
    A(f"s_load_dwordx2 s[{s_}:{s_+1}], s[0:1], {ptr[s_]}")
A(f"s_lshr_b32 s{sR}, s2, 3")
A("v_lshrrev_b32 v1, 6, v0")
A("v_and_b32 v0, 63, v0")
A(f"v_readfirstlane_b32 s{sW}, v1")
A("v_lshlrev_b32 v6, 4, v0")
if not opt.nocodepf:
    A("s_getpc_b64 s[92:93]")
    A.lab("L_pc")
    A(f"s_sub_u32 s92, s92, L_pc-{NAME}_kernel")
    A("s_subb_u32 s93, s93, 0")
    A(f"s_mov_b32 s94, L_codeend-{NAME}_kernel")
    A("s_mov_b32 s95, 0x00020000")
    A(f"s_lshl_b32 s90, s{sR}, 10")
    A(f"s_cmp_lg_u32 s{sW}, 7")
    A("s_cbranch_scc1 L_nopf")
    A("buffer_load_dwordx4 v[252:255], v6, s[92:95], s90 offen")
    A.lab("L_nopf")
for s_ in ptr:
    A(f"s_mov_b32 s{s_+2}, {size[s_]}")
    A(f"s_mov_b32 s{s_+3}, 0x00020000")
A(f"s_and_b32 s{sX}, s2, 7")
A(f"s_mov_b32 s{sPLO}, 0x05040100")
A(f"s_mov_b32 s{sPHI}, 0x07060302")
A(f"s_mov_b32 s{sCNT}, 0")
A(f"s_mov_b32 s{sFAST}, 0")
A(f"s_and_b32 s78, s{sR}, 3")
if opt.hxor:
    A(f"s_xor_b32 s78, s78, {opt.hxor}")
A(f"s_lshl_b32 s{sH}, s{sX}, 2")
A(f"s_add_u32 s{sH}, s{sH}, s78")
A(f"s_lshl_b32 s88, s{sH}, 8")
A("v_lshrrev_b32 v1, 4, v0")
A("v_and_b32 v2, 15, v0")
A("v_bfe_u32 v3, v0, 2, 2")
A("v_and_b32 v4, 3, v0")
A("v_lshrrev_b32 v5, 2, v0")
A("v_lshlrev_b32 v7, 6, v1")
A("v_lshl_add_u32 v7, v4, 4, v7")
A(f"s_bfe_u32 s79, s{sR}, 0x20002")
A("s_lshl_b32 s80, s79, 22")
A(f"s_lshl_b32 s81, s{sH}, 17")
A("s_add_u32 s80, s80, s81")
A(f"s_xor_b32 s{sTL}, s{sW}, 4")
A(f"s_cmp_lt_u32 s{sR}, 16")
A(f"s_cselect_b32 s{sTL}, s{sTL}, s{sW}")
A(f"s_lshl_b32 s81, s{sTL}, 14")
A("s_add_u32 s80, s80, s81")
A(f"s_mul_i32 s81, s{sTL}, {16*ROWB}")
A("s_mul_i32 s87, s79, 160")
A(f"s_lshl_b32 s90, s{sW}, 5")
A("s_add_u32 s87, s87, s90")
A("s_lshl_b32 s89, s87, 13")
A("s_add_u32 s89, s89, s88")
A("v_lshlrev_b32 v9, 16, v1")
A("v_lshl_add_u32 v9, v2, 4, v9")
A("v_lshl_add_u32 v10, v3, 15, v7")
A("s_lshl_b32 s91, s79, 7")
A(f"s_and_b32 s90, s{sW}, 3")
A("s_lshl_b32 s90, s90, 5")
A("s_add_u32 s91, s91, s90")
A("s_lshl_b32 s91, s91, 13")
A("s_add_u32 s91, s91, s88")
A(f"s_cmp_lt_u32 s{sR}, 16")
A("s_waitcnt lgkmcnt(0)")
A(f"s_load_dwordx2 s[82:83], s[{S_WS}:{S_WS+1}], {W_EPOCH}")
A("s_cbranch_scc0 L_frontB")


def xt_publish(t):
    A("s_getreg_b32 s84, hwreg(HW_REG_XCC_ID)")
    A("s_and_b32 s84, s84, 15")
    A(f"s_lshl_b32 s85, s{sX}, 9")
    A(f"s_add_u32 s85, s85, {W_XT}")
    A(f"s_lshl_b32 s86, s{sR}, 4")
    A(f"v_mov_b32 v{t}, s84")
    A(f"v_mov_b32 v{t+1}, 0")
    A(f"v_mov_b32 v{t+2}, s{sT0}")
    A(f"v_mov_b32 v{t+3}, s{sT1}")
    A("v_mov_b32 v12, s86")
    A("s_mov_b64 exec, 1")
    A(f"buffer_store_dwordx4 v[{t}:{t+3}], v12, {srd(S_WS)}, s85 offen sc1")
    execall()


def uk_loads(ts, dst=None):
    for t in ts:
        A(f"s_add_u32 s90, s91, {(16*(t>>2) + (t&3))*8192}")
        d = dst if dst is not None else 208 + 4 * t
        A(f"buffer_load_dwordx4 v[{d}:{d+3}], v10, {srd(S_WUK)}, s90 offen {opt.pq}")


A(f"s_cmp_gt_u32 s{sW}, 4")
A("s_cbranch_scc1 L_notS1")
RAW = 16


def wq_issue(j):
    for i in range(8):
        d = RAW + 32 * j + 4 * i
        A(f"buffer_load_dwordx4 v[{d}:{d+3}], v9, {srd(S_WQ)}, s89 offen {opt.pq}")
        if i < 7:
            A("s_add_u32 s89, s89, 8192")
        if j == 0 and i == 3:
            A("s_barrier")
    if j < 3:
        A(f"s_add_u32 s89, s89, {(160-7)*8192}")
        A(f"s_sub_u32 s90, s89, {640*8192}")
        A(f"s_cmp_ge_u32 s89, {640*8192}")
        A("s_cselect_b32 s89, s90, s89")


def wq_proc(j):
    rw = RAW + 32 * j
    for jj in range(8):
        sel = sPHI if jj & 1 else sPLO
        o = 176 + 4 * jj
        for p in range(4):
            A(f"v_perm_b32 v{o+p}, v{rw+4*(2*p+1)+(jj>>1)}, v{rw+4*(2*p)+(jj>>1)}, s{sel}")
        if jj >= 1:
            j1 = jj - 1
            c = "0" if j == 0 else f"v[{144+4*j1}:{147+4*j1}]"
            A(f"v_mfma_f32_16x16x32_bf16 v[{144+4*j1}:{147+4*j1}], v[{240+4*j}:{243+4*j}], v[{176+4*j1}:{179+4*j1}], {c}")
    A("s_nop 0")
    c = "0" if j == 0 else "v[172:175]"
    A(f"v_mfma_f32_16x16x32_bf16 v[172:175], v[{240+4*j}:{243+4*j}], v[204:207], {c}")


wq_issue(0)
wq_issue(1)
A("v_mul_u32_u24 v8, 1296, v3")
A("v_lshl_add_u32 v8, v1, 4, v8")
A(f"v_add_u32 v8, {L_XN}, v8")
A("s_barrier")
for j in range(4):
    A("s_lshl_b32 s90, s87, 1")
    A("v_add_u32 v11, s90, v8")
    A(f"ds_read_b128 v[{240+4*j}:{243+4*j}], v11")
    if j < 3:
        A("s_add_u32 s87, s87, 160")
        A("s_sub_u32 s90, s87, 640")
        A("s_cmp_ge_u32 s87, 640")
        A("s_cselect_b32 s87, s90, s87")
wq_issue(2)
tag_setup()
A("s_waitcnt vmcnt(16)")
wq_proc(0)
wq_issue(3)
A("s_waitcnt vmcnt(16)")
wq_proc(1)
uk_loads(range(8))
A("s_barrier")
A("v_mul_u32_u24 v12, 576, v1")
A("v_lshl_add_u32 v12, v2, 5, v12")
A("v_lshl_add_u32 v12, v3, 4, v12")
A(f"s_mul_i32 s90, s{sW}, 2304")
A(f"s_add_u32 s90, s90, {L_QP}")
A("v_add_u32 v12, s90, v12")
A("s_waitcnt vmcnt(16)")
wq_proc(2)
A("v_mul_u32_u24 v11, 576, v4")
A("v_lshl_add_u32 v11, v5, 5, v11")
A("v_lshl_add_u32 v11, v1, 4, v11")
A(f"v_add_u32 v11, {L_QP}, v11")
A("v_bfe_u32 v8, v0, 2, 1")
A("v_bfe_u32 v13, v0, 3, 2")
A("v_lshlrev_b32 v14, 4, v4")
A("v_lshl_add_u32 v14, v8, 2, v14")
A("v_add_u32 v14, v14, v13")
A("v_lshlrev_b32 v14, 2, v14")
A("v_and_b32 v15, 7, v0")
A("v_lshlrev_b32 v15, 4, v15")
A("v_lshl_add_u32 v15, v13, 16, v15")
A("s_waitcnt vmcnt(8)")
A.stamp(1, 0)
wq_proc(3)
A("s_nop 3")
for jj in range(0, 8, 2):
    A(f"ds_write2_b32 v12, v{144+4*jj}, v{148+4*jj} offset0:{jj} offset1:{jj+1}")
A("s_waitcnt lgkmcnt(0)")
A.stamp(2)
A("s_barrier")
A(f"s_cmp_eq_u32 s{sW}, 4")
A("s_cbranch_scc0 L_s2")
ckv_dma(range(0, opt.b2))
A("s_barrier")
ckv_dma(range(opt.b2, 16))
A("s_branch L_qgather")

A.lab("L_notS1")
A(f"s_cmp_eq_u32 s{sW}, 5")
A("s_cbranch_scc0 L_w67")
A("v_mul_u32_u24 v8, 1280, v1")
A("v_lshl_add_u32 v8, v2, 4, v8")
for i in range(5):
    A(f"buffer_load_dwordx4 v[{16+4*i}:{19+4*i}], v8, {srd(S_X)}, 0 offen offset:{256*i}")
A("s_barrier")
A("v_mov_b32 v38, 0x3f803f80")
A("v_mov_b32 v36, 0")
A("v_mov_b32 v37, 0")
A("v_mul_u32_u24 v8, 1296, v1")
A("v_lshl_add_u32 v8, v2, 4, v8")
A(f"v_add_u32 v8, {L_XN}, v8")
A("s_waitcnt vmcnt(0)")
for i in range(20):
    A(f"v_dot2_f32_bf16 v36, v{16+i}, v38, v36")
    A(f"v_dot2_f32_bf16 v37, v{16+i}, v{16+i}, v37")
A("s_nop 1")
rowall("v_add_f32", [36, 37])
A(f"v_mul_f32 v36, {f32(1/640)}, v36")
A(f"v_mul_f32 v37, {f32(1/640)}, v37")
A("v_fma_f32 v37, -v36, v36, v37")
A("v_max_f32 v37, 0, v37")
A(f"v_add_f32 v37, {f32(1e-5)}, v37")
A("v_rsq_f32 v38, v37")
A("s_nop 0")
A("v_mul_f32 v36, -v36, v38")
for i in range(20):
    unpack(40, 41, 16 + i)
    A("v_pk_fma_f32 v[40:41], v[40:41], v[38:39], v[36:37] op_sel_hi:[1,0,0]")
    A(f"v_cvt_pk_bf16_f32 v{16+i}, v40, v41")
for i in range(5):
    A(f"ds_write_b128 v8, v[{16+4*i}:{19+4*i}] offset:{256*i}")
A("s_branch L_w567")
A.lab("L_w67")
A("s_barrier")
A.lab("L_w567")
tag_setup()
A("s_barrier")
A(f"s_cmp_eq_u32 s{sW}, 7")
A("s_cbranch_scc0 L_w56b")
xt_publish(20)
A.lab("L_w56b")
A("s_barrier")
ckv_dma(range(0, opt.b1))
A("s_barrier")
ckv_dma(range(opt.b1, opt.b1 + opt.b2))
A("s_barrier")
ckv_dma(range(opt.b1 + opt.b2, 16))
A("s_branch L_qgather")

A.lab("L_frontB")
A(f"s_and_b32 s92, s{sR}, 15")
A(f"s_lshl_b32 s93, s{sX}, 10")
A(f"s_cmp_gt_u32 s{sW}, 4")
A("s_cbranch_scc1 L_B2")
A("s_mul_i32 s89, s92, 5")
A(f"s_add_u32 s89, s89, s{sW}")
A("s_lshl_b32 s89, s89, 16")
A("s_add_u32 s89, s89, s93")
A("s_add_u32 s89, s89, 32768")
for i in range(4):
    A(f"buffer_load_dwordx4 v[16:19], v6, {srd(S_WQ)}, s89 offen {opt.pq}")
    if i < 3:
        A("s_add_u32 s89, s89, 8192")
A.lab("L_B2")
A("s_lshl_b32 s91, s92, 3")
A(f"s_add_u32 s91, s91, s{sW}")
A("s_lshl_b32 s91, s91, 15")
A("s_add_u32 s91, s91, s93")
A("s_barrier")
for i in range(4):
    A(f"buffer_load_dwordx4 v[16:19], v6, {srd(S_WUK)}, s91 offen {opt.pq}")
    if i < 3:
        A("s_add_u32 s91, s91, 8192")
A.lab("L_B3")
A("s_barrier")
ckv_dma(range(16), opt.kb)
tag_setup()
A(f"s_cmp_lg_u32 s{sW}, 0")
A("s_cbranch_scc1 L_qgather")
xt_publish(16)
A(f"s_lshl_b32 s89, s{sH}, 2")
A("s_add_u32 s89, s89, s79")
A("s_lshl_b32 s89, s89, 11")
A(f"s_add_u32 s89, s89, {W_H3B}")
A(f"buffer_load_dwordx4 v[16:19], v6, {srd(S_WS)}, s89 offen sc1")
A(f"buffer_load_dwordx4 v[16:19], v6, {srd(S_WS)}, s89 offen offset:1024 sc1")
A(f"s_and_b32 s90, s{sR}, 15")
A("s_lshl_b32 s90, s90, 10")
A(f"s_lshl_b32 s89, s{sX}, 14")
A("s_add_u32 s89, s89, s90")
A(f"s_add_u32 s89, s89, {W_H4}")
A(f"buffer_load_dwordx4 v[16:19], v6, {srd(S_WS)}, s89 offen sc1")
A(f"s_mul_i32 s89, s{sX}, 10240")
A("s_min_u32 s90, s90, 9216")
A("s_add_u32 s89, s89, s90")
A(f"s_add_u32 s89, s89, {W_H5C}")
A(f"buffer_load_dwordx4 v[16:19], v6, {srd(S_WS)}, s89 offen sc1")
A("s_branch L_qgather")

A.lab("L_s2")
for s_ in range(5):
    A(f"ds_read_b128 v[{24+8*s_}:{27+8*s_}], v11 offset:{2304*s_}")
    A(f"ds_read_b128 v[{28+8*s_}:{31+8*s_}], v11 offset:{2304*s_+16}")
for s_ in range(1, 5):
    A(f"s_waitcnt lgkmcnt({8-2*s_})")
    for i in range(4):
        A(f"v_pk_add_f32 v[{24+2*i}:{25+2*i}], v[{24+2*i}:{25+2*i}], v[{24+8*s_+2*i}:{25+8*s_+2*i}]")
for i in range(4):
    A(f"v_cvt_pk_bf16_f32 v{16+i}, v{24+2*i}, v{25+2*i}")
A("s_waitcnt vmcnt(0)")
A.stamp(3)
A("s_nop 0")
for t in range(8):
    A(f"v_mfma_f32_16x16x32_bf16 v[{40+4*t}:{43+4*t}], v[{208+4*t}:{211+4*t}], v[16:19], 0")
A(f"s_lshl_b32 s89, s{sH}, 11")
A(f"s_lshr_b32 s90, s{sR}, 2")
A("s_lshl_b32 s90, s90, 9")
A("s_add_u32 s89, s89, s90")
A(f"s_and_b32 s90, s{sW}, 3")
A("s_lshl_b32 s90, s90, 7")
A("s_add_u32 s89, s89, s90")
A(f"s_add_u32 s89, s89, {W_H2}")
for t in range(4):
    A(f"v_add_f32_dpp v{24+t}, v{40+4*t+1}, v{40+4*t} row_shl:4 row_mask:0xf bank_mask:0x1")
for t in range(4):
    d = 56 + 4 * t
    A(f"v_add_f32_dpp v{24+t}, v{d}, v{d+1} row_shr:4 row_mask:0xf bank_mask:0x2")
for t in range(4):
    A(f"v_add_f32_dpp v{24+t}, v{40+4*t+2}, v{24+t} row_shl:8 row_mask:0xf bank_mask:0x1")
for t in range(4):
    A(f"v_add_f32_dpp v{24+t}, v{56+4*t+2}, v{24+t} row_shl:4 row_mask:0xf bank_mask:0x2")
for t in range(4):
    A(f"v_add_f32_dpp v{24+t}, v{40+4*t+3}, v{24+t} row_shl:12 row_mask:0xf bank_mask:0x1")
for t in range(4):
    A(f"v_add_f32_dpp v{24+t}, v{56+4*t+3}, v{24+t} row_shl:8 row_mask:0xf bank_mask:0x2")
SC = (128 ** -0.5) * math.log2(math.e)
for t in range(4):
    A(f"v_mul_f32 v{24+t}, {f32(SC)}, v{24+t}")
A("v_cvt_pk_bf16_f32 v28, v24, v25")
A("v_cvt_pk_bf16_f32 v29, v26, v27")
A("ds_bpermute_b32 v16, v14, v28")
A("ds_bpermute_b32 v17, v14, v29")
A(f"v_mov_b32 v18, s{sT0}")
A(f"v_mov_b32 v19, s{sT1}")
A("s_waitcnt lgkmcnt(0)")
execmask(0xFFFFFFFF)
A(f"buffer_store_dwordx4 v[16:19], v15, {srd(S_WS)}, s89 offen sc1")
execall()
A.stamp(4)
A("s_barrier")
ckv_dma(range(15, -1, -1))

A.lab("L_qgather")
A("s_lshl_b32 s89, s79, 5")
A(f"s_and_b32 s90, s{sR}, 16")
A("s_add_u32 s89, s89, s90")
A(f"s_lshl_b32 s90, s{sW}, 1")
A("s_add_u32 s89, s89, s90")
A("s_lshl_b32 s89, s89, 11")
A(f"s_add_u32 s89, s89, {W_H2}")
A(f"s_lshl_b32 s85, s{sX}, 9")
A(f"s_add_u32 s85, s85, {W_XT}")
A("v_and_b32 v164, 0x1ff, v6")
A("v_lshlrev_b32 v248, 4, v2")
A(f"v_add_u32 v248, {L_MX}, v248")
A(f"s_lshl_b32 s90, s{sW}, 2")
A("v_add_u32 v249, s90, v248")
A(f"s_sub_u32 s94, 15, s{sR}")
A(f"s_mul_i32 s90, s{sX}, 7")
A("s_add_u32 s94, s94, s90")
A(f"s_cmp_gt_u32 s{sR}, 8")
A("s_cselect_b32 s100, s94, 99")
A(f"s_cmp_lt_u32 s{sW}, 5")
A("s_cselect_b32 s101, s100, 99")
A("v_lshrrev_b32 v10, 3, v0")
A("v_and_b32 v245, 0x70, v6")
A("v_mul_u32_u24 v244, 10240, v10")
A("v_add_u32 v244, v244, v245")
A("v_lshl_add_u32 v10, v10, 13, v245")
A("v_mul_u32_u24 v247, 10240, v1")
A("v_lshl_add_u32 v247, v2, 4, v247")
A(f"s_and_b32 s93, s{sR}, 8")
A("s_lshl_b32 s93, s93, 3")
A(f"s_lshr_b32 s90, s{sW}, 1")
A("s_lshl_b32 s90, s90, 7")
A("s_add_u32 s93, s93, s90")
A(f"s_and_b32 s90, s{sW}, 1")
A("s_lshl_b32 s90, s90, 3")
A("s_add_u32 s93, s93, s90")
A("s_lshl_b32 s93, s93, 13")
A("s_add_u32 s93, s93, s88")
A(f"s_and_b32 s90, s{sR}, 4")
A("s_lshl_b32 s90, s90, 5")
A("s_add_u32 s93, s93, s90")
A(f"s_and_b32 s82, s{sT0}, 0x3fffffff")
A(f"s_not_b32 s90, s{sT0}")
A("s_lshl_b32 s90, s90, 2")
A("s_and_b32 s90, s90, 0xc0000000")
A("s_or_b32 s82, s82, s90")
A("s_mov_b32 s83, 0x00010001")


def sym(dst, sh):
    A(f"v_lshrrev_b32 v{dst}, v{sh}, v246")
    A(f"v_lshlrev_b32 v15, 15, v{dst}")
    A(f"v_and_b32 v{dst}, 1, v{dst}")
    A(f"v_and_or_b32 v{dst}, v15, s84, v{dst}")


A("s_waitcnt vmcnt(17)")
A("v_mov_b32 v246, s82")
A("s_mov_b32 s84, 0x10000")
A("v_not_b32 v246, v246")
A("v_lshlrev_b32 v245, 3, v4")
for i in range(4):
    sym(252 + i, 245)
    if i < 3:
        A("v_add_u32 v245, 2, v245")
A.stamp(5)
A("s_barrier")
ql = [f"buffer_load_dwordx4 v[{144+4*i}:{147+4*i}], v6, {srd(S_WS)}, s89 offen offset:{1024*i}" for i in range(4)]
ql.append(f"buffer_load_dwordx4 v[160:163], v164, {srd(S_WS)}, s85 offen")
qt = [146, 150, 154, 158, 162]
for i in ql:
    A(i + " sc1")
A(f"v_mul_u32_u24 v12, {ROWB}, v2")
A("v_lshl_add_u32 v12, v1, 4, v12")
A(f"s_mul_i32 s90, s{sW}, {32*ROWB}")
A("v_add_u32 v11, s90, v12")
A(f"v_mul_u32_u24 v13, {ROWB}, v5")
A("v_lshl_add_u32 v13, v4, 3, v13")
A(f"s_and_b32 s94, s{sW}, 3")
A("s_lshl_b32 s90, s94, 8")
A("v_add_u32 v13, s90, v13")
A(f"v_add_u32 v14, {64*ROWB}, v13")
A("v_lshlrev_b32 v8, 3, v0")
A(f"s_mul_i32 s90, s{sW}, {2*ROWB}")
A(f"s_add_u32 s90, s90, {L_Q}")
A("v_add_u32 v8, s90, v8")
A(f"v_add_u32 v12, {L_Q}, v12")
A("s_waitcnt vmcnt(5)")
A("s_barrier")


def uv_loads():
    for e in range(4):
        A(f"buffer_load_dwordx4 v[{212+4*e}:{215+4*e}], v10, {srd(S_WUV)}, s93 offen {opt.po}")
        if e < 3:
            A(f"s_add_u32 s93, s93, {16*8192}")


A(f"s_cmp_lt_u32 s{sR}, 16")
A("s_cbranch_scc1 L_tlF")
A(f"s_cmp_lt_u32 s{sW}, {opt.uvw}")
A("s_cbranch_scc1 L_tlD")
uv_loads()
A("s_branch L_tlD")
A.lab("L_tlF")
A(f"s_cmp_lt_u32 s{sR}, 10")
A("s_cbranch_scc0 L_tlF2")
A(f"s_lshl_b32 s91, s{sX}, 3")
A(f"s_add_u32 s91, s91, s{sW}")
A(f"s_mul_i32 s91, s91, {64*1280}")
A(f"s_lshl_b32 s90, s{sR}, 7")
A("s_add_u32 s91, s91, s90")
for i in range(4):
    A(f"buffer_load_dwordx4 v[{212+4*i}:{215+4*i}], v244, {srd(S_WO)}, s91 offen offset:{1280*i} {opt.po}")
A("s_branch L_tlD")
A.lab("L_tlF2")
A(f"s_mul_i32 s91, s101, {32*1280}")
A(f"s_lshl_b32 s90, s{sW}, 8")
A("s_add_u32 s91, s91, s90")
for i in range(4):
    A(f"buffer_load_dwordx4 v[{212+4*i}:{215+4*i}], v247, {srd(S_W2)}, s91 offen offset:{1280*i} {opt.po}")
A.lab("L_tlD")
A(f"s_cmp_lt_u32 s{sW}, 4")
A("s_cbranch_scc0 L_opV")
for tl in range(2):
    for ks in range(16):
        d = 16 + 64 * tl + 4 * ks
        A(f"ds_read_b128 v[{d}:{d+3}], v11 offset:{16*ROWB*tl + 64*ks}")
A("s_branch L_opD")
A.lab("L_opV")
for ks in range(4):
    for t in range(8):
        for hf in range(2):
            base = 14 if ks >= 2 else 13
            off = ((ks & 1) * 32 + 16 * hf) * ROWB + 32 * t
            d = 16 + (ks * 8 + t) * 4 + 2 * hf
            A(f"ds_read_b64_tr_b16 v[{d}:{d+1}], v{base} offset:{off}")
A.lab("L_opD")
A(f"s_cmp_lt_u32 s{sR}, 16")
A("s_cbranch_scc1 L_qw4")
A(f"s_cmp_lt_u32 s{sW}, {opt.uvw}")
A("s_cbranch_scc0 L_qw4")
A("s_waitcnt vmcnt(0)")
A.lab("L_qw4")
A("s_waitcnt vmcnt(4)")
for k, t in enumerate(qt):
    if k == 0:
        A(f"v_cmp_ne_u64 vcc, s[{sT0}:{sT1}], v[{t}:{t+1}]")
    else:
        A(f"v_cmp_ne_u64 s[98:99], s[{sT0}:{sT1}], v[{t}:{t+1}]")
        A("s_or_b64 vcc, vcc, s[98:99]")
A("s_cbranch_vccz L_qok")
poll(ql, qt, sleep=opt.qsleep)
A.lab("L_qok")
A.stamp(6)
for i in range(4):
    A(f"ds_write_b64 v8, v[{144+4*i}:{145+4*i}] offset:{(i>>1)*ROWB + (i&1)*512}")
xt_decide(160)
A("s_waitcnt lgkmcnt(0)")
A("s_barrier")
A(f"v_mov_b32 v234, s{sT0}")
A(f"v_mov_b32 v235, s{sT1}")
A(f"v_mov_b32 v238, s{sT0}")
A(f"v_mov_b32 v239, s{sT1}")
A(f"s_cmp_lt_u32 s{sW}, 4")
A("s_cbranch_scc0 L_V")
for ks in range(16):
    A(f"ds_read_b128 v[{144+4*ks}:{147+4*ks}], v12 offset:{64*ks}")
A(f"s_cmp_lt_u32 s{sR}, 16")
A("s_cbranch_scc1 L_nouv")
if opt.uvw:
    uv_loads()
A.lab("L_nouv")
S0, S1 = 228, 208
for ks in range(16):
    A(f"s_waitcnt lgkmcnt({15-ks})")
    for tl, S in ((0, S0), (1, S1)):
        c = "0" if ks == 0 else f"v[{S}:{S+3}]"
        d = 16 + 64 * tl + 4 * ks
        A(f"v_mfma_f32_16x16x32_bf16 v[{S}:{S+3}], v[{d}:{d+3}], v[{144+4*ks}:{147+4*ks}], {c}")
A(f"s_lshl_b32 s90, s{sW}, 10")
A(f"s_add_u32 s90, s90, {L_P}")
A("v_add_u32 v12, s90, v6")
A("s_nop 3")
A.stamp(7)
A(f"v_max3_f32 v232, v{S0}, v{S0+1}, v{S0+2}")
A("s_nop 0")
A(f"v_max3_f32 v233, v{S0+3}, v{S1}, v{S1+1}")
A(f"v_max3_f32 v232, v232, v{S1+2}, v{S1+3}")
A("v_max_f32 v232, v232, v233")
for sw in ("v_permlane16_swap_b32", "v_permlane32_swap_b32"):
    A("v_mov_b32 v233, v232")
    A("s_nop 1")
    A(f"{sw} v232, v233")
    A("s_nop 0")
    A("v_max_f32 v232, v232, v233")
A("ds_write_b32 v249, v232")
A("s_waitcnt lgkmcnt(0)")
A("s_barrier")
A.stamp(1, 4)
A("ds_read_b128 v[240:243], v248")
A("s_waitcnt lgkmcnt(0)")
A("v_max3_f32 v232, v240, v241, v242")
A("v_max_f32 v232, v232, v243")
for S in (S0, S1):
    for i in range(4):
        A(f"v_sub_f32 v{S+i}, v{S+i}, v232")
for S in (S0, S1):
    for i in range(4):
        A(f"v_exp_f32 v{S+i}, v{S+i}")
A(f"v_cvt_pk_bf16_f32 v240, v{S0}, v{S0+1}")
A(f"v_cvt_pk_bf16_f32 v241, v{S0+2}, v{S0+3}")
A(f"v_cvt_pk_bf16_f32 v242, v{S1}, v{S1+1}")
A(f"v_cvt_pk_bf16_f32 v243, v{S1+2}, v{S1+3}")
A("ds_write_b128 v12, v[240:243]")
A("s_waitcnt lgkmcnt(0)")
A("s_barrier")
A("s_branch L_nost")

A.lab("L_V")
A("v_lshlrev_b32 v13, 17, v1")
A("v_lshl_add_u32 v13, v2, 4, v13")
A("s_lshl_b32 s93, s79, 5")
A(f"s_and_b32 s90, s{sR}, 16")
A("s_add_u32 s93, s93, s90")
A("s_lshl_b32 s95, s93, 1")
A(f"s_add_u32 s95, s95, s{sH}")
A("s_lshl_b32 s95, s95, 8")
A(f"s_add_u32 s95, s95, {W_STX}")
A("s_lshl_b32 s93, s93, 15")
A(f"s_lshl_b32 s90, s{sH}, 10")
A("s_add_u32 s93, s93, s90")
A("s_lshl_b32 s90, s94, 8")
A("s_add_u32 s93, s93, s90")
A(f"s_add_u32 s93, s93, {W_H3A}")
A(f"v_add_u32 v11, {L_P}, v6")
for i in range(4):
    A(f"v_xor_b32 v{208+i}, s83, v{252+i}")
A("s_barrier")
A("ds_read_b128 v[240:243], v248")
A("s_waitcnt lgkmcnt(0)")
A("v_max3_f32 v232, v240, v241, v242")
A("v_max_f32 v232, v232, v243")
for i in range(4):
    A(f"v_mov_b32 v{240+i}, 0x3f803f80")
A("s_barrier")
A.stamp(2, 4)
for ks in range(4):
    A(f"ds_read_b128 v[{144+4*ks}:{147+4*ks}], v11 offset:{1024*ks}")
for ks in range(4):
    A(f"s_waitcnt lgkmcnt({3-ks})")
    for t in range(8):
        c = "0" if ks == 0 else f"v[{160+4*t}:{163+4*t}]"
        bb = 16 + (ks * 8 + t) * 4
        A(f"v_mfma_f32_16x16x32_bf16 v[{160+4*t}:{163+4*t}], v[{144+4*ks}:{147+4*ks}], v[{bb}:{bb+3}], {c}")
for ks in range(4):
    c = "0" if ks == 0 else "v[228:231]"
    A(f"v_mfma_f32_16x16x32_bf16 v[228:231], v[240:243], v[{144+4*ks}:{147+4*ks}], {c}")
A("s_nop 1")
A.stamp(3, 4)
for r_ in range(4):
    for i in range(4):
        A(f"v_perm_b32 v{192+4*r_+i}, v{164+8*i+r_}, v{160+8*i+r_}, s{sPHI}")
    for i in range(4):
        A(f"v_bfi_b32 v{192+4*r_+i}, s83, v{208+i}, v{192+4*r_+i}")
    A(f"buffer_store_dwordx4 v[{192+4*r_}:{195+4*r_}], v13, {srd(S_WS)}, s93 offen sc1")
    if r_ < 3:
        A("s_add_u32 s93, s93, 32768")
A(f"s_cmp_lg_u32 s{sW}, 7")
A("s_cbranch_scc1 L_nost")
A("v_mov_b32 v233, v228")
execmask(0xFFFF)
A(f"buffer_store_dwordx4 v[232:235], v6, {srd(S_WS)}, s95 offen sc1")
execall()
A.stamp(8)
A.lab("L_nost")
A(f"s_cmp_lt_u32 s{sR}, 16")
A("s_cbranch_scc1 L_F")

L_CB = L_OS
L_CM = L_OS + 8192
A(f"s_cmp_lt_u32 s{sW}, 4")
A("s_cbranch_scc1 L_cbK")
A("s_waitcnt vmcnt(4)")
transpose(80, [212, 216, 220, 224], 4)
A("s_barrier")
A("s_branch L_cbd")
A.lab("L_cbK")
A("s_lshl_b32 s91, s79, 5")
A(f"s_add_u32 s91, s91, s{sH}")
A("s_lshl_b32 s91, s91, 15")
A(f"s_lshl_b32 s90, s{sW}, 13")
A("s_add_u32 s91, s91, s90")
A(f"s_add_u32 s91, s91, {W_H3A}")
A("s_add_u32 s92, s91, 4096")
A("v_and_b32 v12, 7, v0")
A("v_lshlrev_b32 v12, 8, v12")
A("s_lshl_b32 s86, s79, 5")
A(f"s_and_b32 s90, s{sH}, 16")
A("s_add_u32 s86, s86, s90")
A("s_lshl_b32 s86, s86, 9")
A(f"s_lshl_b32 s90, s{sW}, 11")
A("s_add_u32 s86, s86, s90")
A(f"s_add_u32 s94, s90, {L_CB}")
A("v_add_u32 v11, s94, v6")
A(f"s_and_b32 s90, s{sH}, 15")
A("s_lshl_b32 s90, s90, 4")
A("s_add_u32 s86, s86, s90")
A(f"s_add_u32 s86, s86, {W_STX}")
A(f"s_lshl_b32 s90, s{sW}, 3")
A(f"s_add_u32 s90, s90, {L_CM}")
A("v_mov_b32 v8, s90")
A(f"s_and_b32 s90, s{sW}, 1")
A("s_lshl_b32 s90, s90, 10")
A(f"s_add_u32 s94, s90, {L_CB}")
A("v_add_u32 v65, s94, v6")
A(f"v_mov_b32 v66, {L_CM}")
A(f"s_lshl_b32 s93, s{sH}, 2")
A("s_add_u32 s93, s93, s79")
A("s_lshl_b32 s93, s93, 11")
A("s_add_u32 s93, s93, s90")
A(f"s_add_u32 s93, s93, {W_H3B}")
A.stamp(6, 4)
A("s_mov_b64 exec, 0xff")
poll([f"buffer_load_dwordx4 v[16:19], v12, {srd(S_WS)}, s86 offen"], [18], sleep=opt.ssleep)
execall()
A.stamp(9, 4)
bulk = [f"buffer_load_dwordx4 v[{96+4*i}:{99+4*i}], v6, {srd(S_WS)}, {'s91' if i < 4 else 's92'} offen offset:{1024*(i&3)} sc1" for i in range(8)]
for i in bulk:
    A(i)
A.stamp(3)


def all8(op, r_):
    for m in ("quad_perm:[1,0,3,2]", "quad_perm:[2,3,0,1]", "row_half_mirror"):
        A("s_nop 1")
        A(f"{op}_dpp v{r_}, v{r_}, v{r_} {m} {DPPM}")


A("v_mov_b32 v20, v16")
all8("v_max_f32", 20)
A("v_sub_f32 v16, v16, v20")
A("v_exp_f32 v16, v16")
A("s_nop 0")
A("v_mul_f32 v21, v16, v17")
all8("v_add_f32", 21)
A("s_mov_b64 exec, 1")
A("ds_write_b64 v8, v[20:21]")
execall()
WS = [4, 6, 8, 10, 12, 14, 16, 18] if not opt.stamps else [78, 80, 84, 86, 88, 94, 96, 100]
for i in range(8):
    A(f"v_readlane_b32 s{WS[i]}, v16, {i}")
transpose(80, [212, 216, 220, 224], 4)
A("s_branch L_bk1")
A.lab("L_bk0")
for i in bulk:
    A(i)
A(f"s_add_u32 s{sCNT}, s{sCNT}, 1")
A(f"s_cmp_gt_u32 s{sCNT}, {POLL_LIMIT}")
A("s_cbranch_scc1 L_end")
A.lab("L_bk1")
for i in range(8):
    A(f"s_waitcnt vmcnt({7-i})")
    w_ = 96 + 4 * i
    for d in range(4):
        A(f"v_xor_b32 v{w_+d}, v{w_+d}, v{252+d}")
    if i == 0:
        A(f"v_bitop3_b32 v64, v{w_}, v{w_+1}, s83 bitop3:0x80")
    else:
        A(f"v_bitop3_b32 v64, v64, v{w_}, v{w_+1} bitop3:0x80")
    A(f"v_bitop3_b32 v64, v64, v{w_+2}, v{w_+3} bitop3:0x80")
    if i == 7:
        A("v_cmp_ne_u32 vcc, s83, v64")
        A.stamp(10, 4)
    for d in range(4):
        unpack(56 + 2 * d, 57 + 2 * d, w_ + d)
    if i == 7:
        A("s_cbranch_vccnz L_bk0")
    for d in range(4):
        sp = f"s[{WS[i]}:{WS[i]+1}]"
        if i == 0:
            A(f"v_pk_mul_f32 v[{48+2*d}:{49+2*d}], v[{56+2*d}:{57+2*d}], {sp} op_sel_hi:[1,0]")
        else:
            A(f"v_pk_fma_f32 v[{48+2*d}:{49+2*d}], v[{56+2*d}:{57+2*d}], {sp}, v[{48+2*d}:{49+2*d}] op_sel_hi:[1,0,1]")
A("ds_write_b128 v11, v[48:51]")
A("ds_write_b128 v11, v[52:55] offset:1024")
A(f"s_cmp_gt_u32 s{sW}, 1")
A("s_waitcnt lgkmcnt(0)")
A("s_barrier")
A("s_cbranch_scc1 L_cbd")
A("ds_read_b128 v[16:19], v66")
A("ds_read_b128 v[20:23], v66 offset:16")
for i in range(4):
    A(f"ds_read_b128 v[{32+4*i}:{35+4*i}], v65 offset:{2048*i}")
A("s_waitcnt lgkmcnt(4)")
A("v_max3_f32 v24, v16, v18, v20")
A("v_max_f32 v24, v24, v22")
for i in range(4):
    A(f"v_sub_f32 v{16+2*i}, v{16+2*i}, v24")
for i in range(4):
    A(f"v_exp_f32 v{16+2*i}, v{16+2*i}")
A("v_mul_f32 v25, v16, v17")
A("v_fmac_f32 v25, v18, v19")
A("v_fmac_f32 v25, v20, v21")
A("v_fmac_f32 v25, v22, v23")
A("v_rcp_f32 v26, v25")
A("s_waitcnt lgkmcnt(0)")
for i in range(4):
    for hh in range(2):
        x = 32 + 4 * i + 2 * hh
        if i == 0:
            A(f"v_pk_mul_f32 v[{48+2*hh}:{49+2*hh}], v[{x}:{x+1}], v[16:17] op_sel_hi:[1,0]")
        else:
            A(f"v_pk_fma_f32 v[{48+2*hh}:{49+2*hh}], v[{x}:{x+1}], v[{16+2*i}:{17+2*i}], v[{48+2*hh}:{49+2*hh}] op_sel_hi:[1,0,1]")
A("v_pk_mul_f32 v[48:49], v[48:49], v[26:27] op_sel_hi:[1,0]")
A("v_pk_mul_f32 v[50:51], v[50:51], v[26:27] op_sel_hi:[1,0]")
A("v_cvt_pk_bf16_f32 v236, v48, v49")
A("v_cvt_pk_bf16_f32 v237, v50, v51")
store_local([f"buffer_store_dwordx4 v[236:239], v6, {srd(S_WS)}, s93 offen"])
A.stamp(4)
A.stamp(11, 4)
A.lab("L_cbd")

A("v_lshlrev_b32 v12, 11, v3")
A("v_lshl_add_u32 v12, v1, 5, v12")
A("v_and_b32 v13, 1, v0")
A("v_lshl_add_u32 v12, v13, 4, v12")
A(f"s_lshl_b32 s95, s{sH}, 13")
A(f"s_and_b32 s90, s{sR}, 8")
A("s_lshl_b32 s90, s90, 7")
A("s_add_u32 s95, s95, s90")
A(f"s_lshl_b32 s90, s{sW}, 7")
A("s_add_u32 s95, s95, s90")
A(f"s_add_u32 s95, s95, {W_H3B}")
A("v_and_b32 v14, 7, v0")
A("v_lshlrev_b32 v14, 5, v14")
A("v_lshl_add_u32 v14, v1, 8, v14")
A(f"s_lshl_b32 s90, s{sW}, 10")
A(f"s_add_u32 s90, s90, {L_RED}")
A("v_add_u32 v14, s90, v14")
A("v_lshlrev_b32 v15, 11, v1")
A("v_lshl_add_u32 v15, v2, 4, v15")
A(f"s_lshl_b32 s96, s{sX}, 14")
A(f"s_and_b32 s90, s{sR}, 8")
A("s_lshl_b32 s90, s90, 10")
A("s_add_u32 s96, s96, s90")
A(f"s_and_b32 s90, s{sH}, 3")
A("s_lshl_b32 s90, s90, 9")
A("s_add_u32 s96, s96, s90")
A(f"s_and_b32 s90, s{sR}, 4")
A("s_lshl_b32 s90, s90, 6")
A("s_add_u32 s96, s96, s90")
A(f"s_add_u32 s96, s96, {W_H4}")
poll([f"buffer_load_dwordx4 v[208:211], v12, {srd(S_WS)}, s95 offen"], [210])
A.stamp(9)
for jj in range(8):
    d = 144 + 4 * jj
    A(f"v_mfma_f32_16x16x16_bf16 v[{d}:{d+3}], v[208:209], v[{80+2*jj}:{81+2*jj}], 0")
A("s_nop 1")
for jj in range(8):
    d = 144 + 4 * jj
    A(f"v_add_f32_dpp v{216+jj}, v{d+1}, v{d} row_shl:8 {DPPM}")
execmask(M_N8)
A("ds_write_b128 v14, v[216:219]")
A("ds_write_b128 v14, v[220:223] offset:16")
execall()
A("s_waitcnt lgkmcnt(0)")
A("s_barrier")
A(f"s_cmp_lt_u32 s{sW}, 2")
A("s_cbranch_scc1 L_red")
A(f"s_cmp_lt_u32 s{sW}, 4")
A("s_cbranch_scc1 L_s8")
A(f"s_cmp_lg_u32 s{sW}, 7")
A("s_cbranch_scc1 L_clean")
for s_ in range(8):
    A(f"ds_read_b128 v[{144+4*s_}:{147+4*s_}], v6 offset:{L_RED + 1024*s_}")
sum_b128(8, 144, True)
A("v_cvt_pk_bf16_f32 v236, v144, v145")
A("v_cvt_pk_bf16_f32 v237, v146, v147")
store_local([f"buffer_store_dwordx4 v[236:239], v15, {srd(S_WS)}, s96 offen"])
A.stamp(10)
A("s_branch L_fin")

A.lab("L_clean")
A("s_branch L_fin")

A.lab("L_red")
A(f"s_cmp_lt_u32 s{sR}, 26")
A("s_cbranch_scc0 L_fin")
A(f"s_and_b32 s94, s{sR}, 15")
A("v_and_b32 v12, 1, v1")
A("v_mul_u32_u24 v13, 1280, v12")
A("v_lshl_add_u32 v13, v2, 3, v13")
A("v_lshrrev_b32 v15, 5, v0")
A("v_lshl_add_u32 v13, v15, 2, v13")
A(f"s_mul_i32 s90, s{sW}, 2560")
A("s_lshl_b32 s93, s94, 7")
A("s_add_u32 s90, s90, s93")
A(f"buffer_load_dword v200, v13, {srd(S_X)}, s90 offen")
A("v_mul_u32_u24 v13, 2560, v12")
A("v_lshl_add_u32 v13, v2, 4, v13")
A(f"s_mul_i32 s96, s{sX}, 10240")
A(f"s_mul_i32 s90, s{sW}, 5120")
A("s_add_u32 s96, s96, s90")
A("s_lshl_b32 s90, s94, 8")
A("s_add_u32 s96, s96, s90")
A(f"s_add_u32 s96, s96, {W_H5C}")
A("v_and_b32 v14, 0x1ff, v6")
A("v_lshl_add_u32 v14, v15, 10, v14")
A("s_lshl_b32 s95, s94, 13")
A(f"s_lshl_b32 s90, s{sW}, 9")
A("s_add_u32 s95, s95, s90")
A(f"s_add_u32 s95, s95, {W_H5B}")
A("s_add_u32 s93, s95, 4096")
poll([f"buffer_load_dwordx4 v[{144+4*i}:{147+4*i}], v14, {srd(S_WS)}, {'s95' if i < 2 else 's93'} offen offset:{2048*(i&1)}" for i in range(4)],
     [146 + 4 * i for i in range(4)])
for i in range(4):
    unpack(160 + 4 * i, 161 + 4 * i, 144 + 4 * i)
    unpack(162 + 4 * i, 163 + 4 * i, 145 + 4 * i)
unpack(202, 203, 200)
sum_b128(4, 160)
A("s_nop 1")
A("v_permlane32_swap_b32 v160, v162")
A("v_permlane32_swap_b32 v161, v163")
A("s_nop 0")
A("v_pk_add_f32 v[160:161], v[160:161], v[162:163]")
A("v_pk_add_f32 v[160:161], v[160:161], v[202:203]")
A("v_cvt_pk_bf16_f32 v236, v160, v161")
A("v_cvt_pk_bf16_f32 v237, v160, v161")
A("s_nop 1")
A("v_permlane32_swap_b32 v236, v237")
execmask(0xFFFFFFFF)
store_local([f"buffer_store_dwordx4 v[236:239], v13, {srd(S_WS)}, s96 offen"])
execall()
A.stamp(11)
A("s_branch L_fin")

A.lab("L_s8")
A(f"s_sub_u32 s94, 31, s{sR}")
A("s_lshl_b32 s94, s94, 3")
A(f"s_add_u32 s94, s94, s{sX}")
A(f"s_and_b32 s90, s{sW}, 1")
A("s_lshl_b32 s90, s90, 7")
A("s_add_u32 s94, s94, s90")
A("s_cmp_lt_u32 s94, 160")
A("s_cbranch_scc0 L_fin")
A("s_mul_i32 s90, s94, 1639")
A("s_lshr_b32 s90, s90, 16")
A("s_mul_i32 s93, s90, 40")
A("s_sub_u32 s93, s94, s93")
A("s_lshr_b32 s95, s93, 3")
A("s_lshl_b32 s95, s95, 5")
A("s_bfe_u32 s96, s93, 0x10002")
A("s_add_u32 s95, s95, s96")
A("s_and_b32 s96, s93, 3")
A("s_lshl_b32 s96, s96, 3")
A("s_add_u32 s95, s95, s96")
A("v_mul_u32_u24 v12, 10240, v5")
A("v_lshl_add_u32 v12, v4, 4, v12")
A("s_lshl_b32 s78, s94, 6")
A(f"s_add_u32 s78, s78, {W_H6}")
A(f"s_add_u32 s79, s78, {16*10240}")
A(f"s_add_u32 s80, s78, {32*10240}")
A(f"s_add_u32 s81, s78, {48*10240}")
A("v_add_u32 v13, s81, v12")
A(f"s_lshl_b32 s82, s{sX}, 2")
A("s_add_u32 s82, s82, s90")
A("s_mul_i32 s82, s82, 160")
A("s_add_u32 s82, s82, s95")
A("s_lshl_b32 s82, s82, 4")
A(f"s_add_u32 s82, s82, {W_H5C}")
A("v_lshlrev_b32 v14, 5, v4")
A("v_add_u32 v14, s82, v14")
A("v_cmp_gt_u32 vcc, 6, v5")
A("s_nop 1")
A("v_cndmask_b32 v13, v14, v13, vcc")
A("s_mul_i32 s83, s90, 1280")
A("s_lshl_b32 s84, s95, 3")
A("s_add_u32 s83, s83, s84")
A("v_lshlrev_b32 v15, 4, v4")
A("v_lshl_add_u32 v15, v1, 1, v15")
s8l = [f"buffer_load_dwordx4 v[144:147], v12, {srd(S_WS)}, s78 offen",
       f"buffer_load_dwordx4 v[148:151], v12, {srd(S_WS)}, s79 offen",
       f"buffer_load_dwordx4 v[152:155], v12, {srd(S_WS)}, s80 offen",
       f"buffer_load_dwordx4 v[156:159], v13, {srd(S_WS)}, 0 offen"]
for i in s8l:
    A(i + " sc1")
poll([f"buffer_load_dwordx4 v[164:167], v14, {srd(S_WS)}, 0 offen"], [166], sleep=2)
poll(s8l, [146, 150, 154, 158])
A("v_cmp_gt_u32 vcc, 7, v5")
A("s_nop 1")
A("v_cndmask_b32 v156, 0, v156, vcc")
A("v_cndmask_b32 v157, 0, v157, vcc")
for i in range(4):
    unpack(160 + 4 * i, 161 + 4 * i, 144 + 4 * i)
    unpack(162 + 4 * i, 163 + 4 * i, 145 + 4 * i)
sum_b128(4, 160)
A("s_nop 1")
A("v_permlane32_swap_b32 v160, v162")
A("v_permlane32_swap_b32 v161, v163")
A("s_nop 0")
A("v_pk_add_f32 v[160:161], v[160:161], v[162:163]")
A("s_nop 1")
A("v_permlane16_swap_b32 v160, v161")
A("s_nop 0")
A("v_add_f32 v160, v160, v161")
A("s_nop 1")
A(f"v_add_f32_dpp v160, v160, v160 row_ror:8 {DPPM}")
A("s_nop 1")
A(f"v_add_f32_dpp v160, v160, v160 row_ror:4 {DPPM}")
A("s_nop 0")
A("v_cvt_pk_bf16_f32 v160, v160, v160")
execmask(M_N4)
A(f"buffer_store_short v160, v15, {srd(S_OUT)}, s83 offen")
execall()
A("s_cmp_lg_u32 s94, 0")
A("s_cbranch_scc1 L_s8x")
A("v_mov_b32 v12, 0")
A("s_mov_b64 exec, 1")
A(f"buffer_store_dwordx2 v[238:239], v12, {srd(S_WS)}, 0 offen sc1")
execall()
A.lab("L_s8x")
if opt.padto:
    A.lab("L_pad")
    A("s_memrealtime s[6:7]")
    A("s_waitcnt lgkmcnt(0)")
    A("s_sub_u32 s6, s6, s4")
    A(f"s_cmp_lt_u32 s6, {opt.padto*100}")
    A("s_cbranch_scc1 L_pad")
A.stamp(11)
A("s_branch L_fin")

def w1_loads():
    A("v_mul_u32_u24 v15, 13824, v5")
    A("v_lshl_add_u32 v15, v4, 4, v15")
    A(f"s_mul_i32 s93, s{sW}, {128*3456}")
    A("s_lshl_b32 s90, s94, 6")
    A("s_add_u32 s93, s93, s90")
    for i in range(8):
        A(f"s_add_u32 s90, s93, {((i & 3) + 64*(i >> 2))*3456}")
        A(f"buffer_load_dwordx4 v[{16+4*i}:{19+4*i}], v15, {srd(S_W1)}, s90 offen {opt.pt}")


A.lab("L_F")
if opt.fwait:
    A("s_waitcnt vmcnt(0)")
    A.stamp(3, 5)
A("s_barrier")
if opt.fwait > 1:
    A(f"s_sleep {opt.fwait}")
A("s_mov_b32 s94, s100")
A("s_mov_b32 s97, s101")
A(f"s_cmp_lt_u32 s{sR}, 10")
A("s_cbranch_scc0 L_F1")
A("s_add_u32 s90, s91, 5120")
for i in range(4):
    A(f"buffer_load_dwordx4 v[{144+4*i}:{147+4*i}], v244, {srd(S_WO)}, s90 offen offset:{1280*i} {opt.po}")
A("s_cmp_lt_u32 s97, 54")
A("s_cbranch_scc0 L_s5")
w1_loads()
A.lab("L_s5")
A("s_waitcnt vmcnt(0)")
transpose(176, [212, 216, 220, 224, 144, 148, 152, 156], 4)
A("v_lshl_add_u32 v12, v3, 11, v7")
A(f"s_lshl_b32 s95, s{sX}, 14")
A(f"s_lshl_b32 s90, s{sW}, 8")
A("s_add_u32 s95, s95, s90")
A(f"s_add_u32 s95, s95, {W_H4}")
A("s_add_u32 s96, s95, 8192")
A("v_and_b32 v14, 7, v0")
A("v_lshlrev_b32 v14, 5, v14")
A("v_lshl_add_u32 v14, v1, 8, v14")
A(f"s_lshl_b32 s90, s{sW}, 10")
A(f"s_add_u32 s90, s90, {L_RED}")
A("v_add_u32 v14, s90, v14")
poll([f"buffer_load_dwordx4 v[208:211], v12, {srd(S_WS)}, s95 offen",
      f"buffer_load_dwordx4 v[212:215], v12, {srd(S_WS)}, s96 offen"], [210, 214], sleep=1)
A.stamp(9, 0)
unpack(216, 217, 208); unpack(218, 219, 209); unpack(220, 221, 212); unpack(222, 223, 213)
A("v_pk_add_f32 v[216:217], v[216:217], v[220:221]")
A("v_pk_add_f32 v[218:219], v[218:219], v[222:223]")
A("v_cvt_pk_bf16_f32 v208, v216, v217")
A("v_cvt_pk_bf16_f32 v209, v218, v219")
A("s_nop 1")
A(f"v_mov_b32_dpp v212, v208 quad_perm:[0,2,0,2] {DPPM}")
A(f"v_mov_b32_dpp v213, v209 quad_perm:[0,2,0,2] {DPPM}")
A(f"v_mov_b32_dpp v214, v208 quad_perm:[1,3,1,3] {DPPM}")
A(f"v_mov_b32_dpp v215, v209 quad_perm:[1,3,1,3] {DPPM}")
A("s_nop 1")
for jj in range(8):
    d = 144 + 4 * jj
    A(f"v_mfma_f32_16x16x32_bf16 v[{d}:{d+3}], v[212:215], v[{176+4*jj}:{179+4*jj}], 0")
A("s_nop 1")
for jj in range(8):
    d = 144 + 4 * jj
    A(f"v_add_f32_dpp v{216+jj}, v{d+1}, v{d} row_shl:8 {DPPM}")
execmask(M_N8)
A("ds_write_b128 v14, v[216:219]")
A("ds_write_b128 v14, v[220:223] offset:16")
execall()
A("s_waitcnt lgkmcnt(0)")
A("s_barrier")
A(f"s_cmp_lg_u32 s{sW}, 7")
A("s_cbranch_scc1 L_F1")
for s in range(8):
    A(f"ds_read_b128 v[{144+4*s}:{147+4*s}], v6 offset:{L_RED + 1024*s}")
A(f"s_lshl_b32 s95, s{sR}, 3")
A(f"s_add_u32 s95, s95, s{sX}")
A("s_lshl_b32 s95, s95, 10")
A(f"s_add_u32 s95, s95, {W_H5B}")
sum_b128(8, 144, True)
A("v_cvt_pk_bf16_f32 v236, v144, v145")
A("v_cvt_pk_bf16_f32 v237, v146, v147")
A(f"buffer_store_dwordx4 v[236:239], v6, {srd(S_WS)}, s95 offen sc1")
A.stamp(11)
A("s_branch L_fin")

A.lab("L_F1")
A("s_cmp_lt_u32 s97, 54")
A("s_cbranch_scc0 L_fin")
A(f"s_mul_i32 s91, s94, {32*1280}")
A(f"s_lshl_b32 s90, s{sW}, 8")
A("s_add_u32 s91, s91, s90")
A(f"s_cmp_lt_u32 s{sR}, 10")
A("s_cbranch_scc0 L_F1a")
A("s_sleep 2")
for i in range(4):
    A(f"buffer_load_dwordx4 v[{212+4*i}:{215+4*i}], v247, {srd(S_W2)}, s91 offen offset:{1280*i} {opt.po}")
A("s_branch L_F1b")
A.lab("L_F1a")
w1_loads()
A.lab("L_F1b")
A("s_add_u32 s90, s91, 5120")
for i in range(4):
    A(f"buffer_load_dwordx4 v[{64+4*i}:{67+4*i}], v247, {srd(S_W2)}, s90 offen offset:{1280*i} {opt.po}")
A("s_waitcnt vmcnt(0)")
A.stamp(2, 0)
transpose(80, [16 + 4 * i for i in range(8)], 4)
transpose(112, [212, 216, 220, 224, 64, 68, 72, 76], 4)
for i in range(4):
    A(f"v_mov_b32 v{48+i}, 0x3f803f80")
A("s_nop 1")
for jj in range(8):
    A(f"v_mfma_f32_16x16x32_bf16 v[{16+4*jj}:{19+4*jj}], v[48:51], v[{80+4*jj}:{83+4*jj}], 0")
A("s_nop 1")
dppsum([56 + jj for jj in range(8)], [16 + 4 * jj for jj in range(8)])
A("v_lshlrev_b32 v14, 5, v4")
A(f"s_lshl_b32 s90, s{sW}, 7")
A(f"s_add_u32 s90, s90, {L_CS}")
A("v_add_u32 v14, s90, v14")
A("s_mov_b64 exec, 15")
A("ds_write_b128 v14, v[56:59]")
A("ds_write_b128 v14, v[60:63] offset:16")
execall()
A("s_waitcnt lgkmcnt(0)")
A("s_barrier")
A.lab("L_s67")
A("v_lshrrev_b32 v14, 1, v7")
for s in range(5):
    A(f"ds_read_b64 v[{16+2*s}:{17+2*s}], v14 offset:{L_CS + 128*s}")
A("v_mul_u32_u24 v12, 2560, v3")
A("v_add_u32 v12, v12, v7")
A(f"s_mul_i32 s95, s{sX}, 10240")
A(f"s_lshl_b32 s90, s{sW}, 9")
A("s_add_u32 s95, s95, s90")
A(f"s_add_u32 s95, s95, {W_H5C}")
A("v_lshlrev_b32 v13, 1, v7")
A(f"s_add_u32 s90, s90, {L_RED2}")
A("v_add_u32 v13, s90, v13")
A("v_lshlrev_b32 v10, 3, v1")
A(f"s_lshl_b32 s90, s{sW}, 5")
A(f"s_add_u32 s90, s90, {L_RS}")
A("v_add_u32 v10, s90, v10")
A("v_lshl_add_u32 v14, v3, 7, v14")
A("v_lshlrev_b32 v11, 3, v3")
A("v_mul_u32_u24 v9, 2560, v1")
A("v_lshl_add_u32 v9, v2, 4, v9")
A("s_mul_i32 s96, s94, 10240")
A(f"s_lshl_b32 s90, s{sW}, 9")
A("s_add_u32 s96, s96, s90")
A(f"s_add_u32 s96, s96, {W_H6}")
A("s_waitcnt lgkmcnt(0)")
for s in range(1, 5):
    A(f"v_pk_add_f32 v[16:17], v[16:17], v[{16+2*s}:{17+2*s}]")
poll([f"buffer_load_dwordx4 v[208:211], v12, {srd(S_WS)}, s95 offen",
      f"buffer_load_dwordx4 v[212:215], v12, {srd(S_WS)}, s95 offen offset:256"], [210, 214], sleep=1)
A.stamp(10, 0)
A("v_mov_b32 v210, v212")
A("v_mov_b32 v211, v213")
A("s_nop 1")
A("v_mfma_f32_16x16x32_bf16 v[184:187], v[208:211], v[48:51], 0")
A("v_mfma_f32_16x16x32_bf16 v[188:191], v[208:211], v[208:211], 0")
for jj in range(8):
    d = 144 + 4 * jj
    A(f"v_mfma_f32_16x16x32_bf16 v[{d}:{d+3}], v[208:211], v[{80+4*jj}:{83+4*jj}], 0")
A("v_add_f32 v192, v184, v185")
A(f"v_add_f32_dpp v193, v189, v188 row_shl:1 {DPPM}")
A("v_add_f32 v194, v186, v187")
A("s_nop 0")
A(f"v_add_f32_dpp v193, v190, v193 row_shl:2 {DPPM}")
A("v_add_f32 v192, v192, v194")
A("s_nop 0")
A(f"v_add_f32_dpp v193, v191, v193 row_shl:3 {DPPM}")
execmask(0x1000010000100001)
A("ds_write_b64 v10, v[192:193]")
execall()
dppsum([176 + i for i in range(8)], [144 + 4 * i for i in range(8)])
execmask(M_N4)
A("ds_write_b128 v13, v[176:179]")
A("ds_write_b128 v13, v[180:183] offset:16")
execall()
A("s_waitcnt lgkmcnt(0)")
A("s_barrier")
for s in range(5):
    A(f"ds_read_b64 v[{160+2*s}:{161+2*s}], v11 offset:{L_RS + 32*s}")
for s in range(5):
    A(f"ds_read_b64 v[{144+2*s}:{145+2*s}], v14 offset:{L_RED2 + 512*s}")
A("s_waitcnt lgkmcnt(5)")
for s in range(1, 5):
    A(f"v_pk_add_f32 v[160:161], v[160:161], v[{160+2*s}:{161+2*s}]")
A(f"v_mul_f32 v160, {f32(1/640)}, v160")
A(f"v_mul_f32 v161, {f32(1/640)}, v161")
A("v_fma_f32 v161, -v160, v160, v161")
A("v_max_f32 v161, 0, v161")
A(f"v_add_f32 v161, {f32(1e-5)}, v161")
A("v_rsq_f32 v161, v161")
A("s_waitcnt lgkmcnt(0)")
for s in range(1, 5):
    A(f"v_pk_add_f32 v[144:145], v[144:145], v[{144+2*s}:{145+2*s}]")
A("v_fma_f32 v144, -v160, v16, v144")
A("v_fma_f32 v145, -v160, v17, v145")
A("v_mul_f32 v144, v144, v161")
A("v_mul_f32 v145, v145, v161")
A(f"v_mul_f32 v146, {f32(-math.log2(math.e))}, v144")
A(f"v_mul_f32 v147, {f32(-math.log2(math.e))}, v145")
A("v_exp_f32 v146, v146")
A("v_exp_f32 v147, v147")
A("s_nop 0")
A("v_add_f32 v146, 1.0, v146")
A("v_add_f32 v147, 1.0, v147")
A("v_rcp_f32 v146, v146")
A("v_rcp_f32 v147, v147")
A("s_nop 0")
A("v_mul_f32 v144, v144, v146")
A("v_mul_f32 v145, v145, v147")
A("v_cvt_pk_bf16_f32 v148, v144, v145")
A("s_nop 1")
for i in range(4):
    A(f"v_mov_b32_dpp v{208+i}, v148 quad_perm:[{i},{i},{i},{i}] {DPPM}")
A("s_nop 1")
for jj in range(8):
    d = 144 + 4 * jj
    A(f"v_mfma_f32_16x16x32_bf16 v[{d}:{d+3}], v[208:211], v[{112+4*jj}:{115+4*jj}], 0")
A("s_nop 3")
A("v_cvt_pk_bf16_f32 v232, v144, v148")
A("v_cvt_pk_bf16_f32 v233, v152, v156")
A(f"buffer_store_dwordx4 v[232:235], v9, {srd(S_WS)}, s96 offen sc1")
A("s_nop 1")
A("v_cvt_pk_bf16_f32 v236, v160, v164")
A("v_cvt_pk_bf16_f32 v237, v168, v172")
A(f"buffer_store_dwordx4 v[236:239], v9, {srd(S_WS)}, s96 offen offset:256 sc1")
A.stamp(11)

A.lab("L_fin")
if opt.dbgstamps:
    A("s_waitcnt vmcnt(0) lgkmcnt(0)")
    A("s_load_dwordx2 s[92:93], s[0:1], 80")
    A("s_mov_b32 s94, 256")
    A("s_mov_b32 s95, 0x00020000")
    A("v_mov_b32 v8, 0")
    A("s_waitcnt lgkmcnt(0)")
    A("s_mov_b64 exec, 1")
    A("s_not_b32 s90, s4")
    A("v_mov_b32 v9, s90")
    A("buffer_atomic_umax v9, v8, s[92:95], 0 offen offset:60")
    A(f"s_cmp_lt_u32 s{sR}, 16")
    for i in range(12):
        A(f"v_mov_b32 v9, s{4+2*i}")
        if i in (3, 4, 9):
            o2 = {3: 48, 4: 52, 9: 56}[i]
            A(f"s_cselect_b32 s91, {4*i}, {o2}")
            A(f"buffer_atomic_umax v9, v8, s[92:95], s91 offen")
        else:
            A(f"buffer_atomic_umax v9, v8, s[92:95], 0 offen offset:{4*i}")
    A("s_branch L_end")
if opt.stamps:
    A("s_waitcnt vmcnt(0) lgkmcnt(0)")
    A(f"s_lshl_b32 s90, s2, 3")
    A(f"s_add_u32 s90, s90, s{sW}")
    A("s_lshl_b32 s90, s90, 6")
    A(f"s_add_u32 s90, s90, {W_STAMP}")
    A("v_mov_b32 v8, 0")
    A("s_mov_b64 exec, 1")
    for i in range(12):
        A(f"v_mov_b32 v9, s{4+2*i}")
        A(f"buffer_store_dword v9, v8, {srd(S_WS)}, s90 offen offset:{4*i}")
    A(f"v_mov_b32 v9, s{sCNT}")
    A(f"buffer_store_dword v9, v8, {srd(S_WS)}, s90 offen offset:56")
    A(f"v_mov_b32 v9, s{sFAST}")
    A(f"buffer_store_dword v9, v8, {srd(S_WS)}, s90 offen offset:60")
A.lab("L_end")

body = "\n".join(A.l)
if opt.stamps:
    init = "\n".join(f"    s_mov_b32 s{4+2*i}, 0" for i in range(1, 12))
    body = init + "\n" + body
out = HDR + f"""; @launch grid=(256,1,1) block=(512,1,1) lds={LDS_BYTES}
.amdgcn_target "amdgcn-amd-amdhsa--gfx950"
.text
.globl {NAME}_kernel
.p2align 8
.type {NAME}_kernel,@function
{NAME}_kernel:
{body}
    s_endpgm
L_codeend:
.section .rodata,"a"
.p2align 6
.amdhsa_kernel {NAME}_kernel
  .amdhsa_next_free_vgpr 256
  .amdhsa_next_free_sgpr 102
  .amdhsa_accum_offset 256
  .amdhsa_group_segment_fixed_size 0
  .amdhsa_kernarg_size 96
  .amdhsa_user_sgpr_count 2
  .amdhsa_user_sgpr_kernarg_segment_ptr 1
  .amdhsa_system_sgpr_workgroup_id_x 1
.end_amdhsa_kernel
"""
open(opt.o, "w").write(out)
print("wrote", opt.o, "lines", len(A.l), file=sys.stderr)
```

```python
import sys, re, argparse, math, struct

NAME = "sequential_preLN__compressed_kv_cla__dense_activation_silu__decode"
HDR = open(f"cdna_kernels/{NAME}.s.ref").read().split("; Override launch")[0]

ap = argparse.ArgumentParser()
ap.add_argument("-o", default=f"cdna_kernels/{NAME}.s")
ap.add_argument("--stamps", action="store_true")
ap.add_argument("--early", type=int, default=4)
ap.add_argument("--early67", type=int, default=16)
ap.add_argument("--pw", default="sc1")
ap.add_argument("--noh3bt", action="store_true")
ap.add_argument("--earlyA", type=int, default=4)
ap.add_argument("--nocodepf", action="store_true")
ap.add_argument("--nobar2", action="store_true")
ap.add_argument("--nouvpf", action="store_true")
ap.add_argument("--noukpf", action="store_true")
ap.add_argument("--kb0", type=int, default=2)
ap.add_argument("--kb", type=int, default=0)
ap.add_argument("--ka", type=int, default=0)
ap.add_argument("--kf", type=int, default=16)
ap.add_argument("--arev", action="store_true")
ap.add_argument("--grp", type=int, default=0)
ap.add_argument("--ntr0", type=int, default=32)
ap.add_argument("--padto", type=int, default=0)
ap.add_argument("--forceslow", action="store_true")
ap.add_argument("--wb", action="store_true")
ap.add_argument("--dbgstamps", action="store_true")
ap.add_argument("--b1", type=int, default=10)
ap.add_argument("--b2", type=int, default=6)
ap.add_argument("--noclean", action="store_true")
ap.add_argument("--pxor", type=int, default=0)
ap.add_argument("--hxor", type=int, default=0)
ap.add_argument("--uv", default="late")
ap.add_argument("--uvsplit", type=int, default=8)
ap.add_argument("--uvw", type=int, default=4)
ap.add_argument("--ssleep", type=int, default=1)
ap.add_argument("--pc", default="")
ap.add_argument("--pq", default="")
ap.add_argument("--pt", default="")
ap.add_argument("--po", default="nt")
ap.add_argument("--fwait", type=int, default=0)
ap.add_argument("--stearly", action="store_true")
ap.add_argument("--ilv", type=int, default=1)
ap.add_argument("--nv0", type=int, default=12)
ap.add_argument("--vdelay", type=int, default=0)
ap.add_argument("--d1", type=int, default=0)
ap.add_argument("--d2", type=int, default=0)
ap.add_argument("--noearlyF", action="store_true")
ap.add_argument("--stw", type=int, default=3)
ap.add_argument("--bdelay", type=int, default=6)
ap.add_argument("--bs", type=int, default=1)
ap.add_argument("--f2", type=int, default=1)
ap.add_argument("--qsleep", type=int, default=0)
opt = ap.parse_args()

W_EPOCH = 0x0
W_XT = 0x1000
W_H1 = 0x10000
W_H1B = 0x380000
W_H2 = 0x100000
W_ST3 = 0x140000
W_STX = 0x150000
W_H4 = 0x160000
W_H5B = 0x180000
W_H5C = 0x1A0000
W_H3B = 0x200000
W_H6 = 0x280000
W_H3A = 0x400000
W_STAMP = 0x800000
WS_SIZE = 0x1000000

ROWB = 1056
L_Q = 128 * ROWB
L_P = L_Q + 16 * ROWB
L_MX = L_P + 4096
L_SM = L_MX + 512
L_QV = L_SM + 512
L_QP = L_Q + 5376
L_XN = L_Q
LDS_BYTES = 163840
L_S1 = 0 * ROWB
L_RED = 0
L_RED2 = 16384
L_RS = 32768
L_CS = 33792
L_OS = 49152
L_UV = 73728

S_X, S_CKV, S_WQ, S_WUK, S_WUV, S_WO, S_W1, S_W2, S_OUT, S_WS = (28, 32, 36, 40, 44, 48, 52, 56, 60, 64)
sX, sR, sW = 68, 69, 70
sFAST = 71
sT0, sT1 = 72, 73
sPLO, sPHI = 74, 75
sCNT = 76
sH = 77
sTL = 3
POLL_LIMIT = 400000


def f32(x):
    return "0x%08x" % struct.unpack("<I", struct.pack("<f", x))[0]


class Asm:
    def __init__(self):
        self.l = []
        self.nlab = 0

    def __call__(self, s):
        m = re.search(r"offset:(\d+)", s)
        if m:
            lim = 65536 if s.lstrip().startswith("ds_") else 4096
            assert int(m.group(1)) < lim, s
        self.l.append("    " + s)

    def lab(self, n):
        self.l.append(n + ":")

    def newlab(self, p="L"):
        self.nlab += 1
        return f"{p}_{self.nlab}"

    def c(self, s):
        self.l.append("    ; " + s)

    def stamp(self, i, grp=None):
        if grp is not None and grp != opt.grp:
            return
        if opt.grp == 4 and grp != 4 and i not in (0, 7, 8):
            return
        if opt.stamps:
            self(f"s_memrealtime s[{4+2*i}:{5+2*i}]")


A = Asm()
DPPM = "row_mask:0xf bank_mask:0xf"


def srd(n):
    return f"s[{n}:{n+3}]"


def execmask(m):
    A(f"s_mov_b32 exec_lo, 0x{m & 0xffffffff:x}")
    A(f"s_mov_b32 exec_hi, 0x{m >> 32:x}")


def execall():
    A("s_mov_b64 exec, -1")


M_N4 = 0x000F000F000F000F
M_N8 = 0x00FF00FF00FF00FF


def store_local(instr):
    l1, l2 = A.newlab("Lsl"), A.newlab("Lsl")
    A(f"s_cmp_eq_u32 s{sFAST}, 0")
    A(f"s_cbranch_scc1 {l1}")
    for i in instr:
        A(i)
    A(f"s_branch {l2}")
    A.lab(l1)
    for i in instr:
        A(i + " sc1")
    A.lab(l2)


def poll(loads, tagregs, sleep=0, alt=None):
    lp = A.newlab("Lpoll")
    if alt:
        sr, sm, so_ = alt
        lf = A.newlab("Lpf")
        A(f"s_mov_b32 {sr}, {sm}")
        A(f"s_branch {lf}")
        A.lab(lp)
        A(f"s_and_b32 s98, s{sCNT}, 31")
        A("s_cmp_eq_u32 s98, 31")
        A(f"s_cselect_b32 {sr}, {so_}, {sm}")
        A.lab(lf)
    elif sleep:
        lf = A.newlab("Lpf")
        A(f"s_branch {lf}")
        A.lab(lp)
        A(f"s_sleep {sleep}")
        A.lab(lf)
    else:
        A.lab(lp)
    for i in loads:
        A(i + " sc1")
    A(f"s_add_u32 s{sCNT}, s{sCNT}, 1")
    A(f"s_cmp_gt_u32 s{sCNT}, {POLL_LIMIT}")
    A("s_cbranch_scc1 L_end")
    A("s_waitcnt vmcnt(0)")
    for k, t in enumerate(tagregs):
        if k == 0:
            A(f"v_cmp_ne_u64 vcc, s[{sT0}:{sT1}], v[{t}:{t+1}]")
        else:
            A(f"v_cmp_ne_u64 s[98:99], s[{sT0}:{sT1}], v[{t}:{t+1}]")
            A("s_or_b64 vcc, vcc, s[98:99]")
    A(f"s_cbranch_vccnz {lp}")


def transpose(dst, rows, ndw, dup=False):
    nr = len(rows) // 2
    st = 2 * nr if dup else nr
    for jj in range(2 * ndw):
        sel = sPHI if jj & 1 else sPLO
        for rep in range(2 if dup else 1):
            for p in range(nr):
                A(f"v_perm_b32 v{dst + jj*st + rep*nr + p}, v{rows[2*p+1] + (jj >> 1)}, v{rows[2*p] + (jj >> 1)}, s{sel}")


def dppsum(dsts, ds):
    assert len(dsts) >= 3
    for step in (1, 2, 3):
        for t, d in zip(dsts, ds):
            src1 = d if step == 1 else t
            A(f"v_add_f32_dpp v{t}, v{d+step}, v{src1} row_shl:{4*step} {DPPM}")


def unpack(dlo, dhi, s):
    A(f"v_lshlrev_b32 v{dlo}, 16, v{s}")
    A(f"v_and_b32 v{dhi}, 0xffff0000, v{s}")


def rowall(op, regs):
    for sh in (8, 4, 2, 1):
        if len(regs) < 3:
            A(f"s_nop {2 - len(regs)}")
        for r_ in regs:
            A(f"{op}_dpp v{r_}, v{r_}, v{r_} row_ror:{sh} {DPPM}")


def sum_b128(n, base, lds=False):
    st = 1
    while st < n:
        for s in range(0, n, 2 * st):
            if lds and st == 1:
                A(f"s_waitcnt lgkmcnt({n - s - 2})")
            x, y = base + 4 * s, base + 4 * (s + st)
            A(f"v_pk_add_f32 v[{x}:{x+1}], v[{x}:{x+1}], v[{y}:{y+1}]")
            A(f"v_pk_add_f32 v[{x+2}:{x+3}], v[{x+2}:{x+3}], v[{y+2}:{y+3}]")
        st *= 2


def tag_setup():
    A("s_waitcnt lgkmcnt(0)")
    A(f"s_mul_i32 s{sT0}, s82, 0x9E3779B1")
    A(f"s_add_u32 s{sT0}, s{sT0}, 0x7F4A7C15")
    A(f"s_mul_i32 s{sT1}, s83, 0x2C9277B5")
    A(f"s_add_u32 s{sT1}, s{sT1}, 0xAC564B05")


def xt_decide(t):
    A("s_getreg_b32 s84, hwreg(HW_REG_XCC_ID)")
    A("s_and_b32 s84, s84, 15")
    A(f"v_cmp_ne_u32 vcc, s84, v{t}")
    A("s_cmp_eq_u64 vcc, 0")
    A(f"s_cselect_b32 s{sFAST}, {0 if opt.forceslow else 1}, 0")


def ckv_dma(rows, k=None):
    for i in rows:
        st_ = 4 if opt.ilv else 1
        A(f"s_add_u32 m0, s81, {i*ROWB*st_}")
        A(f"s_add_u32 s86, s80, {i*1024*st_}")
        if k:
            A(f"s_waitcnt vmcnt({k-1})")
        A(f"buffer_load_dwordx4 v6, {srd(S_CKV)}, s86 offen {opt.pc} lds")


A.stamp(0)
if opt.padto:
    A("s_memrealtime s[4:5]")
A("s_cmp_ge_u32 s2, 256")
A("s_cbranch_scc1 L_end")
ptr = {S_X: 0, S_CKV: 8, S_WQ: 16, S_WUK: 24, S_WUV: 32, S_WO: 40, S_W1: 56, S_W2: 64, S_OUT: 72, S_WS: 88}
size = {S_X: 5120, S_CKV: 16777216, S_WQ: 5242880, S_WUK: 4194304, S_WUV: 4194304, S_WO: 5242880,
        S_W1: 2211840, S_W2: 2211840, S_OUT: 5120, S_WS: WS_SIZE}
for s_ in (S_WQ, S_X, S_CKV, S_WUK, S_WS, S_WUV, S_WO, S_W1, S_W2, S_OUT):
    A(f"s_load_dwordx2 s[{s_}:{s_+1}], s[0:1], {ptr[s_]}")
A(f"s_lshr_b32 s{sR}, s2, 3")
A("v_lshrrev_b32 v1, 6, v0")
A("v_and_b32 v0, 63, v0")
A(f"v_readfirstlane_b32 s{sW}, v1")
A("v_lshlrev_b32 v6, 4, v0")
if not opt.nocodepf:
    A("s_getpc_b64 s[92:93]")
    A.lab("L_pc")
    A(f"s_sub_u32 s92, s92, L_pc-{NAME}_kernel")
    A("s_subb_u32 s93, s93, 0")
    A(f"s_mov_b32 s94, L_codeend-{NAME}_kernel")
    A("s_mov_b32 s95, 0x00020000")
    A(f"s_lshl_b32 s90, s{sR}, 10")
    A(f"s_cmp_lg_u32 s{sW}, 7")
    A("s_cbranch_scc1 L_nopf")
    A("buffer_load_dwordx4 v[252:255], v6, s[92:95], s90 offen")
    A.lab("L_nopf")
for s_ in ptr:
    A(f"s_mov_b32 s{s_+2}, {size[s_]}")
    A(f"s_mov_b32 s{s_+3}, 0x00020000")
A(f"s_and_b32 s{sX}, s2, 7")
A(f"s_mov_b32 s{sPLO}, 0x05040100")
A(f"s_mov_b32 s{sPHI}, 0x07060302")
A(f"s_mov_b32 s{sCNT}, 0")
A(f"s_mov_b32 s{sFAST}, 0")
A(f"s_and_b32 s78, s{sR}, 3")
if opt.hxor:
    A(f"s_xor_b32 s78, s78, {opt.hxor}")
A(f"s_lshl_b32 s{sH}, s{sX}, 2")
A(f"s_add_u32 s{sH}, s{sH}, s78")
A(f"s_lshl_b32 s88, s{sH}, 8")
A("v_lshrrev_b32 v1, 4, v0")
A("v_and_b32 v2, 15, v0")
A("v_bfe_u32 v3, v0, 2, 2")
A("v_and_b32 v4, 3, v0")
A("v_lshrrev_b32 v5, 2, v0")
A("v_lshlrev_b32 v7, 6, v1")
A("v_lshl_add_u32 v7, v4, 4, v7")
A(f"s_bfe_u32 s79, s{sR}, 0x20002")
A("s_lshl_b32 s80, s79, 22")
A(f"s_lshl_b32 s81, s{sH}, 17")
A("s_add_u32 s80, s80, s81")
A(f"s_xor_b32 s{sTL}, s{sW}, 4")
A(f"s_cmp_lt_u32 s{sR}, 16")
A(f"s_cselect_b32 s{sTL}, s{sTL}, s{sW}")
if opt.ilv:
    A(f"s_and_b32 s81, s{sTL}, 4")
    A("s_lshl_b32 s81, s81, 4")
    A(f"s_and_b32 s90, s{sTL}, 3")
    A("s_add_u32 s81, s81, s90")
    A("s_lshl_b32 s90, s81, 10")
    A("s_add_u32 s80, s80, s90")
    A(f"s_mul_i32 s81, s81, {ROWB}")
else:
    A(f"s_lshl_b32 s81, s{sTL}, 14")
    A("s_add_u32 s80, s80, s81")
    A(f"s_mul_i32 s81, s{sTL}, {16*ROWB}")
A("s_mul_i32 s87, s79, 160")
A(f"s_lshl_b32 s90, s{sW}, 5")
A("s_add_u32 s87, s87, s90")
A("s_lshl_b32 s89, s87, 13")
A("s_add_u32 s89, s89, s88")
A("v_lshlrev_b32 v9, 16, v1")
A("v_lshl_add_u32 v9, v2, 4, v9")
A("v_lshl_add_u32 v10, v3, 15, v7")
A("s_lshl_b32 s91, s79, 7")
A(f"s_and_b32 s90, s{sW}, 3")
A("s_lshl_b32 s90, s90, 5")
A("s_add_u32 s91, s91, s90")
A("s_lshl_b32 s91, s91, 13")
A("s_add_u32 s91, s91, s88")
A(f"s_cmp_lt_u32 s{sR}, 16")
A("s_waitcnt lgkmcnt(0)")
A(f"s_load_dwordx2 s[82:83], s[{S_WS}:{S_WS+1}], {W_EPOCH}")
A("s_cbranch_scc0 L_frontB")


def xt_publish(t):
    A("s_getreg_b32 s84, hwreg(HW_REG_XCC_ID)")
    A("s_and_b32 s84, s84, 15")
    A(f"s_lshl_b32 s85, s{sX}, 9")
    A(f"s_add_u32 s85, s85, {W_XT}")
    A(f"s_lshl_b32 s86, s{sR}, 4")
    A(f"v_mov_b32 v{t}, s84")
    A(f"v_mov_b32 v{t+1}, 0")
    A(f"v_mov_b32 v{t+2}, s{sT0}")
    A(f"v_mov_b32 v{t+3}, s{sT1}")
    A("v_mov_b32 v12, s86")
    A("s_mov_b64 exec, 1")
    A(f"buffer_store_dwordx4 v[{t}:{t+3}], v12, {srd(S_WS)}, s85 offen sc1")
    execall()


def uk_loads(ts, dst=None):
    for t in ts:
        A(f"s_add_u32 s90, s91, {(16*(t>>2) + (t&3))*8192}")
        d = dst if dst is not None else 208 + 4 * t
        A(f"buffer_load_dwordx4 v[{d}:{d+3}], v10, {srd(S_WUK)}, s90 offen {opt.pq}")


A(f"s_cmp_gt_u32 s{sW}, 4")
A("s_cbranch_scc1 L_notS1")
RAW = 16


def wq_issue(j):
    for i in range(8):
        d = RAW + 32 * j + 4 * i
        A(f"buffer_load_dwordx4 v[{d}:{d+3}], v9, {srd(S_WQ)}, s89 offen {opt.pq}")
        if i < 7:
            A("s_add_u32 s89, s89, 8192")
        if j == 0 and i == 3:
            A("s_barrier")
    if j < 3:
        A(f"s_add_u32 s89, s89, {(160-7)*8192}")
        A(f"s_sub_u32 s90, s89, {640*8192}")
        A(f"s_cmp_ge_u32 s89, {640*8192}")
        A("s_cselect_b32 s89, s90, s89")


def wq_proc(j):
    rw = RAW + 32 * j
    for jj in range(8):
        sel = sPHI if jj & 1 else sPLO
        o = 176 + 4 * jj
        for p in range(4):
            A(f"v_perm_b32 v{o+p}, v{rw+4*(2*p+1)+(jj>>1)}, v{rw+4*(2*p)+(jj>>1)}, s{sel}")
        if jj >= 1:
            j1 = jj - 1
            c = "0" if j == 0 else f"v[{144+4*j1}:{147+4*j1}]"
            A(f"v_mfma_f32_16x16x32_bf16 v[{144+4*j1}:{147+4*j1}], v[{240+4*j}:{243+4*j}], v[{176+4*j1}:{179+4*j1}], {c}")
    A("s_nop 0")
    c = "0" if j == 0 else "v[172:175]"
    A(f"v_mfma_f32_16x16x32_bf16 v[172:175], v[{240+4*j}:{243+4*j}], v[204:207], {c}")


wq_issue(0)
wq_issue(1)
A("v_mul_u32_u24 v8, 1296, v3")
A("v_lshl_add_u32 v8, v1, 4, v8")
A(f"v_add_u32 v8, {L_XN}, v8")
A("s_barrier")
for j in range(4):
    A("s_lshl_b32 s90, s87, 1")
    A("v_add_u32 v11, s90, v8")
    A(f"ds_read_b128 v[{240+4*j}:{243+4*j}], v11")
    if j < 3:
        A("s_add_u32 s87, s87, 160")
        A("s_sub_u32 s90, s87, 640")
        A("s_cmp_ge_u32 s87, 640")
        A("s_cselect_b32 s87, s90, s87")
wq_issue(2)
tag_setup()
A("s_waitcnt vmcnt(16)")
wq_proc(0)
wq_issue(3)
A("s_waitcnt vmcnt(16)")
wq_proc(1)
uk_loads(range(8))
A("s_barrier")
A("v_mul_u32_u24 v12, 576, v1")
A("v_lshl_add_u32 v12, v2, 5, v12")
A("v_lshl_add_u32 v12, v3, 4, v12")
A(f"s_mul_i32 s90, s{sW}, 2304")
A(f"s_add_u32 s90, s90, {L_QP}")
A("v_add_u32 v12, s90, v12")
A("s_waitcnt vmcnt(16)")
wq_proc(2)
A("v_mul_u32_u24 v11, 576, v4")
A("v_lshl_add_u32 v11, v5, 5, v11")
A("v_lshl_add_u32 v11, v1, 4, v11")
A(f"v_add_u32 v11, {L_QP}, v11")
A("v_bfe_u32 v8, v0, 2, 1")
A("v_bfe_u32 v13, v0, 3, 2")
A("v_lshlrev_b32 v14, 4, v4")
A("v_lshl_add_u32 v14, v8, 2, v14")
A("v_add_u32 v14, v14, v13")
A("v_lshlrev_b32 v14, 2, v14")
A("v_and_b32 v15, 7, v0")
A("v_lshlrev_b32 v15, 4, v15")
A("v_lshl_add_u32 v15, v13, 16, v15")
A("s_waitcnt vmcnt(8)")
A.stamp(1, 0)
wq_proc(3)
A("s_nop 3")
for jj in range(0, 8, 2):
    A(f"ds_write2_b32 v12, v{144+4*jj}, v{148+4*jj} offset0:{jj} offset1:{jj+1}")
A("s_waitcnt lgkmcnt(0)")
A.stamp(2)
A("s_barrier")
A(f"s_cmp_eq_u32 s{sW}, 4")
A("s_cbranch_scc0 L_s2")
ckv_dma(range(0, opt.b2))
A("s_barrier")
ckv_dma(range(opt.b2, 16))
A("s_branch L_qgather")

A.lab("L_notS1")
A(f"s_cmp_eq_u32 s{sW}, 5")
A("s_cbranch_scc0 L_w67")
A("v_mul_u32_u24 v8, 1280, v1")
A("v_lshl_add_u32 v8, v2, 4, v8")
for i in range(5):
    A(f"buffer_load_dwordx4 v[{16+4*i}:{19+4*i}], v8, {srd(S_X)}, 0 offen offset:{256*i}")
A("s_barrier")
A("v_mov_b32 v38, 0x3f803f80")
A("v_mov_b32 v36, 0")
A("v_mov_b32 v37, 0")
A("v_mul_u32_u24 v8, 1296, v1")
A("v_lshl_add_u32 v8, v2, 4, v8")
A(f"v_add_u32 v8, {L_XN}, v8")
A("s_waitcnt vmcnt(0)")
for i in range(20):
    A(f"v_dot2_f32_bf16 v36, v{16+i}, v38, v36")
    A(f"v_dot2_f32_bf16 v37, v{16+i}, v{16+i}, v37")
A("s_nop 1")
rowall("v_add_f32", [36, 37])
A(f"v_mul_f32 v36, {f32(1/640)}, v36")
A(f"v_mul_f32 v37, {f32(1/640)}, v37")
A("v_fma_f32 v37, -v36, v36, v37")
A("v_max_f32 v37, 0, v37")
A(f"v_add_f32 v37, {f32(1e-5)}, v37")
A("v_rsq_f32 v38, v37")
A("s_nop 0")
A("v_mul_f32 v36, -v36, v38")
for i in range(20):
    unpack(40, 41, 16 + i)
    A("v_pk_fma_f32 v[40:41], v[40:41], v[38:39], v[36:37] op_sel_hi:[1,0,0]")
    A(f"v_cvt_pk_bf16_f32 v{16+i}, v40, v41")
for i in range(5):
    A(f"ds_write_b128 v8, v[{16+4*i}:{19+4*i}] offset:{256*i}")
A("s_branch L_w567")
A.lab("L_w67")
A("s_barrier")
A.lab("L_w567")
tag_setup()
A("s_barrier")
A(f"s_cmp_eq_u32 s{sW}, 7")
A("s_cbranch_scc0 L_w56b")
xt_publish(20)
A.lab("L_w56b")
A("s_barrier")
ckv_dma(range(0, opt.b1))
A("s_barrier")
ckv_dma(range(opt.b1, opt.b1 + opt.b2))
A("s_barrier")
ckv_dma(range(opt.b1 + opt.b2, 16))
A("s_branch L_qgather")

A.lab("L_frontB")
A(f"s_and_b32 s92, s{sR}, 15")
A(f"s_lshl_b32 s93, s{sX}, 10")
A(f"s_cmp_gt_u32 s{sW}, 4")
A("s_cbranch_scc1 L_B2")
A("s_mul_i32 s89, s92, 5")
A(f"s_add_u32 s89, s89, s{sW}")
A("s_lshl_b32 s89, s89, 16")
A("s_add_u32 s89, s89, s93")
A("s_add_u32 s89, s89, 32768")
for i in range(4):
    A(f"buffer_load_dwordx4 v[16:19], v6, {srd(S_WQ)}, s89 offen {opt.pq}")
    if i < 3:
        A("s_add_u32 s89, s89, 8192")
A.lab("L_B2")
A("s_lshl_b32 s91, s92, 3")
A(f"s_add_u32 s91, s91, s{sW}")
A("s_lshl_b32 s91, s91, 15")
A("s_add_u32 s91, s91, s93")
A("s_barrier")
for i in range(4):
    A(f"buffer_load_dwordx4 v[16:19], v6, {srd(S_WUK)}, s91 offen {opt.pq}")
    if i < 3:
        A("s_add_u32 s91, s91, 8192")
A.lab("L_B3")
A("s_barrier")
ckv_dma(range(16), opt.kb)
tag_setup()
A(f"s_cmp_lg_u32 s{sW}, 0")
A("s_cbranch_scc1 L_qgather")
xt_publish(16)
A(f"s_lshl_b32 s89, s{sH}, 2")
A("s_add_u32 s89, s89, s79")
A("s_lshl_b32 s89, s89, 11")
A(f"s_add_u32 s89, s89, {W_H3B}")
A(f"buffer_load_dwordx4 v[16:19], v6, {srd(S_WS)}, s89 offen sc1")
A(f"buffer_load_dwordx4 v[16:19], v6, {srd(S_WS)}, s89 offen offset:1024 sc1")
A(f"s_and_b32 s90, s{sR}, 15")
A("s_lshl_b32 s90, s90, 10")
A(f"s_lshl_b32 s89, s{sX}, 14")
A("s_add_u32 s89, s89, s90")
A(f"s_add_u32 s89, s89, {W_H4}")
A(f"buffer_load_dwordx4 v[16:19], v6, {srd(S_WS)}, s89 offen sc1")
A(f"s_mul_i32 s89, s{sX}, 10240")
A("s_min_u32 s90, s90, 9216")
A("s_add_u32 s89, s89, s90")
A(f"s_add_u32 s89, s89, {W_H5C}")
A(f"buffer_load_dwordx4 v[16:19], v6, {srd(S_WS)}, s89 offen sc1")
A("s_branch L_qgather")

A.lab("L_s2")
for s_ in range(5):
    A(f"ds_read_b128 v[{24+8*s_}:{27+8*s_}], v11 offset:{2304*s_}")
    A(f"ds_read_b128 v[{28+8*s_}:{31+8*s_}], v11 offset:{2304*s_+16}")
for s_ in range(1, 5):
    A(f"s_waitcnt lgkmcnt({8-2*s_})")
    for i in range(4):
        A(f"v_pk_add_f32 v[{24+2*i}:{25+2*i}], v[{24+2*i}:{25+2*i}], v[{24+8*s_+2*i}:{25+8*s_+2*i}]")
for i in range(4):
    A(f"v_cvt_pk_bf16_f32 v{16+i}, v{24+2*i}, v{25+2*i}")
A("s_waitcnt vmcnt(0)")
A.stamp(3)
A("s_nop 0")
for t in range(8):
    A(f"v_mfma_f32_16x16x32_bf16 v[{40+4*t}:{43+4*t}], v[{208+4*t}:{211+4*t}], v[16:19], 0")
A(f"s_lshl_b32 s89, s{sH}, 11")
A(f"s_lshr_b32 s90, s{sR}, 2")
A("s_lshl_b32 s90, s90, 9")
A("s_add_u32 s89, s89, s90")
A(f"s_and_b32 s90, s{sW}, 3")
A("s_lshl_b32 s90, s90, 7")
A("s_add_u32 s89, s89, s90")
A(f"s_add_u32 s89, s89, {W_H2}")
for t in range(4):
    A(f"v_add_f32_dpp v{24+t}, v{40+4*t+1}, v{40+4*t} row_shl:4 row_mask:0xf bank_mask:0x1")
for t in range(4):
    d = 56 + 4 * t
    A(f"v_add_f32_dpp v{24+t}, v{d}, v{d+1} row_shr:4 row_mask:0xf bank_mask:0x2")
for t in range(4):
    A(f"v_add_f32_dpp v{24+t}, v{40+4*t+2}, v{24+t} row_shl:8 row_mask:0xf bank_mask:0x1")
for t in range(4):
    A(f"v_add_f32_dpp v{24+t}, v{56+4*t+2}, v{24+t} row_shl:4 row_mask:0xf bank_mask:0x2")
for t in range(4):
    A(f"v_add_f32_dpp v{24+t}, v{40+4*t+3}, v{24+t} row_shl:12 row_mask:0xf bank_mask:0x1")
for t in range(4):
    A(f"v_add_f32_dpp v{24+t}, v{56+4*t+3}, v{24+t} row_shl:8 row_mask:0xf bank_mask:0x2")
SC = (128 ** -0.5) * math.log2(math.e)
for t in range(4):
    A(f"v_mul_f32 v{24+t}, {f32(SC)}, v{24+t}")
A("v_cvt_pk_bf16_f32 v28, v24, v25")
A("v_cvt_pk_bf16_f32 v29, v26, v27")
A("ds_bpermute_b32 v16, v14, v28")
A("ds_bpermute_b32 v17, v14, v29")
A(f"v_mov_b32 v18, s{sT0}")
A(f"v_mov_b32 v19, s{sT1}")
A("s_waitcnt lgkmcnt(0)")
execmask(0xFFFFFFFF)
A(f"buffer_store_dwordx4 v[16:19], v15, {srd(S_WS)}, s89 offen sc1")
execall()
A.stamp(4)
A("s_barrier")
ckv_dma(range(15, -1, -1))

A.lab("L_qgather")
A("s_lshl_b32 s89, s79, 5")
A(f"s_and_b32 s90, s{sR}, 16")
A("s_add_u32 s89, s89, s90")
A(f"s_lshl_b32 s90, s{sW}, 1")
A("s_add_u32 s89, s89, s90")
A("s_lshl_b32 s89, s89, 11")
A(f"s_add_u32 s89, s89, {W_H2}")
A(f"s_lshl_b32 s85, s{sX}, 9")
A(f"s_add_u32 s85, s85, {W_XT}")
A("v_and_b32 v164, 0x1ff, v6")
A("v_lshlrev_b32 v248, 4, v2")
A(f"v_add_u32 v248, {L_MX}, v248")
A(f"s_lshl_b32 s90, s{sW}, 2")
A("v_add_u32 v249, s90, v248")
A(f"s_sub_u32 s94, 15, s{sR}")
A(f"s_mul_i32 s90, s{sX}, 7")
A("s_add_u32 s94, s94, s90")
A(f"s_cmp_gt_u32 s{sR}, 8")
A("s_cselect_b32 s100, s94, 99")
A(f"s_cmp_lt_u32 s{sW}, 5")
A("s_cselect_b32 s101, s100, 99")
A("v_lshrrev_b32 v10, 3, v0")
A("v_and_b32 v245, 0x70, v6")
A("v_mul_u32_u24 v244, 10240, v10")
A("v_add_u32 v244, v244, v245")
A("v_lshl_add_u32 v10, v10, 13, v245")
A("v_mul_u32_u24 v247, 10240, v1")
A("v_lshl_add_u32 v247, v2, 4, v247")
A(f"s_and_b32 s93, s{sR}, 8")
A("s_lshl_b32 s93, s93, 5")
A(f"s_and_b32 s90, s{sW}, 2")
A("s_lshl_b32 s90, s90, 6")
A("s_add_u32 s93, s93, s90")
A(f"s_and_b32 s90, s{sW}, 4")
A("s_lshl_b32 s90, s90, 4")
A("s_add_u32 s93, s93, s90")
A(f"s_and_b32 s90, s{sW}, 1")
A("s_lshl_b32 s90, s90, 3")
A("s_add_u32 s93, s93, s90")
A("s_lshl_b32 s93, s93, 13")
A("s_add_u32 s93, s93, s88")
A(f"s_and_b32 s90, s{sR}, 4")
A("s_lshl_b32 s90, s90, 5")
A("s_add_u32 s93, s93, s90")
A(f"s_and_b32 s82, s{sT0}, 0x3fffffff")
A(f"s_not_b32 s90, s{sT0}")
A("s_lshl_b32 s90, s90, 2")
A("s_and_b32 s90, s90, 0xc0000000")
A("s_or_b32 s82, s82, s90")
A("s_mov_b32 s83, 0x00010001")


def sym(dst, sh):
    A(f"v_lshrrev_b32 v{dst}, v{sh}, v246")
    A(f"v_lshlrev_b32 v15, 15, v{dst}")
    A(f"v_and_b32 v{dst}, 1, v{dst}")
    A(f"v_and_or_b32 v{dst}, v15, s84, v{dst}")


A("s_waitcnt vmcnt(17)")
A("v_mov_b32 v246, s82")
A("s_mov_b32 s84, 0x10000")
A("v_not_b32 v246, v246")
A("v_lshlrev_b32 v245, 3, v4")
for i in range(4):
    sym(252 + i, 245)
    if i < 3:
        A("v_add_u32 v245, 2, v245")
A.stamp(5, 7)
A("s_barrier")
ql = [f"buffer_load_dwordx4 v[{144+4*i}:{147+4*i}], v6, {srd(S_WS)}, s89 offen offset:{1024*i}" for i in range(4)]
ql.append(f"buffer_load_dwordx4 v[160:163], v164, {srd(S_WS)}, s85 offen")
qt = [146, 150, 154, 158, 162]
for i in ql:
    A(i + " sc1")
A(f"v_mul_u32_u24 v12, {ROWB}, v2")
A("v_lshl_add_u32 v12, v1, 4, v12")
A(f"s_mul_i32 s90, s{sW}, {32*ROWB}")
A("v_add_u32 v11, s90, v12")
A(f"v_mul_u32_u24 v13, {ROWB}, v5")
A("v_lshl_add_u32 v13, v4, 3, v13")
A(f"s_and_b32 s94, s{sW}, 3")
A("s_lshl_b32 s90, s94, 8")
A("v_add_u32 v13, s90, v13")
A(f"v_add_u32 v14, {64*ROWB}, v13")
A("v_lshlrev_b32 v8, 3, v0")
A(f"s_mul_i32 s90, s{sW}, {2*ROWB}")
A(f"s_add_u32 s90, s90, {L_Q}")
A("v_add_u32 v8, s90, v8")
A(f"v_add_u32 v12, {L_Q}, v12")
A("s_waitcnt vmcnt(5)")
A("s_barrier")


def f_second(tag):
    if not opt.f2:
        return
    A(f"s_cmp_lt_u32 s{sR}, 16")
    A(f"s_cbranch_scc0 L_f2x{tag}")
    A("s_add_u32 s90, s91, 5120")
    A(f"s_cmp_lt_u32 s{sR}, 10")
    A(f"s_cbranch_scc0 L_f2b{tag}")
    for i in range(4):
        A(f"buffer_load_dwordx4 v[{192+4*i}:{195+4*i}], v244, {srd(S_WO)}, s90 offen offset:{1280*i} {opt.po}")
    A(f"s_branch L_f2x{tag}")
    A.lab(f"L_f2b{tag}")
    for i in range(4):
        A(f"buffer_load_dwordx4 v[{192+4*i}:{195+4*i}], v247, {srd(S_W2)}, s90 offen offset:{1280*i} {opt.po}")
    A.lab(f"L_f2x{tag}")


def uv_loads():
    for e in range(4):
        A(f"buffer_load_dwordx4 v[{212+4*e}:{215+4*e}], v10, {srd(S_WUV)}, s93 offen {opt.po}")
        if e < 3:
            A(f"s_add_u32 s93, s93, {16*8192}")


A(f"s_cmp_lt_u32 s{sR}, 16")
A("s_cbranch_scc1 L_tlF")
A(f"s_cmp_lt_u32 s{sW}, {opt.uvw}")
A("s_cbranch_scc1 L_tlD")
uv_loads()
A("s_branch L_tlD")
A.lab("L_tlF")
A(f"s_cmp_lt_u32 s{sR}, 10")
A("s_cbranch_scc0 L_tlF2")
A(f"s_lshl_b32 s91, s{sX}, 3")
A(f"s_add_u32 s91, s91, s{sW}")
A(f"s_mul_i32 s91, s91, {64*1280}")
A(f"s_lshl_b32 s90, s{sR}, 7")
A("s_add_u32 s91, s91, s90")
for i in range(4):
    A(f"buffer_load_dwordx4 v[{212+4*i}:{215+4*i}], v244, {srd(S_WO)}, s91 offen offset:{1280*i} {opt.po}")
A("s_branch L_tlD")
A.lab("L_tlF2")
A(f"s_mul_i32 s91, s101, {32*1280}")
A(f"s_lshl_b32 s90, s{sW}, 8")
A("s_add_u32 s91, s91, s90")
for i in range(4):
    A(f"buffer_load_dwordx4 v[{212+4*i}:{215+4*i}], v247, {srd(S_W2)}, s91 offen offset:{1280*i} {opt.po}")
A.lab("L_tlD")
A(f"s_cmp_lt_u32 s{sW}, 4")
A("s_cbranch_scc0 L_opV")
for tl in range(2):
    for ks in range(16):
        d = 16 + 64 * tl + 4 * ks
        A(f"ds_read_b128 v[{d}:{d+3}], v11 offset:{16*ROWB*tl + 64*ks}")
A("s_branch L_opD")
A.lab("L_opV")
trl = []
for ks in range(4):
    for t in range(8):
        for hf in range(2):
            base = 14 if ks >= 2 else 13
            off = ((ks & 1) * 32 + 16 * hf) * ROWB + 32 * t
            d = 16 + (ks * 8 + t) * 4 + 2 * hf
            trl.append(f"ds_read_b64_tr_b16 v[{d}:{d+1}], v{base} offset:{off}")
for i in trl[:opt.nv0]:
    A(i)
A.lab("L_opD")
A(f"s_cmp_lt_u32 s{sR}, 16")
A("s_cbranch_scc1 L_qw4")
A(f"s_cmp_lt_u32 s{sW}, {opt.uvw}")
A("s_cbranch_scc0 L_qw4")
A("s_waitcnt vmcnt(0)")
A.lab("L_qw4")
A("s_waitcnt vmcnt(4)")
for k, t in enumerate(qt):
    if k == 0:
        A(f"v_cmp_ne_u64 vcc, s[{sT0}:{sT1}], v[{t}:{t+1}]")
    else:
        A(f"v_cmp_ne_u64 s[98:99], s[{sT0}:{sT1}], v[{t}:{t+1}]")
        A("s_or_b64 vcc, vcc, s[98:99]")
A("s_cbranch_vccz L_qok")
poll(ql, qt, sleep=opt.qsleep)
A.lab("L_qok")
A.stamp(6)
for i in range(4):
    A(f"ds_write_b64 v8, v[{144+4*i}:{145+4*i}] offset:{(i>>1)*ROWB + (i&1)*512}")
xt_decide(160)
A("s_waitcnt lgkmcnt(0)")
A("s_barrier")
A(f"v_mov_b32 v234, s{sT0}")
A(f"v_mov_b32 v235, s{sT1}")
A(f"v_mov_b32 v238, s{sT0}")
A(f"v_mov_b32 v239, s{sT1}")
A(f"s_cmp_lt_u32 s{sW}, 4")
A("s_cbranch_scc0 L_V")
for ks in range(16):
    A(f"ds_read_b128 v[{144+4*ks}:{147+4*ks}], v12 offset:{64*ks}")
A(f"s_cmp_lt_u32 s{sR}, 16")
A("s_cbranch_scc1 L_nouv")
if opt.uvw:
    uv_loads()
A.lab("L_nouv")
S0, S1 = 228, 208
for ks in range(16):
    A(f"s_waitcnt lgkmcnt({15-ks})")
    for tl, S in ((0, S0), (1, S1)):
        c = "0" if ks == 0 else f"v[{S}:{S+3}]"
        d = 16 + 64 * tl + 4 * ks
        A(f"v_mfma_f32_16x16x32_bf16 v[{S}:{S+3}], v[{d}:{d+3}], v[{144+4*ks}:{147+4*ks}], {c}")
f_second("k")
A(f"s_lshl_b32 s90, s{sW}, 10")
A(f"s_add_u32 s90, s90, {L_P}")
A("v_add_u32 v12, s90, v6")
A("s_nop 3")
A.stamp(7)
A(f"v_max3_f32 v232, v{S0}, v{S0+1}, v{S0+2}")
A("s_nop 0")
A(f"v_max3_f32 v233, v{S0+3}, v{S1}, v{S1+1}")
A(f"v_max3_f32 v232, v232, v{S1+2}, v{S1+3}")
A("v_max_f32 v232, v232, v233")
for sw in ("v_permlane16_swap_b32", "v_permlane32_swap_b32"):
    A("v_mov_b32 v233, v232")
    A("s_nop 1")
    A(f"{sw} v232, v233")
    A("s_nop 0")
    A("v_max_f32 v232, v232, v233")
A("ds_write_b32 v249, v232")
A("s_waitcnt lgkmcnt(0)")
A("s_barrier")
A.stamp(1, 4)
A("ds_read_b128 v[240:243], v248")
A("s_waitcnt lgkmcnt(0)")
A("v_max3_f32 v232, v240, v241, v242")
A("v_max_f32 v232, v232, v243")
for S in (S0, S1):
    for i in range(4):
        A(f"v_sub_f32 v{S+i}, v{S+i}, v232")
for S in (S0, S1):
    for i in range(4):
        A(f"v_exp_f32 v{S+i}, v{S+i}")
A(f"v_cvt_pk_bf16_f32 v240, v{S0}, v{S0+1}")
A(f"v_cvt_pk_bf16_f32 v241, v{S0+2}, v{S0+3}")
A(f"v_cvt_pk_bf16_f32 v242, v{S1}, v{S1+1}")
A(f"v_cvt_pk_bf16_f32 v243, v{S1+2}, v{S1+3}")
A("ds_write_b128 v12, v[240:243]")
A("s_waitcnt lgkmcnt(0)")
A("s_barrier")
A(f"s_cmp_lg_u32 s{sW}, {opt.stw}")
A("s_cbranch_scc1 L_cbK")
A(f"v_add_u32 v11, {L_P}, v6")
for ks in range(4):
    A(f"ds_read_b128 v[{144+4*ks}:{147+4*ks}], v11 offset:{1024*ks}")
for i in range(4):
    A(f"v_mov_b32 v{240+i}, 0x3f803f80")
A("s_lshl_b32 s95, s79, 5")
A(f"s_and_b32 s90, s{sR}, 16")
A("s_add_u32 s95, s95, s90")
A("s_lshl_b32 s95, s95, 1")
A(f"s_add_u32 s95, s95, s{sH}")
A("s_lshl_b32 s95, s95, 8")
A(f"s_add_u32 s95, s95, {W_STX}")
for ks in range(4):
    A(f"s_waitcnt lgkmcnt({3-ks})")
    c = "0" if ks == 0 else "v[228:231]"
    A(f"v_mfma_f32_16x16x32_bf16 v[228:231], v[240:243], v[{144+4*ks}:{147+4*ks}], {c}")
A("s_nop 7")
A("v_mov_b32 v233, v228")
execmask(0xFFFF)
A(f"buffer_store_dwordx4 v[232:235], v6, {srd(S_WS)}, s95 offen sc1")
execall()
A("s_branch L_cbK")

A.lab("L_V")
f_second("v")
if opt.vdelay:
    A(f"s_sleep {opt.vdelay}")
for i in trl[opt.nv0:]:
    A(i)
A("v_lshlrev_b32 v13, 17, v1")
A("v_lshl_add_u32 v13, v2, 4, v13")
A("s_lshl_b32 s93, s79, 5")
A(f"s_and_b32 s90, s{sR}, 16")
A("s_add_u32 s93, s93, s90")
A("s_lshl_b32 s93, s93, 15")
A(f"s_lshl_b32 s90, s{sH}, 10")
A("s_add_u32 s93, s93, s90")
A("s_lshl_b32 s90, s94, 8")
A("s_add_u32 s93, s93, s90")
A(f"s_add_u32 s93, s93, {W_H3A}")
A(f"v_add_u32 v11, {L_P}, v6")
for i in range(4):
    A(f"v_xor_b32 v{208+i}, s83, v{252+i}")
A("s_barrier")
A("s_waitcnt lgkmcnt(0)")
A("s_barrier")
A.stamp(2, 4)
for ks in range(4):
    A(f"ds_read_b128 v[{144+4*ks}:{147+4*ks}], v11 offset:{1024*ks}")
for ks in range(4):
    A(f"s_waitcnt lgkmcnt({3-ks})")
    for t in range(8):
        c = "0" if ks == 0 else f"v[{160+4*t}:{163+4*t}]"
        bb = 16 + (ks * 8 + t) * 4
        A(f"v_mfma_f32_16x16x32_bf16 v[{160+4*t}:{163+4*t}], v[{144+4*ks}:{147+4*ks}], v[{bb}:{bb+3}], {c}")
A("s_nop 5")
A.stamp(3, 4)
for r_ in range(4):
    for i in range(4):
        A(f"v_perm_b32 v{16+4*r_+i}, v{164+8*i+r_}, v{160+8*i+r_}, s{sPHI}")
    for i in range(4):
        A(f"v_bfi_b32 v{16+4*r_+i}, s83, v{208+i}, v{16+4*r_+i}")
    A(f"buffer_store_dwordx4 v[{16+4*r_}:{19+4*r_}], v13, {srd(S_WS)}, s93 offen sc1")
    if r_ < 3:
        A("s_add_u32 s93, s93, 32768")
A.stamp(8)
if opt.bs:
    A("s_barrier")
A("s_barrier")
A("s_branch L_cbd")

L_CB = L_OS
L_CM = L_OS + 8192
A.lab("L_cbK")
A("v_lshrrev_b32 v13, 5, v0")
A("v_and_b32 v9, 0x1ff, v6")
A("v_lshl_add_u32 v9, v13, 10, v9")
A("s_lshl_b32 s96, s79, 5")
A(f"s_add_u32 s96, s96, s{sH}")
A("s_lshl_b32 s96, s96, 15")
A(f"s_lshl_b32 s90, s{sW}, 13")
A("s_add_u32 s96, s96, s90")
A(f"s_and_b32 s90, s{sR}, 16")
A("s_lshl_b32 s90, s90, 5")
A("s_add_u32 s96, s96, s90")
A(f"s_add_u32 s96, s96, {W_H3A}")
A("s_add_u32 s92, s96, 4096")
A("v_lshl_add_u32 v12, v4, 1, v13")
A("v_lshlrev_b32 v12, 8, v12")
A("s_lshl_b32 s86, s79, 5")
A(f"s_and_b32 s90, s{sH}, 16")
A("s_add_u32 s86, s86, s90")
A("s_lshl_b32 s86, s86, 9")
A(f"s_lshl_b32 s90, s{sW}, 11")
A("s_add_u32 s86, s86, s90")
A(f"s_and_b32 s90, s{sH}, 15")
A("s_lshl_b32 s90, s90, 4")
A("s_add_u32 s86, s86, s90")
A(f"s_add_u32 s86, s86, {W_STX}")
A(f"s_lshl_b32 s90, s{sW}, 10")
A(f"s_add_u32 s90, s90, {L_CB}")
A("v_add_u32 v11, s90, v6")
A(f"s_lshl_b32 s90, s{sW}, 3")
A(f"s_add_u32 s90, s90, {L_CM}")
A("v_mov_b32 v8, s90")
A(f"v_add_u32 v65, {L_CB}, v6")
A(f"v_mov_b32 v66, {L_CM}")
A(f"s_lshl_b32 s93, s{sH}, 2")
A("s_add_u32 s93, s93, s79")
A("s_lshl_b32 s93, s93, 11")
A(f"s_and_b32 s90, s{sR}, 16")
A("s_lshl_b32 s90, s90, 6")
A("s_add_u32 s93, s93, s90")
A(f"s_add_u32 s93, s93, {W_H3B}")
for i in range(8):
    A(f"v_mov_b32 v{48+i}, 0")
if opt.bs:
    A("s_barrier")
A.stamp(6, 4)
execmask(0x0000000F0000000F)
poll([f"buffer_load_dwordx4 v[16:19], v12, {srd(S_WS)}, s86 offen"], [18], sleep=opt.ssleep)
execall()
A.stamp(9, 4)
if opt.bdelay:
    A(f"s_sleep {opt.bdelay}")
bulk = [f"buffer_load_dwordx4 v[{32+4*i}:{35+4*i}], v9, {srd(S_WS)}, {'s96' if i < 2 else 's92'} offen offset:{2048*(i&1)} sc1" for i in range(4)]
for i in bulk:
    A(i)
A.stamp(3, 0)


def all8(op, r_, t):
    for m in ("quad_perm:[1,0,3,2]", "quad_perm:[2,3,0,1]"):
        A("s_nop 1")
        A(f"{op}_dpp v{r_}, v{r_}, v{r_} {m} {DPPM}")
    A(f"v_mov_b32 v{t}, v{r_}")
    A("s_nop 1")
    A(f"v_permlane32_swap_b32 v{r_}, v{t}")
    A("s_nop 0")
    A(f"{op} v{r_}, v{r_}, v{t}")


A("v_mov_b32 v20, v16")
all8("v_max_f32", 20, 26)
A("v_sub_f32 v16, v16, v20")
A("v_exp_f32 v16, v16")
A("s_nop 0")
A("v_mul_f32 v21, v16, v17")
all8("v_add_f32", 21, 26)
A("s_mov_b64 exec, 1")
A("ds_write_b64 v8, v[20:21]")
execall()
A("v_mov_b32 v17, v16")
A("s_nop 1")
A("v_permlane16_swap_b32 v16, v17")
A("s_nop 1")
for i in range(4):
    A(f"v_mov_b32_dpp v{24+2*i}, v16 row_newbcast:{i} {DPPM}")


def take(i, lf):
    w_ = 32 + 4 * i
    for d in range(4):
        A(f"v_xor_b32 v{w_+d}, v{w_+d}, v{252+d}")
    A(f"v_bitop3_b32 v64, v{w_}, v{w_+1}, s83 bitop3:0x80")
    A(f"v_bitop3_b32 v64, v64, v{w_+2}, v{w_+3} bitop3:0x80")
    A("v_cmp_ne_u32 vcc, s83, v64")
    for d in range(4):
        unpack(56 + 2 * d, 57 + 2 * d, w_ + d)
    A(f"s_cbranch_vccnz {lf}")
    for d in range(4):
        A(f"v_pk_fma_f32 v[{48+2*d}:{49+2*d}], v[{56+2*d}:{57+2*d}], v[{24+2*i}:{25+2*i}], v[{48+2*d}:{49+2*d}] op_sel_hi:[1,0,1]")
    A(f"s_bitset0_b32 s94, {i}")
    A.lab(lf)


A("s_mov_b32 s94, 15")
for i in range(4):
    A(f"s_waitcnt vmcnt({3-i})")
    take(i, A.newlab("Ltk"))
A("s_cmp_eq_u32 s94, 0")
A("s_cbranch_scc1 L_bkx")
A.lab("L_bk0")
for i in range(4):
    l = A.newlab("Lrl")
    A(f"s_bitcmp1_b32 s94, {i}")
    A(f"s_cbranch_scc0 {l}")
    A(bulk[i])
    A.lab(l)
A(f"s_add_u32 s{sCNT}, s{sCNT}, 0x10000")
A(f"s_cmp_gt_u32 s{sCNT}, 0x7fff0000")
A("s_cbranch_scc1 L_end")
A("s_waitcnt vmcnt(0)")
for i in range(4):
    l = A.newlab("Ltk")
    A(f"s_bitcmp1_b32 s94, {i}")
    A(f"s_cbranch_scc0 {l}")
    take(i, l)
A("s_cmp_eq_u32 s94, 0")
A("s_cbranch_scc0 L_bk0")
A.lab("L_bkx")
A.stamp(10, 4)
A(f"s_lshr_b32 s97, s{sCNT}, 16")
A(f"s_and_b32 s{sCNT}, s{sCNT}, 0xffff")
for e in range(4):
    A(f"v_permlane32_swap_b32 v{48+e}, v{52+e}")
A("v_pk_add_f32 v[48:49], v[48:49], v[52:53]")
A("v_pk_add_f32 v[50:51], v[50:51], v[54:55]")
A("ds_write_b128 v11, v[48:51]")
A(f"s_cmp_lg_u32 s{sW}, 1")
A("s_waitcnt lgkmcnt(0)")
A("s_barrier")
A("s_cbranch_scc1 L_cbd")
A("ds_read_b128 v[16:19], v66")
A("ds_read_b128 v[20:23], v66 offset:16")
for i in range(4):
    A(f"ds_read_b128 v[{32+4*i}:{35+4*i}], v65 offset:{1024*i}")
A("s_waitcnt lgkmcnt(4)")
A("v_max3_f32 v24, v16, v18, v20")
A("v_max_f32 v24, v24, v22")
for i in range(4):
    A(f"v_sub_f32 v{16+2*i}, v{16+2*i}, v24")
for i in range(4):
    A(f"v_exp_f32 v{16+2*i}, v{16+2*i}")
A("v_mul_f32 v25, v16, v17")
A("v_fmac_f32 v25, v18, v19")
A("v_fmac_f32 v25, v20, v21")
A("v_fmac_f32 v25, v22, v23")
A("v_rcp_f32 v26, v25")
A("s_waitcnt lgkmcnt(0)")
for i in range(4):
    for hh in range(2):
        x = 32 + 4 * i + 2 * hh
        if i == 0:
            A(f"v_pk_mul_f32 v[{48+2*hh}:{49+2*hh}], v[{x}:{x+1}], v[16:17] op_sel_hi:[1,0]")
        else:
            A(f"v_pk_fma_f32 v[{48+2*hh}:{49+2*hh}], v[{x}:{x+1}], v[{16+2*i}:{17+2*i}], v[{48+2*hh}:{49+2*hh}] op_sel_hi:[1,0,1]")
A("v_pk_mul_f32 v[48:49], v[48:49], v[26:27] op_sel_hi:[1,0]")
A("v_pk_mul_f32 v[50:51], v[50:51], v[26:27] op_sel_hi:[1,0]")
A("v_cvt_pk_bf16_f32 v236, v48, v49")
A("v_cvt_pk_bf16_f32 v237, v50, v51")
store_local([f"buffer_store_dwordx4 v[236:239], v6, {srd(S_WS)}, s93 offen"])
A.stamp(5, 0)
A.stamp(11, 4)
A.lab("L_cbd")
A(f"s_cmp_lt_u32 s{sR}, 16")
A("s_cbranch_scc1 L_F")
A("s_waitcnt vmcnt(4)")

A("v_lshlrev_b32 v12, 11, v3")
A("v_lshl_add_u32 v12, v1, 5, v12")
A("v_and_b32 v13, 1, v0")
A("v_lshl_add_u32 v12, v13, 4, v12")
A(f"s_lshl_b32 s95, s{sH}, 13")
A(f"s_and_b32 s90, s{sR}, 8")
A("s_lshl_b32 s90, s90, 7")
A("s_add_u32 s95, s95, s90")
A(f"s_lshl_b32 s90, s{sW}, 7")
A("s_add_u32 s95, s95, s90")
A(f"s_add_u32 s95, s95, {W_H3B}")
A("v_and_b32 v14, 7, v0")
A("v_lshlrev_b32 v14, 5, v14")
A("v_lshl_add_u32 v14, v1, 8, v14")
A(f"s_lshl_b32 s90, s{sW}, 10")
A(f"s_add_u32 s90, s90, {L_RED}")
A("v_add_u32 v14, s90, v14")
A("v_lshlrev_b32 v15, 11, v1")
A("v_lshl_add_u32 v15, v2, 4, v15")
A(f"s_lshl_b32 s96, s{sX}, 14")
A(f"s_and_b32 s90, s{sR}, 8")
A("s_lshl_b32 s90, s90, 10")
A("s_add_u32 s96, s96, s90")
A(f"s_and_b32 s90, s{sH}, 3")
A("s_lshl_b32 s90, s90, 9")
A("s_add_u32 s96, s96, s90")
A(f"s_and_b32 s90, s{sR}, 4")
A("s_lshl_b32 s90, s90, 6")
A("s_add_u32 s96, s96, s90")
A(f"s_add_u32 s96, s96, {W_H4}")
transpose(80, [212, 216, 220, 224], 4)
poll([f"buffer_load_dwordx4 v[208:211], v12, {srd(S_WS)}, s95 offen"], [210])
A.stamp(9)
for jj in range(8):
    d = 144 + 4 * jj
    A(f"v_mfma_f32_16x16x16_bf16 v[{d}:{d+3}], v[208:209], v[{80+2*jj}:{81+2*jj}], 0")
A("s_nop 1")
for jj in range(8):
    d = 144 + 4 * jj
    A(f"v_add_f32_dpp v{216+jj}, v{d+1}, v{d} row_shl:8 {DPPM}")
execmask(M_N8)
A("ds_write_b128 v14, v[216:219]")
A("ds_write_b128 v14, v[220:223] offset:16")
execall()
A("s_waitcnt lgkmcnt(0)")
A("s_barrier")
A(f"s_cmp_lt_u32 s{sW}, 2")
A("s_cbranch_scc1 L_red")
A(f"s_cmp_lt_u32 s{sW}, 4")
A("s_cbranch_scc1 L_s8")
A(f"s_cmp_lg_u32 s{sW}, 7")
A("s_cbranch_scc1 L_clean")
for s_ in range(8):
    A(f"ds_read_b128 v[{144+4*s_}:{147+4*s_}], v6 offset:{L_RED + 1024*s_}")
sum_b128(8, 144, True)
A("v_cvt_pk_bf16_f32 v236, v144, v145")
A("v_cvt_pk_bf16_f32 v237, v146, v147")
store_local([f"buffer_store_dwordx4 v[236:239], v15, {srd(S_WS)}, s96 offen"])
A.stamp(10)
A("s_branch L_fin")

A.lab("L_clean")
A("s_branch L_fin")

A.lab("L_red")
A(f"s_cmp_lt_u32 s{sR}, 26")
A("s_cbranch_scc0 L_fin")
A(f"s_and_b32 s94, s{sR}, 15")
A("v_and_b32 v12, 1, v1")
A("v_mul_u32_u24 v13, 1280, v12")
A("v_lshl_add_u32 v13, v2, 3, v13")
A("v_lshrrev_b32 v15, 5, v0")
A("v_lshl_add_u32 v13, v15, 2, v13")
A(f"s_mul_i32 s90, s{sW}, 2560")
A("s_lshl_b32 s93, s94, 7")
A("s_add_u32 s90, s90, s93")
A(f"buffer_load_dword v200, v13, {srd(S_X)}, s90 offen")
A("v_mul_u32_u24 v13, 2560, v12")
A("v_lshl_add_u32 v13, v2, 4, v13")
A(f"s_mul_i32 s96, s{sX}, 10240")
A(f"s_mul_i32 s90, s{sW}, 5120")
A("s_add_u32 s96, s96, s90")
A("s_lshl_b32 s90, s94, 8")
A("s_add_u32 s96, s96, s90")
A(f"s_add_u32 s96, s96, {W_H5C}")
A("v_and_b32 v14, 0x1ff, v6")
A("v_lshl_add_u32 v14, v15, 10, v14")
A("s_lshl_b32 s95, s94, 13")
A(f"s_lshl_b32 s90, s{sW}, 9")
A("s_add_u32 s95, s95, s90")
A(f"s_add_u32 s95, s95, {W_H5B}")
A("s_add_u32 s93, s95, 4096")
poll([f"buffer_load_dwordx4 v[{144+4*i}:{147+4*i}], v14, {srd(S_WS)}, {'s95' if i < 2 else 's93'} offen offset:{2048*(i&1)}" for i in range(4)],
     [146 + 4 * i for i in range(4)])
for i in range(4):
    unpack(160 + 4 * i, 161 + 4 * i, 144 + 4 * i)
    unpack(162 + 4 * i, 163 + 4 * i, 145 + 4 * i)
unpack(202, 203, 200)
sum_b128(4, 160)
A("s_nop 1")
A("v_permlane32_swap_b32 v160, v162")
A("v_permlane32_swap_b32 v161, v163")
A("s_nop 0")
A("v_pk_add_f32 v[160:161], v[160:161], v[162:163]")
A("v_pk_add_f32 v[160:161], v[160:161], v[202:203]")
A("v_cvt_pk_bf16_f32 v236, v160, v161")
A("v_cvt_pk_bf16_f32 v237, v160, v161")
A("s_nop 1")
A("v_permlane32_swap_b32 v236, v237")
execmask(0xFFFFFFFF)
store_local([f"buffer_store_dwordx4 v[236:239], v13, {srd(S_WS)}, s96 offen"])
execall()
A.stamp(11)
A("s_branch L_fin")

A.lab("L_s8")
A(f"s_sub_u32 s94, 31, s{sR}")
A("s_lshl_b32 s94, s94, 3")
A(f"s_add_u32 s94, s94, s{sX}")
A(f"s_and_b32 s90, s{sW}, 1")
A("s_lshl_b32 s90, s90, 7")
A("s_add_u32 s94, s94, s90")
A("s_cmp_lt_u32 s94, 160")
A("s_cbranch_scc0 L_fin")
A("s_mul_i32 s90, s94, 1639")
A("s_lshr_b32 s90, s90, 16")
A("s_mul_i32 s93, s90, 40")
A("s_sub_u32 s93, s94, s93")
A("s_lshr_b32 s95, s93, 3")
A("s_lshl_b32 s95, s95, 5")
A("s_bfe_u32 s96, s93, 0x10002")
A("s_add_u32 s95, s95, s96")
A("s_and_b32 s96, s93, 3")
A("s_lshl_b32 s96, s96, 3")
A("s_add_u32 s95, s95, s96")
A("v_mul_u32_u24 v12, 10240, v5")
A("v_lshl_add_u32 v12, v4, 4, v12")
A("s_lshl_b32 s78, s94, 6")
A(f"s_add_u32 s78, s78, {W_H6}")
A(f"s_add_u32 s79, s78, {16*10240}")
A(f"s_add_u32 s80, s78, {32*10240}")
A(f"s_add_u32 s81, s78, {48*10240}")
A("v_add_u32 v13, s81, v12")
A(f"s_lshl_b32 s82, s{sX}, 2")
A("s_add_u32 s82, s82, s90")
A("s_mul_i32 s82, s82, 160")
A("s_add_u32 s82, s82, s95")
A("s_lshl_b32 s82, s82, 4")
A(f"s_add_u32 s82, s82, {W_H5C}")
A("v_lshlrev_b32 v14, 5, v4")
A("v_add_u32 v14, s82, v14")
A("v_cmp_gt_u32 vcc, 6, v5")
A("s_nop 1")
A("v_cndmask_b32 v13, v14, v13, vcc")
A("s_mul_i32 s83, s90, 1280")
A("s_lshl_b32 s84, s95, 3")
A("s_add_u32 s83, s83, s84")
A("v_lshlrev_b32 v15, 4, v4")
A("v_lshl_add_u32 v15, v1, 1, v15")
s8l = [f"buffer_load_dwordx4 v[144:147], v12, {srd(S_WS)}, s78 offen",
       f"buffer_load_dwordx4 v[148:151], v12, {srd(S_WS)}, s79 offen",
       f"buffer_load_dwordx4 v[152:155], v12, {srd(S_WS)}, s80 offen",
       f"buffer_load_dwordx4 v[156:159], v13, {srd(S_WS)}, 0 offen"]
for i in s8l:
    A(i + " sc1")
poll([f"buffer_load_dwordx4 v[164:167], v14, {srd(S_WS)}, 0 offen"], [166], sleep=2)
poll(s8l, [146, 150, 154, 158])
A("v_cmp_gt_u32 vcc, 7, v5")
A("s_nop 1")
A("v_cndmask_b32 v156, 0, v156, vcc")
A("v_cndmask_b32 v157, 0, v157, vcc")
for i in range(4):
    unpack(160 + 4 * i, 161 + 4 * i, 144 + 4 * i)
    unpack(162 + 4 * i, 163 + 4 * i, 145 + 4 * i)
sum_b128(4, 160)
A("s_nop 1")
A("v_permlane32_swap_b32 v160, v162")
A("v_permlane32_swap_b32 v161, v163")
A("s_nop 0")
A("v_pk_add_f32 v[160:161], v[160:161], v[162:163]")
A("s_nop 1")
A("v_permlane16_swap_b32 v160, v161")
A("s_nop 0")
A("v_add_f32 v160, v160, v161")
A("s_nop 1")
A(f"v_add_f32_dpp v160, v160, v160 row_ror:8 {DPPM}")
A("s_nop 1")
A(f"v_add_f32_dpp v160, v160, v160 row_ror:4 {DPPM}")
A("s_nop 0")
A("v_cvt_pk_bf16_f32 v160, v160, v160")
execmask(M_N4)
A(f"buffer_store_short v160, v15, {srd(S_OUT)}, s83 offen")
execall()
A("s_cmp_lg_u32 s94, 0")
A("s_cbranch_scc1 L_s8x")
A("v_mov_b32 v12, 0")
A("s_mov_b64 exec, 1")
A(f"buffer_store_dwordx2 v[238:239], v12, {srd(S_WS)}, 0 offen sc1")
execall()
A.lab("L_s8x")
if opt.padto:
    A.lab("L_pad")
    A("s_memrealtime s[6:7]")
    A("s_waitcnt lgkmcnt(0)")
    A("s_sub_u32 s6, s6, s4")
    A(f"s_cmp_lt_u32 s6, {opt.padto*100}")
    A("s_cbranch_scc1 L_pad")
A.stamp(11)
A("s_branch L_fin")

def w1_loads():
    A("v_mul_u32_u24 v15, 13824, v5")
    A("v_lshl_add_u32 v15, v4, 4, v15")
    A(f"s_mul_i32 s93, s{sW}, {128*3456}")
    A("s_lshl_b32 s90, s94, 6")
    A("s_add_u32 s93, s93, s90")
    for i in range(8):
        A(f"s_add_u32 s90, s93, {((i & 3) + 64*(i >> 2))*3456}")
        A(f"buffer_load_dwordx4 v[{16+4*i}:{19+4*i}], v15, {srd(S_W1)}, s90 offen {opt.pt}")


A.lab("L_F")
if opt.fwait:
    A("s_waitcnt vmcnt(0)")
    A.stamp(3, 5)
A("s_barrier")
if opt.fwait > 1:
    A(f"s_sleep {opt.fwait}")
A("s_waitcnt vmcnt(4)")
A("s_mov_b32 s94, s100")
A("s_mov_b32 s97, s101")
A(f"s_cmp_lt_u32 s{sR}, 10")
A("s_cbranch_scc0 L_F1")
if opt.d1:
    A(f"s_sleep {opt.d1}")
if not opt.f2:
    A("s_add_u32 s90, s91, 5120")
    for i in range(4):
        A(f"buffer_load_dwordx4 v[{192+4*i}:{195+4*i}], v244, {srd(S_WO)}, s90 offen offset:{1280*i} {opt.po}")
A(f"s_cmp_eq_u32 s{sR}, 9")
A("s_cbranch_scc1 L_r9")
A(f"s_lshl_b32 s90, s{sW}, 3")
A(f"s_add_u32 s90, s90, s{sR}")
A(f"s_cmp_lt_u32 s{sR}, 8")
A("s_cselect_b32 s90, s90, 99")
A("s_cmp_lt_u32 s90, 40")
A("s_cbranch_scc0 L_s5")
A(f"s_mul_i32 s92, s{sX}, 7")
A("s_add_u32 s92, s92, 6")
A("s_lshl_b32 s92, s92, 6")
A("v_mul_u32_u24 v15, 3456, v5")
A("v_lshl_add_u32 v15, v4, 4, v15")
A(f"s_mul_i32 s90, s90, {16*3456}")
A("s_add_u32 s90, s90, s92")
A(f"buffer_load_dwordx4 v[48:51], v15, {srd(S_W1)}, s90 offen")
A("s_branch L_s5")
A.lab("L_r9")
A(f"s_mul_i32 s91, s97, {32*1280}")
A(f"s_lshl_b32 s90, s{sW}, 8")
A("s_add_u32 s91, s91, s90")
A("s_add_u32 s90, s91, 5120")
for i in range(8):
    A(f"buffer_load_dwordx4 v[{48+4*i}:{51+4*i}], v247, {srd(S_W2)}, {'s91' if i < 4 else 's90'} offen offset:{1280*(i&3)} {opt.po}")
A.lab("L_s5")
transpose(112, [212, 216, 220, 224, 192, 196, 200, 204], 4)
A("v_lshl_add_u32 v12, v3, 11, v7")
A(f"s_lshl_b32 s95, s{sX}, 14")
A(f"s_lshl_b32 s90, s{sW}, 8")
A("s_add_u32 s95, s95, s90")
A(f"s_add_u32 s95, s95, {W_H4}")
A("s_add_u32 s96, s95, 8192")
A("v_and_b32 v14, 7, v0")
A("v_lshlrev_b32 v14, 5, v14")
A("v_lshl_add_u32 v14, v1, 8, v14")
A(f"s_lshl_b32 s90, s{sW}, 10")
A(f"s_add_u32 s90, s90, {L_RED}")
A("v_add_u32 v14, s90, v14")
poll([f"buffer_load_dwordx4 v[208:211], v12, {srd(S_WS)}, s95 offen",
      f"buffer_load_dwordx4 v[212:215], v12, {srd(S_WS)}, s96 offen"], [210, 214], sleep=1)
A.stamp(9, 0)
unpack(216, 217, 208); unpack(218, 219, 209); unpack(220, 221, 212); unpack(222, 223, 213)
A("v_pk_add_f32 v[216:217], v[216:217], v[220:221]")
A("v_pk_add_f32 v[218:219], v[218:219], v[222:223]")
A("v_cvt_pk_bf16_f32 v208, v216, v217")
A("v_cvt_pk_bf16_f32 v209, v218, v219")
A("s_nop 1")
A(f"v_mov_b32_dpp v212, v208 quad_perm:[0,2,0,2] {DPPM}")
A(f"v_mov_b32_dpp v213, v209 quad_perm:[0,2,0,2] {DPPM}")
A(f"v_mov_b32_dpp v214, v208 quad_perm:[1,3,1,3] {DPPM}")
A(f"v_mov_b32_dpp v215, v209 quad_perm:[1,3,1,3] {DPPM}")
A("s_nop 1")
for jj in range(8):
    d = 144 + 4 * jj
    A(f"v_mfma_f32_16x16x32_bf16 v[{d}:{d+3}], v[212:215], v[{112+4*jj}:{115+4*jj}], 0")
A("s_nop 1")
for jj in range(8):
    d = 144 + 4 * jj
    A(f"v_add_f32_dpp v{216+jj}, v{d+1}, v{d} row_shl:8 {DPPM}")
execmask(M_N8)
A("ds_write_b128 v14, v[216:219]")
A("ds_write_b128 v14, v[220:223] offset:16")
execall()
A("s_waitcnt lgkmcnt(0)")
A("s_barrier")
A(f"s_cmp_lg_u32 s{sW}, 7")
A("s_cbranch_scc1 L_F1")
for s in range(8):
    A(f"ds_read_b128 v[{144+4*s}:{147+4*s}], v6 offset:{L_RED + 1024*s}")
A(f"s_lshl_b32 s95, s{sR}, 3")
A(f"s_add_u32 s95, s95, s{sX}")
A("s_lshl_b32 s95, s95, 10")
A(f"s_add_u32 s95, s95, {W_H5B}")
sum_b128(8, 144, True)
A("v_cvt_pk_bf16_f32 v236, v144, v145")
A("v_cvt_pk_bf16_f32 v237, v146, v147")
A(f"buffer_store_dwordx4 v[236:239], v6, {srd(S_WS)}, s95 offen sc1")
A.stamp(11)
A("s_branch L_fin")

A.lab("L_F1")
A("s_cmp_lt_u32 s97, 54")
A("s_cbranch_scc0 L_fin")
A(f"s_cmp_lt_u32 s{sR}, 10")
A("s_cbranch_scc0 L_F1a")
A("s_barrier")
w1_loads()
transpose(112, [48 + 4 * i for i in range(8)], 4)
A("s_branch L_F1b")
A.lab("L_F1a")
w1_loads()
A("s_waitcnt vmcnt(8)")
transpose(112, [212, 216, 220, 224, 192, 196, 200, 204], 4)
A.lab("L_F1b")
A("s_waitcnt vmcnt(0)")
A.stamp(2, 0)
transpose(80, [16 + 4 * i for i in range(8)], 4)
for i in range(4):
    A(f"v_mov_b32 v{48+i}, 0x3f803f80")
A("s_nop 1")
for jj in range(8):
    A(f"v_mfma_f32_16x16x32_bf16 v[{16+4*jj}:{19+4*jj}], v[48:51], v[{80+4*jj}:{83+4*jj}], 0")
A("s_nop 1")
dppsum([56 + jj for jj in range(8)], [16 + 4 * jj for jj in range(8)])
A("v_lshlrev_b32 v14, 5, v4")
A(f"s_lshl_b32 s90, s{sW}, 7")
A(f"s_add_u32 s90, s90, {L_CS}")
A("v_add_u32 v14, s90, v14")
A("s_mov_b64 exec, 15")
A("ds_write_b128 v14, v[56:59]")
A("ds_write_b128 v14, v[60:63] offset:16")
execall()
A("s_waitcnt lgkmcnt(0)")
A("s_barrier")
A.lab("L_s67")
A("v_lshrrev_b32 v14, 1, v7")
for s in range(5):
    A(f"ds_read_b64 v[{16+2*s}:{17+2*s}], v14 offset:{L_CS + 128*s}")
A("v_mul_u32_u24 v12, 2560, v3")
A("v_add_u32 v12, v12, v7")
A(f"s_mul_i32 s95, s{sX}, 10240")
A(f"s_lshl_b32 s90, s{sW}, 9")
A("s_add_u32 s95, s95, s90")
A(f"s_add_u32 s95, s95, {W_H5C}")
A("v_lshlrev_b32 v13, 1, v7")
A(f"s_add_u32 s90, s90, {L_RED2}")
A("v_add_u32 v13, s90, v13")
A("v_lshlrev_b32 v10, 3, v1")
A(f"s_lshl_b32 s90, s{sW}, 5")
A(f"s_add_u32 s90, s90, {L_RS}")
A("v_add_u32 v10, s90, v10")
A("v_lshl_add_u32 v14, v3, 7, v14")
A("v_lshlrev_b32 v11, 3, v3")
A("v_mul_u32_u24 v9, 2560, v1")
A("v_lshl_add_u32 v9, v2, 4, v9")
A("s_mul_i32 s96, s94, 10240")
A(f"s_lshl_b32 s90, s{sW}, 9")
A("s_add_u32 s96, s96, s90")
A(f"s_add_u32 s96, s96, {W_H6}")
A("s_waitcnt lgkmcnt(0)")
for s in range(1, 5):
    A(f"v_pk_add_f32 v[16:17], v[16:17], v[{16+2*s}:{17+2*s}]")
poll([f"buffer_load_dwordx4 v[208:211], v12, {srd(S_WS)}, s95 offen",
      f"buffer_load_dwordx4 v[212:215], v12, {srd(S_WS)}, s95 offen offset:256"], [210, 214], sleep=1)
A.stamp(10, 0)
A("v_mov_b32 v210, v212")
A("v_mov_b32 v211, v213")
A("s_nop 1")
A("v_mfma_f32_16x16x32_bf16 v[184:187], v[208:211], v[48:51], 0")
A("v_mfma_f32_16x16x32_bf16 v[188:191], v[208:211], v[208:211], 0")
for jj in range(8):
    d = 144 + 4 * jj
    A(f"v_mfma_f32_16x16x32_bf16 v[{d}:{d+3}], v[208:211], v[{80+4*jj}:{83+4*jj}], 0")
A("v_add_f32 v192, v184, v185")
A(f"v_add_f32_dpp v193, v189, v188 row_shl:1 {DPPM}")
A("v_add_f32 v194, v186, v187")
A("s_nop 0")
A(f"v_add_f32_dpp v193, v190, v193 row_shl:2 {DPPM}")
A("v_add_f32 v192, v192, v194")
A("s_nop 0")
A(f"v_add_f32_dpp v193, v191, v193 row_shl:3 {DPPM}")
execmask(0x1000010000100001)
A("ds_write_b64 v10, v[192:193]")
execall()
dppsum([176 + i for i in range(8)], [144 + 4 * i for i in range(8)])
execmask(M_N4)
A("ds_write_b128 v13, v[176:179]")
A("ds_write_b128 v13, v[180:183] offset:16")
execall()
A("s_waitcnt lgkmcnt(0)")
A("s_barrier")
for s in range(5):
    A(f"ds_read_b64 v[{160+2*s}:{161+2*s}], v11 offset:{L_RS + 32*s}")
for s in range(5):
    A(f"ds_read_b64 v[{144+2*s}:{145+2*s}], v14 offset:{L_RED2 + 512*s}")
A("s_waitcnt lgkmcnt(5)")
for s in range(1, 5):
    A(f"v_pk_add_f32 v[160:161], v[160:161], v[{160+2*s}:{161+2*s}]")
A(f"v_mul_f32 v160, {f32(1/640)}, v160")
A(f"v_mul_f32 v161, {f32(1/640)}, v161")
A("v_fma_f32 v161, -v160, v160, v161")
A("v_max_f32 v161, 0, v161")
A(f"v_add_f32 v161, {f32(1e-5)}, v161")
A("v_rsq_f32 v161, v161")
A("s_waitcnt lgkmcnt(0)")
for s in range(1, 5):
    A(f"v_pk_add_f32 v[144:145], v[144:145], v[{144+2*s}:{145+2*s}]")
A("v_fma_f32 v144, -v160, v16, v144")
A("v_fma_f32 v145, -v160, v17, v145")
A("v_mul_f32 v144, v144, v161")
A("v_mul_f32 v145, v145, v161")
A(f"v_mul_f32 v146, {f32(-math.log2(math.e))}, v144")
A(f"v_mul_f32 v147, {f32(-math.log2(math.e))}, v145")
A("v_exp_f32 v146, v146")
A("v_exp_f32 v147, v147")
A("s_nop 0")
A("v_add_f32 v146, 1.0, v146")
A("v_add_f32 v147, 1.0, v147")
A("v_rcp_f32 v146, v146")
A("v_rcp_f32 v147, v147")
A("s_nop 0")
A("v_mul_f32 v144, v144, v146")
A("v_mul_f32 v145, v145, v147")
A("v_cvt_pk_bf16_f32 v148, v144, v145")
A("s_nop 1")
for i in range(4):
    A(f"v_mov_b32_dpp v{208+i}, v148 quad_perm:[{i},{i},{i},{i}] {DPPM}")
A("s_nop 1")
for jj in range(8):
    d = 144 + 4 * jj
    A(f"v_mfma_f32_16x16x32_bf16 v[{d}:{d+3}], v[208:211], v[{112+4*jj}:{115+4*jj}], 0")
A("s_nop 3")
A("v_cvt_pk_bf16_f32 v232, v144, v148")
A("v_cvt_pk_bf16_f32 v233, v152, v156")
A(f"buffer_store_dwordx4 v[232:235], v9, {srd(S_WS)}, s96 offen sc1")
A("s_nop 1")
A("v_cvt_pk_bf16_f32 v236, v160, v164")
A("v_cvt_pk_bf16_f32 v237, v168, v172")
A(f"buffer_store_dwordx4 v[236:239], v9, {srd(S_WS)}, s96 offen offset:256 sc1")
A.stamp(11)

A.lab("L_fin")
if opt.dbgstamps:
    A("s_waitcnt vmcnt(0) lgkmcnt(0)")
    A("s_load_dwordx2 s[92:93], s[0:1], 80")
    A("s_mov_b32 s94, 256")
    A("s_mov_b32 s95, 0x00020000")
    A("v_mov_b32 v8, 0")
    A("s_waitcnt lgkmcnt(0)")
    A("s_mov_b64 exec, 1")
    A("s_not_b32 s90, s4")
    A("v_mov_b32 v9, s90")
    A("buffer_atomic_umax v9, v8, s[92:95], 0 offen offset:60")
    A(f"s_cmp_lt_u32 s{sR}, 16")
    for i in range(12):
        A(f"v_mov_b32 v9, s{4+2*i}")
        if i in (3, 4, 9):
            o2 = {3: 48, 4: 52, 9: 56}[i]
            A(f"s_cselect_b32 s91, {4*i}, {o2}")
            A(f"buffer_atomic_umax v9, v8, s[92:95], s91 offen")
        else:
            A(f"buffer_atomic_umax v9, v8, s[92:95], 0 offen offset:{4*i}")
    A("s_branch L_end")
if opt.stamps:
    A("s_waitcnt vmcnt(0) lgkmcnt(0)")
    A(f"s_lshl_b32 s90, s2, 3")
    A(f"s_add_u32 s90, s90, s{sW}")
    A("s_lshl_b32 s90, s90, 6")
    A(f"s_add_u32 s90, s90, {W_STAMP}")
    A("v_mov_b32 v8, 0")
    A("s_mov_b64 exec, 1")
    for i in range(12):
        A(f"v_mov_b32 v9, s{4+2*i}")
        A(f"buffer_store_dword v9, v8, {srd(S_WS)}, s90 offen offset:{4*i}")
    A(f"v_mov_b32 v9, s{sCNT}")
    A(f"buffer_store_dword v9, v8, {srd(S_WS)}, s90 offen offset:56")
    A(f"v_mov_b32 v9, s{sFAST}")
    A(f"buffer_store_dword v9, v8, {srd(S_WS)}, s90 offen offset:60")
A.lab("L_end")

body = "\n".join(A.l)
if opt.stamps:
    init = "\n".join(f"    s_mov_b32 s{4+2*i}, 0" for i in range(1, 12))
    body = init + "\n" + body
out = HDR + f"""; @launch grid=(256,1,1) block=(512,1,1) lds={LDS_BYTES}
.amdgcn_target "amdgcn-amd-amdhsa--gfx950"
.text
.globl {NAME}_kernel
.p2align 8
.type {NAME}_kernel,@function
{NAME}_kernel:
{body}
    s_endpgm
L_codeend:
.section .rodata,"a"
.p2align 6
.amdhsa_kernel {NAME}_kernel
  .amdhsa_next_free_vgpr 256
  .amdhsa_next_free_sgpr 102
  .amdhsa_accum_offset 256
  .amdhsa_group_segment_fixed_size 0
  .amdhsa_kernarg_size 96
  .amdhsa_user_sgpr_count 2
  .amdhsa_user_sgpr_kernarg_segment_ptr 1
  .amdhsa_system_sgpr_workgroup_id_x 1
.end_amdhsa_kernel
"""
open(opt.o, "w").write(out)
print("wrote", opt.o, "lines", len(A.l), file=sys.stderr)
```

```python
import sys, re, argparse, math, struct

NAME = "sequential_preLN__compressed_kv_cla__dense_activation_silu__decode"
HDR = open(f"cdna_kernels/{NAME}.s.ref").read().split("; Override launch")[0]

ap = argparse.ArgumentParser()
ap.add_argument("-o", default=f"cdna_kernels/{NAME}.s")
ap.add_argument("--stamps", action="store_true")
ap.add_argument("--early", type=int, default=4)
ap.add_argument("--early67", type=int, default=16)
ap.add_argument("--pw", default="sc1")
ap.add_argument("--noh3bt", action="store_true")
ap.add_argument("--earlyA", type=int, default=4)
ap.add_argument("--nocodepf", action="store_true")
ap.add_argument("--nobar2", action="store_true")
ap.add_argument("--nouvpf", action="store_true")
ap.add_argument("--noukpf", action="store_true")
ap.add_argument("--kb0", type=int, default=2)
ap.add_argument("--kb", type=int, default=0)
ap.add_argument("--ka", type=int, default=0)
ap.add_argument("--kf", type=int, default=16)
ap.add_argument("--arev", action="store_true")
ap.add_argument("--grp", type=int, default=0)
ap.add_argument("--ntr0", type=int, default=32)
ap.add_argument("--padto", type=int, default=0)
ap.add_argument("--forceslow", action="store_true")
ap.add_argument("--wb", action="store_true")
ap.add_argument("--dbgstamps", action="store_true")
ap.add_argument("--b1", type=int, default=10)
ap.add_argument("--b2", type=int, default=6)
ap.add_argument("--noclean", action="store_true")
ap.add_argument("--pxor", type=int, default=0)
ap.add_argument("--hxor", type=int, default=0)
ap.add_argument("--uv", default="late")
ap.add_argument("--uvsplit", type=int, default=8)
ap.add_argument("--uvw", type=int, default=4)
ap.add_argument("--ssleep", type=int, default=1)
ap.add_argument("--pc", default="")
ap.add_argument("--pq", default="")
ap.add_argument("--pt", default="")
ap.add_argument("--po", default="nt")
ap.add_argument("--fwait", type=int, default=0)
ap.add_argument("--stearly", action="store_true")
ap.add_argument("--ilv", type=int, default=1)
ap.add_argument("--nv0", type=int, default=12)
ap.add_argument("--vdelay", type=int, default=0)
ap.add_argument("--d1", type=int, default=0)
ap.add_argument("--d2", type=int, default=0)
ap.add_argument("--noearlyF", action="store_true")
ap.add_argument("--stw", type=int, default=3)
ap.add_argument("--bdelay", type=int, default=6)
ap.add_argument("--bs", type=int, default=1)
ap.add_argument("--f2", type=int, default=2)
ap.add_argument("--spec", type=int, default=1)
ap.add_argument("--sd", type=int, default=0)
ap.add_argument("--ackn", type=int, default=-1)
ap.add_argument("--qsleep", type=int, default=0)
opt = ap.parse_args()

W_EPOCH = 0x0
W_XT = 0x1000
W_H1 = 0x10000
W_H1B = 0x380000
W_H2 = 0x100000
W_ST3 = 0x140000
W_STX = 0x150000
W_H4 = 0x160000
W_H5B = 0x180000
W_H5C = 0x1A0000
W_H3B = 0x200000
W_H6 = 0x280000
W_H3A = 0x400000
W_STAMP = 0x800000
WS_SIZE = 0x1000000

ROWB = 1056
L_Q = 128 * ROWB
L_P = L_Q + 16 * ROWB
L_MX = L_P + 4096
L_SM = L_MX + 512
L_QV = L_SM + 512
L_QP = L_Q + 5376
L_XN = L_Q
LDS_BYTES = 163840
L_S1 = 0 * ROWB
L_RED = 0
L_RED2 = 16384
L_RS = 32768
L_CS = 33792
L_OS = 49152
L_UV = 73728

S_X, S_CKV, S_WQ, S_WUK, S_WUV, S_WO, S_W1, S_W2, S_OUT, S_WS = (28, 32, 36, 40, 44, 48, 52, 56, 60, 64)
sX, sR, sW = 68, 69, 70
sFAST = 71
sT0, sT1 = 72, 73
sPLO, sPHI = 74, 75
sCNT = 76
sH = 77
sTL = 3
POLL_LIMIT = 400000


def f32(x):
    return "0x%08x" % struct.unpack("<I", struct.pack("<f", x))[0]


class Asm:
    def __init__(self):
        self.l = []
        self.nlab = 0

    def __call__(self, s):
        m = re.search(r"offset:(\d+)", s)
        if m:
            lim = 65536 if s.lstrip().startswith("ds_") else 4096
            assert int(m.group(1)) < lim, s
        self.l.append("    " + s)

    def lab(self, n):
        self.l.append(n + ":")

    def newlab(self, p="L"):
        self.nlab += 1
        return f"{p}_{self.nlab}"

    def c(self, s):
        self.l.append("    ; " + s)

    def stamp(self, i, grp=None):
        if grp is not None and grp != opt.grp:
            return
        if opt.grp == 4 and grp != 4 and i not in (0, 7, 8):
            return
        if opt.stamps:
            self(f"s_memrealtime s[{4+2*i}:{5+2*i}]")


A = Asm()
DPPM = "row_mask:0xf bank_mask:0xf"


def srd(n):
    return f"s[{n}:{n+3}]"


def execmask(m):
    A(f"s_mov_b32 exec_lo, 0x{m & 0xffffffff:x}")
    A(f"s_mov_b32 exec_hi, 0x{m >> 32:x}")


def execall():
    A("s_mov_b64 exec, -1")


M_N4 = 0x000F000F000F000F
M_N8 = 0x00FF00FF00FF00FF


def store_local(instr):
    l1, l2 = A.newlab("Lsl"), A.newlab("Lsl")
    A(f"s_cmp_eq_u32 s{sFAST}, 0")
    A(f"s_cbranch_scc1 {l1}")
    for i in instr:
        A(i)
    A(f"s_branch {l2}")
    A.lab(l1)
    for i in instr:
        A(i + " sc1")
    A.lab(l2)


def poll(loads, tagregs, sleep=0, alt=None):
    lp = A.newlab("Lpoll")
    if alt:
        sr, sm, so_ = alt
        lf = A.newlab("Lpf")
        A(f"s_mov_b32 {sr}, {sm}")
        A(f"s_branch {lf}")
        A.lab(lp)
        A(f"s_and_b32 s98, s{sCNT}, 31")
        A("s_cmp_eq_u32 s98, 31")
        A(f"s_cselect_b32 {sr}, {so_}, {sm}")
        A.lab(lf)
    elif sleep:
        lf = A.newlab("Lpf")
        A(f"s_branch {lf}")
        A.lab(lp)
        A(f"s_sleep {sleep}")
        A.lab(lf)
    else:
        A.lab(lp)
    for i in loads:
        A(i + " sc1")
    A(f"s_add_u32 s{sCNT}, s{sCNT}, 1")
    A(f"s_cmp_gt_u32 s{sCNT}, {POLL_LIMIT}")
    A("s_cbranch_scc1 L_end")
    A("s_waitcnt vmcnt(0)")
    for k, t in enumerate(tagregs):
        if k == 0:
            A(f"v_cmp_ne_u64 vcc, s[{sT0}:{sT1}], v[{t}:{t+1}]")
        else:
            A(f"v_cmp_ne_u64 s[98:99], s[{sT0}:{sT1}], v[{t}:{t+1}]")
            A("s_or_b64 vcc, vcc, s[98:99]")
    A(f"s_cbranch_vccnz {lp}")


def transpose(dst, rows, ndw, dup=False):
    nr = len(rows) // 2
    st = 2 * nr if dup else nr
    for jj in range(2 * ndw):
        sel = sPHI if jj & 1 else sPLO
        for rep in range(2 if dup else 1):
            for p in range(nr):
                A(f"v_perm_b32 v{dst + jj*st + rep*nr + p}, v{rows[2*p+1] + (jj >> 1)}, v{rows[2*p] + (jj >> 1)}, s{sel}")


def dppsum(dsts, ds):
    assert len(dsts) >= 3
    for step in (1, 2, 3):
        for t, d in zip(dsts, ds):
            src1 = d if step == 1 else t
            A(f"v_add_f32_dpp v{t}, v{d+step}, v{src1} row_shl:{4*step} {DPPM}")


def unpack(dlo, dhi, s):
    A(f"v_lshlrev_b32 v{dlo}, 16, v{s}")
    A(f"v_and_b32 v{dhi}, 0xffff0000, v{s}")


def rowall(op, regs):
    for sh in (8, 4, 2, 1):
        if len(regs) < 3:
            A(f"s_nop {2 - len(regs)}")
        for r_ in regs:
            A(f"{op}_dpp v{r_}, v{r_}, v{r_} row_ror:{sh} {DPPM}")


def sum_b128(n, base, lds=False):
    st = 1
    while st < n:
        for s in range(0, n, 2 * st):
            if lds and st == 1:
                A(f"s_waitcnt lgkmcnt({n - s - 2})")
            x, y = base + 4 * s, base + 4 * (s + st)
            A(f"v_pk_add_f32 v[{x}:{x+1}], v[{x}:{x+1}], v[{y}:{y+1}]")
            A(f"v_pk_add_f32 v[{x+2}:{x+3}], v[{x+2}:{x+3}], v[{y+2}:{y+3}]")
        st *= 2


def tag_setup():
    A("s_waitcnt lgkmcnt(0)")
    A(f"s_mul_i32 s{sT0}, s82, 0x9E3779B1")
    A(f"s_add_u32 s{sT0}, s{sT0}, 0x7F4A7C15")
    A(f"s_mul_i32 s{sT1}, s83, 0x2C9277B5")
    A(f"s_add_u32 s{sT1}, s{sT1}, 0xAC564B05")


def xt_decide(t):
    A("s_getreg_b32 s84, hwreg(HW_REG_XCC_ID)")
    A("s_and_b32 s84, s84, 15")
    A(f"v_cmp_ne_u32 vcc, s84, v{t}")
    A("s_cmp_eq_u64 vcc, 0")
    A(f"s_cselect_b32 s{sFAST}, {0 if opt.forceslow else 1}, 0")


def ckv_dma(rows, k=None):
    for i in rows:
        st_ = 4 if opt.ilv else 1
        A(f"s_add_u32 m0, s81, {i*ROWB*st_}")
        A(f"s_add_u32 s86, s80, {i*1024*st_}")
        if k:
            A(f"s_waitcnt vmcnt({k-1})")
        A(f"buffer_load_dwordx4 v6, {srd(S_CKV)}, s86 offen {opt.pc} lds")


A.stamp(0)
if opt.padto:
    A("s_memrealtime s[4:5]")
A("s_cmp_ge_u32 s2, 256")
A("s_cbranch_scc1 L_end")
ptr = {S_X: 0, S_CKV: 8, S_WQ: 16, S_WUK: 24, S_WUV: 32, S_WO: 40, S_W1: 56, S_W2: 64, S_OUT: 72, S_WS: 88}
size = {S_X: 5120, S_CKV: 16777216, S_WQ: 5242880, S_WUK: 4194304, S_WUV: 4194304, S_WO: 5242880,
        S_W1: 2211840, S_W2: 2211840, S_OUT: 5120, S_WS: WS_SIZE}
for s_ in (S_WQ, S_X, S_CKV, S_WUK, S_WS, S_WUV, S_WO, S_W1, S_W2, S_OUT):
    A(f"s_load_dwordx2 s[{s_}:{s_+1}], s[0:1], {ptr[s_]}")
A(f"s_lshr_b32 s{sR}, s2, 3")
A("v_lshrrev_b32 v1, 6, v0")
A("v_and_b32 v0, 63, v0")
A(f"v_readfirstlane_b32 s{sW}, v1")
A("v_lshlrev_b32 v6, 4, v0")
if not opt.nocodepf:
    A("s_getpc_b64 s[92:93]")
    A.lab("L_pc")
    A(f"s_sub_u32 s92, s92, L_pc-{NAME}_kernel")
    A("s_subb_u32 s93, s93, 0")
    A(f"s_mov_b32 s94, L_codeend-{NAME}_kernel")
    A("s_mov_b32 s95, 0x00020000")
    A(f"s_lshl_b32 s90, s{sR}, 10")
    A(f"s_cmp_lg_u32 s{sW}, 7")
    A("s_cbranch_scc1 L_nopf")
    A("buffer_load_dwordx4 v[252:255], v6, s[92:95], s90 offen")
    A.lab("L_nopf")
for s_ in ptr:
    A(f"s_mov_b32 s{s_+2}, {size[s_]}")
    A(f"s_mov_b32 s{s_+3}, 0x00020000")
A(f"s_and_b32 s{sX}, s2, 7")
A(f"s_mov_b32 s{sPLO}, 0x05040100")
A(f"s_mov_b32 s{sPHI}, 0x07060302")
A(f"s_mov_b32 s{sCNT}, 0")
A(f"s_mov_b32 s{sFAST}, 0")
A(f"s_and_b32 s78, s{sR}, 3")
if opt.hxor:
    A(f"s_xor_b32 s78, s78, {opt.hxor}")
A(f"s_lshl_b32 s{sH}, s{sX}, 2")
A(f"s_add_u32 s{sH}, s{sH}, s78")
A(f"s_lshl_b32 s88, s{sH}, 8")
A("v_lshrrev_b32 v1, 4, v0")
A("v_and_b32 v2, 15, v0")
A("v_bfe_u32 v3, v0, 2, 2")
A("v_and_b32 v4, 3, v0")
A("v_lshrrev_b32 v5, 2, v0")
A("v_lshlrev_b32 v7, 6, v1")
A("v_lshl_add_u32 v7, v4, 4, v7")
A(f"s_bfe_u32 s79, s{sR}, 0x20002")
A("s_lshl_b32 s80, s79, 22")
A(f"s_lshl_b32 s81, s{sH}, 17")
A("s_add_u32 s80, s80, s81")
A(f"s_xor_b32 s{sTL}, s{sW}, 4")
A(f"s_cmp_lt_u32 s{sR}, 16")
A(f"s_cselect_b32 s{sTL}, s{sTL}, s{sW}")
if opt.ilv:
    A(f"s_and_b32 s81, s{sTL}, 4")
    A("s_lshl_b32 s81, s81, 4")
    A(f"s_and_b32 s90, s{sTL}, 3")
    A("s_add_u32 s81, s81, s90")
    A("s_lshl_b32 s90, s81, 10")
    A("s_add_u32 s80, s80, s90")
    A(f"s_mul_i32 s81, s81, {ROWB}")
else:
    A(f"s_lshl_b32 s81, s{sTL}, 14")
    A("s_add_u32 s80, s80, s81")
    A(f"s_mul_i32 s81, s{sTL}, {16*ROWB}")
A("s_mul_i32 s87, s79, 160")
A(f"s_lshl_b32 s90, s{sW}, 5")
A("s_add_u32 s87, s87, s90")
A("s_lshl_b32 s89, s87, 13")
A("s_add_u32 s89, s89, s88")
A("v_lshlrev_b32 v9, 16, v1")
A("v_lshl_add_u32 v9, v2, 4, v9")
A("v_lshl_add_u32 v10, v3, 15, v7")
A("s_lshl_b32 s91, s79, 7")
A(f"s_and_b32 s90, s{sW}, 3")
A("s_lshl_b32 s90, s90, 5")
A("s_add_u32 s91, s91, s90")
A("s_lshl_b32 s91, s91, 13")
A("s_add_u32 s91, s91, s88")
A(f"s_cmp_lt_u32 s{sR}, 16")
A("s_waitcnt lgkmcnt(0)")
A(f"s_load_dwordx2 s[82:83], s[{S_WS}:{S_WS+1}], {W_EPOCH}")
A("s_cbranch_scc0 L_frontB")


def xt_publish(t):
    A("s_getreg_b32 s84, hwreg(HW_REG_XCC_ID)")
    A("s_and_b32 s84, s84, 15")
    A(f"s_lshl_b32 s85, s{sX}, 9")
    A(f"s_add_u32 s85, s85, {W_XT}")
    A(f"s_lshl_b32 s86, s{sR}, 4")
    A(f"v_mov_b32 v{t}, s84")
    A(f"v_mov_b32 v{t+1}, 0")
    A(f"v_mov_b32 v{t+2}, s{sT0}")
    A(f"v_mov_b32 v{t+3}, s{sT1}")
    A("v_mov_b32 v12, s86")
    A("s_mov_b64 exec, 1")
    A(f"buffer_store_dwordx4 v[{t}:{t+3}], v12, {srd(S_WS)}, s85 offen sc1")
    execall()


def uk_loads(ts, dst=None):
    for t in ts:
        A(f"s_add_u32 s90, s91, {(16*(t>>2) + (t&3))*8192}")
        d = dst if dst is not None else 208 + 4 * t
        A(f"buffer_load_dwordx4 v[{d}:{d+3}], v10, {srd(S_WUK)}, s90 offen {opt.pq}")


A(f"s_cmp_gt_u32 s{sW}, 4")
A("s_cbranch_scc1 L_notS1")
RAW = 16


def wq_issue(j):
    for i in range(8):
        d = RAW + 32 * j + 4 * i
        A(f"buffer_load_dwordx4 v[{d}:{d+3}], v9, {srd(S_WQ)}, s89 offen {opt.pq}")
        if i < 7:
            A("s_add_u32 s89, s89, 8192")
        if j == 0 and i == 3:
            A("s_barrier")
    if j < 3:
        A(f"s_add_u32 s89, s89, {(160-7)*8192}")
        A(f"s_sub_u32 s90, s89, {640*8192}")
        A(f"s_cmp_ge_u32 s89, {640*8192}")
        A("s_cselect_b32 s89, s90, s89")


def wq_proc(j):
    rw = RAW + 32 * j
    for jj in range(8):
        sel = sPHI if jj & 1 else sPLO
        o = 176 + 4 * jj
        for p in range(4):
            A(f"v_perm_b32 v{o+p}, v{rw+4*(2*p+1)+(jj>>1)}, v{rw+4*(2*p)+(jj>>1)}, s{sel}")
        if jj >= 1:
            j1 = jj - 1
            c = "0" if j == 0 else f"v[{144+4*j1}:{147+4*j1}]"
            A(f"v_mfma_f32_16x16x32_bf16 v[{144+4*j1}:{147+4*j1}], v[{240+4*j}:{243+4*j}], v[{176+4*j1}:{179+4*j1}], {c}")
    A("s_nop 0")
    c = "0" if j == 0 else "v[172:175]"
    A(f"v_mfma_f32_16x16x32_bf16 v[172:175], v[{240+4*j}:{243+4*j}], v[204:207], {c}")


wq_issue(0)
wq_issue(1)
A("v_mul_u32_u24 v8, 1296, v3")
A("v_lshl_add_u32 v8, v1, 4, v8")
A(f"v_add_u32 v8, {L_XN}, v8")
A("s_barrier")
for j in range(4):
    A("s_lshl_b32 s90, s87, 1")
    A("v_add_u32 v11, s90, v8")
    A(f"ds_read_b128 v[{240+4*j}:{243+4*j}], v11")
    if j < 3:
        A("s_add_u32 s87, s87, 160")
        A("s_sub_u32 s90, s87, 640")
        A("s_cmp_ge_u32 s87, 640")
        A("s_cselect_b32 s87, s90, s87")
wq_issue(2)
tag_setup()
A("s_waitcnt vmcnt(16)")
wq_proc(0)
wq_issue(3)
A("s_waitcnt vmcnt(16)")
wq_proc(1)
uk_loads(range(8))
A("s_barrier")
A("v_mul_u32_u24 v12, 576, v1")
A("v_lshl_add_u32 v12, v2, 5, v12")
A("v_lshl_add_u32 v12, v3, 4, v12")
A(f"s_mul_i32 s90, s{sW}, 2304")
A(f"s_add_u32 s90, s90, {L_QP}")
A("v_add_u32 v12, s90, v12")
A("s_waitcnt vmcnt(16)")
wq_proc(2)
A("v_mul_u32_u24 v11, 576, v4")
A("v_lshl_add_u32 v11, v5, 5, v11")
A("v_lshl_add_u32 v11, v1, 4, v11")
A(f"v_add_u32 v11, {L_QP}, v11")
A("v_bfe_u32 v8, v0, 2, 1")
A("v_bfe_u32 v13, v0, 3, 2")
A("v_lshlrev_b32 v14, 4, v4")
A("v_lshl_add_u32 v14, v8, 2, v14")
A("v_add_u32 v14, v14, v13")
A("v_lshlrev_b32 v14, 2, v14")
A("v_and_b32 v15, 7, v0")
A("v_lshlrev_b32 v15, 4, v15")
A("v_lshl_add_u32 v15, v13, 16, v15")
A("s_waitcnt vmcnt(8)")
A.stamp(1, 0)
wq_proc(3)
A("s_nop 3")
for jj in range(0, 8, 2):
    A(f"ds_write2_b32 v12, v{144+4*jj}, v{148+4*jj} offset0:{jj} offset1:{jj+1}")
A("s_waitcnt lgkmcnt(0)")
A.stamp(2)
A("s_barrier")
A(f"s_cmp_eq_u32 s{sW}, 4")
A("s_cbranch_scc0 L_s2")
ckv_dma(range(0, opt.b2))
A("s_barrier")
ckv_dma(range(opt.b2, 16))
A("s_branch L_qgather")

A.lab("L_notS1")
A(f"s_cmp_eq_u32 s{sW}, 5")
A("s_cbranch_scc0 L_w67")
A("v_mul_u32_u24 v8, 1280, v1")
A("v_lshl_add_u32 v8, v2, 4, v8")
for i in range(5):
    A(f"buffer_load_dwordx4 v[{16+4*i}:{19+4*i}], v8, {srd(S_X)}, 0 offen offset:{256*i}")
A("s_barrier")
A("v_mov_b32 v38, 0x3f803f80")
A("v_mov_b32 v36, 0")
A("v_mov_b32 v37, 0")
A("v_mul_u32_u24 v8, 1296, v1")
A("v_lshl_add_u32 v8, v2, 4, v8")
A(f"v_add_u32 v8, {L_XN}, v8")
A("s_waitcnt vmcnt(0)")
for i in range(20):
    A(f"v_dot2_f32_bf16 v36, v{16+i}, v38, v36")
    A(f"v_dot2_f32_bf16 v37, v{16+i}, v{16+i}, v37")
A("s_nop 1")
rowall("v_add_f32", [36, 37])
A(f"v_mul_f32 v36, {f32(1/640)}, v36")
A(f"v_mul_f32 v37, {f32(1/640)}, v37")
A("v_fma_f32 v37, -v36, v36, v37")
A("v_max_f32 v37, 0, v37")
A(f"v_add_f32 v37, {f32(1e-5)}, v37")
A("v_rsq_f32 v38, v37")
A("s_nop 0")
A("v_mul_f32 v36, -v36, v38")
for i in range(20):
    unpack(40, 41, 16 + i)
    A("v_pk_fma_f32 v[40:41], v[40:41], v[38:39], v[36:37] op_sel_hi:[1,0,0]")
    A(f"v_cvt_pk_bf16_f32 v{16+i}, v40, v41")
for i in range(5):
    A(f"ds_write_b128 v8, v[{16+4*i}:{19+4*i}] offset:{256*i}")
A("s_branch L_w567")
A.lab("L_w67")
A("s_barrier")
A.lab("L_w567")
tag_setup()
A("s_barrier")
A(f"s_cmp_eq_u32 s{sW}, 7")
A("s_cbranch_scc0 L_w56b")
xt_publish(20)
A.lab("L_w56b")
A("s_barrier")
ckv_dma(range(0, opt.b1))
A("s_barrier")
ckv_dma(range(opt.b1, opt.b1 + opt.b2))
A("s_barrier")
ckv_dma(range(opt.b1 + opt.b2, 16))
A("s_branch L_qgather")

A.lab("L_frontB")
A(f"s_and_b32 s92, s{sR}, 15")
A(f"s_lshl_b32 s93, s{sX}, 10")
A(f"s_cmp_gt_u32 s{sW}, 4")
A("s_cbranch_scc1 L_B2")
A("s_mul_i32 s89, s92, 5")
A(f"s_add_u32 s89, s89, s{sW}")
A("s_lshl_b32 s89, s89, 16")
A("s_add_u32 s89, s89, s93")
A("s_add_u32 s89, s89, 32768")
for i in range(4):
    A(f"buffer_load_dwordx4 v[16:19], v6, {srd(S_WQ)}, s89 offen {opt.pq}")
    if i < 3:
        A("s_add_u32 s89, s89, 8192")
A.lab("L_B2")
A("s_lshl_b32 s91, s92, 3")
A(f"s_add_u32 s91, s91, s{sW}")
A("s_lshl_b32 s91, s91, 15")
A("s_add_u32 s91, s91, s93")
A("s_barrier")
for i in range(4):
    A(f"buffer_load_dwordx4 v[16:19], v6, {srd(S_WUK)}, s91 offen {opt.pq}")
    if i < 3:
        A("s_add_u32 s91, s91, 8192")
A.lab("L_B3")
A("s_barrier")
ckv_dma(range(16), opt.kb)
tag_setup()
A(f"s_cmp_lg_u32 s{sW}, 0")
A("s_cbranch_scc1 L_qgather")
xt_publish(16)
A(f"s_lshl_b32 s89, s{sH}, 2")
A("s_add_u32 s89, s89, s79")
A("s_lshl_b32 s89, s89, 11")
A(f"s_add_u32 s89, s89, {W_H3B}")
A(f"buffer_load_dwordx4 v[16:19], v6, {srd(S_WS)}, s89 offen sc1")
A(f"buffer_load_dwordx4 v[16:19], v6, {srd(S_WS)}, s89 offen offset:1024 sc1")
A(f"s_and_b32 s90, s{sR}, 15")
A("s_lshl_b32 s90, s90, 10")
A(f"s_lshl_b32 s89, s{sX}, 14")
A("s_add_u32 s89, s89, s90")
A(f"s_add_u32 s89, s89, {W_H4}")
A(f"buffer_load_dwordx4 v[16:19], v6, {srd(S_WS)}, s89 offen sc1")
A(f"s_mul_i32 s89, s{sX}, 10240")
A("s_min_u32 s90, s90, 9216")
A("s_add_u32 s89, s89, s90")
A(f"s_add_u32 s89, s89, {W_H5C}")
A(f"buffer_load_dwordx4 v[16:19], v6, {srd(S_WS)}, s89 offen sc1")
A("s_branch L_qgather")

A.lab("L_s2")
for s_ in range(5):
    A(f"ds_read_b128 v[{24+8*s_}:{27+8*s_}], v11 offset:{2304*s_}")
    A(f"ds_read_b128 v[{28+8*s_}:{31+8*s_}], v11 offset:{2304*s_+16}")
for s_ in range(1, 5):
    A(f"s_waitcnt lgkmcnt({8-2*s_})")
    for i in range(4):
        A(f"v_pk_add_f32 v[{24+2*i}:{25+2*i}], v[{24+2*i}:{25+2*i}], v[{24+8*s_+2*i}:{25+8*s_+2*i}]")
for i in range(4):
    A(f"v_cvt_pk_bf16_f32 v{16+i}, v{24+2*i}, v{25+2*i}")
A("s_waitcnt vmcnt(0)")
A.stamp(3)
A("s_nop 0")
for t in range(8):
    A(f"v_mfma_f32_16x16x32_bf16 v[{40+4*t}:{43+4*t}], v[{208+4*t}:{211+4*t}], v[16:19], 0")
A(f"s_lshl_b32 s89, s{sH}, 11")
A(f"s_lshr_b32 s90, s{sR}, 2")
A("s_lshl_b32 s90, s90, 9")
A("s_add_u32 s89, s89, s90")
A(f"s_and_b32 s90, s{sW}, 3")
A("s_lshl_b32 s90, s90, 7")
A("s_add_u32 s89, s89, s90")
A(f"s_add_u32 s89, s89, {W_H2}")
for t in range(4):
    A(f"v_add_f32_dpp v{24+t}, v{40+4*t+1}, v{40+4*t} row_shl:4 row_mask:0xf bank_mask:0x1")
for t in range(4):
    d = 56 + 4 * t
    A(f"v_add_f32_dpp v{24+t}, v{d}, v{d+1} row_shr:4 row_mask:0xf bank_mask:0x2")
for t in range(4):
    A(f"v_add_f32_dpp v{24+t}, v{40+4*t+2}, v{24+t} row_shl:8 row_mask:0xf bank_mask:0x1")
for t in range(4):
    A(f"v_add_f32_dpp v{24+t}, v{56+4*t+2}, v{24+t} row_shl:4 row_mask:0xf bank_mask:0x2")
for t in range(4):
    A(f"v_add_f32_dpp v{24+t}, v{40+4*t+3}, v{24+t} row_shl:12 row_mask:0xf bank_mask:0x1")
for t in range(4):
    A(f"v_add_f32_dpp v{24+t}, v{56+4*t+3}, v{24+t} row_shl:8 row_mask:0xf bank_mask:0x2")
SC = (128 ** -0.5) * math.log2(math.e)
for t in range(4):
    A(f"v_mul_f32 v{24+t}, {f32(SC)}, v{24+t}")
A("v_cvt_pk_bf16_f32 v28, v24, v25")
A("v_cvt_pk_bf16_f32 v29, v26, v27")
A("ds_bpermute_b32 v16, v14, v28")
A("ds_bpermute_b32 v17, v14, v29")
A(f"v_mov_b32 v18, s{sT0}")
A(f"v_mov_b32 v19, s{sT1}")
A("s_waitcnt lgkmcnt(0)")
execmask(0xFFFFFFFF)
A(f"buffer_store_dwordx4 v[16:19], v15, {srd(S_WS)}, s89 offen sc1")
execall()
A.stamp(4)
A("s_barrier")
ckv_dma(range(15, -1, -1))

A.lab("L_qgather")
A("s_lshl_b32 s89, s79, 5")
A(f"s_and_b32 s90, s{sR}, 16")
A("s_add_u32 s89, s89, s90")
A(f"s_lshl_b32 s90, s{sW}, 1")
A("s_add_u32 s89, s89, s90")
A("s_lshl_b32 s89, s89, 11")
A(f"s_add_u32 s89, s89, {W_H2}")
A(f"s_lshl_b32 s85, s{sX}, 9")
A(f"s_add_u32 s85, s85, {W_XT}")
A("v_and_b32 v164, 0x1ff, v6")
A("v_lshlrev_b32 v248, 4, v2")
A(f"v_add_u32 v248, {L_MX}, v248")
A(f"s_lshl_b32 s90, s{sW}, 2")
A("v_add_u32 v249, s90, v248")
A(f"s_sub_u32 s94, 15, s{sR}")
A(f"s_cmp_eq_u32 s{sR}, 31")
A("s_cselect_b32 s94, 6, s94")
A(f"s_cmp_eq_u32 s{sR}, 9")
A("s_cselect_b32 s94, 7, s94")
A("s_cmp_lt_u32 s94, 7")
A(f"s_mul_i32 s90, s{sX}, 7")
A("s_cselect_b32 s94, s94, 99")
A("s_add_u32 s100, s94, s90")
A(f"s_cmp_lt_u32 s{sW}, 5")
A("s_cselect_b32 s101, s100, 99")
A("v_lshrrev_b32 v10, 3, v0")
A("v_and_b32 v245, 0x70, v6")
A("v_mul_u32_u24 v244, 10240, v10")
A("v_add_u32 v244, v244, v245")
A("v_lshl_add_u32 v10, v10, 13, v245")
A("v_mul_u32_u24 v247, 10240, v1")
A("v_lshl_add_u32 v247, v2, 4, v247")
A(f"s_and_b32 s93, s{sR}, 8")
A("s_lshl_b32 s93, s93, 5")
A(f"s_and_b32 s90, s{sW}, 2")
A("s_lshl_b32 s90, s90, 6")
A("s_add_u32 s93, s93, s90")
A(f"s_and_b32 s90, s{sW}, 4")
A("s_lshl_b32 s90, s90, 4")
A("s_add_u32 s93, s93, s90")
A(f"s_and_b32 s90, s{sW}, 1")
A("s_lshl_b32 s90, s90, 3")
A("s_add_u32 s93, s93, s90")
A("s_lshl_b32 s93, s93, 13")
A("s_add_u32 s93, s93, s88")
A(f"s_and_b32 s90, s{sR}, 4")
A("s_lshl_b32 s90, s90, 5")
A("s_add_u32 s93, s93, s90")
A(f"s_and_b32 s82, s{sT0}, 0x3fffffff")
A(f"s_not_b32 s90, s{sT0}")
A("s_lshl_b32 s90, s90, 2")
A("s_and_b32 s90, s90, 0xc0000000")
A("s_or_b32 s82, s82, s90")
A("s_mov_b32 s83, 0x00010001")


def sym(dst, sh):
    A(f"v_lshrrev_b32 v{dst}, v{sh}, v246")
    A(f"v_lshlrev_b32 v15, 15, v{dst}")
    A(f"v_and_b32 v{dst}, 1, v{dst}")
    A(f"v_and_or_b32 v{dst}, v15, s84, v{dst}")


A("s_waitcnt vmcnt(17)")
A("v_mov_b32 v246, s82")
A("s_mov_b32 s84, 0x10000")
A("v_not_b32 v246, v246")
A("v_lshlrev_b32 v245, 3, v4")
for i in range(4):
    sym(252 + i, 245)
    if i < 3:
        A("v_add_u32 v245, 2, v245")
A.stamp(5, 7)
A("s_barrier")
ql = [f"buffer_load_dwordx4 v[{144+4*i}:{147+4*i}], v6, {srd(S_WS)}, s89 offen offset:{1024*i}" for i in range(4)]
ql.append(f"buffer_load_dwordx4 v[160:163], v164, {srd(S_WS)}, s85 offen")
qt = [146, 150, 154, 158, 162]
for i in ql:
    A(i + " sc1")
A(f"v_mul_u32_u24 v12, {ROWB}, v2")
A("v_lshl_add_u32 v12, v1, 4, v12")
A(f"s_mul_i32 s90, s{sW}, {32*ROWB}")
A("v_add_u32 v11, s90, v12")
A(f"v_mul_u32_u24 v13, {ROWB}, v5")
A("v_lshl_add_u32 v13, v4, 3, v13")
A(f"s_and_b32 s94, s{sW}, 3")
A("s_lshl_b32 s90, s94, 8")
A("v_add_u32 v13, s90, v13")
A(f"v_add_u32 v14, {64*ROWB}, v13")
A("v_lshlrev_b32 v8, 3, v0")
A(f"s_mul_i32 s90, s{sW}, {2*ROWB}")
A(f"s_add_u32 s90, s90, {L_Q}")
A("v_add_u32 v8, s90, v8")
A(f"v_add_u32 v12, {L_Q}, v12")
A("s_waitcnt vmcnt(5)")
A("s_barrier")


def f_second(tag):
    if not opt.f2:
        return
    A(f"s_cmp_lt_u32 s{sR}, 16")
    A(f"s_cbranch_scc0 L_f2x{tag}")
    A("s_add_u32 s90, s91, 5120")
    A(f"s_cmp_lt_u32 s{sR}, 10")
    A(f"s_cbranch_scc0 L_f2b{tag}")
    for i in range(4):
        A(f"buffer_load_dwordx4 v[{192+4*i}:{195+4*i}], v244, {srd(S_WO)}, s90 offen offset:{1280*i} {opt.po}")
    A(f"s_branch L_f2x{tag}")
    A.lab(f"L_f2b{tag}")
    for i in range(4):
        A(f"buffer_load_dwordx4 v[{192+4*i}:{195+4*i}], v247, {srd(S_W2)}, s90 offen offset:{1280*i} {opt.po}")
    A.lab(f"L_f2x{tag}")


def s4_setup():
    A("v_lshlrev_b32 v68, 11, v3")
    A("v_lshl_add_u32 v68, v1, 5, v68")
    A("v_and_b32 v69, 1, v0")
    A("v_lshl_add_u32 v68, v69, 4, v68")
    A(f"s_lshl_b32 s80, s{sH}, 13")
    A(f"s_and_b32 s90, s{sR}, 8")
    A("s_lshl_b32 s90, s90, 7")
    A("s_add_u32 s80, s80, s90")
    A(f"s_lshl_b32 s90, s{sW}, 7")
    A("s_add_u32 s80, s80, s90")
    A(f"s_add_u32 s80, s80, {W_H3B}")
    A("v_and_b32 v70, 7, v0")
    A("v_lshlrev_b32 v70, 5, v70")
    A("v_lshl_add_u32 v70, v1, 8, v70")
    A(f"s_lshl_b32 s90, s{sW}, 10")
    A(f"s_add_u32 s90, s90, {L_RED}")
    A("v_add_u32 v70, s90, v70")
    A("v_lshlrev_b32 v71, 11, v1")
    A("v_lshl_add_u32 v71, v2, 4, v71")
    A(f"s_lshl_b32 s81, s{sX}, 14")
    A(f"s_and_b32 s90, s{sR}, 8")
    A("s_lshl_b32 s90, s90, 10")
    A("s_add_u32 s81, s81, s90")
    A(f"s_and_b32 s90, s{sH}, 3")
    A("s_lshl_b32 s90, s90, 9")
    A("s_add_u32 s81, s81, s90")
    A(f"s_and_b32 s90, s{sR}, 4")
    A("s_lshl_b32 s90, s90, 6")
    A("s_add_u32 s81, s81, s90")
    A(f"s_add_u32 s81, s81, {W_H4}")
    transpose(80, [212, 216, 220, 224], 4)


def uv_loads():
    for e in range(4):
        A(f"buffer_load_dwordx4 v[{212+4*e}:{215+4*e}], v10, {srd(S_WUV)}, s93 offen {opt.po}")
        if e < 3:
            A(f"s_add_u32 s93, s93, {16*8192}")


A(f"s_cmp_lt_u32 s{sR}, 16")
A("s_cbranch_scc1 L_tlF")
A(f"s_cmp_lt_u32 s{sW}, {opt.uvw}")
A("s_cbranch_scc1 L_tlD")
uv_loads()
A("s_branch L_tlD")
A.lab("L_tlF")
A(f"s_cmp_lt_u32 s{sR}, 10")
A("s_cbranch_scc0 L_tlF2")
A(f"s_lshl_b32 s91, s{sX}, 3")
A(f"s_add_u32 s91, s91, s{sW}")
A(f"s_mul_i32 s91, s91, {64*1280}")
A(f"s_lshl_b32 s90, s{sR}, 7")
A("s_add_u32 s91, s91, s90")
for i in range(4):
    A(f"buffer_load_dwordx4 v[{212+4*i}:{215+4*i}], v244, {srd(S_WO)}, s91 offen offset:{1280*i} {opt.po}")
A("s_branch L_tlD")
A.lab("L_tlF2")
A(f"s_mul_i32 s91, s101, {32*1280}")
A(f"s_lshl_b32 s90, s{sW}, 8")
A("s_add_u32 s91, s91, s90")
for i in range(4):
    A(f"buffer_load_dwordx4 v[{212+4*i}:{215+4*i}], v247, {srd(S_W2)}, s91 offen offset:{1280*i} {opt.po}")
A.lab("L_tlD")
A(f"s_cmp_lt_u32 s{sW}, 4")
A("s_cbranch_scc0 L_opV")
for tl in range(2):
    for ks in range(16):
        d = 16 + 64 * tl + 4 * ks
        A(f"ds_read_b128 v[{d}:{d+3}], v11 offset:{16*ROWB*tl + 64*ks}")
A("s_branch L_opD")
A.lab("L_opV")
trl = []
for ks in range(4):
    for t in range(8):
        for hf in range(2):
            base = 14 if ks >= 2 else 13
            off = ((ks & 1) * 32 + 16 * hf) * ROWB + 32 * t
            d = 16 + (ks * 8 + t) * 4 + 2 * hf
            trl.append(f"ds_read_b64_tr_b16 v[{d}:{d+1}], v{base} offset:{off}")
for i in trl[:opt.nv0]:
    A(i)
A.lab("L_opD")
A(f"s_cmp_lt_u32 s{sR}, 16")
A("s_cbranch_scc1 L_qw4")
A(f"s_cmp_lt_u32 s{sW}, {opt.uvw}")
A("s_cbranch_scc0 L_qw4")
A("s_waitcnt vmcnt(0)")
A.lab("L_qw4")
A("s_waitcnt vmcnt(4)")
for k, t in enumerate(qt):
    if k == 0:
        A(f"v_cmp_ne_u64 vcc, s[{sT0}:{sT1}], v[{t}:{t+1}]")
    else:
        A(f"v_cmp_ne_u64 s[98:99], s[{sT0}:{sT1}], v[{t}:{t+1}]")
        A("s_or_b64 vcc, vcc, s[98:99]")
A("s_cbranch_vccz L_qok")
poll(ql, qt, sleep=opt.qsleep)
A.lab("L_qok")
A.stamp(6)
for i in range(4):
    A(f"ds_write_b64 v8, v[{144+4*i}:{145+4*i}] offset:{(i>>1)*ROWB + (i&1)*512}")
xt_decide(160)
A("s_waitcnt lgkmcnt(0)")
A("s_barrier")
A(f"v_mov_b32 v234, s{sT0}")
A(f"v_mov_b32 v235, s{sT1}")
A(f"v_mov_b32 v238, s{sT0}")
A(f"v_mov_b32 v239, s{sT1}")
A(f"s_cmp_lt_u32 s{sW}, 4")
A("s_cbranch_scc0 L_V")
for ks in range(16):
    A(f"ds_read_b128 v[{144+4*ks}:{147+4*ks}], v12 offset:{64*ks}")
A(f"s_cmp_lt_u32 s{sR}, 16")
A("s_cbranch_scc1 L_nouv")
if opt.uvw:
    uv_loads()
A.lab("L_nouv")
S0, S1 = 228, 208
for ks in range(16):
    A(f"s_waitcnt lgkmcnt({15-ks})")
    for tl, S in ((0, S0), (1, S1)):
        c = "0" if ks == 0 else f"v[{S}:{S+3}]"
        d = 16 + 64 * tl + 4 * ks
        A(f"v_mfma_f32_16x16x32_bf16 v[{S}:{S+3}], v[{d}:{d+3}], v[{144+4*ks}:{147+4*ks}], {c}")
if opt.f2 == 1:
    f_second("k")
A(f"s_lshl_b32 s90, s{sW}, 10")
A(f"s_add_u32 s90, s90, {L_P}")
A("v_add_u32 v12, s90, v6")
A("s_nop 3")
A.stamp(7)
A(f"v_max3_f32 v232, v{S0}, v{S0+1}, v{S0+2}")
A("s_nop 0")
A(f"v_max3_f32 v233, v{S0+3}, v{S1}, v{S1+1}")
A(f"v_max3_f32 v232, v232, v{S1+2}, v{S1+3}")
A("v_max_f32 v232, v232, v233")
for sw in ("v_permlane16_swap_b32", "v_permlane32_swap_b32"):
    A("v_mov_b32 v233, v232")
    A("s_nop 1")
    A(f"{sw} v232, v233")
    A("s_nop 0")
    A("v_max_f32 v232, v232, v233")
A("ds_write_b32 v249, v232")
A("s_waitcnt lgkmcnt(0)")
A("s_barrier")
A.stamp(1, 4)
A("ds_read_b128 v[240:243], v248")
A("s_waitcnt lgkmcnt(0)")
A("v_max3_f32 v232, v240, v241, v242")
A("v_max_f32 v232, v232, v243")
for S in (S0, S1):
    for i in range(4):
        A(f"v_sub_f32 v{S+i}, v{S+i}, v232")
for S in (S0, S1):
    for i in range(4):
        A(f"v_exp_f32 v{S+i}, v{S+i}")
A(f"v_cvt_pk_bf16_f32 v240, v{S0}, v{S0+1}")
A(f"v_cvt_pk_bf16_f32 v241, v{S0+2}, v{S0+3}")
A(f"v_cvt_pk_bf16_f32 v242, v{S1}, v{S1+1}")
A(f"v_cvt_pk_bf16_f32 v243, v{S1+2}, v{S1+3}")
A("ds_write_b128 v12, v[240:243]")
A("s_waitcnt lgkmcnt(0)")
A("s_barrier")
A(f"s_cmp_lg_u32 s{sW}, {opt.stw}")
A("s_cbranch_scc1 L_cbK")
A(f"v_add_u32 v11, {L_P}, v6")
for ks in range(4):
    A(f"ds_read_b128 v[{144+4*ks}:{147+4*ks}], v11 offset:{1024*ks}")
for i in range(4):
    A(f"v_mov_b32 v{240+i}, 0x3f803f80")
A("s_lshl_b32 s95, s79, 5")
A(f"s_and_b32 s90, s{sR}, 16")
A("s_add_u32 s95, s95, s90")
A("s_lshl_b32 s95, s95, 1")
A(f"s_add_u32 s95, s95, s{sH}")
A("s_lshl_b32 s95, s95, 8")
A(f"s_add_u32 s95, s95, {W_STX}")
for ks in range(4):
    A(f"s_waitcnt lgkmcnt({3-ks})")
    c = "0" if ks == 0 else "v[228:231]"
    A(f"v_mfma_f32_16x16x32_bf16 v[228:231], v[240:243], v[{144+4*ks}:{147+4*ks}], {c}")
A("s_nop 7")
A("v_mov_b32 v233, v228")
execmask(0xFFFF)
A(f"buffer_store_dwordx4 v[232:235], v6, {srd(S_WS)}, s95 offen sc1")
execall()
A("s_branch L_cbK")

A.lab("L_V")
if opt.f2 in (1, 2):
    f_second("v")
if opt.vdelay:
    A(f"s_sleep {opt.vdelay}")
for i in trl[opt.nv0:]:
    A(i)
A("v_lshlrev_b32 v13, 17, v1")
A("v_lshl_add_u32 v13, v2, 4, v13")
A("s_lshl_b32 s93, s79, 5")
A(f"s_and_b32 s90, s{sR}, 16")
A("s_add_u32 s93, s93, s90")
A("s_lshl_b32 s93, s93, 15")
A(f"s_lshl_b32 s90, s{sH}, 10")
A("s_add_u32 s93, s93, s90")
A("s_lshl_b32 s90, s94, 8")
A("s_add_u32 s93, s93, s90")
A(f"s_add_u32 s93, s93, {W_H3A}")
A(f"v_add_u32 v11, {L_P}, v6")
for i in range(4):
    A(f"v_xor_b32 v{208+i}, s83, v{252+i}")
A("s_barrier")
A("s_waitcnt lgkmcnt(0)")
A("s_barrier")
A.stamp(2, 4)
for ks in range(4):
    A(f"ds_read_b128 v[{144+4*ks}:{147+4*ks}], v11 offset:{1024*ks}")
for ks in range(4):
    A(f"s_waitcnt lgkmcnt({3-ks})")
    for t in range(8):
        c = "0" if ks == 0 else f"v[{160+4*t}:{163+4*t}]"
        bb = 16 + (ks * 8 + t) * 4
        A(f"v_mfma_f32_16x16x32_bf16 v[{160+4*t}:{163+4*t}], v[{144+4*ks}:{147+4*ks}], v[{bb}:{bb+3}], {c}")
A("s_nop 5")
A.stamp(3, 4)
for r_ in range(4):
    for i in range(4):
        A(f"v_perm_b32 v{16+4*r_+i}, v{164+8*i+r_}, v{160+8*i+r_}, s{sPHI}")
    for i in range(4):
        A(f"v_bfi_b32 v{16+4*r_+i}, s83, v{208+i}, v{16+4*r_+i}")
    A(f"buffer_store_dwordx4 v[{16+4*r_}:{19+4*r_}], v13, {srd(S_WS)}, s93 offen sc1")
    if r_ < 3:
        A("s_add_u32 s93, s93, 32768")
A.stamp(8)
if opt.ackn >= 0:
    A(f"s_waitcnt vmcnt({opt.ackn})")
if opt.bs:
    A("s_barrier")
A("s_waitcnt vmcnt(4)")
s4_setup()
A("s_barrier")
A("s_branch L_cbd")

L_CB = L_OS
L_CM = L_OS + 8192
A.lab("L_cbK")
A("s_barrier")
A("s_waitcnt vmcnt(0)")
s4_setup()
A("v_lshrrev_b32 v13, 5, v0")
A("v_and_b32 v9, 0x1ff, v6")
A("v_lshl_add_u32 v9, v13, 10, v9")
A("s_lshl_b32 s96, s79, 5")
A(f"s_add_u32 s96, s96, s{sH}")
A("s_lshl_b32 s96, s96, 15")
A(f"s_lshl_b32 s90, s{sW}, 13")
A("s_add_u32 s96, s96, s90")
A(f"s_and_b32 s90, s{sR}, 16")
A("s_lshl_b32 s90, s90, 5")
A("s_add_u32 s96, s96, s90")
A(f"s_add_u32 s96, s96, {W_H3A}")
A("s_add_u32 s92, s96, 4096")
A("v_lshl_add_u32 v12, v4, 1, v13")
A("v_lshlrev_b32 v12, 8, v12")
A("s_lshl_b32 s86, s79, 5")
A(f"s_and_b32 s90, s{sH}, 16")
A("s_add_u32 s86, s86, s90")
A("s_lshl_b32 s86, s86, 9")
A(f"s_lshl_b32 s90, s{sW}, 11")
A("s_add_u32 s86, s86, s90")
A(f"s_and_b32 s90, s{sH}, 15")
A("s_lshl_b32 s90, s90, 4")
A("s_add_u32 s86, s86, s90")
A(f"s_add_u32 s86, s86, {W_STX}")
A(f"s_lshl_b32 s90, s{sW}, 10")
A(f"s_add_u32 s90, s90, {L_CB}")
A("v_add_u32 v11, s90, v6")
A(f"s_lshl_b32 s90, s{sW}, 3")
A(f"s_add_u32 s90, s90, {L_CM}")
A("v_mov_b32 v8, s90")
A(f"v_add_u32 v65, {L_CB}, v6")
A(f"v_mov_b32 v66, {L_CM}")
A(f"s_lshl_b32 s93, s{sH}, 2")
A("s_add_u32 s93, s93, s79")
A("s_lshl_b32 s93, s93, 11")
A(f"s_and_b32 s90, s{sR}, 16")
A("s_lshl_b32 s90, s90, 6")
A("s_add_u32 s93, s93, s90")
A(f"s_add_u32 s93, s93, {W_H3B}")
for i in range(8):
    A(f"v_mov_b32 v{48+i}, 0")
A.stamp(6, 4)
bulk = [f"buffer_load_dwordx4 v[{32+4*i}:{35+4*i}], v9, {srd(S_WS)}, {'s96' if i < 2 else 's92'} offen offset:{2048*(i&1)} sc1" for i in range(4)]
stl = f"buffer_load_dwordx4 v[16:19], v12, {srd(S_WS)}, s86 offen"
if opt.spec:
    if opt.sd:
        A(f"s_sleep {opt.sd}")
    execmask(0x0000000F0000000F)
    A(stl + " sc1")
    execall()
    for i in bulk:
        A(i)
    A("s_waitcnt vmcnt(4)")
    execmask(0x0000000F0000000F)
    A(f"v_cmp_ne_u64 vcc, s[{sT0}:{sT1}], v[18:19]")
    A("s_cbranch_vccz L_stok")
    poll([stl], [18], sleep=opt.ssleep)
    if opt.bdelay:
        A(f"s_sleep {opt.bdelay}")
    A.lab("L_stok")
    execall()
else:
    execmask(0x0000000F0000000F)
    poll([stl], [18], sleep=opt.ssleep)
    execall()
    if opt.bdelay:
        A(f"s_sleep {opt.bdelay}")
    for i in bulk:
        A(i)
A.stamp(9, 4)
A.stamp(3, 0)


def all8(op, r_, t):
    for m in ("quad_perm:[1,0,3,2]", "quad_perm:[2,3,0,1]"):
        A("s_nop 1")
        A(f"{op}_dpp v{r_}, v{r_}, v{r_} {m} {DPPM}")
    A(f"v_mov_b32 v{t}, v{r_}")
    A("s_nop 1")
    A(f"v_permlane32_swap_b32 v{r_}, v{t}")
    A("s_nop 0")
    A(f"{op} v{r_}, v{r_}, v{t}")


A("v_mov_b32 v20, v16")
all8("v_max_f32", 20, 26)
A("v_sub_f32 v16, v16, v20")
A("v_exp_f32 v16, v16")
A("s_nop 0")
A("v_mul_f32 v21, v16, v17")
all8("v_add_f32", 21, 26)
A("s_mov_b64 exec, 1")
A("ds_write_b64 v8, v[20:21]")
execall()
A("v_mov_b32 v17, v16")
A("s_nop 1")
A("v_permlane16_swap_b32 v16, v17")
A("s_nop 1")
for i in range(4):
    A(f"v_mov_b32_dpp v{24+2*i}, v16 row_newbcast:{i} {DPPM}")


def take(i, lf):
    w_ = 32 + 4 * i
    for d in range(4):
        A(f"v_xor_b32 v{w_+d}, v{w_+d}, v{252+d}")
    A(f"v_bitop3_b32 v64, v{w_}, v{w_+1}, s83 bitop3:0x80")
    A(f"v_bitop3_b32 v64, v64, v{w_+2}, v{w_+3} bitop3:0x80")
    A("v_cmp_ne_u32 vcc, s83, v64")
    for d in range(4):
        unpack(56 + 2 * d, 57 + 2 * d, w_ + d)
    A(f"s_cbranch_vccnz {lf}")
    for d in range(4):
        A(f"v_pk_fma_f32 v[{48+2*d}:{49+2*d}], v[{56+2*d}:{57+2*d}], v[{24+2*i}:{25+2*i}], v[{48+2*d}:{49+2*d}] op_sel_hi:[1,0,1]")
    A(f"s_bitset0_b32 s94, {i}")
    A.lab(lf)


A("s_mov_b32 s94, 15")
for i in range(4):
    A(f"s_waitcnt vmcnt({3-i})")
    take(i, A.newlab("Ltk"))
A("s_cmp_eq_u32 s94, 0")
A("s_cbranch_scc1 L_bkx")
A.lab("L_bk0")
for i in range(4):
    l = A.newlab("Lrl")
    A(f"s_bitcmp1_b32 s94, {i}")
    A(f"s_cbranch_scc0 {l}")
    A(bulk[i])
    A.lab(l)
A(f"s_add_u32 s{sCNT}, s{sCNT}, 0x10000")
A(f"s_cmp_gt_u32 s{sCNT}, 0x7fff0000")
A("s_cbranch_scc1 L_end")
A("s_waitcnt vmcnt(0)")
for i in range(4):
    l = A.newlab("Ltk")
    A(f"s_bitcmp1_b32 s94, {i}")
    A(f"s_cbranch_scc0 {l}")
    take(i, l)
A("s_cmp_eq_u32 s94, 0")
A("s_cbranch_scc0 L_bk0")
A.lab("L_bkx")
A.stamp(10, 4)
A(f"s_lshr_b32 s97, s{sCNT}, 16")
A(f"s_and_b32 s{sCNT}, s{sCNT}, 0xffff")
for e in range(4):
    A(f"v_permlane32_swap_b32 v{48+e}, v{52+e}")
A("v_pk_add_f32 v[48:49], v[48:49], v[52:53]")
A("v_pk_add_f32 v[50:51], v[50:51], v[54:55]")
A("ds_write_b128 v11, v[48:51]")
A(f"s_cmp_lg_u32 s{sW}, 1")
A("s_waitcnt lgkmcnt(0)")
A("s_barrier")
A("s_cbranch_scc1 L_cbd")
A("ds_read_b128 v[16:19], v66")
A("ds_read_b128 v[20:23], v66 offset:16")
for i in range(4):
    A(f"ds_read_b128 v[{32+4*i}:{35+4*i}], v65 offset:{1024*i}")
A("s_waitcnt lgkmcnt(4)")
A("v_max3_f32 v24, v16, v18, v20")
A("v_max_f32 v24, v24, v22")
for i in range(4):
    A(f"v_sub_f32 v{16+2*i}, v{16+2*i}, v24")
for i in range(4):
    A(f"v_exp_f32 v{16+2*i}, v{16+2*i}")
A("v_mul_f32 v25, v16, v17")
A("v_fmac_f32 v25, v18, v19")
A("v_fmac_f32 v25, v20, v21")
A("v_fmac_f32 v25, v22, v23")
A("v_rcp_f32 v26, v25")
A("s_waitcnt lgkmcnt(0)")
for i in range(4):
    for hh in range(2):
        x = 32 + 4 * i + 2 * hh
        if i == 0:
            A(f"v_pk_mul_f32 v[{48+2*hh}:{49+2*hh}], v[{x}:{x+1}], v[16:17] op_sel_hi:[1,0]")
        else:
            A(f"v_pk_fma_f32 v[{48+2*hh}:{49+2*hh}], v[{x}:{x+1}], v[{16+2*i}:{17+2*i}], v[{48+2*hh}:{49+2*hh}] op_sel_hi:[1,0,1]")
A("v_pk_mul_f32 v[48:49], v[48:49], v[26:27] op_sel_hi:[1,0]")
A("v_pk_mul_f32 v[50:51], v[50:51], v[26:27] op_sel_hi:[1,0]")
A("v_cvt_pk_bf16_f32 v236, v48, v49")
A("v_cvt_pk_bf16_f32 v237, v50, v51")
store_local([f"buffer_store_dwordx4 v[236:239], v6, {srd(S_WS)}, s93 offen"])
A.stamp(5, 0)
A.stamp(11, 4)
A.lab("L_cbd")
A(f"s_cmp_lt_u32 s{sR}, 16")
A("s_cbranch_scc1 L_F")

poll([f"buffer_load_dwordx4 v[208:211], v68, {srd(S_WS)}, s80 offen"], [210])
A.stamp(9)
for jj in range(8):
    d = 144 + 4 * jj
    A(f"v_mfma_f32_16x16x16_bf16 v[{d}:{d+3}], v[208:209], v[{80+2*jj}:{81+2*jj}], 0")
A("s_nop 1")
for jj in range(8):
    d = 144 + 4 * jj
    A(f"v_add_f32_dpp v{216+jj}, v{d+1}, v{d} row_shl:8 {DPPM}")
execmask(M_N8)
A("ds_write_b128 v70, v[216:219]")
A("ds_write_b128 v70, v[220:223] offset:16")
execall()
A("s_waitcnt lgkmcnt(0)")
A("s_barrier")
A(f"s_cmp_lg_u32 s{sW}, 7")
A("s_cbranch_scc1 L_clean")
for s_ in range(8):
    A(f"ds_read_b128 v[{144+4*s_}:{147+4*s_}], v6 offset:{L_RED + 1024*s_}")
sum_b128(8, 144, True)
A("v_cvt_pk_bf16_f32 v236, v144, v145")
A("v_cvt_pk_bf16_f32 v237, v146, v147")
store_local([f"buffer_store_dwordx4 v[236:239], v71, {srd(S_WS)}, s81 offen"])
A.stamp(10)
A("s_branch L_fin")

A.lab("L_clean")
A("s_mov_b32 s94, s100")
A("s_mov_b32 s97, s101")
A(f"s_cmp_eq_u32 s{sR}, 31")
A("s_cbranch_scc1 L_F1")
A(f"s_cmp_lt_u32 s{sW}, 2")
A("s_cbranch_scc0 L_fin")

A.lab("L_red")
A(f"s_cmp_lt_u32 s{sR}, 26")
A("s_cbranch_scc0 L_fin")
A(f"s_and_b32 s94, s{sR}, 15")
A("v_and_b32 v12, 1, v1")
A("v_mul_u32_u24 v13, 1280, v12")
A("v_lshl_add_u32 v13, v2, 3, v13")
A("v_lshrrev_b32 v15, 5, v0")
A("v_lshl_add_u32 v13, v15, 2, v13")
A(f"s_mul_i32 s90, s{sW}, 2560")
A("s_lshl_b32 s93, s94, 7")
A("s_add_u32 s90, s90, s93")
A(f"buffer_load_dword v200, v13, {srd(S_X)}, s90 offen")
A("v_mul_u32_u24 v13, 2560, v12")
A("v_lshl_add_u32 v13, v2, 4, v13")
A(f"s_mul_i32 s96, s{sX}, 10240")
A(f"s_mul_i32 s90, s{sW}, 5120")
A("s_add_u32 s96, s96, s90")
A("s_lshl_b32 s90, s94, 8")
A("s_add_u32 s96, s96, s90")
A(f"s_add_u32 s96, s96, {W_H5C}")
A("v_and_b32 v14, 0x1ff, v6")
A("v_lshl_add_u32 v14, v15, 10, v14")
A("s_lshl_b32 s95, s94, 13")
A(f"s_lshl_b32 s90, s{sW}, 9")
A("s_add_u32 s95, s95, s90")
A(f"s_add_u32 s95, s95, {W_H5B}")
A("s_add_u32 s93, s95, 4096")
poll([f"buffer_load_dwordx4 v[{144+4*i}:{147+4*i}], v14, {srd(S_WS)}, {'s95' if i < 2 else 's93'} offen offset:{2048*(i&1)}" for i in range(4)],
     [146 + 4 * i for i in range(4)])
for i in range(4):
    unpack(160 + 4 * i, 161 + 4 * i, 144 + 4 * i)
    unpack(162 + 4 * i, 163 + 4 * i, 145 + 4 * i)
unpack(202, 203, 200)
sum_b128(4, 160)
A("s_nop 1")
A("v_permlane32_swap_b32 v160, v162")
A("v_permlane32_swap_b32 v161, v163")
A("s_nop 0")
A("v_pk_add_f32 v[160:161], v[160:161], v[162:163]")
A("v_pk_add_f32 v[160:161], v[160:161], v[202:203]")
A("v_cvt_pk_bf16_f32 v236, v160, v161")
A("v_cvt_pk_bf16_f32 v237, v160, v161")
A("s_nop 1")
A("v_permlane32_swap_b32 v236, v237")
execmask(0xFFFFFFFF)
store_local([f"buffer_store_dwordx4 v[236:239], v13, {srd(S_WS)}, s96 offen"])
execall()
A.stamp(11)
A("s_branch L_fin")

A.lab("L_s8")
A("s_lshl_b32 s94, s2, 1")
A(f"s_and_b32 s90, s{sW}, 1")
A("s_add_u32 s94, s94, s90")
A("s_mul_i32 s90, s94, 1639")
A("s_lshr_b32 s90, s90, 16")
A("s_mul_i32 s93, s90, 40")
A("s_sub_u32 s93, s94, s93")
A("s_lshr_b32 s95, s93, 3")
A("s_lshl_b32 s95, s95, 5")
A("s_bfe_u32 s96, s93, 0x10002")
A("s_add_u32 s95, s95, s96")
A("s_and_b32 s96, s93, 3")
A("s_lshl_b32 s96, s96, 3")
A("s_add_u32 s95, s95, s96")
A("v_mul_u32_u24 v12, 10240, v5")
A("v_lshl_add_u32 v12, v4, 4, v12")
A("s_lshl_b32 s78, s94, 6")
A(f"s_add_u32 s78, s78, {W_H6}")
A(f"s_add_u32 s79, s78, {16*10240}")
A(f"s_add_u32 s80, s78, {32*10240}")
A(f"s_add_u32 s81, s78, {48*10240}")
A("v_add_u32 v13, s81, v12")
A(f"s_lshl_b32 s82, s{sX}, 2")
A("s_add_u32 s82, s82, s90")
A("s_mul_i32 s82, s82, 160")
A("s_add_u32 s82, s82, s95")
A("s_lshl_b32 s82, s82, 4")
A(f"s_add_u32 s82, s82, {W_H5C}")
A("v_lshlrev_b32 v14, 5, v4")
A("v_add_u32 v14, s82, v14")
A("v_cmp_gt_u32 vcc, 6, v5")
A("s_nop 1")
A("v_cndmask_b32 v13, v14, v13, vcc")
A("s_mul_i32 s83, s90, 1280")
A("s_lshl_b32 s84, s95, 3")
A("s_add_u32 s83, s83, s84")
A("v_lshlrev_b32 v15, 4, v4")
A("v_lshl_add_u32 v15, v1, 1, v15")
s8l = [f"buffer_load_dwordx4 v[144:147], v12, {srd(S_WS)}, s78 offen",
       f"buffer_load_dwordx4 v[148:151], v12, {srd(S_WS)}, s79 offen",
       f"buffer_load_dwordx4 v[152:155], v12, {srd(S_WS)}, s80 offen",
       f"buffer_load_dwordx4 v[156:159], v13, {srd(S_WS)}, 0 offen"]
A("s_sleep 4")
for i in s8l:
    A(i + " sc1")
poll([f"buffer_load_dwordx4 v[164:167], v14, {srd(S_WS)}, 0 offen"], [166], sleep=2)
poll(s8l, [146, 150, 154, 158])
A("v_cmp_gt_u32 vcc, 7, v5")
A("s_nop 1")
A("v_cndmask_b32 v156, 0, v156, vcc")
A("v_cndmask_b32 v157, 0, v157, vcc")
for i in range(4):
    unpack(160 + 4 * i, 161 + 4 * i, 144 + 4 * i)
    unpack(162 + 4 * i, 163 + 4 * i, 145 + 4 * i)
sum_b128(4, 160)
A("s_nop 1")
A("v_permlane32_swap_b32 v160, v162")
A("v_permlane32_swap_b32 v161, v163")
A("s_nop 0")
A("v_pk_add_f32 v[160:161], v[160:161], v[162:163]")
A("s_nop 1")
A("v_permlane16_swap_b32 v160, v161")
A("s_nop 0")
A("v_add_f32 v160, v160, v161")
A("s_nop 1")
A(f"v_add_f32_dpp v160, v160, v160 row_ror:8 {DPPM}")
A("s_nop 1")
A(f"v_add_f32_dpp v160, v160, v160 row_ror:4 {DPPM}")
A("s_nop 0")
A("v_cvt_pk_bf16_f32 v160, v160, v160")
execmask(M_N4)
A(f"buffer_store_short v160, v15, {srd(S_OUT)}, s83 offen")
execall()
A("s_cmp_lg_u32 s94, 0")
A("s_cbranch_scc1 L_s8x")
A("v_mov_b32 v12, 0")
A("s_mov_b64 exec, 1")
A(f"buffer_store_dwordx2 v[238:239], v12, {srd(S_WS)}, 0 offen sc1")
execall()
A.lab("L_s8x")
if opt.padto:
    A.lab("L_pad")
    A("s_memrealtime s[6:7]")
    A("s_waitcnt lgkmcnt(0)")
    A("s_sub_u32 s6, s6, s4")
    A(f"s_cmp_lt_u32 s6, {opt.padto*100}")
    A("s_cbranch_scc1 L_pad")
A.stamp(11)
A("s_branch L_fin")

def w1_loads():
    A("v_mul_u32_u24 v15, 13824, v5")
    A("v_lshl_add_u32 v15, v4, 4, v15")
    A(f"s_mul_i32 s93, s{sW}, {128*3456}")
    A("s_lshl_b32 s90, s94, 6")
    A("s_add_u32 s93, s93, s90")
    for i in range(8):
        A(f"s_add_u32 s90, s93, {((i & 3) + 64*(i >> 2))*3456}")
        A(f"buffer_load_dwordx4 v[{16+4*i}:{19+4*i}], v15, {srd(S_W1)}, s90 offen {opt.pt}")


A.lab("L_F")
if opt.fwait:
    A("s_waitcnt vmcnt(0)")
    A.stamp(3, 5)
A("s_barrier")
if opt.fwait > 1:
    A(f"s_sleep {opt.fwait}")
A("s_waitcnt vmcnt(4)")
if opt.f2 == 2:
    A(f"s_cmp_lt_u32 s{sW}, 4")
    A("s_cbranch_scc0 L_f2xl")
    f_second("l")
if opt.f2 == 3:
    f_second("l")
A("s_mov_b32 s94, s100")
A("s_mov_b32 s97, s101")
A(f"s_cmp_lt_u32 s{sR}, 10")
A("s_cbranch_scc0 L_F1")
if opt.d1:
    A(f"s_sleep {opt.d1}")
if not opt.f2:
    A("s_add_u32 s90, s91, 5120")
    for i in range(4):
        A(f"buffer_load_dwordx4 v[{192+4*i}:{195+4*i}], v244, {srd(S_WO)}, s90 offen offset:{1280*i} {opt.po}")
A(f"s_lshl_b32 s90, s{sR}, 3")
A(f"s_add_u32 s90, s90, s{sW}")
A(f"s_mul_i32 s92, s{sX}, 7")
A("s_add_u32 s92, s92, 6")
A("s_cmp_lt_u32 s90, 40")
A("s_cbranch_scc0 L_hp2")
A("s_lshl_b32 s92, s92, 6")
A("v_mul_u32_u24 v15, 3456, v5")
A("v_lshl_add_u32 v15, v4, 4, v15")
A(f"s_mul_i32 s90, s90, {16*3456}")
A("s_add_u32 s90, s90, s92")
A(f"buffer_load_dwordx4 v[48:51], v15, {srd(S_W1)}, s90 offen")
A("s_branch L_s5")
A.lab("L_hp2")
A("s_sub_u32 s90, s90, 40")
A("s_lshl_b32 s90, s90, 10")
A(f"s_mul_i32 s92, s92, {32*1280}")
A("s_add_u32 s90, s90, s92")
A(f"buffer_load_dwordx4 v[48:51], v6, {srd(S_W2)}, s90 offen")
A.lab("L_s5")
A("s_waitcnt vmcnt(1)")
transpose(112, [212, 216, 220, 224, 192, 196, 200, 204], 4)
A("v_lshl_add_u32 v12, v3, 11, v7")
A(f"s_lshl_b32 s95, s{sX}, 14")
A(f"s_lshl_b32 s90, s{sW}, 8")
A("s_add_u32 s95, s95, s90")
A(f"s_add_u32 s95, s95, {W_H4}")
A("s_add_u32 s96, s95, 8192")
A("v_and_b32 v14, 7, v0")
A("v_lshlrev_b32 v14, 5, v14")
A("v_lshl_add_u32 v14, v1, 8, v14")
A(f"s_lshl_b32 s90, s{sW}, 10")
A(f"s_add_u32 s90, s90, {L_RED}")
A("v_add_u32 v14, s90, v14")
poll([f"buffer_load_dwordx4 v[208:211], v12, {srd(S_WS)}, s95 offen",
      f"buffer_load_dwordx4 v[212:215], v12, {srd(S_WS)}, s96 offen"], [210, 214], sleep=1)
A.stamp(9, 0)
unpack(216, 217, 208); unpack(218, 219, 209); unpack(220, 221, 212); unpack(222, 223, 213)
A("v_pk_add_f32 v[216:217], v[216:217], v[220:221]")
A("v_pk_add_f32 v[218:219], v[218:219], v[222:223]")
A("v_cvt_pk_bf16_f32 v208, v216, v217")
A("v_cvt_pk_bf16_f32 v209, v218, v219")
A("s_nop 1")
A(f"v_mov_b32_dpp v212, v208 quad_perm:[0,2,0,2] {DPPM}")
A(f"v_mov_b32_dpp v213, v209 quad_perm:[0,2,0,2] {DPPM}")
A(f"v_mov_b32_dpp v214, v208 quad_perm:[1,3,1,3] {DPPM}")
A(f"v_mov_b32_dpp v215, v209 quad_perm:[1,3,1,3] {DPPM}")
A("s_nop 1")
for jj in range(8):
    d = 144 + 4 * jj
    A(f"v_mfma_f32_16x16x32_bf16 v[{d}:{d+3}], v[212:215], v[{112+4*jj}:{115+4*jj}], 0")
A("s_nop 1")
for jj in range(8):
    d = 144 + 4 * jj
    A(f"v_add_f32_dpp v{216+jj}, v{d+1}, v{d} row_shl:8 {DPPM}")
execmask(M_N8)
A("ds_write_b128 v14, v[216:219]")
A("ds_write_b128 v14, v[220:223] offset:16")
execall()
A("s_waitcnt lgkmcnt(0)")
A("s_barrier")
A(f"s_and_b32 s90, s{sW}, 6")
A("s_cmp_eq_u32 s90, 2")
A("s_cbranch_scc1 L_s8")
A(f"s_cmp_lg_u32 s{sW}, 7")
A("s_cbranch_scc1 L_fin")
for s in range(8):
    A(f"ds_read_b128 v[{144+4*s}:{147+4*s}], v6 offset:{L_RED + 1024*s}")
A(f"s_lshl_b32 s95, s{sR}, 3")
A(f"s_add_u32 s95, s95, s{sX}")
A("s_lshl_b32 s95, s95, 10")
A(f"s_add_u32 s95, s95, {W_H5B}")
sum_b128(8, 144, True)
A("v_cvt_pk_bf16_f32 v236, v144, v145")
A("v_cvt_pk_bf16_f32 v237, v146, v147")
A(f"buffer_store_dwordx4 v[236:239], v6, {srd(S_WS)}, s95 offen sc1")
A.stamp(11)
A("s_branch L_fin")

A.lab("L_F1")
A("s_cmp_lt_u32 s97, 54")
A("s_cbranch_scc0 L_fin")
A(f"s_cmp_lt_u32 s{sR}, 16")
A("s_cbranch_scc1 L_F1a")
A("s_sleep 4")
A(f"s_mul_i32 s91, s94, {32*1280}")
A(f"s_lshl_b32 s90, s{sW}, 8")
A("s_add_u32 s91, s91, s90")
A("s_add_u32 s90, s91, 5120")
for i in range(8):
    d = 212 + 4 * i if i < 4 else 192 + 4 * (i - 4)
    A(f"buffer_load_dwordx4 v[{d}:{d+3}], v247, {srd(S_W2)}, {'s91' if i < 4 else 's90'} offen offset:{1280*(i&3)} {opt.po}")
A.lab("L_F1a")
w1_loads()
A("s_waitcnt vmcnt(8)")
transpose(112, [212, 216, 220, 224, 192, 196, 200, 204], 4)
A("s_waitcnt vmcnt(0)")
A.stamp(2, 0)
transpose(80, [16 + 4 * i for i in range(8)], 4)
for i in range(4):
    A(f"v_mov_b32 v{48+i}, 0x3f803f80")
A("s_nop 1")
for jj in range(8):
    A(f"v_mfma_f32_16x16x32_bf16 v[{16+4*jj}:{19+4*jj}], v[48:51], v[{80+4*jj}:{83+4*jj}], 0")
A("s_nop 1")
dppsum([56 + jj for jj in range(8)], [16 + 4 * jj for jj in range(8)])
A("v_lshlrev_b32 v14, 5, v4")
A(f"s_lshl_b32 s90, s{sW}, 7")
A(f"s_add_u32 s90, s90, {L_CS}")
A("v_add_u32 v14, s90, v14")
A("s_mov_b64 exec, 15")
A("ds_write_b128 v14, v[56:59]")
A("ds_write_b128 v14, v[60:63] offset:16")
execall()
A("s_waitcnt lgkmcnt(0)")
A("s_barrier")
A.lab("L_s67")
A("v_lshrrev_b32 v14, 1, v7")
for s in range(5):
    A(f"ds_read_b64 v[{16+2*s}:{17+2*s}], v14 offset:{L_CS + 128*s}")
A("v_mul_u32_u24 v12, 2560, v3")
A("v_add_u32 v12, v12, v7")
A(f"s_mul_i32 s95, s{sX}, 10240")
A(f"s_lshl_b32 s90, s{sW}, 9")
A("s_add_u32 s95, s95, s90")
A(f"s_add_u32 s95, s95, {W_H5C}")
A("v_lshlrev_b32 v13, 1, v7")
A(f"s_add_u32 s90, s90, {L_RED2}")
A("v_add_u32 v13, s90, v13")
A("v_lshlrev_b32 v10, 3, v1")
A(f"s_lshl_b32 s90, s{sW}, 5")
A(f"s_add_u32 s90, s90, {L_RS}")
A("v_add_u32 v10, s90, v10")
A("v_lshl_add_u32 v14, v3, 7, v14")
A("v_lshlrev_b32 v11, 3, v3")
A("v_mul_u32_u24 v9, 2560, v1")
A("v_lshl_add_u32 v9, v2, 4, v9")
A("s_mul_i32 s96, s94, 10240")
A(f"s_lshl_b32 s90, s{sW}, 9")
A("s_add_u32 s96, s96, s90")
A(f"s_add_u32 s96, s96, {W_H6}")
A("s_waitcnt lgkmcnt(0)")
for s in range(1, 5):
    A(f"v_pk_add_f32 v[16:17], v[16:17], v[{16+2*s}:{17+2*s}]")
poll([f"buffer_load_dwordx4 v[208:211], v12, {srd(S_WS)}, s95 offen",
      f"buffer_load_dwordx4 v[212:215], v12, {srd(S_WS)}, s95 offen offset:256"], [210, 214], sleep=1)
A.stamp(10, 0)
A("v_mov_b32 v210, v212")
A("v_mov_b32 v211, v213")
A("s_nop 1")
A("v_mfma_f32_16x16x32_bf16 v[184:187], v[208:211], v[48:51], 0")
A("v_mfma_f32_16x16x32_bf16 v[188:191], v[208:211], v[208:211], 0")
for jj in range(8):
    d = 144 + 4 * jj
    A(f"v_mfma_f32_16x16x32_bf16 v[{d}:{d+3}], v[208:211], v[{80+4*jj}:{83+4*jj}], 0")
A("v_add_f32 v192, v184, v185")
A(f"v_add_f32_dpp v193, v189, v188 row_shl:1 {DPPM}")
A("v_add_f32 v194, v186, v187")
A("s_nop 0")
A(f"v_add_f32_dpp v193, v190, v193 row_shl:2 {DPPM}")
A("v_add_f32 v192, v192, v194")
A("s_nop 0")
A(f"v_add_f32_dpp v193, v191, v193 row_shl:3 {DPPM}")
execmask(0x1000010000100001)
A("ds_write_b64 v10, v[192:193]")
execall()
dppsum([176 + i for i in range(8)], [144 + 4 * i for i in range(8)])
execmask(M_N4)
A("ds_write_b128 v13, v[176:179]")
A("ds_write_b128 v13, v[180:183] offset:16")
execall()
A("s_waitcnt lgkmcnt(0)")
A("s_barrier")
for s in range(5):
    A(f"ds_read_b64 v[{160+2*s}:{161+2*s}], v11 offset:{L_RS + 32*s}")
for s in range(5):
    A(f"ds_read_b64 v[{144+2*s}:{145+2*s}], v14 offset:{L_RED2 + 512*s}")
A("s_waitcnt lgkmcnt(5)")
for s in range(1, 5):
    A(f"v_pk_add_f32 v[160:161], v[160:161], v[{160+2*s}:{161+2*s}]")
A(f"v_mul_f32 v160, {f32(1/640)}, v160")
A(f"v_mul_f32 v161, {f32(1/640)}, v161")
A("v_fma_f32 v161, -v160, v160, v161")
A("v_max_f32 v161, 0, v161")
A(f"v_add_f32 v161, {f32(1e-5)}, v161")
A("v_rsq_f32 v161, v161")
A("s_waitcnt lgkmcnt(0)")
for s in range(1, 5):
    A(f"v_pk_add_f32 v[144:145], v[144:145], v[{144+2*s}:{145+2*s}]")
A("v_fma_f32 v144, -v160, v16, v144")
A("v_fma_f32 v145, -v160, v17, v145")
A("v_mul_f32 v144, v144, v161")
A("v_mul_f32 v145, v145, v161")
A(f"v_mul_f32 v146, {f32(-math.log2(math.e))}, v144")
A(f"v_mul_f32 v147, {f32(-math.log2(math.e))}, v145")
A("v_exp_f32 v146, v146")
A("v_exp_f32 v147, v147")
A("s_nop 0")
A("v_add_f32 v146, 1.0, v146")
A("v_add_f32 v147, 1.0, v147")
A("v_rcp_f32 v146, v146")
A("v_rcp_f32 v147, v147")
A("s_nop 0")
A("v_mul_f32 v144, v144, v146")
A("v_mul_f32 v145, v145, v147")
A("v_cvt_pk_bf16_f32 v148, v144, v145")
A("s_nop 1")
for i in range(4):
    A(f"v_mov_b32_dpp v{208+i}, v148 quad_perm:[{i},{i},{i},{i}] {DPPM}")
A("s_nop 1")
for jj in range(8):
    d = 144 + 4 * jj
    A(f"v_mfma_f32_16x16x32_bf16 v[{d}:{d+3}], v[208:211], v[{112+4*jj}:{115+4*jj}], 0")
A("s_nop 3")
A("v_cvt_pk_bf16_f32 v232, v144, v148")
A("v_cvt_pk_bf16_f32 v233, v152, v156")
A(f"buffer_store_dwordx4 v[232:235], v9, {srd(S_WS)}, s96 offen sc1")
A("s_nop 1")
A("v_cvt_pk_bf16_f32 v236, v160, v164")
A("v_cvt_pk_bf16_f32 v237, v168, v172")
A(f"buffer_store_dwordx4 v[236:239], v9, {srd(S_WS)}, s96 offen offset:256 sc1")
A.stamp(11)

A.lab("L_fin")
if opt.dbgstamps:
    A("s_waitcnt vmcnt(0) lgkmcnt(0)")
    A("s_load_dwordx2 s[92:93], s[0:1], 80")
    A("s_mov_b32 s94, 256")
    A("s_mov_b32 s95, 0x00020000")
    A("v_mov_b32 v8, 0")
    A("s_waitcnt lgkmcnt(0)")
    A("s_mov_b64 exec, 1")
    A("s_not_b32 s90, s4")
    A("v_mov_b32 v9, s90")
    A("buffer_atomic_umax v9, v8, s[92:95], 0 offen offset:60")
    A(f"s_cmp_lt_u32 s{sR}, 16")
    for i in range(12):
        A(f"v_mov_b32 v9, s{4+2*i}")
        if i in (3, 4, 9):
            o2 = {3: 48, 4: 52, 9: 56}[i]
            A(f"s_cselect_b32 s91, {4*i}, {o2}")
            A(f"buffer_atomic_umax v9, v8, s[92:95], s91 offen")
        else:
            A(f"buffer_atomic_umax v9, v8, s[92:95], 0 offen offset:{4*i}")
    A("s_branch L_end")
if opt.stamps:
    A("s_waitcnt vmcnt(0) lgkmcnt(0)")
    A(f"s_lshl_b32 s90, s2, 3")
    A(f"s_add_u32 s90, s90, s{sW}")
    A("s_lshl_b32 s90, s90, 6")
    A(f"s_add_u32 s90, s90, {W_STAMP}")
    A("v_mov_b32 v8, 0")
    A("s_mov_b64 exec, 1")
    for i in range(12):
        A(f"v_mov_b32 v9, s{4+2*i}")
        A(f"buffer_store_dword v9, v8, {srd(S_WS)}, s90 offen offset:{4*i}")
    A(f"v_mov_b32 v9, s{sCNT}")
    A(f"buffer_store_dword v9, v8, {srd(S_WS)}, s90 offen offset:56")
    A(f"v_mov_b32 v9, s{sFAST}")
    A(f"buffer_store_dword v9, v8, {srd(S_WS)}, s90 offen offset:60")
A.lab("L_end")

body = "\n".join(A.l)
if opt.stamps:
    init = "\n".join(f"    s_mov_b32 s{4+2*i}, 0" for i in range(1, 12))
    body = init + "\n" + body
out = HDR + f"""; @launch grid=(256,1,1) block=(512,1,1) lds={LDS_BYTES}
.amdgcn_target "amdgcn-amd-amdhsa--gfx950"
.text
.globl {NAME}_kernel
.p2align 8
.type {NAME}_kernel,@function
{NAME}_kernel:
{body}
    s_endpgm
L_codeend:
.section .rodata,"a"
.p2align 6
.amdhsa_kernel {NAME}_kernel
  .amdhsa_next_free_vgpr 256
  .amdhsa_next_free_sgpr 102
  .amdhsa_accum_offset 256
  .amdhsa_group_segment_fixed_size 0
  .amdhsa_kernarg_size 96
  .amdhsa_user_sgpr_count 2
  .amdhsa_user_sgpr_kernarg_segment_ptr 1
  .amdhsa_system_sgpr_workgroup_id_x 1
.end_amdhsa_kernel
"""
open(opt.o, "w").write(out)
print("wrote", opt.o, "lines", len(A.l), file=sys.stderr)
```

```python
import sys, re, argparse, math, struct

NAME = "sequential_preLN__compressed_kv_cla__dense_activation_silu__decode"
HDR = open(f"cdna_kernels/{NAME}.s.ref").read().split("; Override launch")[0]

ap = argparse.ArgumentParser()
ap.add_argument("-o", default=f"cdna_kernels/{NAME}.s")
ap.add_argument("--stamps", action="store_true")
ap.add_argument("--early", type=int, default=4)
ap.add_argument("--early67", type=int, default=16)
ap.add_argument("--pw", default="sc1")
ap.add_argument("--noh3bt", action="store_true")
ap.add_argument("--earlyA", type=int, default=4)
ap.add_argument("--nocodepf", action="store_true")
ap.add_argument("--nobar2", action="store_true")
ap.add_argument("--nouvpf", action="store_true")
ap.add_argument("--noukpf", action="store_true")
ap.add_argument("--kb0", type=int, default=2)
ap.add_argument("--kb", type=int, default=0)
ap.add_argument("--ka", type=int, default=0)
ap.add_argument("--kf", type=int, default=16)
ap.add_argument("--arev", action="store_true")
ap.add_argument("--grp", type=int, default=0)
ap.add_argument("--ntr0", type=int, default=32)
ap.add_argument("--padto", type=int, default=0)
ap.add_argument("--forceslow", action="store_true")
ap.add_argument("--wb", action="store_true")
ap.add_argument("--dbgstamps", action="store_true")
ap.add_argument("--b1", type=int, default=10)
ap.add_argument("--b2", type=int, default=6)
ap.add_argument("--noclean", action="store_true")
ap.add_argument("--pxor", type=int, default=0)
ap.add_argument("--hxor", type=int, default=0)
ap.add_argument("--uv", default="late")
ap.add_argument("--uvsplit", type=int, default=8)
ap.add_argument("--uvw", type=int, default=4)
ap.add_argument("--ssleep", type=int, default=0)
ap.add_argument("--pc", default="")
ap.add_argument("--pq", default="")
ap.add_argument("--pt", default="")
ap.add_argument("--po", default="nt")
ap.add_argument("--fwait", type=int, default=0)
ap.add_argument("--stearly", action="store_true")
ap.add_argument("--ilv", type=int, default=1)
ap.add_argument("--nv0", type=int, default=12)
ap.add_argument("--vdelay", type=int, default=0)
ap.add_argument("--d1", type=int, default=0)
ap.add_argument("--d2", type=int, default=0)
ap.add_argument("--noearlyF", action="store_true")
ap.add_argument("--stw", type=int, default=3)
ap.add_argument("--bdelay", type=int, default=0)
ap.add_argument("--bs", type=int, default=1)
ap.add_argument("--f2", type=int, default=2)
ap.add_argument("--spec", type=int, default=0)
ap.add_argument("--sd", type=int, default=0)
ap.add_argument("--ackn", type=int, default=-1)
ap.add_argument("--qsleep", type=int, default=0)
opt = ap.parse_args()

W_EPOCH = 0x0
W_XT = 0x1000
W_H1 = 0x10000
W_H1B = 0x380000
W_H2 = 0x100000
W_ST3 = 0x140000
W_STX = 0x150000
W_H4 = 0x160000
W_H5B = 0x180000
W_H5C = 0x1A0000
W_H3B = 0x200000
W_H6 = 0x280000
W_H3A = 0x400000
W_STAMP = 0x800000
WS_SIZE = 0x1000000

ROWB = 1056
L_Q = 128 * ROWB
L_P = L_Q + 16 * ROWB
L_MX = L_P + 4096
L_SM = L_MX + 512
L_QV = L_SM + 512
L_QP = L_Q + 5376
L_XN = L_Q
LDS_BYTES = 163840
L_S1 = 0 * ROWB
L_RED = 0
L_RED2 = 16384
L_RS = 32768
L_CS = 33792
L_OS = 49152
L_UV = 73728

S_X, S_CKV, S_WQ, S_WUK, S_WUV, S_WO, S_W1, S_W2, S_OUT, S_WS = (28, 32, 36, 40, 44, 48, 52, 56, 60, 64)
sX, sR, sW = 68, 69, 70
sFAST = 71
sT0, sT1 = 72, 73
sPLO, sPHI = 74, 75
sCNT = 76
sH = 77
sTL = 3
POLL_LIMIT = 400000


def f32(x):
    return "0x%08x" % struct.unpack("<I", struct.pack("<f", x))[0]


class Asm:
    def __init__(self):
        self.l = []
        self.nlab = 0

    def __call__(self, s):
        m = re.search(r"offset:(\d+)", s)
        if m:
            lim = 65536 if s.lstrip().startswith("ds_") else 4096
            assert int(m.group(1)) < lim, s
        self.l.append("    " + s)

    def lab(self, n):
        self.l.append(n + ":")

    def newlab(self, p="L"):
        self.nlab += 1
        return f"{p}_{self.nlab}"

    def c(self, s):
        self.l.append("    ; " + s)

    def stamp(self, i, grp=None):
        if grp is not None and grp != opt.grp:
            return
        if opt.grp == 4 and grp != 4 and i not in (0, 7, 8):
            return
        if opt.stamps:
            self(f"s_memrealtime s[{4+2*i}:{5+2*i}]")


A = Asm()
DPPM = "row_mask:0xf bank_mask:0xf"


def srd(n):
    return f"s[{n}:{n+3}]"


def execmask(m):
    A(f"s_mov_b32 exec_lo, 0x{m & 0xffffffff:x}")
    A(f"s_mov_b32 exec_hi, 0x{m >> 32:x}")


def execall():
    A("s_mov_b64 exec, -1")


M_N4 = 0x000F000F000F000F
M_N8 = 0x00FF00FF00FF00FF


def store_local(instr):
    l1, l2 = A.newlab("Lsl"), A.newlab("Lsl")
    A(f"s_cmp_eq_u32 s{sFAST}, 0")
    A(f"s_cbranch_scc1 {l1}")
    for i in instr:
        A(i)
    A(f"s_branch {l2}")
    A.lab(l1)
    for i in instr:
        A(i + " sc1")
    A.lab(l2)


def poll(loads, tagregs, sleep=0, alt=None):
    lp = A.newlab("Lpoll")
    if alt:
        sr, sm, so_ = alt
        lf = A.newlab("Lpf")
        A(f"s_mov_b32 {sr}, {sm}")
        A(f"s_branch {lf}")
        A.lab(lp)
        A(f"s_and_b32 s98, s{sCNT}, 31")
        A("s_cmp_eq_u32 s98, 31")
        A(f"s_cselect_b32 {sr}, {so_}, {sm}")
        A.lab(lf)
    elif sleep:
        lf = A.newlab("Lpf")
        A(f"s_branch {lf}")
        A.lab(lp)
        A(f"s_sleep {sleep}")
        A.lab(lf)
    else:
        A.lab(lp)
    for i in loads:
        A(i + " sc1")
    A(f"s_add_u32 s{sCNT}, s{sCNT}, 1")
    A(f"s_cmp_gt_u32 s{sCNT}, {POLL_LIMIT}")
    A("s_cbranch_scc1 L_end")
    A("s_waitcnt vmcnt(0)")
    for k, t in enumerate(tagregs):
        if k == 0:
            A(f"v_cmp_ne_u64 vcc, s[{sT0}:{sT1}], v[{t}:{t+1}]")
        else:
            A(f"v_cmp_ne_u64 s[98:99], s[{sT0}:{sT1}], v[{t}:{t+1}]")
            A("s_or_b64 vcc, vcc, s[98:99]")
    A(f"s_cbranch_vccnz {lp}")


def transpose(dst, rows, ndw, dup=False):
    nr = len(rows) // 2
    st = 2 * nr if dup else nr
    for jj in range(2 * ndw):
        sel = sPHI if jj & 1 else sPLO
        for rep in range(2 if dup else 1):
            for p in range(nr):
                A(f"v_perm_b32 v{dst + jj*st + rep*nr + p}, v{rows[2*p+1] + (jj >> 1)}, v{rows[2*p] + (jj >> 1)}, s{sel}")


def dppsum(dsts, ds):
    assert len(dsts) >= 3
    for step in (1, 2, 3):
        for t, d in zip(dsts, ds):
            src1 = d if step == 1 else t
            A(f"v_add_f32_dpp v{t}, v{d+step}, v{src1} row_shl:{4*step} {DPPM}")


def unpack(dlo, dhi, s):
    A(f"v_lshlrev_b32 v{dlo}, 16, v{s}")
    A(f"v_and_b32 v{dhi}, 0xffff0000, v{s}")


def rowall(op, regs):
    for sh in (8, 4, 2, 1):
        if len(regs) < 3:
            A(f"s_nop {2 - len(regs)}")
        for r_ in regs:
            A(f"{op}_dpp v{r_}, v{r_}, v{r_} row_ror:{sh} {DPPM}")


def sum_b128(n, base, lds=False):
    st = 1
    while st < n:
        for s in range(0, n, 2 * st):
            if lds and st == 1:
                A(f"s_waitcnt lgkmcnt({n - s - 2})")
            x, y = base + 4 * s, base + 4 * (s + st)
            A(f"v_pk_add_f32 v[{x}:{x+1}], v[{x}:{x+1}], v[{y}:{y+1}]")
            A(f"v_pk_add_f32 v[{x+2}:{x+3}], v[{x+2}:{x+3}], v[{y+2}:{y+3}]")
        st *= 2


def tag_setup():
    A("s_waitcnt lgkmcnt(0)")
    A(f"s_mul_i32 s{sT0}, s82, 0x9E3779B1")
    A(f"s_add_u32 s{sT0}, s{sT0}, 0x7F4A7C15")
    A(f"s_mul_i32 s{sT1}, s83, 0x2C9277B5")
    A(f"s_add_u32 s{sT1}, s{sT1}, 0xAC564B05")


def xt_decide(t):
    A("s_getreg_b32 s84, hwreg(HW_REG_XCC_ID)")
    A("s_and_b32 s84, s84, 15")
    A(f"v_cmp_ne_u32 vcc, s84, v{t}")
    A("s_cmp_eq_u64 vcc, 0")
    A(f"s_cselect_b32 s{sFAST}, {0 if opt.forceslow else 1}, 0")


def ckv_dma(rows, k=None):
    for i in rows:
        st_ = 4 if opt.ilv else 1
        A(f"s_add_u32 m0, s81, {i*ROWB*st_}")
        A(f"s_add_u32 s86, s80, {i*1024*st_}")
        if k:
            A(f"s_waitcnt vmcnt({k-1})")
        A(f"buffer_load_dwordx4 v6, {srd(S_CKV)}, s86 offen {opt.pc} lds")


A.stamp(0)
if opt.padto:
    A("s_memrealtime s[4:5]")
A("s_cmp_ge_u32 s2, 256")
A("s_cbranch_scc1 L_end")
ptr = {S_X: 0, S_CKV: 8, S_WQ: 16, S_WUK: 24, S_WUV: 32, S_WO: 40, S_W1: 56, S_W2: 64, S_OUT: 72, S_WS: 88}
size = {S_X: 5120, S_CKV: 16777216, S_WQ: 5242880, S_WUK: 4194304, S_WUV: 4194304, S_WO: 5242880,
        S_W1: 2211840, S_W2: 2211840, S_OUT: 5120, S_WS: WS_SIZE}
for s_ in (S_WQ, S_X, S_CKV, S_WUK, S_WS, S_WUV, S_WO, S_W1, S_W2, S_OUT):
    A(f"s_load_dwordx2 s[{s_}:{s_+1}], s[0:1], {ptr[s_]}")
A(f"s_lshr_b32 s{sR}, s2, 3")
A("v_lshrrev_b32 v1, 6, v0")
A("v_and_b32 v0, 63, v0")
A(f"v_readfirstlane_b32 s{sW}, v1")
A("v_lshlrev_b32 v6, 4, v0")
if not opt.nocodepf:
    A("s_getpc_b64 s[92:93]")
    A.lab("L_pc")
    A(f"s_sub_u32 s92, s92, L_pc-{NAME}_kernel")
    A("s_subb_u32 s93, s93, 0")
    A(f"s_mov_b32 s94, L_codeend-{NAME}_kernel")
    A("s_mov_b32 s95, 0x00020000")
    A(f"s_lshl_b32 s90, s{sR}, 10")
    A(f"s_cmp_lg_u32 s{sW}, 7")
    A("s_cbranch_scc1 L_nopf")
    A("buffer_load_dwordx4 v[252:255], v6, s[92:95], s90 offen")
    A.lab("L_nopf")
for s_ in ptr:
    A(f"s_mov_b32 s{s_+2}, {size[s_]}")
    A(f"s_mov_b32 s{s_+3}, 0x00020000")
A(f"s_and_b32 s{sX}, s2, 7")
A(f"s_mov_b32 s{sPLO}, 0x05040100")
A(f"s_mov_b32 s{sPHI}, 0x07060302")
A(f"s_mov_b32 s{sCNT}, 0")
A(f"s_mov_b32 s{sFAST}, 0")
A(f"s_and_b32 s78, s{sR}, 3")
if opt.hxor:
    A(f"s_xor_b32 s78, s78, {opt.hxor}")
A(f"s_lshl_b32 s{sH}, s{sX}, 2")
A(f"s_add_u32 s{sH}, s{sH}, s78")
A(f"s_lshl_b32 s88, s{sH}, 8")
A("v_lshrrev_b32 v1, 4, v0")
A("v_and_b32 v2, 15, v0")
A("v_bfe_u32 v3, v0, 2, 2")
A("v_and_b32 v4, 3, v0")
A("v_lshrrev_b32 v5, 2, v0")
A("v_lshlrev_b32 v7, 6, v1")
A("v_lshl_add_u32 v7, v4, 4, v7")
A(f"s_bfe_u32 s79, s{sR}, 0x20002")
A("s_lshl_b32 s80, s79, 22")
A(f"s_lshl_b32 s81, s{sH}, 17")
A("s_add_u32 s80, s80, s81")
A(f"s_xor_b32 s{sTL}, s{sW}, 4")
A(f"s_cmp_lt_u32 s{sR}, 16")
A(f"s_cselect_b32 s{sTL}, s{sTL}, s{sW}")
if opt.ilv:
    A(f"s_and_b32 s81, s{sTL}, 4")
    A("s_lshl_b32 s81, s81, 4")
    A(f"s_and_b32 s90, s{sTL}, 3")
    A("s_add_u32 s81, s81, s90")
    A("s_lshl_b32 s90, s81, 10")
    A("s_add_u32 s80, s80, s90")
    A(f"s_mul_i32 s81, s81, {ROWB}")
else:
    A(f"s_lshl_b32 s81, s{sTL}, 14")
    A("s_add_u32 s80, s80, s81")
    A(f"s_mul_i32 s81, s{sTL}, {16*ROWB}")
A("s_mul_i32 s87, s79, 160")
A(f"s_lshl_b32 s90, s{sW}, 5")
A("s_add_u32 s87, s87, s90")
A("s_lshl_b32 s89, s87, 13")
A("s_add_u32 s89, s89, s88")
A("v_lshlrev_b32 v9, 16, v1")
A("v_lshl_add_u32 v9, v2, 4, v9")
A("v_lshl_add_u32 v10, v3, 15, v7")
A("s_lshl_b32 s91, s79, 7")
A(f"s_and_b32 s90, s{sW}, 3")
A("s_lshl_b32 s90, s90, 5")
A("s_add_u32 s91, s91, s90")
A("s_lshl_b32 s91, s91, 13")
A("s_add_u32 s91, s91, s88")
A(f"s_cmp_lt_u32 s{sR}, 16")
A("s_waitcnt lgkmcnt(0)")
A(f"s_load_dwordx2 s[82:83], s[{S_WS}:{S_WS+1}], {W_EPOCH}")
A("s_cbranch_scc0 L_frontB")


def xt_publish(t):
    A("s_getreg_b32 s84, hwreg(HW_REG_XCC_ID)")
    A("s_and_b32 s84, s84, 15")
    A(f"s_lshl_b32 s85, s{sX}, 9")
    A(f"s_add_u32 s85, s85, {W_XT}")
    A(f"s_lshl_b32 s86, s{sR}, 4")
    A(f"v_mov_b32 v{t}, s84")
    A(f"v_mov_b32 v{t+1}, 0")
    A(f"v_mov_b32 v{t+2}, s{sT0}")
    A(f"v_mov_b32 v{t+3}, s{sT1}")
    A("v_mov_b32 v12, s86")
    A("s_mov_b64 exec, 1")
    A(f"buffer_store_dwordx4 v[{t}:{t+3}], v12, {srd(S_WS)}, s85 offen sc1")
    execall()


def uk_loads(ts, dst=None):
    for t in ts:
        A(f"s_add_u32 s90, s91, {(16*(t>>2) + (t&3))*8192}")
        d = dst if dst is not None else 208 + 4 * t
        A(f"buffer_load_dwordx4 v[{d}:{d+3}], v10, {srd(S_WUK)}, s90 offen {opt.pq}")


A(f"s_cmp_gt_u32 s{sW}, 4")
A("s_cbranch_scc1 L_notS1")
RAW = 16


def wq_issue(j):
    for i in range(8):
        d = RAW + 32 * j + 4 * i
        A(f"buffer_load_dwordx4 v[{d}:{d+3}], v9, {srd(S_WQ)}, s89 offen {opt.pq}")
        if i < 7:
            A("s_add_u32 s89, s89, 8192")
        if j == 0 and i == 3:
            A("s_barrier")
    if j < 3:
        A(f"s_add_u32 s89, s89, {(160-7)*8192}")
        A(f"s_sub_u32 s90, s89, {640*8192}")
        A(f"s_cmp_ge_u32 s89, {640*8192}")
        A("s_cselect_b32 s89, s90, s89")


def wq_proc(j):
    rw = RAW + 32 * j
    for jj in range(8):
        sel = sPHI if jj & 1 else sPLO
        o = 176 + 4 * jj
        for p in range(4):
            A(f"v_perm_b32 v{o+p}, v{rw+4*(2*p+1)+(jj>>1)}, v{rw+4*(2*p)+(jj>>1)}, s{sel}")
        if jj >= 1:
            j1 = jj - 1
            c = "0" if j == 0 else f"v[{144+4*j1}:{147+4*j1}]"
            A(f"v_mfma_f32_16x16x32_bf16 v[{144+4*j1}:{147+4*j1}], v[{240+4*j}:{243+4*j}], v[{176+4*j1}:{179+4*j1}], {c}")
    A("s_nop 0")
    c = "0" if j == 0 else "v[172:175]"
    A(f"v_mfma_f32_16x16x32_bf16 v[172:175], v[{240+4*j}:{243+4*j}], v[204:207], {c}")


wq_issue(0)
wq_issue(1)
A("v_mul_u32_u24 v8, 1296, v3")
A("v_lshl_add_u32 v8, v1, 4, v8")
A(f"v_add_u32 v8, {L_XN}, v8")
A("s_barrier")
for j in range(4):
    A("s_lshl_b32 s90, s87, 1")
    A("v_add_u32 v11, s90, v8")
    A(f"ds_read_b128 v[{240+4*j}:{243+4*j}], v11")
    if j < 3:
        A("s_add_u32 s87, s87, 160")
        A("s_sub_u32 s90, s87, 640")
        A("s_cmp_ge_u32 s87, 640")
        A("s_cselect_b32 s87, s90, s87")
wq_issue(2)
tag_setup()
A("s_waitcnt vmcnt(16)")
A.stamp(9, 7)
wq_proc(0)
wq_issue(3)
A("s_waitcnt vmcnt(16)")
wq_proc(1)
uk_loads(range(8))
A("s_barrier")
A("v_mul_u32_u24 v12, 576, v1")
A("v_lshl_add_u32 v12, v2, 5, v12")
A("v_lshl_add_u32 v12, v3, 4, v12")
A(f"s_mul_i32 s90, s{sW}, 2304")
A(f"s_add_u32 s90, s90, {L_QP}")
A("v_add_u32 v12, s90, v12")
A("s_waitcnt vmcnt(16)")
wq_proc(2)
A("v_mul_u32_u24 v11, 576, v4")
A("v_lshl_add_u32 v11, v5, 5, v11")
A("v_lshl_add_u32 v11, v1, 4, v11")
A(f"v_add_u32 v11, {L_QP}, v11")
A("v_bfe_u32 v8, v0, 2, 1")
A("v_bfe_u32 v13, v0, 3, 2")
A("v_lshlrev_b32 v14, 4, v4")
A("v_lshl_add_u32 v14, v8, 2, v14")
A("v_add_u32 v14, v14, v13")
A("v_lshlrev_b32 v14, 2, v14")
A("v_and_b32 v15, 7, v0")
A("v_lshlrev_b32 v15, 4, v15")
A("v_lshl_add_u32 v15, v13, 16, v15")
A("s_waitcnt vmcnt(8)")
A.stamp(1, 0)
A.stamp(1, 7)
wq_proc(3)
A("s_nop 3")
for jj in range(0, 8, 2):
    A(f"ds_write2_b32 v12, v{144+4*jj}, v{148+4*jj} offset0:{jj} offset1:{jj+1}")
A("s_waitcnt lgkmcnt(0)")
A.stamp(2)
A("s_barrier")
A(f"s_cmp_eq_u32 s{sW}, 4")
A("s_cbranch_scc0 L_s2")
ckv_dma(range(0, opt.b2))
A("s_barrier")
ckv_dma(range(opt.b2, 16))
A("s_branch L_qgather")

A.lab("L_notS1")
A(f"s_cmp_eq_u32 s{sW}, 5")
A("s_cbranch_scc0 L_w67")
A("v_mul_u32_u24 v8, 1280, v1")
A("v_lshl_add_u32 v8, v2, 4, v8")
for i in range(5):
    A(f"buffer_load_dwordx4 v[{16+4*i}:{19+4*i}], v8, {srd(S_X)}, 0 offen offset:{256*i}")
A("s_barrier")
A("v_mov_b32 v38, 0x3f803f80")
A("v_mov_b32 v36, 0")
A("v_mov_b32 v37, 0")
A("v_mul_u32_u24 v8, 1296, v1")
A("v_lshl_add_u32 v8, v2, 4, v8")
A(f"v_add_u32 v8, {L_XN}, v8")
A("s_waitcnt vmcnt(0)")
for i in range(20):
    A(f"v_dot2_f32_bf16 v36, v{16+i}, v38, v36")
    A(f"v_dot2_f32_bf16 v37, v{16+i}, v{16+i}, v37")
A("s_nop 1")
rowall("v_add_f32", [36, 37])
A(f"v_mul_f32 v36, {f32(1/640)}, v36")
A(f"v_mul_f32 v37, {f32(1/640)}, v37")
A("v_fma_f32 v37, -v36, v36, v37")
A("v_max_f32 v37, 0, v37")
A(f"v_add_f32 v37, {f32(1e-5)}, v37")
A("v_rsq_f32 v38, v37")
A("s_nop 0")
A("v_mul_f32 v36, -v36, v38")
for i in range(20):
    unpack(40, 41, 16 + i)
    A("v_pk_fma_f32 v[40:41], v[40:41], v[38:39], v[36:37] op_sel_hi:[1,0,0]")
    A(f"v_cvt_pk_bf16_f32 v{16+i}, v40, v41")
for i in range(5):
    A(f"ds_write_b128 v8, v[{16+4*i}:{19+4*i}] offset:{256*i}")
A("s_branch L_w567")
A.lab("L_w67")
A("s_barrier")
A.lab("L_w567")
tag_setup()
A("s_barrier")
A(f"s_cmp_eq_u32 s{sW}, 7")
A("s_cbranch_scc0 L_w56b")
xt_publish(20)
A.lab("L_w56b")
A("s_barrier")
ckv_dma(range(0, opt.b1))
A("s_barrier")
ckv_dma(range(opt.b1, opt.b1 + opt.b2))
A("s_barrier")
ckv_dma(range(opt.b1 + opt.b2, 16))
A("s_branch L_qgather")

A.lab("L_frontB")
A(f"s_and_b32 s92, s{sR}, 15")
A(f"s_lshl_b32 s93, s{sX}, 10")
A(f"s_cmp_gt_u32 s{sW}, 4")
A("s_cbranch_scc1 L_B2")
A("s_mul_i32 s89, s92, 5")
A(f"s_add_u32 s89, s89, s{sW}")
A("s_lshl_b32 s89, s89, 16")
A("s_add_u32 s89, s89, s93")
A("s_add_u32 s89, s89, 32768")
for i in range(4):
    A(f"buffer_load_dwordx4 v[16:19], v6, {srd(S_WQ)}, s89 offen {opt.pq}")
    if i < 3:
        A("s_add_u32 s89, s89, 8192")
A.lab("L_B2")
A("s_lshl_b32 s91, s92, 3")
A(f"s_add_u32 s91, s91, s{sW}")
A("s_lshl_b32 s91, s91, 15")
A("s_add_u32 s91, s91, s93")
A("s_barrier")
for i in range(4):
    A(f"buffer_load_dwordx4 v[16:19], v6, {srd(S_WUK)}, s91 offen {opt.pq}")
    if i < 3:
        A("s_add_u32 s91, s91, 8192")
A.lab("L_B3")
A("s_barrier")
ckv_dma(range(16), opt.kb)
tag_setup()
A(f"s_cmp_lg_u32 s{sW}, 0")
A("s_cbranch_scc1 L_qgather")
xt_publish(16)
A(f"s_lshl_b32 s89, s{sH}, 2")
A("s_add_u32 s89, s89, s79")
A("s_lshl_b32 s89, s89, 11")
A(f"s_add_u32 s89, s89, {W_H3B}")
A(f"buffer_load_dwordx4 v[16:19], v6, {srd(S_WS)}, s89 offen sc1")
A(f"buffer_load_dwordx4 v[16:19], v6, {srd(S_WS)}, s89 offen offset:1024 sc1")
A(f"s_and_b32 s90, s{sR}, 15")
A("s_lshl_b32 s90, s90, 10")
A(f"s_lshl_b32 s89, s{sX}, 14")
A("s_add_u32 s89, s89, s90")
A(f"s_add_u32 s89, s89, {W_H4}")
A(f"buffer_load_dwordx4 v[16:19], v6, {srd(S_WS)}, s89 offen sc1")
A(f"s_mul_i32 s89, s{sX}, 10240")
A("s_min_u32 s90, s90, 9216")
A("s_add_u32 s89, s89, s90")
A(f"s_add_u32 s89, s89, {W_H5C}")
A(f"buffer_load_dwordx4 v[16:19], v6, {srd(S_WS)}, s89 offen sc1")
A("s_branch L_qgather")

A.lab("L_s2")
for s_ in range(5):
    A(f"ds_read_b128 v[{24+8*s_}:{27+8*s_}], v11 offset:{2304*s_}")
    A(f"ds_read_b128 v[{28+8*s_}:{31+8*s_}], v11 offset:{2304*s_+16}")
for s_ in range(1, 5):
    A(f"s_waitcnt lgkmcnt({8-2*s_})")
    for i in range(4):
        A(f"v_pk_add_f32 v[{24+2*i}:{25+2*i}], v[{24+2*i}:{25+2*i}], v[{24+8*s_+2*i}:{25+8*s_+2*i}]")
for i in range(4):
    A(f"v_cvt_pk_bf16_f32 v{16+i}, v{24+2*i}, v{25+2*i}")
A("s_waitcnt vmcnt(0)")
A.stamp(3)
A("s_nop 0")
for t in range(8):
    A(f"v_mfma_f32_16x16x32_bf16 v[{40+4*t}:{43+4*t}], v[{208+4*t}:{211+4*t}], v[16:19], 0")
A(f"s_lshl_b32 s89, s{sH}, 11")
A(f"s_lshr_b32 s90, s{sR}, 2")
A("s_lshl_b32 s90, s90, 9")
A("s_add_u32 s89, s89, s90")
A(f"s_and_b32 s90, s{sW}, 3")
A("s_lshl_b32 s90, s90, 7")
A("s_add_u32 s89, s89, s90")
A(f"s_add_u32 s89, s89, {W_H2}")
for t in range(4):
    A(f"v_add_f32_dpp v{24+t}, v{40+4*t+1}, v{40+4*t} row_shl:4 row_mask:0xf bank_mask:0x1")
for t in range(4):
    d = 56 + 4 * t
    A(f"v_add_f32_dpp v{24+t}, v{d}, v{d+1} row_shr:4 row_mask:0xf bank_mask:0x2")
for t in range(4):
    A(f"v_add_f32_dpp v{24+t}, v{40+4*t+2}, v{24+t} row_shl:8 row_mask:0xf bank_mask:0x1")
for t in range(4):
    A(f"v_add_f32_dpp v{24+t}, v{56+4*t+2}, v{24+t} row_shl:4 row_mask:0xf bank_mask:0x2")
for t in range(4):
    A(f"v_add_f32_dpp v{24+t}, v{40+4*t+3}, v{24+t} row_shl:12 row_mask:0xf bank_mask:0x1")
for t in range(4):
    A(f"v_add_f32_dpp v{24+t}, v{56+4*t+3}, v{24+t} row_shl:8 row_mask:0xf bank_mask:0x2")
SC = (128 ** -0.5) * math.log2(math.e)
for t in range(4):
    A(f"v_mul_f32 v{24+t}, {f32(SC)}, v{24+t}")
A("v_cvt_pk_bf16_f32 v28, v24, v25")
A("v_cvt_pk_bf16_f32 v29, v26, v27")
A("ds_bpermute_b32 v16, v14, v28")
A("ds_bpermute_b32 v17, v14, v29")
A(f"v_mov_b32 v18, s{sT0}")
A(f"v_mov_b32 v19, s{sT1}")
A("s_waitcnt lgkmcnt(0)")
execmask(0xFFFFFFFF)
A(f"buffer_store_dwordx4 v[16:19], v15, {srd(S_WS)}, s89 offen sc1")
execall()
A.stamp(4)
A("s_barrier")
ckv_dma(range(15, -1, -1))

A.lab("L_qgather")
A("s_lshl_b32 s89, s79, 5")
A(f"s_and_b32 s90, s{sR}, 16")
A("s_add_u32 s89, s89, s90")
A(f"s_lshl_b32 s90, s{sW}, 1")
A("s_add_u32 s89, s89, s90")
A("s_lshl_b32 s89, s89, 11")
A(f"s_add_u32 s89, s89, {W_H2}")
A(f"s_lshl_b32 s85, s{sX}, 9")
A(f"s_add_u32 s85, s85, {W_XT}")
A("v_and_b32 v164, 0x1ff, v6")
A("v_lshlrev_b32 v248, 4, v2")
A(f"v_add_u32 v248, {L_MX}, v248")
A(f"s_lshl_b32 s90, s{sW}, 2")
A("v_add_u32 v249, s90, v248")
A(f"s_sub_u32 s94, 15, s{sR}")
A(f"s_cmp_eq_u32 s{sR}, 31")
A("s_cselect_b32 s94, 6, s94")
A(f"s_cmp_eq_u32 s{sR}, 9")
A("s_cselect_b32 s94, 7, s94")
A("s_cmp_lt_u32 s94, 7")
A(f"s_mul_i32 s90, s{sX}, 7")
A("s_cselect_b32 s94, s94, 99")
A("s_add_u32 s100, s94, s90")
A(f"s_cmp_lt_u32 s{sW}, 5")
A("s_cselect_b32 s101, s100, 99")
A("v_lshrrev_b32 v10, 3, v0")
A("v_and_b32 v245, 0x70, v6")
A("v_mul_u32_u24 v244, 10240, v10")
A("v_add_u32 v244, v244, v245")
A("v_lshl_add_u32 v10, v10, 13, v245")
A("v_mul_u32_u24 v247, 10240, v1")
A("v_lshl_add_u32 v247, v2, 4, v247")
A(f"s_and_b32 s93, s{sR}, 8")
A("s_lshl_b32 s93, s93, 5")
A(f"s_and_b32 s90, s{sW}, 2")
A("s_lshl_b32 s90, s90, 6")
A("s_add_u32 s93, s93, s90")
A(f"s_and_b32 s90, s{sW}, 4")
A("s_lshl_b32 s90, s90, 4")
A("s_add_u32 s93, s93, s90")
A(f"s_and_b32 s90, s{sW}, 1")
A("s_lshl_b32 s90, s90, 3")
A("s_add_u32 s93, s93, s90")
A("s_lshl_b32 s93, s93, 13")
A("s_add_u32 s93, s93, s88")
A(f"s_and_b32 s90, s{sR}, 4")
A("s_lshl_b32 s90, s90, 5")
A("s_add_u32 s93, s93, s90")
A(f"s_and_b32 s82, s{sT0}, 0x3fffffff")
A(f"s_not_b32 s90, s{sT0}")
A("s_lshl_b32 s90, s90, 2")
A("s_and_b32 s90, s90, 0xc0000000")
A("s_or_b32 s82, s82, s90")
A("s_mov_b32 s83, 0x00010001")


def sym(dst, sh):
    A(f"v_lshrrev_b32 v{dst}, v{sh}, v246")
    A(f"v_lshlrev_b32 v15, 15, v{dst}")
    A(f"v_and_b32 v{dst}, 1, v{dst}")
    A(f"v_and_or_b32 v{dst}, v15, s84, v{dst}")


A("s_waitcnt vmcnt(17)")
A("v_mov_b32 v246, s82")
A("s_mov_b32 s84, 0x10000")
A("v_not_b32 v246, v246")
A("v_lshlrev_b32 v245, 3, v4")
for i in range(4):
    sym(252 + i, 245)
    if i < 3:
        A("v_add_u32 v245, 2, v245")
A.stamp(5, 7)
A("s_barrier")
ql = [f"buffer_load_dwordx4 v[{144+4*i}:{147+4*i}], v6, {srd(S_WS)}, s89 offen offset:{1024*i}" for i in range(4)]
ql.append(f"buffer_load_dwordx4 v[160:163], v164, {srd(S_WS)}, s85 offen")
qt = [146, 150, 154, 158, 162]
for i in ql:
    A(i + " sc1")
A(f"v_mul_u32_u24 v12, {ROWB}, v2")
A("v_lshl_add_u32 v12, v1, 4, v12")
A(f"s_mul_i32 s90, s{sW}, {32*ROWB}")
A("v_add_u32 v11, s90, v12")
A(f"v_mul_u32_u24 v13, {ROWB}, v5")
A("v_lshl_add_u32 v13, v4, 3, v13")
A(f"s_and_b32 s94, s{sW}, 3")
A("s_lshl_b32 s90, s94, 8")
A("v_add_u32 v13, s90, v13")
A(f"v_add_u32 v14, {64*ROWB}, v13")
A("v_lshlrev_b32 v8, 3, v0")
A(f"s_mul_i32 s90, s{sW}, {2*ROWB}")
A(f"s_add_u32 s90, s90, {L_Q}")
A("v_add_u32 v8, s90, v8")
A(f"v_add_u32 v12, {L_Q}, v12")
A("s_waitcnt vmcnt(5)")
A.stamp(10, 7)
A("s_barrier")


def f_second(tag):
    if not opt.f2:
        return
    A(f"s_cmp_lt_u32 s{sR}, 16")
    A(f"s_cbranch_scc0 L_f2x{tag}")
    A("s_add_u32 s90, s91, 5120")
    A(f"s_cmp_lt_u32 s{sR}, 10")
    A(f"s_cbranch_scc0 L_f2b{tag}")
    for i in range(4):
        A(f"buffer_load_dwordx4 v[{192+4*i}:{195+4*i}], v244, {srd(S_WO)}, s90 offen offset:{1280*i} {opt.po}")
    A(f"s_branch L_f2x{tag}")
    A.lab(f"L_f2b{tag}")
    for i in range(4):
        A(f"buffer_load_dwordx4 v[{192+4*i}:{195+4*i}], v247, {srd(S_W2)}, s90 offen offset:{1280*i} {opt.po}")
    A.lab(f"L_f2x{tag}")


def s4_setup():
    A("v_lshlrev_b32 v68, 11, v3")
    A("v_lshl_add_u32 v68, v1, 5, v68")
    A("v_and_b32 v69, 1, v0")
    A("v_lshl_add_u32 v68, v69, 4, v68")
    A(f"s_lshl_b32 s80, s{sH}, 13")
    A(f"s_and_b32 s90, s{sR}, 8")
    A("s_lshl_b32 s90, s90, 7")
    A("s_add_u32 s80, s80, s90")
    A(f"s_lshl_b32 s90, s{sW}, 7")
    A("s_add_u32 s80, s80, s90")
    A(f"s_add_u32 s80, s80, {W_H3B}")
    A("v_and_b32 v70, 7, v0")
    A("v_lshlrev_b32 v70, 5, v70")
    A("v_lshl_add_u32 v70, v1, 8, v70")
    A(f"s_lshl_b32 s90, s{sW}, 10")
    A(f"s_add_u32 s90, s90, {L_RED}")
    A("v_add_u32 v70, s90, v70")
    A("v_lshlrev_b32 v71, 11, v1")
    A("v_lshl_add_u32 v71, v2, 4, v71")
    A(f"s_lshl_b32 s81, s{sX}, 14")
    A(f"s_and_b32 s90, s{sR}, 8")
    A("s_lshl_b32 s90, s90, 10")
    A("s_add_u32 s81, s81, s90")
    A(f"s_and_b32 s90, s{sH}, 3")
    A("s_lshl_b32 s90, s90, 9")
    A("s_add_u32 s81, s81, s90")
    A(f"s_and_b32 s90, s{sR}, 4")
    A("s_lshl_b32 s90, s90, 6")
    A("s_add_u32 s81, s81, s90")
    A(f"s_add_u32 s81, s81, {W_H4}")
    transpose(80, [212, 216, 220, 224], 4)


def uv_loads():
    for e in range(4):
        A(f"buffer_load_dwordx4 v[{212+4*e}:{215+4*e}], v10, {srd(S_WUV)}, s93 offen {opt.po}")
        if e < 3:
            A(f"s_add_u32 s93, s93, {16*8192}")


A(f"s_cmp_lt_u32 s{sR}, 16")
A("s_cbranch_scc1 L_tlF")
A(f"s_cmp_lt_u32 s{sW}, {opt.uvw}")
A("s_cbranch_scc1 L_tlD")
uv_loads()
A("s_branch L_tlD")
A.lab("L_tlF")
A(f"s_cmp_lt_u32 s{sR}, 10")
A("s_cbranch_scc0 L_tlF2")
A(f"s_lshl_b32 s91, s{sX}, 3")
A(f"s_add_u32 s91, s91, s{sW}")
A(f"s_mul_i32 s91, s91, {64*1280}")
A(f"s_lshl_b32 s90, s{sR}, 7")
A("s_add_u32 s91, s91, s90")
for i in range(4):
    A(f"buffer_load_dwordx4 v[{212+4*i}:{215+4*i}], v244, {srd(S_WO)}, s91 offen offset:{1280*i} {opt.po}")
A("s_branch L_tlD")
A.lab("L_tlF2")
A(f"s_mul_i32 s91, s101, {32*1280}")
A(f"s_lshl_b32 s90, s{sW}, 8")
A("s_add_u32 s91, s91, s90")
for i in range(4):
    A(f"buffer_load_dwordx4 v[{212+4*i}:{215+4*i}], v247, {srd(S_W2)}, s91 offen offset:{1280*i} {opt.po}")
A.lab("L_tlD")
A(f"s_cmp_lt_u32 s{sW}, 4")
A("s_cbranch_scc0 L_opV")
for tl in range(2):
    for ks in range(16):
        d = 16 + 64 * tl + 4 * ks
        A(f"ds_read_b128 v[{d}:{d+3}], v11 offset:{16*ROWB*tl + 64*ks}")
A("s_branch L_opD")
A.lab("L_opV")
trl = []
for ks in range(4):
    for t in range(8):
        for hf in range(2):
            base = 14 if ks >= 2 else 13
            off = ((ks & 1) * 32 + 16 * hf) * ROWB + 32 * t
            d = 16 + (ks * 8 + t) * 4 + 2 * hf
            trl.append(f"ds_read_b64_tr_b16 v[{d}:{d+1}], v{base} offset:{off}")
for i in trl[:opt.nv0]:
    A(i)
A.lab("L_opD")
A(f"s_cmp_lt_u32 s{sR}, 16")
A("s_cbranch_scc1 L_qw4")
A(f"s_cmp_lt_u32 s{sW}, {opt.uvw}")
A("s_cbranch_scc0 L_qw4")
A("s_waitcnt vmcnt(0)")
A.lab("L_qw4")
A("s_waitcnt vmcnt(4)")
for k, t in enumerate(qt):
    if k == 0:
        A(f"v_cmp_ne_u64 vcc, s[{sT0}:{sT1}], v[{t}:{t+1}]")
    else:
        A(f"v_cmp_ne_u64 s[98:99], s[{sT0}:{sT1}], v[{t}:{t+1}]")
        A("s_or_b64 vcc, vcc, s[98:99]")
A("s_cbranch_vccz L_qok")
poll(ql, qt, sleep=opt.qsleep)
A.lab("L_qok")
A.stamp(6)
for i in range(4):
    A(f"ds_write_b64 v8, v[{144+4*i}:{145+4*i}] offset:{(i>>1)*ROWB + (i&1)*512}")
xt_decide(160)
A("s_waitcnt lgkmcnt(0)")
A("s_barrier")
A(f"v_mov_b32 v234, s{sT0}")
A(f"v_mov_b32 v235, s{sT1}")
A(f"v_mov_b32 v238, s{sT0}")
A(f"v_mov_b32 v239, s{sT1}")
A(f"s_cmp_lt_u32 s{sW}, 4")
A("s_cbranch_scc0 L_V")
for ks in range(16):
    A(f"ds_read_b128 v[{144+4*ks}:{147+4*ks}], v12 offset:{64*ks}")
A(f"s_cmp_lt_u32 s{sR}, 16")
A("s_cbranch_scc1 L_nouv")
if opt.uvw:
    uv_loads()
A.lab("L_nouv")
S0, S1 = 228, 208
for ks in range(16):
    A(f"s_waitcnt lgkmcnt({15-ks})")
    for tl, S in ((0, S0), (1, S1)):
        c = "0" if ks == 0 else f"v[{S}:{S+3}]"
        d = 16 + 64 * tl + 4 * ks
        A(f"v_mfma_f32_16x16x32_bf16 v[{S}:{S+3}], v[{d}:{d+3}], v[{144+4*ks}:{147+4*ks}], {c}")
if opt.f2 == 1:
    f_second("k")
A(f"s_lshl_b32 s90, s{sW}, 10")
A(f"s_add_u32 s90, s90, {L_P}")
A("v_add_u32 v12, s90, v6")
A("s_nop 3")
A.stamp(7)
A(f"v_max3_f32 v232, v{S0}, v{S0+1}, v{S0+2}")
A("s_nop 0")
A(f"v_max3_f32 v233, v{S0+3}, v{S1}, v{S1+1}")
A(f"v_max3_f32 v232, v232, v{S1+2}, v{S1+3}")
A("v_max_f32 v232, v232, v233")
for sw in ("v_permlane16_swap_b32", "v_permlane32_swap_b32"):
    A("v_mov_b32 v233, v232")
    A("s_nop 1")
    A(f"{sw} v232, v233")
    A("s_nop 0")
    A("v_max_f32 v232, v232, v233")
A("ds_write_b32 v249, v232")
A("s_waitcnt lgkmcnt(0)")
A("s_barrier")
A.stamp(1, 4)
A("ds_read_b128 v[240:243], v248")
A("s_waitcnt lgkmcnt(0)")
A("v_max3_f32 v232, v240, v241, v242")
A("v_max_f32 v232, v232, v243")
for S in (S0, S1):
    for i in range(4):
        A(f"v_sub_f32 v{S+i}, v{S+i}, v232")
for S in (S0, S1):
    for i in range(4):
        A(f"v_exp_f32 v{S+i}, v{S+i}")
A(f"v_cvt_pk_bf16_f32 v240, v{S0}, v{S0+1}")
A(f"v_cvt_pk_bf16_f32 v241, v{S0+2}, v{S0+3}")
A(f"v_cvt_pk_bf16_f32 v242, v{S1}, v{S1+1}")
A(f"v_cvt_pk_bf16_f32 v243, v{S1+2}, v{S1+3}")
A("ds_write_b128 v12, v[240:243]")
A("s_waitcnt lgkmcnt(0)")
A("s_barrier")
A(f"s_cmp_lg_u32 s{sW}, {opt.stw}")
A("s_cbranch_scc1 L_cbK")
A(f"v_add_u32 v11, {L_P}, v6")
for ks in range(4):
    A(f"ds_read_b128 v[{144+4*ks}:{147+4*ks}], v11 offset:{1024*ks}")
for i in range(4):
    A(f"v_mov_b32 v{240+i}, 0x3f803f80")
A("s_lshl_b32 s95, s79, 5")
A(f"s_and_b32 s90, s{sR}, 16")
A("s_add_u32 s95, s95, s90")
A("s_lshl_b32 s95, s95, 1")
A(f"s_add_u32 s95, s95, s{sH}")
A("s_lshl_b32 s95, s95, 8")
A(f"s_add_u32 s95, s95, {W_STX}")
for ks in range(4):
    A(f"s_waitcnt lgkmcnt({3-ks})")
    c = "0" if ks == 0 else "v[228:231]"
    A(f"v_mfma_f32_16x16x32_bf16 v[228:231], v[240:243], v[{144+4*ks}:{147+4*ks}], {c}")
A("s_nop 7")
A("v_mov_b32 v233, v228")
execmask(0xFFFF)
A(f"buffer_store_dwordx4 v[232:235], v6, {srd(S_WS)}, s95 offen sc1")
execall()
A("s_branch L_cbK")

A.lab("L_V")
if opt.f2 in (1, 2):
    f_second("v")
if opt.vdelay:
    A(f"s_sleep {opt.vdelay}")
for i in trl[opt.nv0:]:
    A(i)
A("v_lshlrev_b32 v13, 17, v1")
A("v_lshl_add_u32 v13, v2, 4, v13")
A("s_lshl_b32 s93, s79, 5")
A(f"s_and_b32 s90, s{sR}, 16")
A("s_add_u32 s93, s93, s90")
A("s_lshl_b32 s93, s93, 15")
A(f"s_lshl_b32 s90, s{sH}, 10")
A("s_add_u32 s93, s93, s90")
A("s_lshl_b32 s90, s94, 8")
A("s_add_u32 s93, s93, s90")
A(f"s_add_u32 s93, s93, {W_H3A}")
A(f"v_add_u32 v11, {L_P}, v6")
for i in range(4):
    A(f"v_xor_b32 v{208+i}, s83, v{252+i}")
A("s_barrier")
A("s_waitcnt lgkmcnt(0)")
A("s_barrier")
A.stamp(2, 4)
for ks in range(4):
    A(f"ds_read_b128 v[{144+4*ks}:{147+4*ks}], v11 offset:{1024*ks}")
for ks in range(4):
    A(f"s_waitcnt lgkmcnt({3-ks})")
    for t in range(8):
        c = "0" if ks == 0 else f"v[{160+4*t}:{163+4*t}]"
        bb = 16 + (ks * 8 + t) * 4
        A(f"v_mfma_f32_16x16x32_bf16 v[{160+4*t}:{163+4*t}], v[{144+4*ks}:{147+4*ks}], v[{bb}:{bb+3}], {c}")
A("s_nop 5")
A.stamp(3, 4)
for r_ in range(4):
    for i in range(4):
        A(f"v_perm_b32 v{16+4*r_+i}, v{164+8*i+r_}, v{160+8*i+r_}, s{sPHI}")
    for i in range(4):
        A(f"v_bfi_b32 v{16+4*r_+i}, s83, v{208+i}, v{16+4*r_+i}")
    A(f"buffer_store_dwordx4 v[{16+4*r_}:{19+4*r_}], v13, {srd(S_WS)}, s93 offen sc1")
    if r_ < 3:
        A("s_add_u32 s93, s93, 32768")
A.stamp(8)
if opt.ackn >= 0:
    A(f"s_waitcnt vmcnt({opt.ackn})")
if opt.bs:
    A("s_barrier")
A("s_waitcnt vmcnt(4)")
s4_setup()
A("s_barrier")
A("s_branch L_cbd")

L_CB = L_OS
L_CM = L_OS + 8192
A.lab("L_cbK")
A("s_barrier")
A("s_waitcnt vmcnt(0)")
s4_setup()
A("v_lshrrev_b32 v13, 5, v0")
A("v_and_b32 v9, 0x1ff, v6")
A("v_lshl_add_u32 v9, v13, 10, v9")
A("s_lshl_b32 s96, s79, 5")
A(f"s_add_u32 s96, s96, s{sH}")
A("s_lshl_b32 s96, s96, 15")
A(f"s_lshl_b32 s90, s{sW}, 13")
A("s_add_u32 s96, s96, s90")
A(f"s_and_b32 s90, s{sR}, 16")
A("s_lshl_b32 s90, s90, 5")
A("s_add_u32 s96, s96, s90")
A(f"s_add_u32 s96, s96, {W_H3A}")
A("s_add_u32 s92, s96, 4096")
A("v_lshl_add_u32 v12, v4, 1, v13")
A("v_lshlrev_b32 v12, 8, v12")
A("s_lshl_b32 s86, s79, 5")
A(f"s_and_b32 s90, s{sH}, 16")
A("s_add_u32 s86, s86, s90")
A("s_lshl_b32 s86, s86, 9")
A(f"s_lshl_b32 s90, s{sW}, 11")
A("s_add_u32 s86, s86, s90")
A(f"s_and_b32 s90, s{sH}, 15")
A("s_lshl_b32 s90, s90, 4")
A("s_add_u32 s86, s86, s90")
A(f"s_add_u32 s86, s86, {W_STX}")
A(f"s_lshl_b32 s90, s{sW}, 10")
A(f"s_add_u32 s90, s90, {L_CB}")
A("v_add_u32 v11, s90, v6")
A(f"s_lshl_b32 s90, s{sW}, 3")
A(f"s_add_u32 s90, s90, {L_CM}")
A("v_mov_b32 v8, s90")
A(f"v_add_u32 v65, {L_CB}, v6")
A(f"v_mov_b32 v66, {L_CM}")
A(f"s_lshl_b32 s93, s{sH}, 2")
A("s_add_u32 s93, s93, s79")
A("s_lshl_b32 s93, s93, 11")
A(f"s_and_b32 s90, s{sR}, 16")
A("s_lshl_b32 s90, s90, 6")
A("s_add_u32 s93, s93, s90")
A(f"s_add_u32 s93, s93, {W_H3B}")
for i in range(8):
    A(f"v_mov_b32 v{48+i}, 0")
A.stamp(6, 4)
bulk = [f"buffer_load_dwordx4 v[{32+4*i}:{35+4*i}], v9, {srd(S_WS)}, {'s96' if i < 2 else 's92'} offen offset:{2048*(i&1)} sc1" for i in range(4)]
stl = f"buffer_load_dwordx4 v[16:19], v12, {srd(S_WS)}, s86 offen"
if opt.spec:
    if opt.sd:
        A(f"s_sleep {opt.sd}")
    execmask(0x0000000F0000000F)
    A(stl + " sc1")
    execall()
    for i in bulk:
        A(i)
    A("s_waitcnt vmcnt(4)")
    execmask(0x0000000F0000000F)
    A(f"v_cmp_ne_u64 vcc, s[{sT0}:{sT1}], v[18:19]")
    A("s_cbranch_vccz L_stok")
    poll([stl], [18], sleep=opt.ssleep)
    if opt.bdelay:
        A(f"s_sleep {opt.bdelay}")
    A.lab("L_stok")
    execall()
else:
    execmask(0x0000000F0000000F)
    poll([stl], [18], sleep=opt.ssleep)
    execall()
    if opt.bdelay:
        A(f"s_sleep {opt.bdelay}")
    for i in bulk:
        A(i)
A.stamp(9, 4)
A.stamp(3, 0)


def all8(op, r_, t):
    for m in ("quad_perm:[1,0,3,2]", "quad_perm:[2,3,0,1]"):
        A("s_nop 1")
        A(f"{op}_dpp v{r_}, v{r_}, v{r_} {m} {DPPM}")
    A(f"v_mov_b32 v{t}, v{r_}")
    A("s_nop 1")
    A(f"v_permlane32_swap_b32 v{r_}, v{t}")
    A("s_nop 0")
    A(f"{op} v{r_}, v{r_}, v{t}")


A("v_mov_b32 v20, v16")
all8("v_max_f32", 20, 26)
A("v_sub_f32 v16, v16, v20")
A("v_exp_f32 v16, v16")
A("s_nop 0")
A("v_mul_f32 v21, v16, v17")
all8("v_add_f32", 21, 26)
A("s_mov_b64 exec, 1")
A("ds_write_b64 v8, v[20:21]")
execall()
A("v_mov_b32 v17, v16")
A("s_nop 1")
A("v_permlane16_swap_b32 v16, v17")
A("s_nop 1")
for i in range(4):
    A(f"v_mov_b32_dpp v{24+2*i}, v16 row_newbcast:{i} {DPPM}")


def take(i, lf):
    w_ = 32 + 4 * i
    for d in range(4):
        A(f"v_xor_b32 v{w_+d}, v{w_+d}, v{252+d}")
    A(f"v_bitop3_b32 v64, v{w_}, v{w_+1}, s83 bitop3:0x80")
    A(f"v_bitop3_b32 v64, v64, v{w_+2}, v{w_+3} bitop3:0x80")
    A("v_cmp_ne_u32 vcc, s83, v64")
    for d in range(4):
        unpack(56 + 2 * d, 57 + 2 * d, w_ + d)
    A(f"s_cbranch_vccnz {lf}")
    for d in range(4):
        A(f"v_pk_fma_f32 v[{48+2*d}:{49+2*d}], v[{56+2*d}:{57+2*d}], v[{24+2*i}:{25+2*i}], v[{48+2*d}:{49+2*d}] op_sel_hi:[1,0,1]")
    A(f"s_bitset0_b32 s94, {i}")
    A.lab(lf)


A("s_mov_b32 s94, 15")
for i in range(4):
    A(f"s_waitcnt vmcnt({3-i})")
    take(i, A.newlab("Ltk"))
A("s_cmp_eq_u32 s94, 0")
A("s_cbranch_scc1 L_bkx")
A.lab("L_bk0")
for i in range(4):
    l = A.newlab("Lrl")
    A(f"s_bitcmp1_b32 s94, {i}")
    A(f"s_cbranch_scc0 {l}")
    A(bulk[i])
    A.lab(l)
A(f"s_add_u32 s{sCNT}, s{sCNT}, 0x10000")
A(f"s_cmp_gt_u32 s{sCNT}, 0x7fff0000")
A("s_cbranch_scc1 L_end")
A("s_waitcnt vmcnt(0)")
for i in range(4):
    l = A.newlab("Ltk")
    A(f"s_bitcmp1_b32 s94, {i}")
    A(f"s_cbranch_scc0 {l}")
    take(i, l)
A("s_cmp_eq_u32 s94, 0")
A("s_cbranch_scc0 L_bk0")
A.lab("L_bkx")
A.stamp(10, 4)
A(f"s_lshr_b32 s97, s{sCNT}, 16")
A(f"s_and_b32 s{sCNT}, s{sCNT}, 0xffff")
for e in range(4):
    A(f"v_permlane32_swap_b32 v{48+e}, v{52+e}")
A("v_pk_add_f32 v[48:49], v[48:49], v[52:53]")
A("v_pk_add_f32 v[50:51], v[50:51], v[54:55]")
A("ds_write_b128 v11, v[48:51]")
A(f"s_cmp_lg_u32 s{sW}, 1")
A("s_waitcnt lgkmcnt(0)")
A("s_barrier")
A("s_cbranch_scc1 L_cbd")
A("ds_read_b128 v[16:19], v66")
A("ds_read_b128 v[20:23], v66 offset:16")
for i in range(4):
    A(f"ds_read_b128 v[{32+4*i}:{35+4*i}], v65 offset:{1024*i}")
A("s_waitcnt lgkmcnt(4)")
A("v_max3_f32 v24, v16, v18, v20")
A("v_max_f32 v24, v24, v22")
for i in range(4):
    A(f"v_sub_f32 v{16+2*i}, v{16+2*i}, v24")
for i in range(4):
    A(f"v_exp_f32 v{16+2*i}, v{16+2*i}")
A("v_mul_f32 v25, v16, v17")
A("v_fmac_f32 v25, v18, v19")
A("v_fmac_f32 v25, v20, v21")
A("v_fmac_f32 v25, v22, v23")
A("v_rcp_f32 v26, v25")
A("s_waitcnt lgkmcnt(0)")
for i in range(4):
    for hh in range(2):
        x = 32 + 4 * i + 2 * hh
        if i == 0:
            A(f"v_pk_mul_f32 v[{48+2*hh}:{49+2*hh}], v[{x}:{x+1}], v[16:17] op_sel_hi:[1,0]")
        else:
            A(f"v_pk_fma_f32 v[{48+2*hh}:{49+2*hh}], v[{x}:{x+1}], v[{16+2*i}:{17+2*i}], v[{48+2*hh}:{49+2*hh}] op_sel_hi:[1,0,1]")
A("v_pk_mul_f32 v[48:49], v[48:49], v[26:27] op_sel_hi:[1,0]")
A("v_pk_mul_f32 v[50:51], v[50:51], v[26:27] op_sel_hi:[1,0]")
A("v_cvt_pk_bf16_f32 v236, v48, v49")
A("v_cvt_pk_bf16_f32 v237, v50, v51")
store_local([f"buffer_store_dwordx4 v[236:239], v6, {srd(S_WS)}, s93 offen"])
A.stamp(5, 0)
A.stamp(11, 4)
A.lab("L_cbd")
A(f"s_cmp_lt_u32 s{sR}, 16")
A("s_cbranch_scc1 L_F")

poll([f"buffer_load_dwordx4 v[208:211], v68, {srd(S_WS)}, s80 offen"], [210])
A.stamp(9, 0)
for jj in range(8):
    d = 144 + 4 * jj
    A(f"v_mfma_f32_16x16x16_bf16 v[{d}:{d+3}], v[208:209], v[{80+2*jj}:{81+2*jj}], 0")
A("s_nop 1")
for jj in range(8):
    d = 144 + 4 * jj
    A(f"v_add_f32_dpp v{216+jj}, v{d+1}, v{d} row_shl:8 {DPPM}")
execmask(M_N8)
A("ds_write_b128 v70, v[216:219]")
A("ds_write_b128 v70, v[220:223] offset:16")
execall()
A("s_waitcnt lgkmcnt(0)")
A("s_barrier")
A(f"s_cmp_lg_u32 s{sW}, 7")
A("s_cbranch_scc1 L_clean")
for s_ in range(8):
    A(f"ds_read_b128 v[{144+4*s_}:{147+4*s_}], v6 offset:{L_RED + 1024*s_}")
sum_b128(8, 144, True)
A("v_cvt_pk_bf16_f32 v236, v144, v145")
A("v_cvt_pk_bf16_f32 v237, v146, v147")
store_local([f"buffer_store_dwordx4 v[236:239], v71, {srd(S_WS)}, s81 offen"])
A.stamp(10, 0)
A("s_branch L_fin")

A.lab("L_clean")
A("s_mov_b32 s94, s100")
A("s_mov_b32 s97, s101")
A(f"s_cmp_eq_u32 s{sR}, 31")
A("s_cbranch_scc1 L_F1")
A(f"s_cmp_lt_u32 s{sW}, 2")
A("s_cbranch_scc0 L_fin")

A.lab("L_red")
A(f"s_cmp_lt_u32 s{sR}, 26")
A("s_cbranch_scc0 L_fin")
A(f"s_and_b32 s94, s{sR}, 15")
A("v_and_b32 v12, 1, v1")
A("v_mul_u32_u24 v13, 1280, v12")
A("v_lshl_add_u32 v13, v2, 3, v13")
A("v_lshrrev_b32 v15, 5, v0")
A("v_lshl_add_u32 v13, v15, 2, v13")
A(f"s_mul_i32 s90, s{sW}, 2560")
A("s_lshl_b32 s93, s94, 7")
A("s_add_u32 s90, s90, s93")
A(f"buffer_load_dword v200, v13, {srd(S_X)}, s90 offen")
A("v_mul_u32_u24 v13, 2560, v12")
A("v_lshl_add_u32 v13, v2, 4, v13")
A(f"s_mul_i32 s96, s{sX}, 10240")
A(f"s_mul_i32 s90, s{sW}, 5120")
A("s_add_u32 s96, s96, s90")
A("s_lshl_b32 s90, s94, 8")
A("s_add_u32 s96, s96, s90")
A(f"s_add_u32 s96, s96, {W_H5C}")
A("v_and_b32 v14, 0x1ff, v6")
A("v_lshl_add_u32 v14, v15, 10, v14")
A("s_lshl_b32 s95, s94, 13")
A(f"s_lshl_b32 s90, s{sW}, 9")
A("s_add_u32 s95, s95, s90")
A(f"s_add_u32 s95, s95, {W_H5B}")
A("s_add_u32 s93, s95, 4096")
poll([f"buffer_load_dwordx4 v[{144+4*i}:{147+4*i}], v14, {srd(S_WS)}, {'s95' if i < 2 else 's93'} offen offset:{2048*(i&1)}" for i in range(4)],
     [146 + 4 * i for i in range(4)])
for i in range(4):
    unpack(160 + 4 * i, 161 + 4 * i, 144 + 4 * i)
    unpack(162 + 4 * i, 163 + 4 * i, 145 + 4 * i)
unpack(202, 203, 200)
sum_b128(4, 160)
A("s_nop 1")
A("v_permlane32_swap_b32 v160, v162")
A("v_permlane32_swap_b32 v161, v163")
A("s_nop 0")
A("v_pk_add_f32 v[160:161], v[160:161], v[162:163]")
A("v_pk_add_f32 v[160:161], v[160:161], v[202:203]")
A("v_cvt_pk_bf16_f32 v236, v160, v161")
A("v_cvt_pk_bf16_f32 v237, v160, v161")
A("s_nop 1")
A("v_permlane32_swap_b32 v236, v237")
execmask(0xFFFFFFFF)
store_local([f"buffer_store_dwordx4 v[236:239], v13, {srd(S_WS)}, s96 offen"])
execall()
A.stamp(11)
A("s_branch L_fin")

A.lab("L_s8")
A("s_lshl_b32 s94, s2, 1")
A(f"s_and_b32 s90, s{sW}, 1")
A("s_add_u32 s94, s94, s90")
A("s_mul_i32 s90, s94, 1639")
A("s_lshr_b32 s90, s90, 16")
A("s_mul_i32 s93, s90, 40")
A("s_sub_u32 s93, s94, s93")
A("s_lshr_b32 s95, s93, 3")
A("s_lshl_b32 s95, s95, 5")
A("s_bfe_u32 s96, s93, 0x10002")
A("s_add_u32 s95, s95, s96")
A("s_and_b32 s96, s93, 3")
A("s_lshl_b32 s96, s96, 3")
A("s_add_u32 s95, s95, s96")
A("v_mul_u32_u24 v12, 10240, v5")
A("v_lshl_add_u32 v12, v4, 4, v12")
A("s_lshl_b32 s78, s94, 6")
A(f"s_add_u32 s78, s78, {W_H6}")
A(f"s_add_u32 s79, s78, {16*10240}")
A(f"s_add_u32 s80, s78, {32*10240}")
A(f"s_add_u32 s81, s78, {48*10240}")
A("v_add_u32 v13, s81, v12")
A(f"s_lshl_b32 s82, s{sX}, 2")
A("s_add_u32 s82, s82, s90")
A("s_mul_i32 s82, s82, 160")
A("s_add_u32 s82, s82, s95")
A("s_lshl_b32 s82, s82, 4")
A(f"s_add_u32 s82, s82, {W_H5C}")
A("v_lshlrev_b32 v14, 5, v4")
A("v_add_u32 v14, s82, v14")
A("v_cmp_gt_u32 vcc, 6, v5")
A("s_nop 1")
A("v_cndmask_b32 v13, v14, v13, vcc")
A("s_mul_i32 s83, s90, 1280")
A("s_lshl_b32 s84, s95, 3")
A("s_add_u32 s83, s83, s84")
A("v_lshlrev_b32 v15, 4, v4")
A("v_lshl_add_u32 v15, v1, 1, v15")
s8l = [f"buffer_load_dwordx4 v[144:147], v12, {srd(S_WS)}, s78 offen",
       f"buffer_load_dwordx4 v[148:151], v12, {srd(S_WS)}, s79 offen",
       f"buffer_load_dwordx4 v[152:155], v12, {srd(S_WS)}, s80 offen",
       f"buffer_load_dwordx4 v[156:159], v13, {srd(S_WS)}, 0 offen"]
A("s_sleep 4")
for i in s8l:
    A(i + " sc1")
poll([f"buffer_load_dwordx4 v[164:167], v14, {srd(S_WS)}, 0 offen"], [166], sleep=2)
poll(s8l, [146, 150, 154, 158])
A("v_cmp_gt_u32 vcc, 7, v5")
A("s_nop 1")
A("v_cndmask_b32 v156, 0, v156, vcc")
A("v_cndmask_b32 v157, 0, v157, vcc")
for i in range(4):
    unpack(160 + 4 * i, 161 + 4 * i, 144 + 4 * i)
    unpack(162 + 4 * i, 163 + 4 * i, 145 + 4 * i)
sum_b128(4, 160)
A("s_nop 1")
A("v_permlane32_swap_b32 v160, v162")
A("v_permlane32_swap_b32 v161, v163")
A("s_nop 0")
A("v_pk_add_f32 v[160:161], v[160:161], v[162:163]")
A("s_nop 1")
A("v_permlane16_swap_b32 v160, v161")
A("s_nop 0")
A("v_add_f32 v160, v160, v161")
A("s_nop 1")
A(f"v_add_f32_dpp v160, v160, v160 row_ror:8 {DPPM}")
A("s_nop 1")
A(f"v_add_f32_dpp v160, v160, v160 row_ror:4 {DPPM}")
A("s_nop 0")
A("v_cvt_pk_bf16_f32 v160, v160, v160")
execmask(M_N4)
A(f"buffer_store_short v160, v15, {srd(S_OUT)}, s83 offen")
execall()
A("s_cmp_lg_u32 s94, 0")
A("s_cbranch_scc1 L_s8x")
A("v_mov_b32 v12, 0")
A("s_mov_b64 exec, 1")
A(f"buffer_store_dwordx2 v[238:239], v12, {srd(S_WS)}, 0 offen sc1")
execall()
A.lab("L_s8x")
if opt.padto:
    A.lab("L_pad")
    A("s_memrealtime s[6:7]")
    A("s_waitcnt lgkmcnt(0)")
    A("s_sub_u32 s6, s6, s4")
    A(f"s_cmp_lt_u32 s6, {opt.padto*100}")
    A("s_cbranch_scc1 L_pad")
A.stamp(11)
A("s_branch L_fin")

def w1_loads():
    A("v_mul_u32_u24 v15, 13824, v5")
    A("v_lshl_add_u32 v15, v4, 4, v15")
    A(f"s_mul_i32 s93, s{sW}, {128*3456}")
    A("s_lshl_b32 s90, s94, 6")
    A("s_add_u32 s93, s93, s90")
    for i in range(8):
        A(f"s_add_u32 s90, s93, {((i & 3) + 64*(i >> 2))*3456}")
        A(f"buffer_load_dwordx4 v[{16+4*i}:{19+4*i}], v15, {srd(S_W1)}, s90 offen {opt.pt}")


A.lab("L_F")
if opt.fwait:
    A("s_waitcnt vmcnt(0)")
    A.stamp(3, 5)
A("s_barrier")
if opt.fwait > 1:
    A(f"s_sleep {opt.fwait}")
A("s_waitcnt vmcnt(4)")
if opt.f2 == 2:
    A(f"s_cmp_lt_u32 s{sW}, 4")
    A("s_cbranch_scc0 L_f2xl")
    f_second("l")
if opt.f2 == 3:
    f_second("l")
A("s_mov_b32 s94, s100")
A("s_mov_b32 s97, s101")
A(f"s_cmp_lt_u32 s{sR}, 10")
A("s_cbranch_scc0 L_F1")
if opt.d1:
    A(f"s_sleep {opt.d1}")
if not opt.f2:
    A("s_add_u32 s90, s91, 5120")
    for i in range(4):
        A(f"buffer_load_dwordx4 v[{192+4*i}:{195+4*i}], v244, {srd(S_WO)}, s90 offen offset:{1280*i} {opt.po}")
A(f"s_lshl_b32 s90, s{sR}, 3")
A(f"s_add_u32 s90, s90, s{sW}")
A(f"s_mul_i32 s92, s{sX}, 7")
A("s_add_u32 s92, s92, 6")
A("s_cmp_lt_u32 s90, 40")
A("s_cbranch_scc0 L_hp2")
A("s_lshl_b32 s92, s92, 6")
A("v_mul_u32_u24 v15, 3456, v5")
A("v_lshl_add_u32 v15, v4, 4, v15")
A(f"s_mul_i32 s90, s90, {16*3456}")
A("s_add_u32 s90, s90, s92")
A(f"buffer_load_dwordx4 v[48:51], v15, {srd(S_W1)}, s90 offen")
A("s_branch L_s5")
A.lab("L_hp2")
A("s_sub_u32 s90, s90, 40")
A("s_lshl_b32 s90, s90, 10")
A(f"s_mul_i32 s92, s92, {32*1280}")
A("s_add_u32 s90, s90, s92")
A(f"buffer_load_dwordx4 v[48:51], v6, {srd(S_W2)}, s90 offen")
A.lab("L_s5")
A("s_waitcnt vmcnt(1)")
transpose(112, [212, 216, 220, 224, 192, 196, 200, 204], 4)
A("v_lshl_add_u32 v12, v3, 11, v7")
A(f"s_lshl_b32 s95, s{sX}, 14")
A(f"s_lshl_b32 s90, s{sW}, 8")
A("s_add_u32 s95, s95, s90")
A(f"s_add_u32 s95, s95, {W_H4}")
A("s_add_u32 s96, s95, 8192")
A("v_and_b32 v14, 7, v0")
A("v_lshlrev_b32 v14, 5, v14")
A("v_lshl_add_u32 v14, v1, 8, v14")
A(f"s_lshl_b32 s90, s{sW}, 10")
A(f"s_add_u32 s90, s90, {L_RED}")
A("v_add_u32 v14, s90, v14")
poll([f"buffer_load_dwordx4 v[208:211], v12, {srd(S_WS)}, s95 offen",
      f"buffer_load_dwordx4 v[212:215], v12, {srd(S_WS)}, s96 offen"], [210, 214], sleep=1)
A.stamp(9, 0)
unpack(216, 217, 208); unpack(218, 219, 209); unpack(220, 221, 212); unpack(222, 223, 213)
A("v_pk_add_f32 v[216:217], v[216:217], v[220:221]")
A("v_pk_add_f32 v[218:219], v[218:219], v[222:223]")
A("v_cvt_pk_bf16_f32 v208, v216, v217")
A("v_cvt_pk_bf16_f32 v209, v218, v219")
A("s_nop 1")
A(f"v_mov_b32_dpp v212, v208 quad_perm:[0,2,0,2] {DPPM}")
A(f"v_mov_b32_dpp v213, v209 quad_perm:[0,2,0,2] {DPPM}")
A(f"v_mov_b32_dpp v214, v208 quad_perm:[1,3,1,3] {DPPM}")
A(f"v_mov_b32_dpp v215, v209 quad_perm:[1,3,1,3] {DPPM}")
A("s_nop 1")
for jj in range(8):
    d = 144 + 4 * jj
    A(f"v_mfma_f32_16x16x32_bf16 v[{d}:{d+3}], v[212:215], v[{112+4*jj}:{115+4*jj}], 0")
A("s_nop 1")
for jj in range(8):
    d = 144 + 4 * jj
    A(f"v_add_f32_dpp v{216+jj}, v{d+1}, v{d} row_shl:8 {DPPM}")
execmask(M_N8)
A("ds_write_b128 v14, v[216:219]")
A("ds_write_b128 v14, v[220:223] offset:16")
execall()
A("s_waitcnt lgkmcnt(0)")
A("s_barrier")
A(f"s_and_b32 s90, s{sW}, 6")
A("s_cmp_eq_u32 s90, 2")
A("s_cbranch_scc1 L_s8")
A(f"s_cmp_lg_u32 s{sW}, 7")
A("s_cbranch_scc1 L_fin")
for s in range(8):
    A(f"ds_read_b128 v[{144+4*s}:{147+4*s}], v6 offset:{L_RED + 1024*s}")
A(f"s_lshl_b32 s95, s{sR}, 3")
A(f"s_add_u32 s95, s95, s{sX}")
A("s_lshl_b32 s95, s95, 10")
A(f"s_add_u32 s95, s95, {W_H5B}")
sum_b128(8, 144, True)
A("v_cvt_pk_bf16_f32 v236, v144, v145")
A("v_cvt_pk_bf16_f32 v237, v146, v147")
A(f"buffer_store_dwordx4 v[236:239], v6, {srd(S_WS)}, s95 offen sc1")
A.stamp(11)
A("s_branch L_fin")

A.lab("L_F1")
A("s_cmp_lt_u32 s97, 54")
A("s_cbranch_scc0 L_fin")
A(f"s_cmp_lt_u32 s{sR}, 16")
A("s_cbranch_scc1 L_F1a")
A("s_sleep 4")
A(f"s_mul_i32 s91, s94, {32*1280}")
A(f"s_lshl_b32 s90, s{sW}, 8")
A("s_add_u32 s91, s91, s90")
A("s_add_u32 s90, s91, 5120")
for i in range(8):
    d = 212 + 4 * i if i < 4 else 192 + 4 * (i - 4)
    A(f"buffer_load_dwordx4 v[{d}:{d+3}], v247, {srd(S_W2)}, {'s91' if i < 4 else 's90'} offen offset:{1280*(i&3)} {opt.po}")
A.lab("L_F1a")
w1_loads()
A("s_waitcnt vmcnt(8)")
transpose(112, [212, 216, 220, 224, 192, 196, 200, 204], 4)
A("s_waitcnt vmcnt(0)")
A.stamp(2, 0)
transpose(80, [16 + 4 * i for i in range(8)], 4)
for i in range(4):
    A(f"v_mov_b32 v{48+i}, 0x3f803f80")
A("s_nop 1")
for jj in range(8):
    A(f"v_mfma_f32_16x16x32_bf16 v[{16+4*jj}:{19+4*jj}], v[48:51], v[{80+4*jj}:{83+4*jj}], 0")
A("s_nop 1")
dppsum([56 + jj for jj in range(8)], [16 + 4 * jj for jj in range(8)])
A("v_lshlrev_b32 v14, 5, v4")
A(f"s_lshl_b32 s90, s{sW}, 7")
A(f"s_add_u32 s90, s90, {L_CS}")
A("v_add_u32 v14, s90, v14")
A("s_mov_b64 exec, 15")
A("ds_write_b128 v14, v[56:59]")
A("ds_write_b128 v14, v[60:63] offset:16")
execall()
A("s_waitcnt lgkmcnt(0)")
A("s_barrier")
A.lab("L_s67")
A("v_lshrrev_b32 v14, 1, v7")
for s in range(5):
    A(f"ds_read_b64 v[{16+2*s}:{17+2*s}], v14 offset:{L_CS + 128*s}")
A("v_mul_u32_u24 v12, 2560, v3")
A("v_add_u32 v12, v12, v7")
A(f"s_mul_i32 s95, s{sX}, 10240")
A(f"s_lshl_b32 s90, s{sW}, 9")
A("s_add_u32 s95, s95, s90")
A(f"s_add_u32 s95, s95, {W_H5C}")
A("v_lshlrev_b32 v13, 1, v7")
A(f"s_add_u32 s90, s90, {L_RED2}")
A("v_add_u32 v13, s90, v13")
A("v_lshlrev_b32 v10, 3, v1")
A(f"s_lshl_b32 s90, s{sW}, 5")
A(f"s_add_u32 s90, s90, {L_RS}")
A("v_add_u32 v10, s90, v10")
A("v_lshl_add_u32 v14, v3, 7, v14")
A("v_lshlrev_b32 v11, 3, v3")
A("v_mul_u32_u24 v9, 2560, v1")
A("v_lshl_add_u32 v9, v2, 4, v9")
A("s_mul_i32 s96, s94, 10240")
A(f"s_lshl_b32 s90, s{sW}, 9")
A("s_add_u32 s96, s96, s90")
A(f"s_add_u32 s96, s96, {W_H6}")
A("s_waitcnt lgkmcnt(0)")
for s in range(1, 5):
    A(f"v_pk_add_f32 v[16:17], v[16:17], v[{16+2*s}:{17+2*s}]")
poll([f"buffer_load_dwordx4 v[208:211], v12, {srd(S_WS)}, s95 offen",
      f"buffer_load_dwordx4 v[212:215], v12, {srd(S_WS)}, s95 offen offset:256"], [210, 214], sleep=1)
A.stamp(10, 0)
A("v_mov_b32 v210, v212")
A("v_mov_b32 v211, v213")
A("s_nop 1")
A("v_mfma_f32_16x16x32_bf16 v[184:187], v[208:211], v[48:51], 0")
A("v_mfma_f32_16x16x32_bf16 v[188:191], v[208:211], v[208:211], 0")
for jj in range(8):
    d = 144 + 4 * jj
    A(f"v_mfma_f32_16x16x32_bf16 v[{d}:{d+3}], v[208:211], v[{80+4*jj}:{83+4*jj}], 0")
A("v_add_f32 v192, v184, v185")
A(f"v_add_f32_dpp v193, v189, v188 row_shl:1 {DPPM}")
A("v_add_f32 v194, v186, v187")
A("s_nop 0")
A(f"v_add_f32_dpp v193, v190, v193 row_shl:2 {DPPM}")
A("v_add_f32 v192, v192, v194")
A("s_nop 0")
A(f"v_add_f32_dpp v193, v191, v193 row_shl:3 {DPPM}")
execmask(0x1000010000100001)
A("ds_write_b64 v10, v[192:193]")
execall()
dppsum([176 + i for i in range(8)], [144 + 4 * i for i in range(8)])
execmask(M_N4)
A("ds_write_b128 v13, v[176:179]")
A("ds_write_b128 v13, v[180:183] offset:16")
execall()
A("s_waitcnt lgkmcnt(0)")
A("s_barrier")
for s in range(5):
    A(f"ds_read_b64 v[{160+2*s}:{161+2*s}], v11 offset:{L_RS + 32*s}")
for s in range(5):
    A(f"ds_read_b64 v[{144+2*s}:{145+2*s}], v14 offset:{L_RED2 + 512*s}")
A("s_waitcnt lgkmcnt(5)")
for s in range(1, 5):
    A(f"v_pk_add_f32 v[160:161], v[160:161], v[{160+2*s}:{161+2*s}]")
A(f"v_mul_f32 v160, {f32(1/640)}, v160")
A(f"v_mul_f32 v161, {f32(1/640)}, v161")
A("v_fma_f32 v161, -v160, v160, v161")
A("v_max_f32 v161, 0, v161")
A(f"v_add_f32 v161, {f32(1e-5)}, v161")
A("v_rsq_f32 v161, v161")
A("s_waitcnt lgkmcnt(0)")
for s in range(1, 5):
    A(f"v_pk_add_f32 v[144:145], v[144:145], v[{144+2*s}:{145+2*s}]")
A("v_fma_f32 v144, -v160, v16, v144")
A("v_fma_f32 v145, -v160, v17, v145")
A("v_mul_f32 v144, v144, v161")
A("v_mul_f32 v145, v145, v161")
A(f"v_mul_f32 v146, {f32(-math.log2(math.e))}, v144")
A(f"v_mul_f32 v147, {f32(-math.log2(math.e))}, v145")
A("v_exp_f32 v146, v146")
A("v_exp_f32 v147, v147")
A("s_nop 0")
A("v_add_f32 v146, 1.0, v146")
A("v_add_f32 v147, 1.0, v147")
A("v_rcp_f32 v146, v146")
A("v_rcp_f32 v147, v147")
A("s_nop 0")
A("v_mul_f32 v144, v144, v146")
A("v_mul_f32 v145, v145, v147")
A("v_cvt_pk_bf16_f32 v148, v144, v145")
A("s_nop 1")
for i in range(4):
    A(f"v_mov_b32_dpp v{208+i}, v148 quad_perm:[{i},{i},{i},{i}] {DPPM}")
A("s_nop 1")
for jj in range(8):
    d = 144 + 4 * jj
    A(f"v_mfma_f32_16x16x32_bf16 v[{d}:{d+3}], v[208:211], v[{112+4*jj}:{115+4*jj}], 0")
A("s_nop 3")
A("v_cvt_pk_bf16_f32 v232, v144, v148")
A("v_cvt_pk_bf16_f32 v233, v152, v156")
A(f"buffer_store_dwordx4 v[232:235], v9, {srd(S_WS)}, s96 offen sc1")
A("s_nop 1")
A("v_cvt_pk_bf16_f32 v236, v160, v164")
A("v_cvt_pk_bf16_f32 v237, v168, v172")
A(f"buffer_store_dwordx4 v[236:239], v9, {srd(S_WS)}, s96 offen offset:256 sc1")
A.stamp(11)

A.lab("L_fin")
if opt.dbgstamps:
    A("s_waitcnt vmcnt(0) lgkmcnt(0)")
    A("s_load_dwordx2 s[92:93], s[0:1], 80")
    A("s_mov_b32 s94, 256")
    A("s_mov_b32 s95, 0x00020000")
    A("v_mov_b32 v8, 0")
    A("s_waitcnt lgkmcnt(0)")
    A("s_mov_b64 exec, 1")
    A("s_not_b32 s90, s4")
    A("v_mov_b32 v9, s90")
    A("buffer_atomic_umax v9, v8, s[92:95], 0 offen offset:60")
    A(f"s_cmp_lt_u32 s{sR}, 16")
    for i in range(12):
        A(f"v_mov_b32 v9, s{4+2*i}")
        if i in (3, 4, 9):
            o2 = {3: 48, 4: 52, 9: 56}[i]
            A(f"s_cselect_b32 s91, {4*i}, {o2}")
            A(f"buffer_atomic_umax v9, v8, s[92:95], s91 offen")
        else:
            A(f"buffer_atomic_umax v9, v8, s[92:95], 0 offen offset:{4*i}")
    A("s_branch L_end")
if opt.stamps:
    A("s_waitcnt vmcnt(0) lgkmcnt(0)")
    A(f"s_lshl_b32 s90, s2, 3")
    A(f"s_add_u32 s90, s90, s{sW}")
    A("s_lshl_b32 s90, s90, 6")
    A(f"s_add_u32 s90, s90, {W_STAMP}")
    A("v_mov_b32 v8, 0")
    A("s_mov_b64 exec, 1")
    for i in range(12):
        A(f"v_mov_b32 v9, s{4+2*i}")
        A(f"buffer_store_dword v9, v8, {srd(S_WS)}, s90 offen offset:{4*i}")
    A(f"v_mov_b32 v9, s{sCNT}")
    A(f"buffer_store_dword v9, v8, {srd(S_WS)}, s90 offen offset:56")
    A(f"v_mov_b32 v9, s{sFAST}")
    A(f"buffer_store_dword v9, v8, {srd(S_WS)}, s90 offen offset:60")
A.lab("L_end")

body = "\n".join(A.l)
if opt.stamps:
    init = "\n".join(f"    s_mov_b32 s{4+2*i}, 0" for i in range(1, 12))
    body = init + "\n" + body
out = HDR + f"""; @launch grid=(256,1,1) block=(512,1,1) lds={LDS_BYTES}
.amdgcn_target "amdgcn-amd-amdhsa--gfx950"
.text
.globl {NAME}_kernel
.p2align 8
.type {NAME}_kernel,@function
{NAME}_kernel:
{body}
    s_endpgm
L_codeend:
.section .rodata,"a"
.p2align 6
.amdhsa_kernel {NAME}_kernel
  .amdhsa_next_free_vgpr 256
  .amdhsa_next_free_sgpr 102
  .amdhsa_accum_offset 256
  .amdhsa_group_segment_fixed_size 0
  .amdhsa_kernarg_size 96
  .amdhsa_user_sgpr_count 2
  .amdhsa_user_sgpr_kernarg_segment_ptr 1
  .amdhsa_system_sgpr_workgroup_id_x 1
.end_amdhsa_kernel
"""
open(opt.o, "w").write(out)
print("wrote", opt.o, "lines", len(A.l), file=sys.stderr)
```

```python
import sys, re, argparse, math, struct

NAME = "sequential_preLN__compressed_kv_cla__dense_activation_silu__decode"
HDR = open(f"cdna_kernels/{NAME}.s.ref").read().split("; Override launch")[0]

ap = argparse.ArgumentParser()
ap.add_argument("-o", default=f"cdna_kernels/{NAME}.s")
ap.add_argument("--stamps", action="store_true")
ap.add_argument("--early", type=int, default=4)
ap.add_argument("--early67", type=int, default=16)
ap.add_argument("--pw", default="sc1")
ap.add_argument("--noh3bt", action="store_true")
ap.add_argument("--earlyA", type=int, default=4)
ap.add_argument("--nocodepf", action="store_true")
ap.add_argument("--nobar2", action="store_true")
ap.add_argument("--nouvpf", action="store_true")
ap.add_argument("--noukpf", action="store_true")
ap.add_argument("--kb0", type=int, default=2)
ap.add_argument("--kb", type=int, default=0)
ap.add_argument("--ka", type=int, default=0)
ap.add_argument("--kf", type=int, default=16)
ap.add_argument("--arev", action="store_true")
ap.add_argument("--grp", type=int, default=0)
ap.add_argument("--ntr0", type=int, default=32)
ap.add_argument("--padto", type=int, default=0)
ap.add_argument("--forceslow", action="store_true")
ap.add_argument("--wb", action="store_true")
ap.add_argument("--dbgstamps", action="store_true")
ap.add_argument("--b1", type=int, default=10)
ap.add_argument("--b2", type=int, default=6)
ap.add_argument("--noclean", action="store_true")
ap.add_argument("--pxor", type=int, default=0)
ap.add_argument("--hxor", type=int, default=0)
ap.add_argument("--uv", default="late")
ap.add_argument("--uvsplit", type=int, default=8)
ap.add_argument("--uvw", type=int, default=4)
ap.add_argument("--ssleep", type=int, default=0)
ap.add_argument("--pc", default="")
ap.add_argument("--pq", default="")
ap.add_argument("--pt", default="")
ap.add_argument("--po", default="nt")
ap.add_argument("--fwait", type=int, default=0)
ap.add_argument("--stearly", action="store_true")
ap.add_argument("--ilv", type=int, default=1)
ap.add_argument("--nv0", type=int, default=12)
ap.add_argument("--vdelay", type=int, default=0)
ap.add_argument("--d1", type=int, default=0)
ap.add_argument("--d2", type=int, default=0)
ap.add_argument("--noearlyF", action="store_true")
ap.add_argument("--stw", type=int, default=3)
ap.add_argument("--bdelay", type=int, default=0)
ap.add_argument("--bs", type=int, default=1)
ap.add_argument("--f2", type=int, default=2)
ap.add_argument("--spec", type=int, default=0)
ap.add_argument("--sd", type=int, default=0)
ap.add_argument("--ackn", type=int, default=-1)
ap.add_argument("--lsleep", type=int, default=0)
ap.add_argument("--qsleep", type=int, default=0)
opt = ap.parse_args()

W_EPOCH = 0x0
W_XT = 0x1000
W_H1 = 0x10000
W_H1B = 0x380000
W_H2 = 0x100000
W_ST3 = 0x140000
W_STX = 0x150000
W_H4 = 0x160000
W_H5B = 0x180000
W_H5C = 0x1A0000
W_H3B = 0x200000
W_H6 = 0x280000
W_H3A = 0x400000
W_STAMP = 0x800000
WS_SIZE = 0x1000000

ROWB = 1056
L_Q = 128 * ROWB
L_P = L_Q + 16 * ROWB
L_MX = L_P + 4096
L_SM = L_MX + 512
L_QV = L_SM + 512
L_QP = L_Q + 5376
L_XN = L_Q
LDS_BYTES = 163840
L_S1 = 0 * ROWB
L_RED = 0
L_RED2 = 16384
L_RS = 32768
L_CS = 33792
L_OS = 49152
L_UV = 73728

S_X, S_CKV, S_WQ, S_WUK, S_WUV, S_WO, S_W1, S_W2, S_OUT, S_WS = (28, 32, 36, 40, 44, 48, 52, 56, 60, 64)
sX, sR, sW = 68, 69, 70
sFAST = 71
sT0, sT1 = 72, 73
sPLO, sPHI = 74, 75
sCNT = 76
sH = 77
sTL = 3
POLL_LIMIT = 400000


def f32(x):
    return "0x%08x" % struct.unpack("<I", struct.pack("<f", x))[0]


class Asm:
    def __init__(self):
        self.l = []
        self.nlab = 0

    def __call__(self, s):
        m = re.search(r"offset:(\d+)", s)
        if m:
            lim = 65536 if s.lstrip().startswith("ds_") else 4096
            assert int(m.group(1)) < lim, s
        self.l.append("    " + s)

    def lab(self, n):
        self.l.append(n + ":")

    def newlab(self, p="L"):
        self.nlab += 1
        return f"{p}_{self.nlab}"

    def c(self, s):
        self.l.append("    ; " + s)

    def stamp(self, i, grp=None):
        if grp is not None and grp != opt.grp:
            return
        if opt.grp == 4 and grp != 4 and i not in (0, 7, 8):
            return
        if opt.stamps:
            self(f"s_memrealtime s[{4+2*i}:{5+2*i}]")


A = Asm()
DPPM = "row_mask:0xf bank_mask:0xf"


def srd(n):
    return f"s[{n}:{n+3}]"


def execmask(m):
    A(f"s_mov_b32 exec_lo, 0x{m & 0xffffffff:x}")
    A(f"s_mov_b32 exec_hi, 0x{m >> 32:x}")


def execall():
    A("s_mov_b64 exec, -1")


M_N4 = 0x000F000F000F000F
M_N8 = 0x00FF00FF00FF00FF


def store_local(instr):
    l1, l2 = A.newlab("Lsl"), A.newlab("Lsl")
    A(f"s_cmp_eq_u32 s{sFAST}, 0")
    A(f"s_cbranch_scc1 {l1}")
    for i in instr:
        A(i)
    A(f"s_branch {l2}")
    A.lab(l1)
    for i in instr:
        A(i + " sc1")
    A.lab(l2)


def poll(loads, tagregs, sleep=0, alt=None):
    lp = A.newlab("Lpoll")
    if alt:
        sr, sm, so_ = alt
        lf = A.newlab("Lpf")
        A(f"s_mov_b32 {sr}, {sm}")
        A(f"s_branch {lf}")
        A.lab(lp)
        A(f"s_and_b32 s98, s{sCNT}, 31")
        A("s_cmp_eq_u32 s98, 31")
        A(f"s_cselect_b32 {sr}, {so_}, {sm}")
        A.lab(lf)
    elif sleep:
        lf = A.newlab("Lpf")
        A(f"s_branch {lf}")
        A.lab(lp)
        A(f"s_sleep {sleep}")
        A.lab(lf)
    else:
        A.lab(lp)
    for i in loads:
        A(i + " sc1")
    A(f"s_add_u32 s{sCNT}, s{sCNT}, 1")
    A(f"s_cmp_gt_u32 s{sCNT}, {POLL_LIMIT}")
    A("s_cbranch_scc1 L_end")
    A("s_waitcnt vmcnt(0)")
    for k, t in enumerate(tagregs):
        if k == 0:
            A(f"v_cmp_ne_u64 vcc, s[{sT0}:{sT1}], v[{t}:{t+1}]")
        else:
            A(f"v_cmp_ne_u64 s[98:99], s[{sT0}:{sT1}], v[{t}:{t+1}]")
            A("s_or_b64 vcc, vcc, s[98:99]")
    A(f"s_cbranch_vccnz {lp}")


def transpose(dst, rows, ndw, dup=False):
    nr = len(rows) // 2
    st = 2 * nr if dup else nr
    for jj in range(2 * ndw):
        sel = sPHI if jj & 1 else sPLO
        for rep in range(2 if dup else 1):
            for p in range(nr):
                A(f"v_perm_b32 v{dst + jj*st + rep*nr + p}, v{rows[2*p+1] + (jj >> 1)}, v{rows[2*p] + (jj >> 1)}, s{sel}")


def dppsum(dsts, ds):
    assert len(dsts) >= 3
    for step in (1, 2, 3):
        for t, d in zip(dsts, ds):
            src1 = d if step == 1 else t
            A(f"v_add_f32_dpp v{t}, v{d+step}, v{src1} row_shl:{4*step} {DPPM}")


def unpack(dlo, dhi, s):
    A(f"v_lshlrev_b32 v{dlo}, 16, v{s}")
    A(f"v_and_b32 v{dhi}, 0xffff0000, v{s}")


def rowall(op, regs):
    for sh in (8, 4, 2, 1):
        if len(regs) < 3:
            A(f"s_nop {2 - len(regs)}")
        for r_ in regs:
            A(f"{op}_dpp v{r_}, v{r_}, v{r_} row_ror:{sh} {DPPM}")


def sum_b128(n, base, lds=False):
    st = 1
    while st < n:
        for s in range(0, n, 2 * st):
            if lds and st == 1:
                A(f"s_waitcnt lgkmcnt({n - s - 2})")
            x, y = base + 4 * s, base + 4 * (s + st)
            A(f"v_pk_add_f32 v[{x}:{x+1}], v[{x}:{x+1}], v[{y}:{y+1}]")
            A(f"v_pk_add_f32 v[{x+2}:{x+3}], v[{x+2}:{x+3}], v[{y+2}:{y+3}]")
        st *= 2


def tag_setup():
    A("s_waitcnt lgkmcnt(0)")
    A(f"s_mul_i32 s{sT0}, s82, 0x9E3779B1")
    A(f"s_add_u32 s{sT0}, s{sT0}, 0x7F4A7C15")
    A(f"s_mul_i32 s{sT1}, s83, 0x2C9277B5")
    A(f"s_add_u32 s{sT1}, s{sT1}, 0xAC564B05")


def xt_decide(t):
    A("s_getreg_b32 s84, hwreg(HW_REG_XCC_ID)")
    A("s_and_b32 s84, s84, 15")
    A(f"v_cmp_ne_u32 vcc, s84, v{t}")
    A("s_cmp_eq_u64 vcc, 0")
    A(f"s_cselect_b32 s{sFAST}, {0 if opt.forceslow else 1}, 0")


def ckv_dma(rows, k=None):
    for i in rows:
        st_ = 4 if opt.ilv else 1
        A(f"s_add_u32 m0, s81, {i*ROWB*st_}")
        A(f"s_add_u32 s86, s80, {i*1024*st_}")
        if k:
            A(f"s_waitcnt vmcnt({k-1})")
        A(f"buffer_load_dwordx4 v6, {srd(S_CKV)}, s86 offen {opt.pc} lds")


A.stamp(0)
if opt.padto:
    A("s_memrealtime s[4:5]")
A("s_cmp_ge_u32 s2, 256")
A("s_cbranch_scc1 L_end")
ptr = {S_X: 0, S_CKV: 8, S_WQ: 16, S_WUK: 24, S_WUV: 32, S_WO: 40, S_W1: 56, S_W2: 64, S_OUT: 72, S_WS: 88}
size = {S_X: 5120, S_CKV: 16777216, S_WQ: 5242880, S_WUK: 4194304, S_WUV: 4194304, S_WO: 5242880,
        S_W1: 2211840, S_W2: 2211840, S_OUT: 5120, S_WS: WS_SIZE}
for s_ in (S_WQ, S_X, S_CKV, S_WUK, S_WS, S_WUV, S_WO, S_W1, S_W2, S_OUT):
    A(f"s_load_dwordx2 s[{s_}:{s_+1}], s[0:1], {ptr[s_]}")
A(f"s_lshr_b32 s{sR}, s2, 3")
A("v_lshrrev_b32 v1, 6, v0")
A("v_and_b32 v0, 63, v0")
A(f"v_readfirstlane_b32 s{sW}, v1")
A("v_lshlrev_b32 v6, 4, v0")
if not opt.nocodepf:
    A("s_getpc_b64 s[92:93]")
    A.lab("L_pc")
    A(f"s_sub_u32 s92, s92, L_pc-{NAME}_kernel")
    A("s_subb_u32 s93, s93, 0")
    A(f"s_mov_b32 s94, L_codeend-{NAME}_kernel")
    A("s_mov_b32 s95, 0x00020000")
    A(f"s_lshl_b32 s90, s{sR}, 10")
    A(f"s_cmp_lg_u32 s{sW}, 7")
    A("s_cbranch_scc1 L_nopf")
    A("buffer_load_dwordx4 v[252:255], v6, s[92:95], s90 offen")
    A.lab("L_nopf")
for s_ in ptr:
    A(f"s_mov_b32 s{s_+2}, {size[s_]}")
    A(f"s_mov_b32 s{s_+3}, 0x00020000")
A(f"s_and_b32 s{sX}, s2, 7")
A(f"s_mov_b32 s{sPLO}, 0x05040100")
A(f"s_mov_b32 s{sPHI}, 0x07060302")
A(f"s_mov_b32 s{sCNT}, 0")
A(f"s_mov_b32 s{sFAST}, 0")
A(f"s_and_b32 s78, s{sR}, 3")
if opt.hxor:
    A(f"s_xor_b32 s78, s78, {opt.hxor}")
A(f"s_lshl_b32 s{sH}, s{sX}, 2")
A(f"s_add_u32 s{sH}, s{sH}, s78")
A(f"s_lshl_b32 s88, s{sH}, 8")
A("v_lshrrev_b32 v1, 4, v0")
A("v_and_b32 v2, 15, v0")
A("v_bfe_u32 v3, v0, 2, 2")
A("v_and_b32 v4, 3, v0")
A("v_lshrrev_b32 v5, 2, v0")
A("v_lshlrev_b32 v7, 6, v1")
A("v_lshl_add_u32 v7, v4, 4, v7")
A(f"s_bfe_u32 s79, s{sR}, 0x20002")
A("s_lshl_b32 s80, s79, 22")
A(f"s_lshl_b32 s81, s{sH}, 17")
A("s_add_u32 s80, s80, s81")
A(f"s_xor_b32 s{sTL}, s{sW}, 4")
A(f"s_cmp_lt_u32 s{sR}, 16")
A(f"s_cselect_b32 s{sTL}, s{sTL}, s{sW}")
if opt.ilv:
    A(f"s_and_b32 s81, s{sTL}, 4")
    A("s_lshl_b32 s81, s81, 4")
    A(f"s_and_b32 s90, s{sTL}, 3")
    A("s_add_u32 s81, s81, s90")
    A("s_lshl_b32 s90, s81, 10")
    A("s_add_u32 s80, s80, s90")
    A(f"s_mul_i32 s81, s81, {ROWB}")
else:
    A(f"s_lshl_b32 s81, s{sTL}, 14")
    A("s_add_u32 s80, s80, s81")
    A(f"s_mul_i32 s81, s{sTL}, {16*ROWB}")
A("s_mul_i32 s87, s79, 160")
A(f"s_lshl_b32 s90, s{sW}, 5")
A("s_add_u32 s87, s87, s90")
A("s_lshl_b32 s89, s87, 13")
A("s_add_u32 s89, s89, s88")
A("v_lshlrev_b32 v9, 16, v1")
A("v_lshl_add_u32 v9, v2, 4, v9")
A("v_lshl_add_u32 v10, v3, 15, v7")
A("s_lshl_b32 s91, s79, 7")
A(f"s_and_b32 s90, s{sW}, 3")
A("s_lshl_b32 s90, s90, 5")
A("s_add_u32 s91, s91, s90")
A("s_lshl_b32 s91, s91, 13")
A("s_add_u32 s91, s91, s88")
A(f"s_cmp_lt_u32 s{sR}, 16")
A("s_waitcnt lgkmcnt(0)")
A(f"s_load_dwordx2 s[82:83], s[{S_WS}:{S_WS+1}], {W_EPOCH}")
A("s_cbranch_scc0 L_frontB")


def xt_publish(t):
    A("s_getreg_b32 s84, hwreg(HW_REG_XCC_ID)")
    A("s_and_b32 s84, s84, 15")
    A(f"s_lshl_b32 s85, s{sX}, 9")
    A(f"s_add_u32 s85, s85, {W_XT}")
    A(f"s_lshl_b32 s86, s{sR}, 4")
    A(f"v_mov_b32 v{t}, s84")
    A(f"v_mov_b32 v{t+1}, 0")
    A(f"v_mov_b32 v{t+2}, s{sT0}")
    A(f"v_mov_b32 v{t+3}, s{sT1}")
    A("v_mov_b32 v12, s86")
    A("s_mov_b64 exec, 1")
    A(f"buffer_store_dwordx4 v[{t}:{t+3}], v12, {srd(S_WS)}, s85 offen sc1")
    execall()


def uk_loads(ts, dst=None):
    for t in ts:
        A(f"s_add_u32 s90, s91, {(16*(t>>2) + (t&3))*8192}")
        d = dst if dst is not None else 208 + 4 * t
        A(f"buffer_load_dwordx4 v[{d}:{d+3}], v10, {srd(S_WUK)}, s90 offen {opt.pq}")


A(f"s_cmp_gt_u32 s{sW}, 3")
A("s_cbranch_scc1 L_notS1")
RAW = 16
UK = 48
XA = 208


def wq_issue(j):
    for i in range(8):
        d = RAW + 32 * (j & 3) + 4 * i
        A(f"buffer_load_dwordx4 v[{d}:{d+3}], v9, {srd(S_WQ)}, s89 offen {opt.pq}")
        if i < 7:
            A("s_add_u32 s89, s89, 8192")
        if j == 0 and i == 3:
            A("s_barrier")
    if j < 4:
        A(f"s_add_u32 s89, s89, {(128-7)*8192}")
        A(f"s_sub_u32 s90, s89, {640*8192}")
        A(f"s_cmp_ge_u32 s89, {640*8192}")
        A("s_cselect_b32 s89, s90, s89")


def wq_proc(j):
    rw = RAW + 32 * (j & 3)
    xa = f"v[{XA+4*j}:{XA+4*j+3}]"
    for jj in range(8):
        sel = sPHI if jj & 1 else sPLO
        o = 176 + 4 * jj
        for p in range(4):
            A(f"v_perm_b32 v{o+p}, v{rw+4*(2*p+1)+(jj>>1)}, v{rw+4*(2*p)+(jj>>1)}, s{sel}")
        if jj >= 1:
            j1 = jj - 1
            c = "0" if j == 0 else f"v[{144+4*j1}:{147+4*j1}]"
            A(f"v_mfma_f32_16x16x32_bf16 v[{144+4*j1}:{147+4*j1}], {xa}, v[{176+4*j1}:{179+4*j1}], {c}")
    A("s_nop 0")
    c = "0" if j == 0 else "v[172:175]"
    A(f"v_mfma_f32_16x16x32_bf16 v[172:175], {xa}, v[204:207], {c}")


wq_issue(0)
wq_issue(1)
wq_issue(2)
A("v_mul_u32_u24 v8, 1296, v3")
A("v_lshl_add_u32 v8, v1, 4, v8")
A(f"v_add_u32 v8, {L_XN}, v8")
A("s_barrier")
for j in range(5):
    A("s_lshl_b32 s90, s87, 1")
    A("v_add_u32 v11, s90, v8")
    A(f"ds_read_b128 v[{XA+4*j}:{XA+4*j+3}], v11")
    if j < 4:
        A("s_add_u32 s87, s87, 128")
        A("s_sub_u32 s90, s87, 640")
        A("s_cmp_ge_u32 s87, 640")
        A("s_cselect_b32 s87, s90, s87")
wq_issue(3)
tag_setup()
A("s_waitcnt vmcnt(24)")
A.stamp(9, 7)
wq_proc(0)
wq_issue(4)
A("s_waitcnt vmcnt(24)")
wq_proc(1)
for t in range(8):
    uk_loads([t], UK + 4 * t)
A("s_barrier")
A("v_mul_u32_u24 v12, 576, v1")
A("v_lshl_add_u32 v12, v2, 5, v12")
A("v_lshl_add_u32 v12, v3, 4, v12")
A(f"s_mul_i32 s90, s{sW}, 2304")
A(f"s_add_u32 s90, s90, {L_QP}")
A("v_add_u32 v12, s90, v12")
A("s_waitcnt vmcnt(24)")
wq_proc(2)
A("v_mul_u32_u24 v11, 576, v4")
A("v_lshl_add_u32 v11, v5, 5, v11")
A("v_lshl_add_u32 v11, v1, 4, v11")
A(f"v_add_u32 v11, {L_QP}, v11")
A("v_bfe_u32 v8, v0, 2, 1")
A("v_bfe_u32 v13, v0, 3, 2")
A("v_lshlrev_b32 v14, 4, v4")
A("v_lshl_add_u32 v14, v8, 2, v14")
A("v_add_u32 v14, v14, v13")
A("v_lshlrev_b32 v14, 2, v14")
A("v_and_b32 v15, 7, v0")
A("v_lshlrev_b32 v15, 4, v15")
A("v_lshl_add_u32 v15, v13, 16, v15")
A(f"s_lshl_b32 s89, s{sH}, 11")
A("s_lshl_b32 s90, s79, 9")
A("s_add_u32 s89, s89, s90")
A(f"s_lshl_b32 s90, s{sW}, 7")
A("s_add_u32 s89, s89, s90")
A(f"s_add_u32 s89, s89, {W_H2}")
A("s_waitcnt vmcnt(16)")
wq_proc(3)
A("s_waitcnt vmcnt(8)")
A.stamp(1, 0)
A.stamp(1, 7)
wq_proc(4)
A("s_nop 4")
for jj in range(0, 8, 2):
    A(f"ds_write2_b32 v12, v{144+4*jj}, v{148+4*jj} offset0:{jj} offset1:{jj+1}")
A("s_waitcnt lgkmcnt(0)")
A.stamp(2)
A("s_barrier")
for s_ in range(4):
    A(f"ds_read_b128 v[{80+8*s_}:{83+8*s_}], v11 offset:{2304*s_}")
    A(f"ds_read_b128 v[{84+8*s_}:{87+8*s_}], v11 offset:{2304*s_+16}")
A(f"v_mov_b32 v22, s{sT0}")
A(f"v_mov_b32 v23, s{sT1}")
A("s_waitcnt lgkmcnt(4)")
for i in range(4):
    A(f"v_pk_add_f32 v[{80+2*i}:{81+2*i}], v[{80+2*i}:{81+2*i}], v[{88+2*i}:{89+2*i}]")
A("s_waitcnt lgkmcnt(0)")
for i in range(4):
    A(f"v_pk_add_f32 v[{96+2*i}:{97+2*i}], v[{96+2*i}:{97+2*i}], v[{104+2*i}:{105+2*i}]")
for i in range(4):
    A(f"v_pk_add_f32 v[{80+2*i}:{81+2*i}], v[{80+2*i}:{81+2*i}], v[{96+2*i}:{97+2*i}]")
for i in range(4):
    A(f"v_cvt_pk_bf16_f32 v{16+i}, v{80+2*i}, v{81+2*i}")
A("s_waitcnt vmcnt(0)")
A.stamp(3)
A("s_nop 0")
D = 144
for t in range(8):
    A(f"v_mfma_f32_16x16x32_bf16 v[{D+4*t}:{D+3+4*t}], v[{UK+4*t}:{UK+3+4*t}], v[16:19], 0")
A("s_nop 0")
for t in range(4):
    A(f"v_add_f32_dpp v{24+t}, v{D+4*t+1}, v{D+4*t} row_shl:4 row_mask:0xf bank_mask:0x1")
for t in range(4):
    A(f"v_add_f32_dpp v{24+t}, v{D+4*t+2}, v{24+t} row_shl:8 row_mask:0xf bank_mask:0x1")
for t in range(4):
    A(f"v_add_f32_dpp v{24+t}, v{D+4*t+3}, v{24+t} row_shl:12 row_mask:0xf bank_mask:0x1")
for t in range(4):
    d = D + 16 + 4 * t
    A(f"v_add_f32_dpp v{24+t}, v{d}, v{d+1} row_shr:4 row_mask:0xf bank_mask:0x2")
for t in range(4):
    A(f"v_add_f32_dpp v{24+t}, v{D+16+4*t+2}, v{24+t} row_shl:4 row_mask:0xf bank_mask:0x2")
for t in range(4):
    A(f"v_add_f32_dpp v{24+t}, v{D+16+4*t+3}, v{24+t} row_shl:8 row_mask:0xf bank_mask:0x2")
A("v_cvt_pk_bf16_f32 v28, v24, v25")
A("v_cvt_pk_bf16_f32 v29, v26, v27")
A("ds_bpermute_b32 v20, v14, v28")
A("ds_bpermute_b32 v21, v14, v29")
execmask(0xFFFFFFFF)
A("s_waitcnt lgkmcnt(0)")
A(f"buffer_store_dwordx4 v[20:23], v15, {srd(S_WS)}, s89 offen sc1")
execall()
A.stamp(4)
A("s_barrier")
ckv_dma(range(15, -1, -1))
A("s_branch L_qgather")

A.lab("L_notS1")
A(f"s_cmp_eq_u32 s{sW}, 5")
A("s_cbranch_scc0 L_w67")
A("v_mul_u32_u24 v8, 1280, v1")
A("v_lshl_add_u32 v8, v2, 4, v8")
for i in range(5):
    A(f"buffer_load_dwordx4 v[{16+4*i}:{19+4*i}], v8, {srd(S_X)}, 0 offen offset:{256*i}")
A("s_barrier")
A("v_mov_b32 v38, 0x3f803f80")
A("v_mov_b32 v36, 0")
A("v_mov_b32 v37, 0")
A("v_mul_u32_u24 v8, 1296, v1")
A("v_lshl_add_u32 v8, v2, 4, v8")
A(f"v_add_u32 v8, {L_XN}, v8")
A("s_waitcnt vmcnt(0)")
for i in range(20):
    A(f"v_dot2_f32_bf16 v36, v{16+i}, v38, v36")
    A(f"v_dot2_f32_bf16 v37, v{16+i}, v{16+i}, v37")
A("s_nop 1")
rowall("v_add_f32", [36, 37])
A(f"v_mul_f32 v36, {f32(1/640)}, v36")
A(f"v_mul_f32 v37, {f32(1/640)}, v37")
A("v_fma_f32 v37, -v36, v36, v37")
A("v_max_f32 v37, 0, v37")
A(f"v_add_f32 v37, {f32(1e-5)}, v37")
A("v_rsq_f32 v38, v37")
A("s_nop 0")
A("v_mul_f32 v36, -v36, v38")
for i in range(20):
    unpack(40, 41, 16 + i)
    A("v_pk_fma_f32 v[40:41], v[40:41], v[38:39], v[36:37] op_sel_hi:[1,0,0]")
    A(f"v_cvt_pk_bf16_f32 v{16+i}, v40, v41")
for i in range(5):
    A(f"ds_write_b128 v8, v[{16+4*i}:{19+4*i}] offset:{256*i}")
A("s_branch L_w567")
A.lab("L_w67")
A("s_barrier")
A.lab("L_w567")
tag_setup()
A("s_barrier")
A(f"s_cmp_eq_u32 s{sW}, 7")
A("s_cbranch_scc0 L_w56b")
xt_publish(20)
A.lab("L_w56b")
A("s_barrier")
ckv_dma(range(0, opt.b1))
A("s_barrier")
ckv_dma(range(opt.b1, opt.b1 + opt.b2))
A("s_barrier")
ckv_dma(range(opt.b1 + opt.b2, 16))
A("s_branch L_qgather")

A.lab("L_frontB")
A(f"s_and_b32 s92, s{sR}, 15")
A(f"s_lshl_b32 s93, s{sX}, 10")
A(f"s_cmp_gt_u32 s{sW}, 4")
A("s_cbranch_scc1 L_B2")
A("s_mul_i32 s89, s92, 5")
A(f"s_add_u32 s89, s89, s{sW}")
A("s_lshl_b32 s89, s89, 16")
A("s_add_u32 s89, s89, s93")
A("s_add_u32 s89, s89, 32768")
for i in range(4):
    A(f"buffer_load_dwordx4 v[16:19], v6, {srd(S_WQ)}, s89 offen {opt.pq}")
    if i < 3:
        A("s_add_u32 s89, s89, 8192")
A.lab("L_B2")
A("s_lshl_b32 s91, s92, 3")
A(f"s_add_u32 s91, s91, s{sW}")
A("s_lshl_b32 s91, s91, 15")
A("s_add_u32 s91, s91, s93")
A("s_barrier")
for i in range(4):
    A(f"buffer_load_dwordx4 v[16:19], v6, {srd(S_WUK)}, s91 offen {opt.pq}")
    if i < 3:
        A("s_add_u32 s91, s91, 8192")
A.lab("L_B3")
A("s_barrier")
ckv_dma(range(16), opt.kb)
tag_setup()
A(f"s_cmp_lg_u32 s{sW}, 0")
A("s_cbranch_scc1 L_qgather")
xt_publish(16)
A(f"s_lshl_b32 s89, s{sH}, 2")
A("s_add_u32 s89, s89, s79")
A("s_lshl_b32 s89, s89, 11")
A(f"s_add_u32 s89, s89, {W_H3B}")
A(f"buffer_load_dwordx4 v[16:19], v6, {srd(S_WS)}, s89 offen sc1")
A(f"buffer_load_dwordx4 v[16:19], v6, {srd(S_WS)}, s89 offen offset:1024 sc1")
A(f"s_and_b32 s90, s{sR}, 15")
A("s_lshl_b32 s90, s90, 10")
A(f"s_lshl_b32 s89, s{sX}, 14")
A("s_add_u32 s89, s89, s90")
A(f"s_add_u32 s89, s89, {W_H4}")
A(f"buffer_load_dwordx4 v[16:19], v6, {srd(S_WS)}, s89 offen sc1")
A(f"s_mul_i32 s89, s{sX}, 10240")
A("s_min_u32 s90, s90, 9216")
A("s_add_u32 s89, s89, s90")
A(f"s_add_u32 s89, s89, {W_H5C}")
A(f"buffer_load_dwordx4 v[16:19], v6, {srd(S_WS)}, s89 offen sc1")
A("s_branch L_qgather")

A.lab("L_qgather")
A("s_lshl_b32 s89, s79, 5")
A(f"s_and_b32 s90, s{sR}, 16")
A("s_add_u32 s89, s89, s90")
A(f"s_lshl_b32 s90, s{sW}, 1")
A("s_add_u32 s89, s89, s90")
A("s_lshl_b32 s89, s89, 11")
A(f"s_add_u32 s89, s89, {W_H2}")
A(f"s_lshl_b32 s85, s{sX}, 9")
A(f"s_add_u32 s85, s85, {W_XT}")
A("v_lshlrev_b32 v248, 4, v2")
A(f"v_add_u32 v248, {L_MX}, v248")
A(f"s_lshl_b32 s90, s{sW}, 2")
A("v_add_u32 v249, s90, v248")
A(f"s_sub_u32 s94, 15, s{sR}")
A(f"s_cmp_eq_u32 s{sR}, 31")
A("s_cselect_b32 s94, 6, s94")
A(f"s_cmp_eq_u32 s{sR}, 9")
A("s_cselect_b32 s94, 7, s94")
A("s_cmp_lt_u32 s94, 7")
A(f"s_mul_i32 s90, s{sX}, 7")
A("s_cselect_b32 s94, s94, 99")
A("s_add_u32 s100, s94, s90")
A(f"s_cmp_lt_u32 s{sW}, 5")
A("s_cselect_b32 s101, s100, 99")
A("v_lshrrev_b32 v10, 3, v0")
A("v_and_b32 v245, 0x70, v6")
A("v_mul_u32_u24 v244, 10240, v10")
A("v_add_u32 v244, v244, v245")
A("v_lshl_add_u32 v10, v10, 13, v245")
A("v_mul_u32_u24 v247, 10240, v1")
A("v_lshl_add_u32 v247, v2, 4, v247")
A(f"s_and_b32 s93, s{sR}, 8")
A("s_lshl_b32 s93, s93, 5")
A(f"s_and_b32 s90, s{sW}, 2")
A("s_lshl_b32 s90, s90, 6")
A("s_add_u32 s93, s93, s90")
A(f"s_and_b32 s90, s{sW}, 4")
A("s_lshl_b32 s90, s90, 4")
A("s_add_u32 s93, s93, s90")
A(f"s_and_b32 s90, s{sW}, 1")
A("s_lshl_b32 s90, s90, 3")
A("s_add_u32 s93, s93, s90")
A("s_lshl_b32 s93, s93, 13")
A("s_add_u32 s93, s93, s88")
A(f"s_and_b32 s90, s{sR}, 4")
A("s_lshl_b32 s90, s90, 5")
A("s_add_u32 s93, s93, s90")
A(f"s_and_b32 s82, s{sT0}, 0x3fffffff")
A(f"s_not_b32 s90, s{sT0}")
A("s_lshl_b32 s90, s90, 2")
A("s_and_b32 s90, s90, 0xc0000000")
A("s_or_b32 s82, s82, s90")
A("s_mov_b32 s83, 0x00010001")


def sym(dst, sh):
    A(f"v_lshrrev_b32 v{dst}, v{sh}, v246")
    A(f"v_lshlrev_b32 v15, 15, v{dst}")
    A(f"v_and_b32 v{dst}, 1, v{dst}")
    A(f"v_and_or_b32 v{dst}, v15, s84, v{dst}")


A("s_waitcnt vmcnt(17)")
A("v_mov_b32 v246, s82")
A("s_mov_b32 s84, 0x10000")
A("v_not_b32 v246, v246")
A("v_lshlrev_b32 v245, 3, v4")
for i in range(4):
    sym(252 + i, 245)
    if i < 3:
        A("v_add_u32 v245, 2, v245")
A.stamp(5, 7)
A("s_barrier")
ql = [f"buffer_load_dwordx4 v[{144+4*i}:{147+4*i}], v6, {srd(S_WS)}, s89 offen offset:{1024*i}" for i in range(4)]
qt = [146, 150, 154, 158]
for i in ql:
    A(i + " sc1")
A(f"v_mul_u32_u24 v12, {ROWB}, v2")
A("v_lshl_add_u32 v12, v1, 4, v12")
A(f"s_mul_i32 s90, s{sW}, {32*ROWB}")
A("v_add_u32 v11, s90, v12")
A(f"v_mul_u32_u24 v13, {ROWB}, v5")
A("v_lshl_add_u32 v13, v4, 3, v13")
A(f"s_and_b32 s94, s{sW}, 3")
A("s_lshl_b32 s90, s94, 8")
A("v_add_u32 v13, s90, v13")
A(f"v_add_u32 v14, {64*ROWB}, v13")
A("v_lshlrev_b32 v8, 3, v0")
A(f"s_mul_i32 s90, s{sW}, {2*ROWB}")
A(f"s_add_u32 s90, s90, {L_Q}")
A("v_add_u32 v8, s90, v8")
A(f"v_add_u32 v12, {L_Q}, v12")
A("s_waitcnt vmcnt(4)")
A.stamp(10, 7)
A("s_barrier")


def f_second(tag):
    if not opt.f2:
        return
    A(f"s_cmp_lt_u32 s{sR}, 16")
    A(f"s_cbranch_scc0 L_f2x{tag}")
    A("s_add_u32 s90, s91, 5120")
    A(f"s_cmp_lt_u32 s{sR}, 10")
    A(f"s_cbranch_scc0 L_f2b{tag}")
    for i in range(4):
        A(f"buffer_load_dwordx4 v[{192+4*i}:{195+4*i}], v244, {srd(S_WO)}, s90 offen offset:{1280*i} {opt.po}")
    A(f"s_branch L_f2x{tag}")
    A.lab(f"L_f2b{tag}")
    for i in range(4):
        A(f"buffer_load_dwordx4 v[{192+4*i}:{195+4*i}], v247, {srd(S_W2)}, s90 offen offset:{1280*i} {opt.po}")
    A.lab(f"L_f2x{tag}")


def s4_setup():
    A("v_and_b32 v76, 0x1ff, v6")
    poll([f"buffer_load_dwordx4 v[72:75], v76, {srd(S_WS)}, s85 offen"], [74])
    xt_decide(72)
    A("v_lshlrev_b32 v68, 11, v3")
    A("v_lshl_add_u32 v68, v1, 5, v68")
    A("v_and_b32 v69, 1, v0")
    A("v_lshl_add_u32 v68, v69, 4, v68")
    A(f"s_lshl_b32 s80, s{sH}, 13")
    A(f"s_and_b32 s90, s{sR}, 8")
    A("s_lshl_b32 s90, s90, 7")
    A("s_add_u32 s80, s80, s90")
    A(f"s_lshl_b32 s90, s{sW}, 7")
    A("s_add_u32 s80, s80, s90")
    A(f"s_add_u32 s80, s80, {W_H3B}")
    A("v_and_b32 v70, 7, v0")
    A("v_lshlrev_b32 v70, 5, v70")
    A("v_lshl_add_u32 v70, v1, 8, v70")
    A(f"s_lshl_b32 s90, s{sW}, 10")
    A(f"s_add_u32 s90, s90, {L_RED}")
    A("v_add_u32 v70, s90, v70")
    A("v_lshlrev_b32 v71, 11, v1")
    A("v_lshl_add_u32 v71, v2, 4, v71")
    A(f"s_lshl_b32 s81, s{sX}, 14")
    A(f"s_and_b32 s90, s{sR}, 8")
    A("s_lshl_b32 s90, s90, 10")
    A("s_add_u32 s81, s81, s90")
    A(f"s_and_b32 s90, s{sH}, 3")
    A("s_lshl_b32 s90, s90, 9")
    A("s_add_u32 s81, s81, s90")
    A(f"s_and_b32 s90, s{sR}, 4")
    A("s_lshl_b32 s90, s90, 6")
    A("s_add_u32 s81, s81, s90")
    A(f"s_add_u32 s81, s81, {W_H4}")
    transpose(80, [212, 216, 220, 224], 4)


def uv_loads():
    for e in range(4):
        A(f"buffer_load_dwordx4 v[{212+4*e}:{215+4*e}], v10, {srd(S_WUV)}, s93 offen {opt.po}")
        if e < 3:
            A(f"s_add_u32 s93, s93, {16*8192}")


A(f"s_cmp_lt_u32 s{sR}, 16")
A("s_cbranch_scc1 L_tlF")
A(f"s_cmp_lt_u32 s{sW}, {opt.uvw}")
A("s_cbranch_scc1 L_tlD")
uv_loads()
A("s_branch L_tlD")
A.lab("L_tlF")
A(f"s_cmp_lt_u32 s{sR}, 10")
A("s_cbranch_scc0 L_tlF2")
A(f"s_lshl_b32 s91, s{sX}, 3")
A(f"s_add_u32 s91, s91, s{sW}")
A(f"s_mul_i32 s91, s91, {64*1280}")
A(f"s_lshl_b32 s90, s{sR}, 7")
A("s_add_u32 s91, s91, s90")
for i in range(4):
    A(f"buffer_load_dwordx4 v[{212+4*i}:{215+4*i}], v244, {srd(S_WO)}, s91 offen offset:{1280*i} {opt.po}")
A("s_branch L_tlD")
A.lab("L_tlF2")
A(f"s_mul_i32 s91, s101, {32*1280}")
A(f"s_lshl_b32 s90, s{sW}, 8")
A("s_add_u32 s91, s91, s90")
for i in range(4):
    A(f"buffer_load_dwordx4 v[{212+4*i}:{215+4*i}], v247, {srd(S_W2)}, s91 offen offset:{1280*i} {opt.po}")
A.lab("L_tlD")
A(f"s_cmp_lt_u32 s{sW}, 4")
A("s_cbranch_scc0 L_opV")
for tl in range(2):
    for ks in range(16):
        d = 16 + 64 * tl + 4 * ks
        A(f"ds_read_b128 v[{d}:{d+3}], v11 offset:{16*ROWB*tl + 64*ks}")
A("s_branch L_opD")
A.lab("L_opV")
trl = []
for ks in range(4):
    for t in range(8):
        for hf in range(2):
            base = 14 if ks >= 2 else 13
            off = ((ks & 1) * 32 + 16 * hf) * ROWB + 32 * t
            d = 16 + (ks * 8 + t) * 4 + 2 * hf
            trl.append(f"ds_read_b64_tr_b16 v[{d}:{d+1}], v{base} offset:{off}")
for i in trl[:opt.nv0]:
    A(i)
A.lab("L_opD")
A(f"s_cmp_lt_u32 s{sR}, 16")
A("s_cbranch_scc1 L_qw4")
A(f"s_cmp_lt_u32 s{sW}, {opt.uvw}")
A("s_cbranch_scc0 L_qw4")
A("s_waitcnt vmcnt(0)")
A.lab("L_qw4")
A("s_waitcnt vmcnt(4)")
for k, t in enumerate(qt):
    if k == 0:
        A(f"v_cmp_ne_u64 vcc, s[{sT0}:{sT1}], v[{t}:{t+1}]")
    else:
        A(f"v_cmp_ne_u64 s[98:99], s[{sT0}:{sT1}], v[{t}:{t+1}]")
        A("s_or_b64 vcc, vcc, s[98:99]")
A("s_cbranch_vccz L_qok")
poll(ql, qt, sleep=opt.qsleep)
A.lab("L_qok")
A.stamp(6)
for i in range(4):
    A(f"ds_write_b64 v8, v[{144+4*i}:{145+4*i}] offset:{(i>>1)*ROWB + (i&1)*512}")
A("s_waitcnt lgkmcnt(0)")
A("s_barrier")
A(f"v_mov_b32 v234, s{sT0}")
A(f"v_mov_b32 v235, s{sT1}")
A(f"v_mov_b32 v238, s{sT0}")
A(f"v_mov_b32 v239, s{sT1}")
A(f"s_cmp_lt_u32 s{sW}, 4")
A("s_cbranch_scc0 L_V")
for ks in range(16):
    A(f"ds_read_b128 v[{144+4*ks}:{147+4*ks}], v12 offset:{64*ks}")
A(f"s_cmp_lt_u32 s{sR}, 16")
A("s_cbranch_scc1 L_nouv")
if opt.uvw:
    uv_loads()
A.lab("L_nouv")
S0, S1 = 228, 208
for ks in range(16):
    A(f"s_waitcnt lgkmcnt({15-ks})")
    for tl, S in ((0, S0), (1, S1)):
        c = "0" if ks == 0 else f"v[{S}:{S+3}]"
        d = 16 + 64 * tl + 4 * ks
        A(f"v_mfma_f32_16x16x32_bf16 v[{S}:{S+3}], v[{d}:{d+3}], v[{144+4*ks}:{147+4*ks}], {c}")
if opt.f2 == 1:
    f_second("k")
A(f"s_lshl_b32 s90, s{sW}, 10")
A(f"s_add_u32 s90, s90, {L_P}")
A("v_add_u32 v12, s90, v6")
A("s_nop 3")
A.stamp(7)
A(f"v_max3_f32 v232, v{S0}, v{S0+1}, v{S0+2}")
A("s_nop 0")
A(f"v_max3_f32 v233, v{S0+3}, v{S1}, v{S1+1}")
A(f"v_max3_f32 v232, v232, v{S1+2}, v{S1+3}")
A("v_max_f32 v232, v232, v233")
for sw in ("v_permlane16_swap_b32", "v_permlane32_swap_b32"):
    A("v_mov_b32 v233, v232")
    A("s_nop 1")
    A(f"{sw} v232, v233")
    A("s_nop 0")
    A("v_max_f32 v232, v232, v233")
A("ds_write_b32 v249, v232")
A("s_waitcnt lgkmcnt(0)")
A("s_barrier")
A.stamp(1, 4)
A("ds_read_b128 v[240:243], v248")
A("s_waitcnt lgkmcnt(0)")
A("v_max3_f32 v232, v240, v241, v242")
A("v_max_f32 v232, v232, v243")
SC = (128 ** -0.5) * math.log2(math.e)
A(f"v_mul_f32 v232, {f32(SC)}, v232")
A(f"s_mov_b32 s90, {f32(SC)}")
for S in (S0, S1):
    for i in range(4):
        A(f"v_fma_f32 v{S+i}, v{S+i}, s90, -v232")
for S in (S0, S1):
    for i in range(4):
        A(f"v_exp_f32 v{S+i}, v{S+i}")
A(f"v_cvt_pk_bf16_f32 v240, v{S0}, v{S0+1}")
A(f"v_cvt_pk_bf16_f32 v241, v{S0+2}, v{S0+3}")
A(f"v_cvt_pk_bf16_f32 v242, v{S1}, v{S1+1}")
A(f"v_cvt_pk_bf16_f32 v243, v{S1+2}, v{S1+3}")
A("ds_write_b128 v12, v[240:243]")
A("s_waitcnt lgkmcnt(0)")
A("s_barrier")
A(f"s_cmp_lg_u32 s{sW}, {opt.stw}")
A("s_cbranch_scc1 L_cbK")
A(f"v_add_u32 v11, {L_P}, v6")
for ks in range(4):
    A(f"ds_read_b128 v[{144+4*ks}:{147+4*ks}], v11 offset:{1024*ks}")
for i in range(4):
    A(f"v_mov_b32 v{240+i}, 0x3f803f80")
A("s_lshl_b32 s95, s79, 5")
A(f"s_and_b32 s90, s{sR}, 16")
A("s_add_u32 s95, s95, s90")
A("s_lshl_b32 s95, s95, 1")
A(f"s_add_u32 s95, s95, s{sH}")
A("s_lshl_b32 s95, s95, 8")
A(f"s_add_u32 s95, s95, {W_STX}")
for ks in range(4):
    A(f"s_waitcnt lgkmcnt({3-ks})")
    c = "0" if ks == 0 else "v[228:231]"
    A(f"v_mfma_f32_16x16x32_bf16 v[228:231], v[240:243], v[{144+4*ks}:{147+4*ks}], {c}")
A("s_nop 7")
A("v_mov_b32 v233, v228")
execmask(0xFFFF)
A(f"buffer_store_dwordx4 v[232:235], v6, {srd(S_WS)}, s95 offen sc1")
execall()
A("s_branch L_cbK")

A.lab("L_V")
if opt.f2 in (1, 2):
    f_second("v")
if opt.vdelay:
    A(f"s_sleep {opt.vdelay}")
for i in trl[opt.nv0:]:
    A(i)
A("v_lshlrev_b32 v13, 17, v1")
A("v_lshl_add_u32 v13, v2, 4, v13")
A("s_lshl_b32 s93, s79, 5")
A(f"s_and_b32 s90, s{sR}, 16")
A("s_add_u32 s93, s93, s90")
A("s_lshl_b32 s93, s93, 15")
A(f"s_lshl_b32 s90, s{sH}, 10")
A("s_add_u32 s93, s93, s90")
A("s_lshl_b32 s90, s94, 8")
A("s_add_u32 s93, s93, s90")
A(f"s_add_u32 s93, s93, {W_H3A}")
A(f"v_add_u32 v11, {L_P}, v6")
for i in range(4):
    A(f"v_xor_b32 v{208+i}, s83, v{252+i}")
A("s_barrier")
A("s_waitcnt lgkmcnt(0)")
A("s_barrier")
A.stamp(2, 4)
for ks in range(4):
    A(f"ds_read_b128 v[{144+4*ks}:{147+4*ks}], v11 offset:{1024*ks}")
for ks in range(4):
    A(f"s_waitcnt lgkmcnt({3-ks})")
    for t in range(8):
        c = "0" if ks == 0 else f"v[{160+4*t}:{163+4*t}]"
        bb = 16 + (ks * 8 + t) * 4
        A(f"v_mfma_f32_16x16x32_bf16 v[{160+4*t}:{163+4*t}], v[{144+4*ks}:{147+4*ks}], v[{bb}:{bb+3}], {c}")
A("s_nop 5")
A.stamp(3, 4)
for r_ in range(4):
    for i in range(4):
        A(f"v_perm_b32 v{16+4*r_+i}, v{164+8*i+r_}, v{160+8*i+r_}, s{sPHI}")
    for i in range(4):
        A(f"v_bfi_b32 v{16+4*r_+i}, s83, v{208+i}, v{16+4*r_+i}")
    A(f"buffer_store_dwordx4 v[{16+4*r_}:{19+4*r_}], v13, {srd(S_WS)}, s93 offen sc1")
    if r_ < 3:
        A("s_add_u32 s93, s93, 32768")
A.stamp(8)
if opt.ackn >= 0:
    A(f"s_waitcnt vmcnt({opt.ackn})")
if opt.bs:
    A("s_barrier")
s4_setup()
A("s_barrier")
A("s_branch L_cbd")

L_CB = L_OS
L_CM = L_OS + 8192
A.lab("L_cbK")
A("s_barrier")
s4_setup()
A("v_lshrrev_b32 v13, 5, v0")
A("v_and_b32 v9, 0x1ff, v6")
A("v_lshl_add_u32 v9, v13, 10, v9")
A("s_lshl_b32 s96, s79, 5")
A(f"s_add_u32 s96, s96, s{sH}")
A("s_lshl_b32 s96, s96, 15")
A(f"s_lshl_b32 s90, s{sW}, 13")
A("s_add_u32 s96, s96, s90")
A(f"s_and_b32 s90, s{sR}, 16")
A("s_lshl_b32 s90, s90, 5")
A("s_add_u32 s96, s96, s90")
A(f"s_add_u32 s96, s96, {W_H3A}")
A("s_add_u32 s92, s96, 4096")
A("v_lshl_add_u32 v12, v4, 1, v13")
A("v_lshlrev_b32 v12, 8, v12")
A("s_lshl_b32 s86, s79, 5")
A(f"s_and_b32 s90, s{sH}, 16")
A("s_add_u32 s86, s86, s90")
A("s_lshl_b32 s86, s86, 9")
A(f"s_lshl_b32 s90, s{sW}, 11")
A("s_add_u32 s86, s86, s90")
A(f"s_and_b32 s90, s{sH}, 15")
A("s_lshl_b32 s90, s90, 4")
A("s_add_u32 s86, s86, s90")
A(f"s_add_u32 s86, s86, {W_STX}")
A(f"s_lshl_b32 s90, s{sW}, 10")
A(f"s_add_u32 s90, s90, {L_CB}")
A("v_add_u32 v11, s90, v6")
A(f"s_lshl_b32 s90, s{sW}, 3")
A(f"s_add_u32 s90, s90, {L_CM}")
A("v_mov_b32 v8, s90")
A(f"v_add_u32 v65, {L_CB}, v6")
A(f"v_mov_b32 v66, {L_CM}")
A(f"s_lshl_b32 s93, s{sH}, 2")
A("s_add_u32 s93, s93, s79")
A("s_lshl_b32 s93, s93, 11")
A(f"s_and_b32 s90, s{sR}, 16")
A("s_lshl_b32 s90, s90, 6")
A("s_add_u32 s93, s93, s90")
A(f"s_add_u32 s93, s93, {W_H3B}")
for i in range(8):
    A(f"v_mov_b32 v{48+i}, 0")
A.stamp(6, 4)
bulk = [f"buffer_load_dwordx4 v[{32+4*i}:{35+4*i}], v9, {srd(S_WS)}, {'s96' if i < 2 else 's92'} offen offset:{2048*(i&1)} sc1" for i in range(4)]
stl = f"buffer_load_dwordx4 v[16:19], v12, {srd(S_WS)}, s86 offen"
if opt.spec:
    if opt.sd:
        A(f"s_sleep {opt.sd}")
    execmask(0x0000000F0000000F)
    A(stl + " sc1")
    execall()
    for i in bulk:
        A(i)
    A("s_waitcnt vmcnt(4)")
    execmask(0x0000000F0000000F)
    A(f"v_cmp_ne_u64 vcc, s[{sT0}:{sT1}], v[18:19]")
    A("s_cbranch_vccz L_stok")
    poll([stl], [18], sleep=opt.ssleep)
    if opt.bdelay:
        A(f"s_sleep {opt.bdelay}")
    A.lab("L_stok")
    execall()
else:
    execmask(0x0000000F0000000F)
    poll([stl], [18], sleep=opt.ssleep)
    execall()
    if opt.bdelay:
        A(f"s_sleep {opt.bdelay}")
    for i in bulk:
        A(i)
A.stamp(9, 4)
A.stamp(3, 0)


def all8(op, r_, t):
    for m in ("quad_perm:[1,0,3,2]", "quad_perm:[2,3,0,1]"):
        A("s_nop 1")
        A(f"{op}_dpp v{r_}, v{r_}, v{r_} {m} {DPPM}")
    A(f"v_mov_b32 v{t}, v{r_}")
    A("s_nop 1")
    A(f"v_permlane32_swap_b32 v{r_}, v{t}")
    A("s_nop 0")
    A(f"{op} v{r_}, v{r_}, v{t}")


A("v_mov_b32 v20, v16")
all8("v_max_f32", 20, 26)
A("v_sub_f32 v16, v16, v20")
A("v_exp_f32 v16, v16")
A("s_nop 0")
A("v_mul_f32 v21, v16, v17")
all8("v_add_f32", 21, 26)
A("s_mov_b64 exec, 1")
A("ds_write_b64 v8, v[20:21]")
execall()
A("v_mov_b32 v17, v16")
A("s_nop 1")
A("v_permlane16_swap_b32 v16, v17")
A("s_nop 1")
for i in range(4):
    A(f"v_mov_b32_dpp v{24+2*i}, v16 row_newbcast:{i} {DPPM}")


def take(i, lf):
    w_ = 32 + 4 * i
    for d in range(4):
        A(f"v_xor_b32 v{w_+d}, v{w_+d}, v{252+d}")
    A(f"v_bitop3_b32 v64, v{w_}, v{w_+1}, s83 bitop3:0x80")
    A(f"v_bitop3_b32 v64, v64, v{w_+2}, v{w_+3} bitop3:0x80")
    A("v_cmp_ne_u32 vcc, s83, v64")
    for d in range(4):
        unpack(56 + 2 * d, 57 + 2 * d, w_ + d)
    A(f"s_cbranch_vccnz {lf}")
    for d in range(4):
        A(f"v_pk_fma_f32 v[{48+2*d}:{49+2*d}], v[{56+2*d}:{57+2*d}], v[{24+2*i}:{25+2*i}], v[{48+2*d}:{49+2*d}] op_sel_hi:[1,0,1]")
    A(f"s_bitset0_b32 s94, {i}")
    A.lab(lf)


A("s_mov_b32 s94, 15")
for i in range(4):
    A(f"s_waitcnt vmcnt({3-i})")
    take(i, A.newlab("Ltk"))
A("s_cmp_eq_u32 s94, 0")
A("s_cbranch_scc1 L_bkx")
A.lab("L_bk0")
for i in range(4):
    l = A.newlab("Lrl")
    A(f"s_bitcmp1_b32 s94, {i}")
    A(f"s_cbranch_scc0 {l}")
    A(bulk[i])
    A.lab(l)
A(f"s_add_u32 s{sCNT}, s{sCNT}, 0x10000")
A(f"s_cmp_gt_u32 s{sCNT}, 0x7fff0000")
A("s_cbranch_scc1 L_end")
A("s_waitcnt vmcnt(0)")
for i in range(4):
    l = A.newlab("Ltk")
    A(f"s_bitcmp1_b32 s94, {i}")
    A(f"s_cbranch_scc0 {l}")
    take(i, l)
A("s_cmp_eq_u32 s94, 0")
A("s_cbranch_scc0 L_bk0")
A.lab("L_bkx")
A.stamp(10, 4)
A(f"s_lshr_b32 s97, s{sCNT}, 16")
A(f"s_and_b32 s{sCNT}, s{sCNT}, 0xffff")
for e in range(4):
    A(f"v_permlane32_swap_b32 v{48+e}, v{52+e}")
A("v_pk_add_f32 v[48:49], v[48:49], v[52:53]")
A("v_pk_add_f32 v[50:51], v[50:51], v[54:55]")
A("ds_write_b128 v11, v[48:51]")
A(f"s_cmp_lg_u32 s{sW}, 1")
A("s_waitcnt lgkmcnt(0)")
A("s_barrier")
A("s_cbranch_scc1 L_cbd")
A("ds_read_b128 v[16:19], v66")
A("ds_read_b128 v[20:23], v66 offset:16")
for i in range(4):
    A(f"ds_read_b128 v[{32+4*i}:{35+4*i}], v65 offset:{1024*i}")
A("s_waitcnt lgkmcnt(4)")
A("v_max3_f32 v24, v16, v18, v20")
A("v_max_f32 v24, v24, v22")
for i in range(4):
    A(f"v_sub_f32 v{16+2*i}, v{16+2*i}, v24")
for i in range(4):
    A(f"v_exp_f32 v{16+2*i}, v{16+2*i}")
A("v_mul_f32 v25, v16, v17")
A("v_fmac_f32 v25, v18, v19")
A("v_fmac_f32 v25, v20, v21")
A("v_fmac_f32 v25, v22, v23")
A("v_rcp_f32 v26, v25")
A("s_waitcnt lgkmcnt(0)")
for i in range(4):
    for hh in range(2):
        x = 32 + 4 * i + 2 * hh
        if i == 0:
            A(f"v_pk_mul_f32 v[{48+2*hh}:{49+2*hh}], v[{x}:{x+1}], v[16:17] op_sel_hi:[1,0]")
        else:
            A(f"v_pk_fma_f32 v[{48+2*hh}:{49+2*hh}], v[{x}:{x+1}], v[{16+2*i}:{17+2*i}], v[{48+2*hh}:{49+2*hh}] op_sel_hi:[1,0,1]")
A("v_pk_mul_f32 v[48:49], v[48:49], v[26:27] op_sel_hi:[1,0]")
A("v_pk_mul_f32 v[50:51], v[50:51], v[26:27] op_sel_hi:[1,0]")
A("v_cvt_pk_bf16_f32 v236, v48, v49")
A("v_cvt_pk_bf16_f32 v237, v50, v51")
store_local([f"buffer_store_dwordx4 v[236:239], v6, {srd(S_WS)}, s93 offen"])
A.stamp(5, 0)
A.stamp(11, 4)
A.lab("L_cbd")
A(f"s_cmp_lt_u32 s{sR}, 16")
A("s_cbranch_scc1 L_F")

poll([f"buffer_load_dwordx4 v[208:211], v68, {srd(S_WS)}, s80 offen"], [210])
A.stamp(9, 0)
for jj in range(8):
    d = 144 + 4 * jj
    A(f"v_mfma_f32_16x16x16_bf16 v[{d}:{d+3}], v[208:209], v[{80+2*jj}:{81+2*jj}], 0")
A("s_nop 1")
for jj in range(8):
    d = 144 + 4 * jj
    A(f"v_add_f32_dpp v{216+jj}, v{d+1}, v{d} row_shl:8 {DPPM}")
execmask(M_N8)
A("ds_write_b128 v70, v[216:219]")
A("ds_write_b128 v70, v[220:223] offset:16")
execall()
A("s_waitcnt lgkmcnt(0)")
A("s_barrier")
A(f"s_cmp_lg_u32 s{sW}, 7")
A("s_cbranch_scc1 L_clean")
for s_ in range(8):
    A(f"ds_read_b128 v[{144+4*s_}:{147+4*s_}], v6 offset:{L_RED + 1024*s_}")
sum_b128(8, 144, True)
A("v_cvt_pk_bf16_f32 v236, v144, v145")
A("v_cvt_pk_bf16_f32 v237, v146, v147")
store_local([f"buffer_store_dwordx4 v[236:239], v71, {srd(S_WS)}, s81 offen"])
A.stamp(10, 0)
A("s_branch L_fin")

A.lab("L_clean")
A("s_mov_b32 s94, s100")
A("s_mov_b32 s97, s101")
A(f"s_cmp_eq_u32 s{sR}, 31")
A("s_cbranch_scc1 L_F1")
A(f"s_cmp_lt_u32 s{sW}, 2")
A("s_cbranch_scc0 L_fin")

A.lab("L_red")
A(f"s_cmp_lt_u32 s{sR}, 26")
A("s_cbranch_scc0 L_fin")
A(f"s_and_b32 s94, s{sR}, 15")
A("v_and_b32 v12, 1, v1")
A("v_mul_u32_u24 v13, 1280, v12")
A("v_lshl_add_u32 v13, v2, 3, v13")
A("v_lshrrev_b32 v15, 5, v0")
A("v_lshl_add_u32 v13, v15, 2, v13")
A(f"s_mul_i32 s90, s{sW}, 2560")
A("s_lshl_b32 s93, s94, 7")
A("s_add_u32 s90, s90, s93")
A(f"buffer_load_dword v200, v13, {srd(S_X)}, s90 offen")
A("v_mul_u32_u24 v13, 2560, v12")
A("v_lshl_add_u32 v13, v2, 4, v13")
A(f"s_mul_i32 s96, s{sX}, 10240")
A(f"s_mul_i32 s90, s{sW}, 5120")
A("s_add_u32 s96, s96, s90")
A("s_lshl_b32 s90, s94, 8")
A("s_add_u32 s96, s96, s90")
A(f"s_add_u32 s96, s96, {W_H5C}")
A("v_and_b32 v14, 0x1ff, v6")
A("v_lshl_add_u32 v14, v15, 10, v14")
A("s_lshl_b32 s95, s94, 13")
A(f"s_lshl_b32 s90, s{sW}, 9")
A("s_add_u32 s95, s95, s90")
A(f"s_add_u32 s95, s95, {W_H5B}")
A("s_add_u32 s93, s95, 4096")
poll([f"buffer_load_dwordx4 v[{144+4*i}:{147+4*i}], v14, {srd(S_WS)}, {'s95' if i < 2 else 's93'} offen offset:{2048*(i&1)}" for i in range(4)],
     [146 + 4 * i for i in range(4)])
for i in range(4):
    unpack(160 + 4 * i, 161 + 4 * i, 144 + 4 * i)
    unpack(162 + 4 * i, 163 + 4 * i, 145 + 4 * i)
unpack(202, 203, 200)
sum_b128(4, 160)
A("s_nop 1")
A("v_permlane32_swap_b32 v160, v162")
A("v_permlane32_swap_b32 v161, v163")
A("s_nop 0")
A("v_pk_add_f32 v[160:161], v[160:161], v[162:163]")
A("v_pk_add_f32 v[160:161], v[160:161], v[202:203]")
A("v_cvt_pk_bf16_f32 v236, v160, v161")
A("v_cvt_pk_bf16_f32 v237, v160, v161")
A("s_nop 1")
A("v_permlane32_swap_b32 v236, v237")
execmask(0xFFFFFFFF)
store_local([f"buffer_store_dwordx4 v[236:239], v13, {srd(S_WS)}, s96 offen"])
execall()
A.stamp(11)
A("s_branch L_fin")

A.lab("L_s8")
A("s_lshl_b32 s94, s2, 1")
A(f"s_and_b32 s90, s{sW}, 1")
A("s_add_u32 s94, s94, s90")
A("s_mul_i32 s90, s94, 1639")
A("s_lshr_b32 s90, s90, 16")
A("s_mul_i32 s93, s90, 40")
A("s_sub_u32 s93, s94, s93")
A("s_lshr_b32 s95, s93, 3")
A("s_lshl_b32 s95, s95, 5")
A("s_bfe_u32 s96, s93, 0x10002")
A("s_add_u32 s95, s95, s96")
A("s_and_b32 s96, s93, 3")
A("s_lshl_b32 s96, s96, 3")
A("s_add_u32 s95, s95, s96")
A("v_mul_u32_u24 v12, 10240, v5")
A("v_lshl_add_u32 v12, v4, 4, v12")
A("s_lshl_b32 s78, s94, 6")
A(f"s_add_u32 s78, s78, {W_H6}")
A(f"s_add_u32 s79, s78, {16*10240}")
A(f"s_add_u32 s80, s78, {32*10240}")
A(f"s_add_u32 s81, s78, {48*10240}")
A("v_add_u32 v13, s81, v12")
A(f"s_lshl_b32 s82, s{sX}, 2")
A("s_add_u32 s82, s82, s90")
A("s_mul_i32 s82, s82, 160")
A("s_add_u32 s82, s82, s95")
A("s_lshl_b32 s82, s82, 4")
A(f"s_add_u32 s82, s82, {W_H5C}")
A("v_lshlrev_b32 v14, 5, v4")
A("v_add_u32 v14, s82, v14")
A("v_cmp_gt_u32 vcc, 6, v5")
A("s_nop 1")
A("v_cndmask_b32 v13, v14, v13, vcc")
A("s_mul_i32 s83, s90, 1280")
A("s_lshl_b32 s84, s95, 3")
A("s_add_u32 s83, s83, s84")
A("v_lshlrev_b32 v15, 4, v4")
A("v_lshl_add_u32 v15, v1, 1, v15")
s8l = [f"buffer_load_dwordx4 v[144:147], v12, {srd(S_WS)}, s78 offen",
       f"buffer_load_dwordx4 v[148:151], v12, {srd(S_WS)}, s79 offen",
       f"buffer_load_dwordx4 v[152:155], v12, {srd(S_WS)}, s80 offen",
       f"buffer_load_dwordx4 v[156:159], v13, {srd(S_WS)}, 0 offen"]
A("s_sleep 4")
for i in s8l:
    A(i + " sc1")
poll([f"buffer_load_dwordx4 v[164:167], v14, {srd(S_WS)}, 0 offen"], [166], sleep=2)
poll(s8l, [146, 150, 154, 158])
A("v_cmp_gt_u32 vcc, 7, v5")
A("s_nop 1")
A("v_cndmask_b32 v156, 0, v156, vcc")
A("v_cndmask_b32 v157, 0, v157, vcc")
for i in range(4):
    unpack(160 + 4 * i, 161 + 4 * i, 144 + 4 * i)
    unpack(162 + 4 * i, 163 + 4 * i, 145 + 4 * i)
sum_b128(4, 160)
A("s_nop 1")
A("v_permlane32_swap_b32 v160, v162")
A("v_permlane32_swap_b32 v161, v163")
A("s_nop 0")
A("v_pk_add_f32 v[160:161], v[160:161], v[162:163]")
A("s_nop 1")
A("v_permlane16_swap_b32 v160, v161")
A("s_nop 0")
A("v_add_f32 v160, v160, v161")
A("s_nop 1")
A(f"v_add_f32_dpp v160, v160, v160 row_ror:8 {DPPM}")
A("s_nop 1")
A(f"v_add_f32_dpp v160, v160, v160 row_ror:4 {DPPM}")
A("s_nop 0")
A("v_cvt_pk_bf16_f32 v160, v160, v160")
execmask(M_N4)
A(f"buffer_store_short v160, v15, {srd(S_OUT)}, s83 offen")
execall()
A("s_cmp_lg_u32 s94, 0")
A("s_cbranch_scc1 L_s8x")
A("v_mov_b32 v12, 0")
A("s_mov_b64 exec, 1")
A(f"buffer_store_dwordx2 v[238:239], v12, {srd(S_WS)}, 0 offen sc1")
execall()
A.lab("L_s8x")
if opt.padto:
    A.lab("L_pad")
    A("s_memrealtime s[6:7]")
    A("s_waitcnt lgkmcnt(0)")
    A("s_sub_u32 s6, s6, s4")
    A(f"s_cmp_lt_u32 s6, {opt.padto*100}")
    A("s_cbranch_scc1 L_pad")
A.stamp(11)
A("s_branch L_fin")

def w1_loads():
    A("v_mul_u32_u24 v15, 13824, v5")
    A("v_lshl_add_u32 v15, v4, 4, v15")
    A(f"s_mul_i32 s93, s{sW}, {128*3456}")
    A("s_lshl_b32 s90, s94, 6")
    A("s_add_u32 s93, s93, s90")
    for i in range(8):
        A(f"s_add_u32 s90, s93, {((i & 3) + 64*(i >> 2))*3456}")
        A(f"buffer_load_dwordx4 v[{16+4*i}:{19+4*i}], v15, {srd(S_W1)}, s90 offen {opt.pt}")


A.lab("L_F")
if opt.fwait:
    A("s_waitcnt vmcnt(0)")
    A.stamp(3, 5)
A("s_barrier")
if opt.fwait > 1:
    A(f"s_sleep {opt.fwait}")
A("s_waitcnt vmcnt(4)")
if opt.f2 == 2:
    A(f"s_cmp_lt_u32 s{sW}, 4")
    A("s_cbranch_scc0 L_f2xl")
    f_second("l")
if opt.f2 == 3:
    f_second("l")
A("s_mov_b32 s94, s100")
A("s_mov_b32 s97, s101")
A(f"s_cmp_lt_u32 s{sR}, 10")
A("s_cbranch_scc0 L_F1")
if opt.d1:
    A(f"s_sleep {opt.d1}")
if not opt.f2:
    A("s_add_u32 s90, s91, 5120")
    for i in range(4):
        A(f"buffer_load_dwordx4 v[{192+4*i}:{195+4*i}], v244, {srd(S_WO)}, s90 offen offset:{1280*i} {opt.po}")
A(f"s_lshl_b32 s90, s{sR}, 3")
A(f"s_add_u32 s90, s90, s{sW}")
A(f"s_mul_i32 s92, s{sX}, 7")
A("s_add_u32 s92, s92, 6")
A("s_cmp_lt_u32 s90, 40")
A("s_cbranch_scc0 L_hp2")
A("s_lshl_b32 s92, s92, 6")
A("v_mul_u32_u24 v15, 3456, v5")
A("v_lshl_add_u32 v15, v4, 4, v15")
A(f"s_mul_i32 s90, s90, {16*3456}")
A("s_add_u32 s90, s90, s92")
A(f"buffer_load_dwordx4 v[48:51], v15, {srd(S_W1)}, s90 offen")
A("s_branch L_s5")
A.lab("L_hp2")
A("s_sub_u32 s90, s90, 40")
A("s_lshl_b32 s90, s90, 10")
A(f"s_mul_i32 s92, s92, {32*1280}")
A("s_add_u32 s90, s90, s92")
A(f"buffer_load_dwordx4 v[48:51], v6, {srd(S_W2)}, s90 offen")
A.lab("L_s5")
A("s_waitcnt vmcnt(1)")
transpose(112, [212, 216, 220, 224, 192, 196, 200, 204], 4)
A("v_lshl_add_u32 v12, v3, 11, v7")
A(f"s_lshl_b32 s95, s{sX}, 14")
A(f"s_lshl_b32 s90, s{sW}, 8")
A("s_add_u32 s95, s95, s90")
A(f"s_add_u32 s95, s95, {W_H4}")
A("s_add_u32 s96, s95, 8192")
A("v_and_b32 v14, 7, v0")
A("v_lshlrev_b32 v14, 5, v14")
A("v_lshl_add_u32 v14, v1, 8, v14")
A(f"s_lshl_b32 s90, s{sW}, 10")
A(f"s_add_u32 s90, s90, {L_RED}")
A("v_add_u32 v14, s90, v14")
poll([f"buffer_load_dwordx4 v[208:211], v12, {srd(S_WS)}, s95 offen",
      f"buffer_load_dwordx4 v[212:215], v12, {srd(S_WS)}, s96 offen"], [210, 214], sleep=opt.lsleep)
A.stamp(9, 0)
unpack(216, 217, 208); unpack(218, 219, 209); unpack(220, 221, 212); unpack(222, 223, 213)
A("v_pk_add_f32 v[216:217], v[216:217], v[220:221]")
A("v_pk_add_f32 v[218:219], v[218:219], v[222:223]")
A("v_cvt_pk_bf16_f32 v208, v216, v217")
A("v_cvt_pk_bf16_f32 v209, v218, v219")
A("s_nop 1")
A(f"v_mov_b32_dpp v212, v208 quad_perm:[0,2,0,2] {DPPM}")
A(f"v_mov_b32_dpp v213, v209 quad_perm:[0,2,0,2] {DPPM}")
A(f"v_mov_b32_dpp v214, v208 quad_perm:[1,3,1,3] {DPPM}")
A(f"v_mov_b32_dpp v215, v209 quad_perm:[1,3,1,3] {DPPM}")
A("s_nop 1")
for jj in range(8):
    d = 144 + 4 * jj
    A(f"v_mfma_f32_16x16x32_bf16 v[{d}:{d+3}], v[212:215], v[{112+4*jj}:{115+4*jj}], 0")
A("s_nop 1")
for jj in range(8):
    d = 144 + 4 * jj
    A(f"v_add_f32_dpp v{216+jj}, v{d+1}, v{d} row_shl:8 {DPPM}")
execmask(M_N8)
A("ds_write_b128 v14, v[216:219]")
A("ds_write_b128 v14, v[220:223] offset:16")
execall()
A("s_waitcnt lgkmcnt(0)")
A("s_barrier")
A(f"s_and_b32 s90, s{sW}, 6")
A("s_cmp_eq_u32 s90, 2")
A("s_cbranch_scc1 L_s8")
A(f"s_cmp_lg_u32 s{sW}, 7")
A("s_cbranch_scc1 L_fin")
for s in range(8):
    A(f"ds_read_b128 v[{144+4*s}:{147+4*s}], v6 offset:{L_RED + 1024*s}")
A(f"s_lshl_b32 s95, s{sR}, 3")
A(f"s_add_u32 s95, s95, s{sX}")
A("s_lshl_b32 s95, s95, 10")
A(f"s_add_u32 s95, s95, {W_H5B}")
sum_b128(8, 144, True)
A("v_cvt_pk_bf16_f32 v236, v144, v145")
A("v_cvt_pk_bf16_f32 v237, v146, v147")
A(f"buffer_store_dwordx4 v[236:239], v6, {srd(S_WS)}, s95 offen sc1")
A.stamp(11)
A("s_branch L_fin")

A.lab("L_F1")
A("s_cmp_lt_u32 s97, 54")
A("s_cbranch_scc0 L_fin")
A(f"s_cmp_lt_u32 s{sR}, 16")
A("s_cbranch_scc1 L_F1a")
A("s_sleep 4")
A(f"s_mul_i32 s91, s94, {32*1280}")
A(f"s_lshl_b32 s90, s{sW}, 8")
A("s_add_u32 s91, s91, s90")
A("s_add_u32 s90, s91, 5120")
for i in range(8):
    d = 212 + 4 * i if i < 4 else 192 + 4 * (i - 4)
    A(f"buffer_load_dwordx4 v[{d}:{d+3}], v247, {srd(S_W2)}, {'s91' if i < 4 else 's90'} offen offset:{1280*(i&3)} {opt.po}")
A.lab("L_F1a")
w1_loads()
A("s_waitcnt vmcnt(8)")
transpose(112, [212, 216, 220, 224, 192, 196, 200, 204], 4)
A("s_waitcnt vmcnt(0)")
A.stamp(2, 0)
transpose(80, [16 + 4 * i for i in range(8)], 4)
for i in range(4):
    A(f"v_mov_b32 v{48+i}, 0x3f803f80")
A("s_nop 1")
for jj in range(8):
    A(f"v_mfma_f32_16x16x32_bf16 v[{16+4*jj}:{19+4*jj}], v[48:51], v[{80+4*jj}:{83+4*jj}], 0")
A("s_nop 1")
dppsum([56 + jj for jj in range(8)], [16 + 4 * jj for jj in range(8)])
A("v_lshlrev_b32 v14, 5, v4")
A(f"s_lshl_b32 s90, s{sW}, 7")
A(f"s_add_u32 s90, s90, {L_CS}")
A("v_add_u32 v14, s90, v14")
A("s_mov_b64 exec, 15")
A("ds_write_b128 v14, v[56:59]")
A("ds_write_b128 v14, v[60:63] offset:16")
execall()
A("s_waitcnt lgkmcnt(0)")
A("s_barrier")
A.lab("L_s67")
A("v_lshrrev_b32 v14, 1, v7")
for s in range(5):
    A(f"ds_read_b64 v[{16+2*s}:{17+2*s}], v14 offset:{L_CS + 128*s}")
A("v_mul_u32_u24 v12, 2560, v3")
A("v_add_u32 v12, v12, v7")
A(f"s_mul_i32 s95, s{sX}, 10240")
A(f"s_lshl_b32 s90, s{sW}, 9")
A("s_add_u32 s95, s95, s90")
A(f"s_add_u32 s95, s95, {W_H5C}")
A("v_lshlrev_b32 v13, 1, v7")
A(f"s_add_u32 s90, s90, {L_RED2}")
A("v_add_u32 v13, s90, v13")
A("v_lshlrev_b32 v10, 3, v1")
A(f"s_lshl_b32 s90, s{sW}, 5")
A(f"s_add_u32 s90, s90, {L_RS}")
A("v_add_u32 v10, s90, v10")
A("v_lshl_add_u32 v14, v3, 7, v14")
A("v_lshlrev_b32 v11, 3, v3")
A("v_mul_u32_u24 v9, 2560, v1")
A("v_lshl_add_u32 v9, v2, 4, v9")
A("s_mul_i32 s96, s94, 10240")
A(f"s_lshl_b32 s90, s{sW}, 9")
A("s_add_u32 s96, s96, s90")
A(f"s_add_u32 s96, s96, {W_H6}")
A("s_waitcnt lgkmcnt(0)")
for s in range(1, 5):
    A(f"v_pk_add_f32 v[16:17], v[16:17], v[{16+2*s}:{17+2*s}]")
poll([f"buffer_load_dwordx4 v[208:211], v12, {srd(S_WS)}, s95 offen",
      f"buffer_load_dwordx4 v[212:215], v12, {srd(S_WS)}, s95 offen offset:256"], [210, 214], sleep=opt.lsleep)
A.stamp(10, 0)
A("v_mov_b32 v210, v212")
A("v_mov_b32 v211, v213")
A("s_nop 1")
A("v_mfma_f32_16x16x32_bf16 v[184:187], v[208:211], v[48:51], 0")
A("v_mfma_f32_16x16x32_bf16 v[188:191], v[208:211], v[208:211], 0")
for jj in range(8):
    d = 144 + 4 * jj
    A(f"v_mfma_f32_16x16x32_bf16 v[{d}:{d+3}], v[208:211], v[{80+4*jj}:{83+4*jj}], 0")
A("v_add_f32 v192, v184, v185")
A(f"v_add_f32_dpp v193, v189, v188 row_shl:1 {DPPM}")
A("v_add_f32 v194, v186, v187")
A("s_nop 0")
A(f"v_add_f32_dpp v193, v190, v193 row_shl:2 {DPPM}")
A("v_add_f32 v192, v192, v194")
A("s_nop 0")
A(f"v_add_f32_dpp v193, v191, v193 row_shl:3 {DPPM}")
execmask(0x1000010000100001)
A("ds_write_b64 v10, v[192:193]")
execall()
dppsum([176 + i for i in range(8)], [144 + 4 * i for i in range(8)])
execmask(M_N4)
A("ds_write_b128 v13, v[176:179]")
A("ds_write_b128 v13, v[180:183] offset:16")
execall()
A("s_waitcnt lgkmcnt(0)")
A("s_barrier")
for s in range(5):
    A(f"ds_read_b64 v[{160+2*s}:{161+2*s}], v11 offset:{L_RS + 32*s}")
for s in range(5):
    A(f"ds_read_b64 v[{144+2*s}:{145+2*s}], v14 offset:{L_RED2 + 512*s}")
A("s_waitcnt lgkmcnt(5)")
for s in range(1, 5):
    A(f"v_pk_add_f32 v[160:161], v[160:161], v[{160+2*s}:{161+2*s}]")
A(f"v_mul_f32 v160, {f32(1/640)}, v160")
A(f"v_mul_f32 v161, {f32(1/640)}, v161")
A("v_fma_f32 v161, -v160, v160, v161")
A("v_max_f32 v161, 0, v161")
A(f"v_add_f32 v161, {f32(1e-5)}, v161")
A("v_rsq_f32 v161, v161")
A("s_waitcnt lgkmcnt(0)")
for s in range(1, 5):
    A(f"v_pk_add_f32 v[144:145], v[144:145], v[{144+2*s}:{145+2*s}]")
A("v_fma_f32 v144, -v160, v16, v144")
A("v_fma_f32 v145, -v160, v17, v145")
A("v_mul_f32 v144, v144, v161")
A("v_mul_f32 v145, v145, v161")
A(f"v_mul_f32 v146, {f32(-math.log2(math.e))}, v144")
A(f"v_mul_f32 v147, {f32(-math.log2(math.e))}, v145")
A("v_exp_f32 v146, v146")
A("v_exp_f32 v147, v147")
A("s_nop 0")
A("v_add_f32 v146, 1.0, v146")
A("v_add_f32 v147, 1.0, v147")
A("v_rcp_f32 v146, v146")
A("v_rcp_f32 v147, v147")
A("s_nop 0")
A("v_mul_f32 v144, v144, v146")
A("v_mul_f32 v145, v145, v147")
A("v_cvt_pk_bf16_f32 v148, v144, v145")
A("s_nop 1")
for i in range(4):
    A(f"v_mov_b32_dpp v{208+i}, v148 quad_perm:[{i},{i},{i},{i}] {DPPM}")
A("s_nop 1")
for jj in range(8):
    d = 144 + 4 * jj
    A(f"v_mfma_f32_16x16x32_bf16 v[{d}:{d+3}], v[208:211], v[{112+4*jj}:{115+4*jj}], 0")
A("s_nop 3")
A("v_cvt_pk_bf16_f32 v232, v144, v148")
A("v_cvt_pk_bf16_f32 v233, v152, v156")
A(f"buffer_store_dwordx4 v[232:235], v9, {srd(S_WS)}, s96 offen sc1")
A("s_nop 1")
A("v_cvt_pk_bf16_f32 v236, v160, v164")
A("v_cvt_pk_bf16_f32 v237, v168, v172")
A(f"buffer_store_dwordx4 v[236:239], v9, {srd(S_WS)}, s96 offen offset:256 sc1")
A.stamp(11)

A.lab("L_fin")
if opt.dbgstamps:
    A("s_waitcnt vmcnt(0) lgkmcnt(0)")
    A("s_load_dwordx2 s[92:93], s[0:1], 80")
    A("s_mov_b32 s94, 256")
    A("s_mov_b32 s95, 0x00020000")
    A("v_mov_b32 v8, 0")
    A("s_waitcnt lgkmcnt(0)")
    A("s_mov_b64 exec, 1")
    A("s_not_b32 s90, s4")
    A("v_mov_b32 v9, s90")
    A("buffer_atomic_umax v9, v8, s[92:95], 0 offen offset:60")
    A(f"s_cmp_lt_u32 s{sR}, 16")
    for i in range(12):
        A(f"v_mov_b32 v9, s{4+2*i}")
        if i in (3, 4, 9):
            o2 = {3: 48, 4: 52, 9: 56}[i]
            A(f"s_cselect_b32 s91, {4*i}, {o2}")
            A(f"buffer_atomic_umax v9, v8, s[92:95], s91 offen")
        else:
            A(f"buffer_atomic_umax v9, v8, s[92:95], 0 offen offset:{4*i}")
    A("s_branch L_end")
if opt.stamps:
    A("s_waitcnt vmcnt(0) lgkmcnt(0)")
    A(f"s_lshl_b32 s90, s2, 3")
    A(f"s_add_u32 s90, s90, s{sW}")
    A("s_lshl_b32 s90, s90, 6")
    A(f"s_add_u32 s90, s90, {W_STAMP}")
    A("v_mov_b32 v8, 0")
    A("s_mov_b64 exec, 1")
    for i in range(12):
        A(f"v_mov_b32 v9, s{4+2*i}")
        A(f"buffer_store_dword v9, v8, {srd(S_WS)}, s90 offen offset:{4*i}")
    A(f"v_mov_b32 v9, s{sCNT}")
    A(f"buffer_store_dword v9, v8, {srd(S_WS)}, s90 offen offset:56")
    A(f"v_mov_b32 v9, s{sFAST}")
    A(f"buffer_store_dword v9, v8, {srd(S_WS)}, s90 offen offset:60")
A.lab("L_end")

body = "\n".join(A.l)
if opt.stamps:
    init = "\n".join(f"    s_mov_b32 s{4+2*i}, 0" for i in range(1, 12))
    body = init + "\n" + body
out = HDR + f"""; @launch grid=(256,1,1) block=(512,1,1) lds={LDS_BYTES}
.amdgcn_target "amdgcn-amd-amdhsa--gfx950"
.text
.globl {NAME}_kernel
.p2align 8
.type {NAME}_kernel,@function
{NAME}_kernel:
{body}
    s_endpgm
L_codeend:
.section .rodata,"a"
.p2align 6
.amdhsa_kernel {NAME}_kernel
  .amdhsa_next_free_vgpr 256
  .amdhsa_next_free_sgpr 102
  .amdhsa_accum_offset 256
  .amdhsa_group_segment_fixed_size 0
  .amdhsa_kernarg_size 96
  .amdhsa_user_sgpr_count 2
  .amdhsa_user_sgpr_kernarg_segment_ptr 1
  .amdhsa_system_sgpr_workgroup_id_x 1
.end_amdhsa_kernel
"""
open(opt.o, "w").write(out)
print("wrote", opt.o, "lines", len(A.l), file=sys.stderr)
```

```python
import sys, re, argparse, math, struct

NAME = "sequential_preLN__compressed_kv_cla__dense_activation_silu__decode"
HDR = open(f"cdna_kernels/{NAME}.s.ref").read().split("; Override launch")[0]

ap = argparse.ArgumentParser()
ap.add_argument("-o", default=f"cdna_kernels/{NAME}.s")
ap.add_argument("--stamps", action="store_true")
ap.add_argument("--early", type=int, default=4)
ap.add_argument("--early67", type=int, default=16)
ap.add_argument("--pw", default="sc1")
ap.add_argument("--noh3bt", action="store_true")
ap.add_argument("--earlyA", type=int, default=4)
ap.add_argument("--nocodepf", action="store_true")
ap.add_argument("--nobar2", action="store_true")
ap.add_argument("--nouvpf", action="store_true")
ap.add_argument("--noukpf", action="store_true")
ap.add_argument("--kb0", type=int, default=2)
ap.add_argument("--kb", type=int, default=0)
ap.add_argument("--ka", type=int, default=0)
ap.add_argument("--kf", type=int, default=16)
ap.add_argument("--arev", action="store_true")
ap.add_argument("--grp", type=int, default=0)
ap.add_argument("--ntr0", type=int, default=32)
ap.add_argument("--padto", type=int, default=0)
ap.add_argument("--forceslow", action="store_true")
ap.add_argument("--wb", action="store_true")
ap.add_argument("--dbgstamps", action="store_true")
ap.add_argument("--b1", type=int, default=10)
ap.add_argument("--b2", type=int, default=6)
ap.add_argument("--noclean", action="store_true")
ap.add_argument("--pxor", type=int, default=0)
ap.add_argument("--hxor", type=int, default=0)
ap.add_argument("--uv", default="late")
ap.add_argument("--uvsplit", type=int, default=8)
ap.add_argument("--uvw", type=int, default=4)
ap.add_argument("--ssleep", type=int, default=0)
ap.add_argument("--pc", default="")
ap.add_argument("--pq", default="")
ap.add_argument("--pt", default="")
ap.add_argument("--po", default="nt")
ap.add_argument("--fwait", type=int, default=0)
ap.add_argument("--stearly", action="store_true")
ap.add_argument("--ilv", type=int, default=1)
ap.add_argument("--nv0", type=int, default=12)
ap.add_argument("--vdelay", type=int, default=0)
ap.add_argument("--d1", type=int, default=0)
ap.add_argument("--d2", type=int, default=0)
ap.add_argument("--noearlyF", action="store_true")
ap.add_argument("--stw", type=int, default=3)
ap.add_argument("--bdelay", type=int, default=0)
ap.add_argument("--bs", type=int, default=1)
ap.add_argument("--f2", type=int, default=2)
ap.add_argument("--spec", type=int, default=0)
ap.add_argument("--sd", type=int, default=0)
ap.add_argument("--ackn", type=int, default=-1)
ap.add_argument("--lsleep", type=int, default=0)
ap.add_argument("--nuk", type=int, default=4)
ap.add_argument("--qsleep", type=int, default=0)
opt = ap.parse_args()

W_EPOCH = 0x0
W_XT = 0x1000
W_H1 = 0x10000
W_H1B = 0x380000
W_H2 = 0x100000
W_ST3 = 0x140000
W_STX = 0x150000
W_H4 = 0x160000
W_H5B = 0x180000
W_H5C = 0x1A0000
W_H3B = 0x200000
W_H6 = 0x280000
W_H3A = 0x400000
W_STAMP = 0x800000
WS_SIZE = 0x1000000

ROWB = 1056
L_Q = 128 * ROWB
L_P = L_Q + 16 * ROWB
L_MX = L_P + 4096
L_SM = L_MX + 512
L_QV = L_SM + 512
L_QP = L_Q + 5376
L_XN = L_Q
LDS_BYTES = 163840
L_S1 = 0 * ROWB
L_RED = 0
L_RED2 = 16384
L_RS = 32768
L_CS = 33792
L_OS = 49152
L_UV = 73728

S_X, S_CKV, S_WQ, S_WUK, S_WUV, S_WO, S_W1, S_W2, S_OUT, S_WS = (28, 32, 36, 40, 44, 48, 52, 56, 60, 64)
sX, sR, sW = 68, 69, 70
sFAST = 71
sT0, sT1 = 72, 73
sPLO, sPHI = 74, 75
sCNT = 76
sH = 77
sTL = 3
POLL_LIMIT = 400000


def f32(x):
    return "0x%08x" % struct.unpack("<I", struct.pack("<f", x))[0]


class Asm:
    def __init__(self):
        self.l = []
        self.nlab = 0

    def __call__(self, s):
        m = re.search(r"offset:(\d+)", s)
        if m:
            lim = 65536 if s.lstrip().startswith("ds_") else 4096
            assert int(m.group(1)) < lim, s
        self.l.append("    " + s)

    def lab(self, n):
        self.l.append(n + ":")

    def newlab(self, p="L"):
        self.nlab += 1
        return f"{p}_{self.nlab}"

    def c(self, s):
        self.l.append("    ; " + s)

    def stamp(self, i, grp=None):
        if grp is not None and grp != opt.grp:
            return
        if opt.grp == 4 and grp != 4 and i not in (0, 7, 8):
            return
        if opt.grp == 8 and grp != 8 and i not in (0, 11):
            return
        if opt.stamps:
            self(f"s_memrealtime s[{4+2*i}:{5+2*i}]")


A = Asm()
DPPM = "row_mask:0xf bank_mask:0xf"


def srd(n):
    return f"s[{n}:{n+3}]"


def execmask(m):
    A(f"s_mov_b32 exec_lo, 0x{m & 0xffffffff:x}")
    A(f"s_mov_b32 exec_hi, 0x{m >> 32:x}")


def execall():
    A("s_mov_b64 exec, -1")


M_N4 = 0x000F000F000F000F
M_N8 = 0x00FF00FF00FF00FF


def store_local(instr):
    l1, l2 = A.newlab("Lsl"), A.newlab("Lsl")
    A(f"s_cmp_eq_u32 s{sFAST}, 0")
    A(f"s_cbranch_scc1 {l1}")
    for i in instr:
        A(i)
    A(f"s_branch {l2}")
    A.lab(l1)
    for i in instr:
        A(i + " sc1")
    A.lab(l2)


def poll(loads, tagregs, sleep=0, alt=None):
    lp = A.newlab("Lpoll")
    if alt:
        sr, sm, so_ = alt
        lf = A.newlab("Lpf")
        A(f"s_mov_b32 {sr}, {sm}")
        A(f"s_branch {lf}")
        A.lab(lp)
        A(f"s_and_b32 s98, s{sCNT}, 31")
        A("s_cmp_eq_u32 s98, 31")
        A(f"s_cselect_b32 {sr}, {so_}, {sm}")
        A.lab(lf)
    elif sleep:
        lf = A.newlab("Lpf")
        A(f"s_branch {lf}")
        A.lab(lp)
        A(f"s_sleep {sleep}")
        A.lab(lf)
    else:
        A.lab(lp)
    for i in loads:
        A(i + " sc1")
    A(f"s_add_u32 s{sCNT}, s{sCNT}, 1")
    A(f"s_cmp_gt_u32 s{sCNT}, {POLL_LIMIT}")
    A("s_cbranch_scc1 L_end")
    A("s_waitcnt vmcnt(0)")
    for k, t in enumerate(tagregs):
        if k == 0:
            A(f"v_cmp_ne_u64 vcc, s[{sT0}:{sT1}], v[{t}:{t+1}]")
        else:
            A(f"v_cmp_ne_u64 s[98:99], s[{sT0}:{sT1}], v[{t}:{t+1}]")
            A("s_or_b64 vcc, vcc, s[98:99]")
    A(f"s_cbranch_vccnz {lp}")


def transpose(dst, rows, ndw, dup=False):
    nr = len(rows) // 2
    st = 2 * nr if dup else nr
    for jj in range(2 * ndw):
        sel = sPHI if jj & 1 else sPLO
        for rep in range(2 if dup else 1):
            for p in range(nr):
                A(f"v_perm_b32 v{dst + jj*st + rep*nr + p}, v{rows[2*p+1] + (jj >> 1)}, v{rows[2*p] + (jj >> 1)}, s{sel}")


def dppsum(dsts, ds):
    assert len(dsts) >= 3
    for step in (1, 2, 3):
        for t, d in zip(dsts, ds):
            src1 = d if step == 1 else t
            A(f"v_add_f32_dpp v{t}, v{d+step}, v{src1} row_shl:{4*step} {DPPM}")


def unpack(dlo, dhi, s):
    A(f"v_lshlrev_b32 v{dlo}, 16, v{s}")
    A(f"v_and_b32 v{dhi}, 0xffff0000, v{s}")


def rowall(op, regs):
    for sh in (8, 4, 2, 1):
        if len(regs) < 3:
            A(f"s_nop {2 - len(regs)}")
        for r_ in regs:
            A(f"{op}_dpp v{r_}, v{r_}, v{r_} row_ror:{sh} {DPPM}")


def sum_b128(n, base, lds=False):
    st = 1
    while st < n:
        for s in range(0, n, 2 * st):
            if lds and st == 1:
                A(f"s_waitcnt lgkmcnt({n - s - 2})")
            x, y = base + 4 * s, base + 4 * (s + st)
            A(f"v_pk_add_f32 v[{x}:{x+1}], v[{x}:{x+1}], v[{y}:{y+1}]")
            A(f"v_pk_add_f32 v[{x+2}:{x+3}], v[{x+2}:{x+3}], v[{y+2}:{y+3}]")
        st *= 2


def tag_setup():
    A("s_waitcnt lgkmcnt(0)")
    A(f"s_mul_i32 s{sT0}, s82, 0x9E3779B1")
    A(f"s_add_u32 s{sT0}, s{sT0}, 0x7F4A7C15")
    A(f"s_mul_i32 s{sT1}, s83, 0x2C9277B5")
    A(f"s_add_u32 s{sT1}, s{sT1}, 0xAC564B05")


def xt_decide(t):
    A("s_getreg_b32 s84, hwreg(HW_REG_XCC_ID)")
    A("s_and_b32 s84, s84, 15")
    A(f"v_cmp_ne_u32 vcc, s84, v{t}")
    A("s_cmp_eq_u64 vcc, 0")
    A(f"s_cselect_b32 s{sFAST}, {0 if opt.forceslow else 1}, 0")


def ckv_dma(rows, k=None):
    for i in rows:
        st_ = 4 if opt.ilv else 1
        A(f"s_add_u32 m0, s81, {i*ROWB*st_}")
        A(f"s_add_u32 s86, s80, {i*1024*st_}")
        if k:
            A(f"s_waitcnt vmcnt({k-1})")
        A(f"buffer_load_dwordx4 v6, {srd(S_CKV)}, s86 offen {opt.pc} lds")


A.stamp(0)
if opt.padto:
    A("s_memrealtime s[4:5]")
A("s_cmp_ge_u32 s2, 256")
A("s_cbranch_scc1 L_end")
ptr = {S_X: 0, S_CKV: 8, S_WQ: 16, S_WUK: 24, S_WUV: 32, S_WO: 40, S_W1: 56, S_W2: 64, S_OUT: 72, S_WS: 88}
size = {S_X: 5120, S_CKV: 16777216, S_WQ: 5242880, S_WUK: 4194304, S_WUV: 4194304, S_WO: 5242880,
        S_W1: 2211840, S_W2: 2211840, S_OUT: 5120, S_WS: WS_SIZE}
for s_ in (S_WQ, S_X, S_CKV, S_WUK, S_WS):
    A(f"s_load_dwordx2 s[{s_}:{s_+1}], s[0:1], {ptr[s_]}")
A(f"s_lshr_b32 s{sR}, s2, 3")
A("v_lshrrev_b32 v1, 6, v0")
A("v_and_b32 v0, 63, v0")
A(f"v_readfirstlane_b32 s{sW}, v1")
A("v_lshlrev_b32 v6, 4, v0")
if not opt.nocodepf:
    A(f"s_cmp_lg_u32 s{sW}, 7")
    A("s_cbranch_scc1 L_nopf")
    A("s_getpc_b64 s[92:93]")
    A.lab("L_pc")
    A(f"s_lshl_b32 s90, s{sR}, 10")
    A("v_add_u32 v250, s90, v6")
    A("s_mov_b32 s94, L_codeend-L_pc-16")
    A("v_mov_b32 v251, s93")
    A("v_cmp_gt_u32 s[96:97], s94, v250")
    A("v_add_co_u32 v250, vcc, s92, v250")
    A("s_nop 1")
    A("v_addc_co_u32 v251, vcc, 0, v251, vcc")
    A("s_and_saveexec_b64 s[94:95], s[96:97]")
    A("s_cbranch_execz L_pfx")
    A("global_load_dwordx4 v[252:255], v[250:251], off")
    A.lab("L_pfx")
    A("s_mov_b64 exec, s[94:95]")
    A.lab("L_nopf")
for s_ in (S_WQ, S_X, S_CKV, S_WUK, S_WS):
    A(f"s_mov_b32 s{s_+2}, {size[s_]}")
    A(f"s_mov_b32 s{s_+3}, 0x00020000")
A(f"s_and_b32 s{sX}, s2, 7")
A(f"s_mov_b32 s{sPLO}, 0x05040100")
A(f"s_mov_b32 s{sPHI}, 0x07060302")
A(f"s_mov_b32 s{sCNT}, 0")
A(f"s_mov_b32 s{sFAST}, 0")
A(f"s_and_b32 s78, s{sR}, 3")
if opt.hxor:
    A(f"s_xor_b32 s78, s78, {opt.hxor}")
A(f"s_lshl_b32 s{sH}, s{sX}, 2")
A(f"s_add_u32 s{sH}, s{sH}, s78")
A(f"s_lshl_b32 s88, s{sH}, 8")
A("v_lshrrev_b32 v1, 4, v0")
A("v_and_b32 v2, 15, v0")
A("v_bfe_u32 v3, v0, 2, 2")
A("v_and_b32 v4, 3, v0")
A("v_lshrrev_b32 v5, 2, v0")
A("v_lshlrev_b32 v7, 6, v1")
A("v_lshl_add_u32 v7, v4, 4, v7")
A(f"s_bfe_u32 s79, s{sR}, 0x20002")
A("s_lshl_b32 s80, s79, 22")
A(f"s_lshl_b32 s81, s{sH}, 17")
A("s_add_u32 s80, s80, s81")
A(f"s_xor_b32 s{sTL}, s{sW}, 4")
A(f"s_cmp_lt_u32 s{sR}, 16")
A(f"s_cselect_b32 s{sTL}, s{sTL}, s{sW}")
if opt.ilv:
    A(f"s_and_b32 s81, s{sTL}, 4")
    A("s_lshl_b32 s81, s81, 4")
    A(f"s_and_b32 s90, s{sTL}, 3")
    A("s_add_u32 s81, s81, s90")
    A("s_lshl_b32 s90, s81, 10")
    A("s_add_u32 s80, s80, s90")
    A(f"s_mul_i32 s81, s81, {ROWB}")
else:
    A(f"s_lshl_b32 s81, s{sTL}, 14")
    A("s_add_u32 s80, s80, s81")
    A(f"s_mul_i32 s81, s{sTL}, {16*ROWB}")
A("s_mul_i32 s87, s79, 160")
A(f"s_lshl_b32 s90, s{sW}, 5")
A("s_add_u32 s87, s87, s90")
A("s_lshl_b32 s89, s87, 13")
A("s_add_u32 s89, s89, s88")
A("v_lshlrev_b32 v9, 16, v1")
A("v_lshl_add_u32 v9, v2, 4, v9")
A("v_lshl_add_u32 v10, v3, 15, v7")
A("s_lshl_b32 s91, s79, 7")
A(f"s_and_b32 s90, s{sW}, 3")
A("s_lshl_b32 s90, s90, 5")
A("s_add_u32 s91, s91, s90")
A("s_lshl_b32 s91, s91, 13")
A("s_add_u32 s91, s91, s88")
A(f"s_cmp_lt_u32 s{sR}, 16")
A.stamp(1, 8)
A("s_waitcnt lgkmcnt(0)")
A.stamp(2, 8)
A(f"s_load_dwordx2 s[82:83], s[{S_WS}:{S_WS+1}], {W_EPOCH}")
A("s_cbranch_scc0 L_frontB")


def xt_publish(t):
    A("s_getreg_b32 s84, hwreg(HW_REG_XCC_ID)")
    A("s_and_b32 s84, s84, 15")
    A(f"s_lshl_b32 s85, s{sX}, 9")
    A(f"s_add_u32 s85, s85, {W_XT}")
    A(f"s_lshl_b32 s86, s{sR}, 4")
    A(f"v_mov_b32 v{t}, s84")
    A(f"v_mov_b32 v{t+1}, 0")
    A(f"v_mov_b32 v{t+2}, s{sT0}")
    A(f"v_mov_b32 v{t+3}, s{sT1}")
    A("v_mov_b32 v12, s86")
    A("s_mov_b64 exec, 1")
    A(f"buffer_store_dwordx4 v[{t}:{t+3}], v12, {srd(S_WS)}, s85 offen sc1")
    execall()


def uk_loads(ts, dst=None):
    for t in ts:
        A(f"s_add_u32 s90, s91, {(16*(t>>2) + (t&3))*8192}")
        d = dst if dst is not None else 208 + 4 * t
        A(f"buffer_load_dwordx4 v[{d}:{d+3}], v10, {srd(S_WUK)}, s90 offen {opt.pq}")


A(f"s_cmp_gt_u32 s{sW}, 3")
A("s_cbranch_scc1 L_notS1")
RAW = 16
UK = 48
XA = 208


def wq_issue(j):
    for i in range(8):
        d = RAW + 32 * (j & 3) + 4 * i
        A(f"buffer_load_dwordx4 v[{d}:{d+3}], v9, {srd(S_WQ)}, s89 offen {opt.pq}")
        if i < 7:
            A("s_add_u32 s89, s89, 8192")
        if j == 0 and i == 3:
            A.stamp(3, 8)
            A("s_barrier")
            A.stamp(4, 8)
    if j < 4:
        A(f"s_add_u32 s89, s89, {(128-7)*8192}")
        A(f"s_sub_u32 s90, s89, {640*8192}")
        A(f"s_cmp_ge_u32 s89, {640*8192}")
        A("s_cselect_b32 s89, s90, s89")


def wq_proc(j):
    rw = RAW + 32 * (j & 3)
    xa = f"v[{XA+4*j}:{XA+4*j+3}]"
    for jj in range(8):
        sel = sPHI if jj & 1 else sPLO
        o = 176 + 4 * jj
        for p in range(4):
            A(f"v_perm_b32 v{o+p}, v{rw+4*(2*p+1)+(jj>>1)}, v{rw+4*(2*p)+(jj>>1)}, s{sel}")
        if jj >= 1:
            j1 = jj - 1
            c = "0" if j == 0 else f"v[{144+4*j1}:{147+4*j1}]"
            A(f"v_mfma_f32_16x16x32_bf16 v[{144+4*j1}:{147+4*j1}], {xa}, v[{176+4*j1}:{179+4*j1}], {c}")
    A("s_nop 0")
    c = "0" if j == 0 else "v[172:175]"
    A(f"v_mfma_f32_16x16x32_bf16 v[172:175], {xa}, v[204:207], {c}")


wq_issue(0)
wq_issue(1)
wq_issue(2)
A("v_mul_u32_u24 v8, 1296, v3")
A("v_lshl_add_u32 v8, v1, 4, v8")
A(f"v_add_u32 v8, {L_XN}, v8")
A("s_barrier")
for j in range(5):
    A("s_lshl_b32 s90, s87, 1")
    A("v_add_u32 v11, s90, v8")
    A(f"ds_read_b128 v[{XA+4*j}:{XA+4*j+3}], v11")
    if j < 4:
        A("s_add_u32 s87, s87, 128")
        A("s_sub_u32 s90, s87, 640")
        A("s_cmp_ge_u32 s87, 640")
        A("s_cselect_b32 s87, s90, s87")
wq_issue(3)
tag_setup()
A("s_waitcnt vmcnt(24)")
A.stamp(9, 7)
wq_proc(0)
wq_issue(4)
A("s_waitcnt vmcnt(24)")
wq_proc(1)
for t in range(8):
    uk_loads([t], UK + 4 * t)
A("s_barrier")
A("v_mul_u32_u24 v12, 576, v1")
A("v_lshl_add_u32 v12, v2, 5, v12")
A("v_lshl_add_u32 v12, v3, 4, v12")
A(f"s_mul_i32 s90, s{sW}, 2304")
A(f"s_add_u32 s90, s90, {L_QP}")
A("v_add_u32 v12, s90, v12")
A("s_waitcnt vmcnt(24)")
wq_proc(2)
A("v_mul_u32_u24 v11, 576, v4")
A("v_lshl_add_u32 v11, v5, 5, v11")
A("v_lshl_add_u32 v11, v1, 4, v11")
A(f"v_add_u32 v11, {L_QP}, v11")
A("v_bfe_u32 v8, v0, 2, 1")
A("v_bfe_u32 v13, v0, 3, 2")
A("v_lshlrev_b32 v14, 4, v4")
A("v_lshl_add_u32 v14, v8, 2, v14")
A("v_add_u32 v14, v14, v13")
A("v_lshlrev_b32 v14, 2, v14")
A("v_and_b32 v15, 7, v0")
A("v_lshlrev_b32 v15, 4, v15")
A("v_lshl_add_u32 v15, v13, 16, v15")
A(f"s_lshl_b32 s89, s{sH}, 11")
A("s_lshl_b32 s90, s79, 9")
A("s_add_u32 s89, s89, s90")
A(f"s_lshl_b32 s90, s{sW}, 7")
A("s_add_u32 s89, s89, s90")
A(f"s_add_u32 s89, s89, {W_H2}")
A("s_waitcnt vmcnt(16)")
wq_proc(3)
A("s_waitcnt vmcnt(8)")
A.stamp(1, 0)
A.stamp(1, 7)
wq_proc(4)
A("s_nop 4")
for jj in range(0, 8, 2):
    A(f"ds_write2_b32 v12, v{144+4*jj}, v{148+4*jj} offset0:{jj} offset1:{jj+1}")
A("s_waitcnt lgkmcnt(0)")
A.stamp(2)
A("s_barrier")
for s_ in range(4):
    A(f"ds_read_b128 v[{80+8*s_}:{83+8*s_}], v11 offset:{2304*s_}")
    A(f"ds_read_b128 v[{84+8*s_}:{87+8*s_}], v11 offset:{2304*s_+16}")
A(f"v_mov_b32 v22, s{sT0}")
A(f"v_mov_b32 v23, s{sT1}")
A("s_waitcnt lgkmcnt(4)")
for i in range(4):
    A(f"v_pk_add_f32 v[{80+2*i}:{81+2*i}], v[{80+2*i}:{81+2*i}], v[{88+2*i}:{89+2*i}]")
A("s_waitcnt lgkmcnt(0)")
for i in range(4):
    A(f"v_pk_add_f32 v[{96+2*i}:{97+2*i}], v[{96+2*i}:{97+2*i}], v[{104+2*i}:{105+2*i}]")
for i in range(4):
    A(f"v_pk_add_f32 v[{80+2*i}:{81+2*i}], v[{80+2*i}:{81+2*i}], v[{96+2*i}:{97+2*i}]")
for i in range(4):
    A(f"v_cvt_pk_bf16_f32 v{16+i}, v{80+2*i}, v{81+2*i}")
A("s_waitcnt vmcnt(0)")
A.stamp(3)
A("s_nop 0")
D = 144
for t in range(8):
    A(f"v_mfma_f32_16x16x32_bf16 v[{D+4*t}:{D+3+4*t}], v[{UK+4*t}:{UK+3+4*t}], v[16:19], 0")
A("s_nop 0")
for t in range(4):
    A(f"v_add_f32_dpp v{24+t}, v{D+4*t+1}, v{D+4*t} row_shl:4 row_mask:0xf bank_mask:0x1")
for t in range(4):
    A(f"v_add_f32_dpp v{24+t}, v{D+4*t+2}, v{24+t} row_shl:8 row_mask:0xf bank_mask:0x1")
for t in range(4):
    A(f"v_add_f32_dpp v{24+t}, v{D+4*t+3}, v{24+t} row_shl:12 row_mask:0xf bank_mask:0x1")
for t in range(4):
    d = D + 16 + 4 * t
    A(f"v_add_f32_dpp v{24+t}, v{d}, v{d+1} row_shr:4 row_mask:0xf bank_mask:0x2")
for t in range(4):
    A(f"v_add_f32_dpp v{24+t}, v{D+16+4*t+2}, v{24+t} row_shl:4 row_mask:0xf bank_mask:0x2")
for t in range(4):
    A(f"v_add_f32_dpp v{24+t}, v{D+16+4*t+3}, v{24+t} row_shl:8 row_mask:0xf bank_mask:0x2")
A("v_cvt_pk_bf16_f32 v28, v24, v25")
A("v_cvt_pk_bf16_f32 v29, v26, v27")
A("ds_bpermute_b32 v20, v14, v28")
A("ds_bpermute_b32 v21, v14, v29")
execmask(0xFFFFFFFF)
A("s_waitcnt lgkmcnt(0)")
A(f"buffer_store_dwordx4 v[20:23], v15, {srd(S_WS)}, s89 offen sc1")
execall()
A.stamp(4)
A("s_barrier")
ckv_dma(range(15, -1, -1))
A("s_branch L_qgather")

A.lab("L_notS1")
A(f"s_cmp_eq_u32 s{sW}, 5")
A("s_cbranch_scc0 L_w67")
A("v_mul_u32_u24 v8, 1280, v1")
A("v_lshl_add_u32 v8, v2, 4, v8")
for i in range(5):
    A(f"buffer_load_dwordx4 v[{16+4*i}:{19+4*i}], v8, {srd(S_X)}, 0 offen offset:{256*i}")
A("s_barrier")
A("v_mov_b32 v38, 0x3f803f80")
A("v_mov_b32 v36, 0")
A("v_mov_b32 v37, 0")
A("v_mul_u32_u24 v8, 1296, v1")
A("v_lshl_add_u32 v8, v2, 4, v8")
A(f"v_add_u32 v8, {L_XN}, v8")
A("s_waitcnt vmcnt(0)")
for i in range(20):
    A(f"v_dot2_f32_bf16 v36, v{16+i}, v38, v36")
    A(f"v_dot2_f32_bf16 v37, v{16+i}, v{16+i}, v37")
A("s_nop 1")
rowall("v_add_f32", [36, 37])
A(f"v_mul_f32 v36, {f32(1/640)}, v36")
A(f"v_mul_f32 v37, {f32(1/640)}, v37")
A("v_fma_f32 v37, -v36, v36, v37")
A("v_max_f32 v37, 0, v37")
A(f"v_add_f32 v37, {f32(1e-5)}, v37")
A("v_rsq_f32 v38, v37")
A("s_nop 0")
A("v_mul_f32 v36, -v36, v38")
for i in range(20):
    unpack(40, 41, 16 + i)
    A("v_pk_fma_f32 v[40:41], v[40:41], v[38:39], v[36:37] op_sel_hi:[1,0,0]")
    A(f"v_cvt_pk_bf16_f32 v{16+i}, v40, v41")
for i in range(5):
    A(f"ds_write_b128 v8, v[{16+4*i}:{19+4*i}] offset:{256*i}")
A("s_branch L_w567")
A.lab("L_w67")
A("s_barrier")
A.lab("L_w567")
tag_setup()
A("s_barrier")
A(f"s_cmp_eq_u32 s{sW}, 7")
A("s_cbranch_scc0 L_w56b")
xt_publish(20)
A.lab("L_w56b")
A("s_barrier")
ckv_dma(range(0, opt.b1))
A("s_barrier")
ckv_dma(range(opt.b1, opt.b1 + opt.b2))
A("s_barrier")
ckv_dma(range(opt.b1 + opt.b2, 16))
A("s_branch L_qgather")

A.lab("L_frontB")
A(f"s_and_b32 s92, s{sR}, 15")
A(f"s_lshl_b32 s93, s{sX}, 10")
A(f"s_cmp_gt_u32 s{sW}, 4")
A("s_cbranch_scc1 L_B2")
A("s_mul_i32 s89, s92, 5")
A(f"s_add_u32 s89, s89, s{sW}")
A("s_lshl_b32 s89, s89, 16")
A("s_add_u32 s89, s89, s93")
A("s_add_u32 s89, s89, 32768")
for i in range(4):
    A(f"buffer_load_dwordx4 v[16:19], v6, {srd(S_WQ)}, s89 offen {opt.pq}")
    if i < 3:
        A("s_add_u32 s89, s89, 8192")
A.lab("L_B2")
A.stamp(3, 8)
A("s_lshl_b32 s91, s92, 3")
A(f"s_add_u32 s91, s91, s{sW}")
A("s_lshl_b32 s91, s91, 15")
A("s_add_u32 s91, s91, s93")
A("s_barrier")
for i in range(opt.nuk):
    A(f"buffer_load_dwordx4 v[16:19], v6, {srd(S_WUK)}, s91 offen {opt.pq}")
    if i < 3:
        A("s_add_u32 s91, s91, 8192")
A.lab("L_B3")
A("s_barrier")
A.stamp(4, 8)
if opt.grp == 8:
    A("s_waitcnt vmcnt(3)")
    A.stamp(5, 8)
ckv_dma(range(16), opt.kb)
tag_setup()
A(f"s_cmp_lg_u32 s{sW}, 0")
A("s_cbranch_scc1 L_qgather")
xt_publish(40)
A(f"s_lshl_b32 s89, s{sH}, 2")
A("s_add_u32 s89, s89, s79")
A("s_lshl_b32 s89, s89, 11")
A(f"s_add_u32 s89, s89, {W_H3B}")
A(f"buffer_load_dwordx4 v[16:19], v6, {srd(S_WS)}, s89 offen sc1")
A(f"buffer_load_dwordx4 v[16:19], v6, {srd(S_WS)}, s89 offen offset:1024 sc1")
A(f"s_and_b32 s90, s{sR}, 15")
A("s_lshl_b32 s90, s90, 10")
A(f"s_lshl_b32 s89, s{sX}, 14")
A("s_add_u32 s89, s89, s90")
A(f"s_add_u32 s89, s89, {W_H4}")
A(f"buffer_load_dwordx4 v[16:19], v6, {srd(S_WS)}, s89 offen sc1")
A(f"s_mul_i32 s89, s{sX}, 10240")
A("s_min_u32 s90, s90, 9216")
A("s_add_u32 s89, s89, s90")
A(f"s_add_u32 s89, s89, {W_H5C}")
A(f"buffer_load_dwordx4 v[16:19], v6, {srd(S_WS)}, s89 offen sc1")
A("s_branch L_qgather")

A.lab("L_qgather")
for s_ in (S_WUV, S_WO, S_W1, S_W2, S_OUT):
    A(f"s_load_dwordx2 s[{s_}:{s_+1}], s[0:1], {ptr[s_]}")
    A(f"s_mov_b32 s{s_+2}, {size[s_]}")
    A(f"s_mov_b32 s{s_+3}, 0x00020000")
A("s_lshl_b32 s89, s79, 5")
A(f"s_and_b32 s90, s{sR}, 16")
A("s_add_u32 s89, s89, s90")
A(f"s_lshl_b32 s90, s{sW}, 1")
A("s_add_u32 s89, s89, s90")
A("s_lshl_b32 s89, s89, 11")
A(f"s_add_u32 s89, s89, {W_H2}")
A(f"s_lshl_b32 s85, s{sX}, 9")
A(f"s_add_u32 s85, s85, {W_XT}")
A("v_lshlrev_b32 v248, 4, v2")
A(f"v_add_u32 v248, {L_MX}, v248")
A(f"s_lshl_b32 s90, s{sW}, 2")
A("v_add_u32 v249, s90, v248")
A(f"s_sub_u32 s94, 15, s{sR}")
A(f"s_cmp_eq_u32 s{sR}, 31")
A("s_cselect_b32 s94, 6, s94")
A(f"s_cmp_eq_u32 s{sR}, 9")
A("s_cselect_b32 s94, 7, s94")
A("s_cmp_lt_u32 s94, 7")
A(f"s_mul_i32 s90, s{sX}, 7")
A("s_cselect_b32 s94, s94, 99")
A("s_add_u32 s100, s94, s90")
A(f"s_cmp_lt_u32 s{sW}, 5")
A("s_cselect_b32 s101, s100, 99")
A("v_lshrrev_b32 v10, 3, v0")
A("v_and_b32 v245, 0x70, v6")
A("v_mul_u32_u24 v244, 10240, v10")
A("v_add_u32 v244, v244, v245")
A("v_lshl_add_u32 v10, v10, 13, v245")
A("v_mul_u32_u24 v247, 10240, v1")
A("v_lshl_add_u32 v247, v2, 4, v247")
A(f"s_and_b32 s93, s{sR}, 8")
A("s_lshl_b32 s93, s93, 5")
A(f"s_and_b32 s90, s{sW}, 2")
A("s_lshl_b32 s90, s90, 6")
A("s_add_u32 s93, s93, s90")
A(f"s_and_b32 s90, s{sW}, 4")
A("s_lshl_b32 s90, s90, 4")
A("s_add_u32 s93, s93, s90")
A(f"s_and_b32 s90, s{sW}, 1")
A("s_lshl_b32 s90, s90, 3")
A("s_add_u32 s93, s93, s90")
A("s_lshl_b32 s93, s93, 13")
A("s_add_u32 s93, s93, s88")
A(f"s_and_b32 s90, s{sR}, 4")
A("s_lshl_b32 s90, s90, 5")
A("s_add_u32 s93, s93, s90")
A(f"s_and_b32 s82, s{sT0}, 0x3fffffff")
A(f"s_not_b32 s90, s{sT0}")
A("s_lshl_b32 s90, s90, 2")
A("s_and_b32 s90, s90, 0xc0000000")
A("s_or_b32 s82, s82, s90")
A("s_mov_b32 s83, 0x00010001")


def sym(dst, sh):
    A(f"v_lshrrev_b32 v{dst}, v{sh}, v246")
    A(f"v_lshlrev_b32 v15, 15, v{dst}")
    A(f"v_and_b32 v{dst}, 1, v{dst}")
    A(f"v_and_or_b32 v{dst}, v15, s84, v{dst}")


A("s_waitcnt vmcnt(16)")
A("v_mov_b32 v246, s82")
A("s_mov_b32 s84, 0x10000")
A("v_not_b32 v246, v246")
A("v_lshlrev_b32 v245, 3, v4")
for i in range(4):
    sym(252 + i, 245)
    if i < 3:
        A("v_add_u32 v245, 2, v245")
A.stamp(5, 7)
A("s_barrier")
ql = [f"buffer_load_dwordx4 v[{144+4*i}:{147+4*i}], v6, {srd(S_WS)}, s89 offen offset:{1024*i}" for i in range(4)]
qt = [146, 150, 154, 158]
for i in ql:
    A(i + " sc1")
A(f"v_mul_u32_u24 v12, {ROWB}, v2")
A("v_lshl_add_u32 v12, v1, 4, v12")
A(f"s_mul_i32 s90, s{sW}, {32*ROWB}")
A("v_add_u32 v11, s90, v12")
A(f"v_mul_u32_u24 v13, {ROWB}, v5")
A("v_lshl_add_u32 v13, v4, 3, v13")
A(f"s_and_b32 s94, s{sW}, 3")
A("s_lshl_b32 s90, s94, 8")
A("v_add_u32 v13, s90, v13")
A(f"v_add_u32 v14, {64*ROWB}, v13")
A("v_lshlrev_b32 v8, 3, v0")
A(f"s_mul_i32 s90, s{sW}, {2*ROWB}")
A(f"s_add_u32 s90, s90, {L_Q}")
A("v_add_u32 v8, s90, v8")
A(f"v_add_u32 v12, {L_Q}, v12")
A("s_waitcnt vmcnt(4) lgkmcnt(0)")
A.stamp(10, 7)
A("s_barrier")


def f_second(tag):
    if not opt.f2:
        return
    A(f"s_cmp_lt_u32 s{sR}, 16")
    A(f"s_cbranch_scc0 L_f2x{tag}")
    A("s_add_u32 s90, s91, 5120")
    A(f"s_cmp_lt_u32 s{sR}, 10")
    A(f"s_cbranch_scc0 L_f2b{tag}")
    for i in range(4):
        A(f"buffer_load_dwordx4 v[{192+4*i}:{195+4*i}], v244, {srd(S_WO)}, s90 offen offset:{1280*i} {opt.po}")
    A(f"s_branch L_f2x{tag}")
    A.lab(f"L_f2b{tag}")
    for i in range(4):
        A(f"buffer_load_dwordx4 v[{192+4*i}:{195+4*i}], v247, {srd(S_W2)}, s90 offen offset:{1280*i} {opt.po}")
    A.lab(f"L_f2x{tag}")


def s4_setup():
    A("v_and_b32 v76, 0x1ff, v6")
    poll([f"buffer_load_dwordx4 v[72:75], v76, {srd(S_WS)}, s85 offen"], [74])
    xt_decide(72)
    A("v_lshlrev_b32 v68, 11, v3")
    A("v_lshl_add_u32 v68, v1, 5, v68")
    A("v_and_b32 v69, 1, v0")
    A("v_lshl_add_u32 v68, v69, 4, v68")
    A(f"s_lshl_b32 s80, s{sH}, 13")
    A(f"s_and_b32 s90, s{sR}, 8")
    A("s_lshl_b32 s90, s90, 7")
    A("s_add_u32 s80, s80, s90")
    A(f"s_lshl_b32 s90, s{sW}, 7")
    A("s_add_u32 s80, s80, s90")
    A(f"s_add_u32 s80, s80, {W_H3B}")
    A("v_and_b32 v70, 7, v0")
    A("v_lshlrev_b32 v70, 5, v70")
    A("v_lshl_add_u32 v70, v1, 8, v70")
    A(f"s_lshl_b32 s90, s{sW}, 10")
    A(f"s_add_u32 s90, s90, {L_RED}")
    A("v_add_u32 v70, s90, v70")
    A("v_lshlrev_b32 v71, 11, v1")
    A("v_lshl_add_u32 v71, v2, 4, v71")
    A(f"s_lshl_b32 s81, s{sX}, 14")
    A(f"s_and_b32 s90, s{sR}, 8")
    A("s_lshl_b32 s90, s90, 10")
    A("s_add_u32 s81, s81, s90")
    A(f"s_and_b32 s90, s{sH}, 3")
    A("s_lshl_b32 s90, s90, 9")
    A("s_add_u32 s81, s81, s90")
    A(f"s_and_b32 s90, s{sR}, 4")
    A("s_lshl_b32 s90, s90, 6")
    A("s_add_u32 s81, s81, s90")
    A(f"s_add_u32 s81, s81, {W_H4}")
    transpose(80, [212, 216, 220, 224], 4)


def uv_loads():
    for e in range(4):
        A(f"buffer_load_dwordx4 v[{212+4*e}:{215+4*e}], v10, {srd(S_WUV)}, s93 offen {opt.po}")
        if e < 3:
            A(f"s_add_u32 s93, s93, {16*8192}")


A(f"s_cmp_lt_u32 s{sR}, 16")
A("s_cbranch_scc1 L_tlF")
A(f"s_cmp_lt_u32 s{sW}, {opt.uvw}")
A("s_cbranch_scc1 L_tlD")
uv_loads()
A("s_branch L_tlD")
A.lab("L_tlF")
A(f"s_cmp_lt_u32 s{sR}, 10")
A("s_cbranch_scc0 L_tlF2")
A(f"s_lshl_b32 s91, s{sX}, 3")
A(f"s_add_u32 s91, s91, s{sW}")
A(f"s_mul_i32 s91, s91, {64*1280}")
A(f"s_lshl_b32 s90, s{sR}, 7")
A("s_add_u32 s91, s91, s90")
for i in range(4):
    A(f"buffer_load_dwordx4 v[{212+4*i}:{215+4*i}], v244, {srd(S_WO)}, s91 offen offset:{1280*i} {opt.po}")
A("s_branch L_tlD")
A.lab("L_tlF2")
A(f"s_mul_i32 s91, s101, {32*1280}")
A(f"s_lshl_b32 s90, s{sW}, 8")
A("s_add_u32 s91, s91, s90")
for i in range(4):
    A(f"buffer_load_dwordx4 v[{212+4*i}:{215+4*i}], v247, {srd(S_W2)}, s91 offen offset:{1280*i} {opt.po}")
A.lab("L_tlD")
A(f"s_cmp_lt_u32 s{sW}, 4")
A("s_cbranch_scc0 L_opV")
for tl in range(2):
    for ks in range(16):
        d = 16 + 64 * tl + 4 * ks
        A(f"ds_read_b128 v[{d}:{d+3}], v11 offset:{16*ROWB*tl + 64*ks}")
A("s_branch L_opD")
A.lab("L_opV")
trl = []
for ks in range(4):
    for t in range(8):
        for hf in range(2):
            base = 14 if ks >= 2 else 13
            off = ((ks & 1) * 32 + 16 * hf) * ROWB + 32 * t
            d = 16 + (ks * 8 + t) * 4 + 2 * hf
            trl.append(f"ds_read_b64_tr_b16 v[{d}:{d+1}], v{base} offset:{off}")
for i in trl[:opt.nv0]:
    A(i)
A.lab("L_opD")
A(f"s_cmp_lt_u32 s{sR}, 16")
A("s_cbranch_scc1 L_qw4")
A(f"s_cmp_lt_u32 s{sW}, {opt.uvw}")
A("s_cbranch_scc0 L_qw4")
A("s_waitcnt vmcnt(0)")
A.lab("L_qw4")
A("s_waitcnt vmcnt(4)")
for k, t in enumerate(qt):
    if k == 0:
        A(f"v_cmp_ne_u64 vcc, s[{sT0}:{sT1}], v[{t}:{t+1}]")
    else:
        A(f"v_cmp_ne_u64 s[98:99], s[{sT0}:{sT1}], v[{t}:{t+1}]")
        A("s_or_b64 vcc, vcc, s[98:99]")
A("s_cbranch_vccz L_qok")
poll(ql, qt, sleep=opt.qsleep)
A.lab("L_qok")
A.stamp(6)
for i in range(4):
    A(f"ds_write_b64 v8, v[{144+4*i}:{145+4*i}] offset:{(i>>1)*ROWB + (i&1)*512}")
A("s_waitcnt lgkmcnt(0)")
A("s_barrier")
A(f"v_mov_b32 v234, s{sT0}")
A(f"v_mov_b32 v235, s{sT1}")
A(f"v_mov_b32 v238, s{sT0}")
A(f"v_mov_b32 v239, s{sT1}")
A(f"s_cmp_lt_u32 s{sW}, 4")
A("s_cbranch_scc0 L_V")
for ks in range(16):
    A(f"ds_read_b128 v[{144+4*ks}:{147+4*ks}], v12 offset:{64*ks}")
A(f"s_cmp_lt_u32 s{sR}, 16")
A("s_cbranch_scc1 L_nouv")
if opt.uvw:
    uv_loads()
A.lab("L_nouv")
S0, S1 = 228, 208
for ks in range(16):
    A(f"s_waitcnt lgkmcnt({15-ks})")
    for tl, S in ((0, S0), (1, S1)):
        c = "0" if ks == 0 else f"v[{S}:{S+3}]"
        d = 16 + 64 * tl + 4 * ks
        A(f"v_mfma_f32_16x16x32_bf16 v[{S}:{S+3}], v[{d}:{d+3}], v[{144+4*ks}:{147+4*ks}], {c}")
if opt.f2 == 1:
    f_second("k")
A(f"s_lshl_b32 s90, s{sW}, 10")
A(f"s_add_u32 s90, s90, {L_P}")
A("v_add_u32 v12, s90, v6")
A("s_nop 3")
A.stamp(7)
A(f"v_max3_f32 v232, v{S0}, v{S0+1}, v{S0+2}")
A("s_nop 0")
A(f"v_max3_f32 v233, v{S0+3}, v{S1}, v{S1+1}")
A(f"v_max3_f32 v232, v232, v{S1+2}, v{S1+3}")
A("v_max_f32 v232, v232, v233")
for sw in ("v_permlane16_swap_b32", "v_permlane32_swap_b32"):
    A("v_mov_b32 v233, v232")
    A("s_nop 1")
    A(f"{sw} v232, v233")
    A("s_nop 0")
    A("v_max_f32 v232, v232, v233")
A("ds_write_b32 v249, v232")
A("s_waitcnt lgkmcnt(0)")
A("s_barrier")
A.stamp(1, 4)
A("ds_read_b128 v[240:243], v248")
A("s_waitcnt lgkmcnt(0)")
A("v_max3_f32 v232, v240, v241, v242")
A("v_max_f32 v232, v232, v243")
SC = (128 ** -0.5) * math.log2(math.e)
A(f"v_mul_f32 v232, {f32(SC)}, v232")
A(f"s_mov_b32 s90, {f32(SC)}")
for S in (S0, S1):
    for i in range(4):
        A(f"v_fma_f32 v{S+i}, v{S+i}, s90, -v232")
for S in (S0, S1):
    for i in range(4):
        A(f"v_exp_f32 v{S+i}, v{S+i}")
A(f"v_cvt_pk_bf16_f32 v240, v{S0}, v{S0+1}")
A(f"v_cvt_pk_bf16_f32 v241, v{S0+2}, v{S0+3}")
A(f"v_cvt_pk_bf16_f32 v242, v{S1}, v{S1+1}")
A(f"v_cvt_pk_bf16_f32 v243, v{S1+2}, v{S1+3}")
A("ds_write_b128 v12, v[240:243]")
A("s_waitcnt lgkmcnt(0)")
A("s_barrier")
A(f"s_cmp_lg_u32 s{sW}, {opt.stw}")
A("s_cbranch_scc1 L_cbK")
A(f"v_add_u32 v11, {L_P}, v6")
for ks in range(4):
    A(f"ds_read_b128 v[{144+4*ks}:{147+4*ks}], v11 offset:{1024*ks}")
for i in range(4):
    A(f"v_mov_b32 v{240+i}, 0x3f803f80")
A("s_lshl_b32 s95, s79, 5")
A(f"s_and_b32 s90, s{sR}, 16")
A("s_add_u32 s95, s95, s90")
A("s_lshl_b32 s95, s95, 1")
A(f"s_add_u32 s95, s95, s{sH}")
A("s_lshl_b32 s95, s95, 8")
A(f"s_add_u32 s95, s95, {W_STX}")
for ks in range(4):
    A(f"s_waitcnt lgkmcnt({3-ks})")
    c = "0" if ks == 0 else "v[228:231]"
    A(f"v_mfma_f32_16x16x32_bf16 v[228:231], v[240:243], v[{144+4*ks}:{147+4*ks}], {c}")
A("s_nop 7")
A("v_mov_b32 v233, v228")
execmask(0xFFFF)
A(f"buffer_store_dwordx4 v[232:235], v6, {srd(S_WS)}, s95 offen sc1")
execall()
A("s_branch L_cbK")

A.lab("L_V")
if opt.f2 in (1, 2):
    f_second("v")
if opt.vdelay:
    A(f"s_sleep {opt.vdelay}")
for i in trl[opt.nv0:]:
    A(i)
A("v_lshlrev_b32 v13, 17, v1")
A("v_lshl_add_u32 v13, v2, 4, v13")
A("s_lshl_b32 s93, s79, 5")
A(f"s_and_b32 s90, s{sR}, 16")
A("s_add_u32 s93, s93, s90")
A("s_lshl_b32 s93, s93, 15")
A(f"s_lshl_b32 s90, s{sH}, 10")
A("s_add_u32 s93, s93, s90")
A("s_lshl_b32 s90, s94, 8")
A("s_add_u32 s93, s93, s90")
A(f"s_add_u32 s93, s93, {W_H3A}")
A(f"v_add_u32 v11, {L_P}, v6")
for i in range(4):
    A(f"v_xor_b32 v{208+i}, s83, v{252+i}")
A("s_barrier")
A("s_waitcnt lgkmcnt(0)")
A("s_barrier")
A.stamp(2, 4)
for ks in range(4):
    A(f"ds_read_b128 v[{144+4*ks}:{147+4*ks}], v11 offset:{1024*ks}")
for ks in range(4):
    A(f"s_waitcnt lgkmcnt({3-ks})")
    for t in range(8):
        c = "0" if ks == 0 else f"v[{160+4*t}:{163+4*t}]"
        bb = 16 + (ks * 8 + t) * 4
        A(f"v_mfma_f32_16x16x32_bf16 v[{160+4*t}:{163+4*t}], v[{144+4*ks}:{147+4*ks}], v[{bb}:{bb+3}], {c}")
A("s_nop 5")
A.stamp(3, 4)
for r_ in range(4):
    for i in range(4):
        A(f"v_perm_b32 v{16+4*r_+i}, v{164+8*i+r_}, v{160+8*i+r_}, s{sPHI}")
    for i in range(4):
        A(f"v_bfi_b32 v{16+4*r_+i}, s83, v{208+i}, v{16+4*r_+i}")
    A(f"buffer_store_dwordx4 v[{16+4*r_}:{19+4*r_}], v13, {srd(S_WS)}, s93 offen sc1")
    if r_ < 3:
        A("s_add_u32 s93, s93, 32768")
A.stamp(8)
if opt.ackn >= 0:
    A(f"s_waitcnt vmcnt({opt.ackn})")
if opt.bs:
    A("s_barrier")
s4_setup()
A("s_barrier")
A("s_branch L_cbd")

L_CB = L_OS
L_CM = L_OS + 8192
A.lab("L_cbK")
A("s_barrier")
s4_setup()
A("v_lshrrev_b32 v13, 5, v0")
A("v_and_b32 v9, 0x1ff, v6")
A("v_lshl_add_u32 v9, v13, 10, v9")
A("s_lshl_b32 s96, s79, 5")
A(f"s_add_u32 s96, s96, s{sH}")
A("s_lshl_b32 s96, s96, 15")
A(f"s_lshl_b32 s90, s{sW}, 13")
A("s_add_u32 s96, s96, s90")
A(f"s_and_b32 s90, s{sR}, 16")
A("s_lshl_b32 s90, s90, 5")
A("s_add_u32 s96, s96, s90")
A(f"s_add_u32 s96, s96, {W_H3A}")
A("s_add_u32 s92, s96, 4096")
A("v_lshl_add_u32 v12, v4, 1, v13")
A("v_lshlrev_b32 v12, 8, v12")
A("s_lshl_b32 s86, s79, 5")
A(f"s_and_b32 s90, s{sH}, 16")
A("s_add_u32 s86, s86, s90")
A("s_lshl_b32 s86, s86, 9")
A(f"s_lshl_b32 s90, s{sW}, 11")
A("s_add_u32 s86, s86, s90")
A(f"s_and_b32 s90, s{sH}, 15")
A("s_lshl_b32 s90, s90, 4")
A("s_add_u32 s86, s86, s90")
A(f"s_add_u32 s86, s86, {W_STX}")
A(f"s_lshl_b32 s90, s{sW}, 10")
A(f"s_add_u32 s90, s90, {L_CB}")
A("v_add_u32 v11, s90, v6")
A(f"s_lshl_b32 s90, s{sW}, 3")
A(f"s_add_u32 s90, s90, {L_CM}")
A("v_mov_b32 v8, s90")
A(f"v_add_u32 v65, {L_CB}, v6")
A(f"v_mov_b32 v66, {L_CM}")
A(f"s_lshl_b32 s93, s{sH}, 2")
A("s_add_u32 s93, s93, s79")
A("s_lshl_b32 s93, s93, 11")
A(f"s_and_b32 s90, s{sR}, 16")
A("s_lshl_b32 s90, s90, 6")
A("s_add_u32 s93, s93, s90")
A(f"s_add_u32 s93, s93, {W_H3B}")
for i in range(8):
    A(f"v_mov_b32 v{48+i}, 0")
A.stamp(6, 4)
bulk = [f"buffer_load_dwordx4 v[{32+4*i}:{35+4*i}], v9, {srd(S_WS)}, {'s96' if i < 2 else 's92'} offen offset:{2048*(i&1)} sc1" for i in range(4)]
stl = f"buffer_load_dwordx4 v[16:19], v12, {srd(S_WS)}, s86 offen"
if opt.spec:
    if opt.sd:
        A(f"s_sleep {opt.sd}")
    execmask(0x0000000F0000000F)
    A(stl + " sc1")
    execall()
    for i in bulk:
        A(i)
    A("s_waitcnt vmcnt(4)")
    execmask(0x0000000F0000000F)
    A(f"v_cmp_ne_u64 vcc, s[{sT0}:{sT1}], v[18:19]")
    A("s_cbranch_vccz L_stok")
    poll([stl], [18], sleep=opt.ssleep)
    if opt.bdelay:
        A(f"s_sleep {opt.bdelay}")
    A.lab("L_stok")
    execall()
else:
    execmask(0x0000000F0000000F)
    poll([stl], [18], sleep=opt.ssleep)
    execall()
    if opt.bdelay:
        A(f"s_sleep {opt.bdelay}")
    for i in bulk:
        A(i)
A.stamp(9, 4)
A.stamp(3, 0)


def all8(op, r_, t):
    for m in ("quad_perm:[1,0,3,2]", "quad_perm:[2,3,0,1]"):
        A("s_nop 1")
        A(f"{op}_dpp v{r_}, v{r_}, v{r_} {m} {DPPM}")
    A(f"v_mov_b32 v{t}, v{r_}")
    A("s_nop 1")
    A(f"v_permlane32_swap_b32 v{r_}, v{t}")
    A("s_nop 0")
    A(f"{op} v{r_}, v{r_}, v{t}")


A("v_mov_b32 v20, v16")
all8("v_max_f32", 20, 26)
A("v_sub_f32 v16, v16, v20")
A("v_exp_f32 v16, v16")
A("s_nop 0")
A("v_mul_f32 v21, v16, v17")
all8("v_add_f32", 21, 26)
A("s_mov_b64 exec, 1")
A("ds_write_b64 v8, v[20:21]")
execall()
A("v_mov_b32 v17, v16")
A("s_nop 1")
A("v_permlane16_swap_b32 v16, v17")
A("s_nop 1")
for i in range(4):
    A(f"v_mov_b32_dpp v{24+2*i}, v16 row_newbcast:{i} {DPPM}")


def take(i, lf):
    w_ = 32 + 4 * i
    for d in range(4):
        A(f"v_xor_b32 v{w_+d}, v{w_+d}, v{252+d}")
    A(f"v_bitop3_b32 v64, v{w_}, v{w_+1}, s83 bitop3:0x80")
    A(f"v_bitop3_b32 v64, v64, v{w_+2}, v{w_+3} bitop3:0x80")
    A("v_cmp_ne_u32 vcc, s83, v64")
    for d in range(4):
        unpack(56 + 2 * d, 57 + 2 * d, w_ + d)
    A(f"s_cbranch_vccnz {lf}")
    for d in range(4):
        A(f"v_pk_fma_f32 v[{48+2*d}:{49+2*d}], v[{56+2*d}:{57+2*d}], v[{24+2*i}:{25+2*i}], v[{48+2*d}:{49+2*d}] op_sel_hi:[1,0,1]")
    A(f"s_bitset0_b32 s94, {i}")
    A.lab(lf)


A("s_mov_b32 s94, 15")
for i in range(4):
    A(f"s_waitcnt vmcnt({3-i})")
    take(i, A.newlab("Ltk"))
A("s_cmp_eq_u32 s94, 0")
A("s_cbranch_scc1 L_bkx")
A.lab("L_bk0")
for i in range(4):
    l = A.newlab("Lrl")
    A(f"s_bitcmp1_b32 s94, {i}")
    A(f"s_cbranch_scc0 {l}")
    A(bulk[i])
    A.lab(l)
A(f"s_add_u32 s{sCNT}, s{sCNT}, 0x10000")
A(f"s_cmp_gt_u32 s{sCNT}, 0x7fff0000")
A("s_cbranch_scc1 L_end")
A("s_waitcnt vmcnt(0)")
for i in range(4):
    l = A.newlab("Ltk")
    A(f"s_bitcmp1_b32 s94, {i}")
    A(f"s_cbranch_scc0 {l}")
    take(i, l)
A("s_cmp_eq_u32 s94, 0")
A("s_cbranch_scc0 L_bk0")
A.lab("L_bkx")
A.stamp(10, 4)
A(f"s_lshr_b32 s97, s{sCNT}, 16")
A(f"s_and_b32 s{sCNT}, s{sCNT}, 0xffff")
for e in range(4):
    A(f"v_permlane32_swap_b32 v{48+e}, v{52+e}")
A("v_pk_add_f32 v[48:49], v[48:49], v[52:53]")
A("v_pk_add_f32 v[50:51], v[50:51], v[54:55]")
A("ds_write_b128 v11, v[48:51]")
A(f"s_cmp_lg_u32 s{sW}, 1")
A("s_waitcnt lgkmcnt(0)")
A("s_barrier")
A("s_cbranch_scc1 L_cbd")
A("ds_read_b128 v[16:19], v66")
A("ds_read_b128 v[20:23], v66 offset:16")
for i in range(4):
    A(f"ds_read_b128 v[{32+4*i}:{35+4*i}], v65 offset:{1024*i}")
A("s_waitcnt lgkmcnt(4)")
A("v_max3_f32 v24, v16, v18, v20")
A("v_max_f32 v24, v24, v22")
for i in range(4):
    A(f"v_sub_f32 v{16+2*i}, v{16+2*i}, v24")
for i in range(4):
    A(f"v_exp_f32 v{16+2*i}, v{16+2*i}")
A("v_mul_f32 v25, v16, v17")
A("v_fmac_f32 v25, v18, v19")
A("v_fmac_f32 v25, v20, v21")
A("v_fmac_f32 v25, v22, v23")
A("v_rcp_f32 v26, v25")
A("s_waitcnt lgkmcnt(0)")
for i in range(4):
    for hh in range(2):
        x = 32 + 4 * i + 2 * hh
        if i == 0:
            A(f"v_pk_mul_f32 v[{48+2*hh}:{49+2*hh}], v[{x}:{x+1}], v[16:17] op_sel_hi:[1,0]")
        else:
            A(f"v_pk_fma_f32 v[{48+2*hh}:{49+2*hh}], v[{x}:{x+1}], v[{16+2*i}:{17+2*i}], v[{48+2*hh}:{49+2*hh}] op_sel_hi:[1,0,1]")
A("v_pk_mul_f32 v[48:49], v[48:49], v[26:27] op_sel_hi:[1,0]")
A("v_pk_mul_f32 v[50:51], v[50:51], v[26:27] op_sel_hi:[1,0]")
A("v_cvt_pk_bf16_f32 v236, v48, v49")
A("v_cvt_pk_bf16_f32 v237, v50, v51")
store_local([f"buffer_store_dwordx4 v[236:239], v6, {srd(S_WS)}, s93 offen"])
A.stamp(5, 0)
A.stamp(11, 4)
A.lab("L_cbd")
A(f"s_cmp_lt_u32 s{sR}, 16")
A("s_cbranch_scc1 L_F")

poll([f"buffer_load_dwordx4 v[208:211], v68, {srd(S_WS)}, s80 offen"], [210])
A.stamp(9, 0)
for jj in range(8):
    d = 144 + 4 * jj
    A(f"v_mfma_f32_16x16x16_bf16 v[{d}:{d+3}], v[208:209], v[{80+2*jj}:{81+2*jj}], 0")
A("s_nop 1")
for jj in range(8):
    d = 144 + 4 * jj
    A(f"v_add_f32_dpp v{216+jj}, v{d+1}, v{d} row_shl:8 {DPPM}")
execmask(M_N8)
A("ds_write_b128 v70, v[216:219]")
A("ds_write_b128 v70, v[220:223] offset:16")
execall()
A("s_waitcnt lgkmcnt(0)")
A("s_barrier")
A(f"s_cmp_lg_u32 s{sW}, 7")
A("s_cbranch_scc1 L_clean")
for s_ in range(8):
    A(f"ds_read_b128 v[{144+4*s_}:{147+4*s_}], v6 offset:{L_RED + 1024*s_}")
sum_b128(8, 144, True)
A("v_cvt_pk_bf16_f32 v236, v144, v145")
A("v_cvt_pk_bf16_f32 v237, v146, v147")
store_local([f"buffer_store_dwordx4 v[236:239], v71, {srd(S_WS)}, s81 offen"])
A.stamp(10, 0)
A("s_branch L_fin")

A.lab("L_clean")
A("s_mov_b32 s94, s100")
A("s_mov_b32 s97, s101")
A(f"s_cmp_eq_u32 s{sR}, 31")
A("s_cbranch_scc1 L_F1")
A(f"s_cmp_lt_u32 s{sW}, 2")
A("s_cbranch_scc0 L_fin")

A.lab("L_red")
A(f"s_cmp_lt_u32 s{sR}, 26")
A("s_cbranch_scc0 L_fin")
A(f"s_and_b32 s94, s{sR}, 15")
A("v_and_b32 v12, 1, v1")
A("v_mul_u32_u24 v13, 1280, v12")
A("v_lshl_add_u32 v13, v2, 3, v13")
A("v_lshrrev_b32 v15, 5, v0")
A("v_lshl_add_u32 v13, v15, 2, v13")
A(f"s_mul_i32 s90, s{sW}, 2560")
A("s_lshl_b32 s93, s94, 7")
A("s_add_u32 s90, s90, s93")
A(f"buffer_load_dword v200, v13, {srd(S_X)}, s90 offen")
A("v_mul_u32_u24 v13, 2560, v12")
A("v_lshl_add_u32 v13, v2, 4, v13")
A(f"s_mul_i32 s96, s{sX}, 10240")
A(f"s_mul_i32 s90, s{sW}, 5120")
A("s_add_u32 s96, s96, s90")
A("s_lshl_b32 s90, s94, 8")
A("s_add_u32 s96, s96, s90")
A(f"s_add_u32 s96, s96, {W_H5C}")
A("v_and_b32 v14, 0x1ff, v6")
A("v_lshl_add_u32 v14, v15, 10, v14")
A("s_lshl_b32 s95, s94, 13")
A(f"s_lshl_b32 s90, s{sW}, 9")
A("s_add_u32 s95, s95, s90")
A(f"s_add_u32 s95, s95, {W_H5B}")
A("s_add_u32 s93, s95, 4096")
poll([f"buffer_load_dwordx4 v[{144+4*i}:{147+4*i}], v14, {srd(S_WS)}, {'s95' if i < 2 else 's93'} offen offset:{2048*(i&1)}" for i in range(4)],
     [146 + 4 * i for i in range(4)])
for i in range(4):
    unpack(160 + 4 * i, 161 + 4 * i, 144 + 4 * i)
    unpack(162 + 4 * i, 163 + 4 * i, 145 + 4 * i)
unpack(202, 203, 200)
sum_b128(4, 160)
A("s_nop 1")
A("v_permlane32_swap_b32 v160, v162")
A("v_permlane32_swap_b32 v161, v163")
A("s_nop 0")
A("v_pk_add_f32 v[160:161], v[160:161], v[162:163]")
A("v_pk_add_f32 v[160:161], v[160:161], v[202:203]")
A("v_cvt_pk_bf16_f32 v236, v160, v161")
A("v_cvt_pk_bf16_f32 v237, v160, v161")
A("s_nop 1")
A("v_permlane32_swap_b32 v236, v237")
execmask(0xFFFFFFFF)
store_local([f"buffer_store_dwordx4 v[236:239], v13, {srd(S_WS)}, s96 offen"])
execall()
A.stamp(11)
A("s_branch L_fin")

A.lab("L_s8")
A("s_lshl_b32 s94, s2, 1")
A(f"s_and_b32 s90, s{sW}, 1")
A("s_add_u32 s94, s94, s90")
A("s_mul_i32 s90, s94, 1639")
A("s_lshr_b32 s90, s90, 16")
A("s_mul_i32 s93, s90, 40")
A("s_sub_u32 s93, s94, s93")
A("s_lshr_b32 s95, s93, 3")
A("s_lshl_b32 s95, s95, 5")
A("s_bfe_u32 s96, s93, 0x10002")
A("s_add_u32 s95, s95, s96")
A("s_and_b32 s96, s93, 3")
A("s_lshl_b32 s96, s96, 3")
A("s_add_u32 s95, s95, s96")
A("v_mul_u32_u24 v12, 10240, v5")
A("v_lshl_add_u32 v12, v4, 4, v12")
A("s_lshl_b32 s78, s94, 6")
A(f"s_add_u32 s78, s78, {W_H6}")
A(f"s_add_u32 s79, s78, {16*10240}")
A(f"s_add_u32 s80, s78, {32*10240}")
A(f"s_add_u32 s81, s78, {48*10240}")
A("v_add_u32 v13, s81, v12")
A(f"s_lshl_b32 s82, s{sX}, 2")
A("s_add_u32 s82, s82, s90")
A("s_mul_i32 s82, s82, 160")
A("s_add_u32 s82, s82, s95")
A("s_lshl_b32 s82, s82, 4")
A(f"s_add_u32 s82, s82, {W_H5C}")
A("v_lshlrev_b32 v14, 5, v4")
A("v_add_u32 v14, s82, v14")
A("v_cmp_gt_u32 vcc, 6, v5")
A("s_nop 1")
A("v_cndmask_b32 v13, v14, v13, vcc")
A("s_mul_i32 s83, s90, 1280")
A("s_lshl_b32 s84, s95, 3")
A("s_add_u32 s83, s83, s84")
A("v_lshlrev_b32 v15, 4, v4")
A("v_lshl_add_u32 v15, v1, 1, v15")
s8l = [f"buffer_load_dwordx4 v[144:147], v12, {srd(S_WS)}, s78 offen",
       f"buffer_load_dwordx4 v[148:151], v12, {srd(S_WS)}, s79 offen",
       f"buffer_load_dwordx4 v[152:155], v12, {srd(S_WS)}, s80 offen",
       f"buffer_load_dwordx4 v[156:159], v13, {srd(S_WS)}, 0 offen"]
A("s_sleep 4")
for i in s8l:
    A(i + " sc1")
poll([f"buffer_load_dwordx4 v[164:167], v14, {srd(S_WS)}, 0 offen"], [166], sleep=2)
poll(s8l, [146, 150, 154, 158])
A("v_cmp_gt_u32 vcc, 7, v5")
A("s_nop 1")
A("v_cndmask_b32 v156, 0, v156, vcc")
A("v_cndmask_b32 v157, 0, v157, vcc")
for i in range(4):
    unpack(160 + 4 * i, 161 + 4 * i, 144 + 4 * i)
    unpack(162 + 4 * i, 163 + 4 * i, 145 + 4 * i)
sum_b128(4, 160)
A("s_nop 1")
A("v_permlane32_swap_b32 v160, v162")
A("v_permlane32_swap_b32 v161, v163")
A("s_nop 0")
A("v_pk_add_f32 v[160:161], v[160:161], v[162:163]")
A("s_nop 1")
A("v_permlane16_swap_b32 v160, v161")
A("s_nop 0")
A("v_add_f32 v160, v160, v161")
A("s_nop 1")
A(f"v_add_f32_dpp v160, v160, v160 row_ror:8 {DPPM}")
A("s_nop 1")
A(f"v_add_f32_dpp v160, v160, v160 row_ror:4 {DPPM}")
A("s_nop 0")
A("v_cvt_pk_bf16_f32 v160, v160, v160")
execmask(M_N4)
A(f"buffer_store_short v160, v15, {srd(S_OUT)}, s83 offen")
execall()
A("s_cmp_lg_u32 s94, 0")
A("s_cbranch_scc1 L_s8x")
A("v_mov_b32 v12, 0")
A("s_mov_b64 exec, 1")
A(f"buffer_store_dwordx2 v[238:239], v12, {srd(S_WS)}, 0 offen sc1")
execall()
A.lab("L_s8x")
if opt.padto:
    A.lab("L_pad")
    A("s_memrealtime s[6:7]")
    A("s_waitcnt lgkmcnt(0)")
    A("s_sub_u32 s6, s6, s4")
    A(f"s_cmp_lt_u32 s6, {opt.padto*100}")
    A("s_cbranch_scc1 L_pad")
A.stamp(11)
A("s_branch L_fin")

def w1_loads():
    A("v_mul_u32_u24 v15, 13824, v5")
    A("v_lshl_add_u32 v15, v4, 4, v15")
    A(f"s_mul_i32 s93, s{sW}, {128*3456}")
    A("s_lshl_b32 s90, s94, 6")
    A("s_add_u32 s93, s93, s90")
    for i in range(8):
        A(f"s_add_u32 s90, s93, {((i & 3) + 64*(i >> 2))*3456}")
        A(f"buffer_load_dwordx4 v[{16+4*i}:{19+4*i}], v15, {srd(S_W1)}, s90 offen {opt.pt}")


A.lab("L_F")
if opt.fwait:
    A("s_waitcnt vmcnt(0)")
    A.stamp(3, 5)
A("s_barrier")
if opt.fwait > 1:
    A(f"s_sleep {opt.fwait}")
A("s_waitcnt vmcnt(4)")
if opt.f2 == 2:
    A(f"s_cmp_lt_u32 s{sW}, 4")
    A("s_cbranch_scc0 L_f2xl")
    f_second("l")
if opt.f2 == 3:
    f_second("l")
A("s_mov_b32 s94, s100")
A("s_mov_b32 s97, s101")
A(f"s_cmp_lt_u32 s{sR}, 10")
A("s_cbranch_scc0 L_F1")
if opt.d1:
    A(f"s_sleep {opt.d1}")
if not opt.f2:
    A("s_add_u32 s90, s91, 5120")
    for i in range(4):
        A(f"buffer_load_dwordx4 v[{192+4*i}:{195+4*i}], v244, {srd(S_WO)}, s90 offen offset:{1280*i} {opt.po}")
A(f"s_lshl_b32 s90, s{sR}, 3")
A(f"s_add_u32 s90, s90, s{sW}")
A(f"s_mul_i32 s92, s{sX}, 7")
A("s_add_u32 s92, s92, 6")
A("s_cmp_lt_u32 s90, 40")
A("s_cbranch_scc0 L_hp2")
A("s_lshl_b32 s92, s92, 6")
A("v_mul_u32_u24 v15, 3456, v5")
A("v_lshl_add_u32 v15, v4, 4, v15")
A(f"s_mul_i32 s90, s90, {16*3456}")
A("s_add_u32 s90, s90, s92")
A(f"buffer_load_dwordx4 v[48:51], v15, {srd(S_W1)}, s90 offen")
A("s_branch L_s5")
A.lab("L_hp2")
A("s_sub_u32 s90, s90, 40")
A("s_lshl_b32 s90, s90, 10")
A(f"s_mul_i32 s92, s92, {32*1280}")
A("s_add_u32 s90, s90, s92")
A(f"buffer_load_dwordx4 v[48:51], v6, {srd(S_W2)}, s90 offen")
A.lab("L_s5")
A("s_waitcnt vmcnt(1)")
transpose(112, [212, 216, 220, 224, 192, 196, 200, 204], 4)
A("v_lshl_add_u32 v12, v3, 11, v7")
A(f"s_lshl_b32 s95, s{sX}, 14")
A(f"s_lshl_b32 s90, s{sW}, 8")
A("s_add_u32 s95, s95, s90")
A(f"s_add_u32 s95, s95, {W_H4}")
A("s_add_u32 s96, s95, 8192")
A("v_and_b32 v14, 7, v0")
A("v_lshlrev_b32 v14, 5, v14")
A("v_lshl_add_u32 v14, v1, 8, v14")
A(f"s_lshl_b32 s90, s{sW}, 10")
A(f"s_add_u32 s90, s90, {L_RED}")
A("v_add_u32 v14, s90, v14")
poll([f"buffer_load_dwordx4 v[208:211], v12, {srd(S_WS)}, s95 offen",
      f"buffer_load_dwordx4 v[212:215], v12, {srd(S_WS)}, s96 offen"], [210, 214], sleep=opt.lsleep)
A.stamp(9, 0)
unpack(216, 217, 208); unpack(218, 219, 209); unpack(220, 221, 212); unpack(222, 223, 213)
A("v_pk_add_f32 v[216:217], v[216:217], v[220:221]")
A("v_pk_add_f32 v[218:219], v[218:219], v[222:223]")
A("v_cvt_pk_bf16_f32 v208, v216, v217")
A("v_cvt_pk_bf16_f32 v209, v218, v219")
A("s_nop 1")
A(f"v_mov_b32_dpp v212, v208 quad_perm:[0,2,0,2] {DPPM}")
A(f"v_mov_b32_dpp v213, v209 quad_perm:[0,2,0,2] {DPPM}")
A(f"v_mov_b32_dpp v214, v208 quad_perm:[1,3,1,3] {DPPM}")
A(f"v_mov_b32_dpp v215, v209 quad_perm:[1,3,1,3] {DPPM}")
A("s_nop 1")
for jj in range(8):
    d = 144 + 4 * jj
    A(f"v_mfma_f32_16x16x32_bf16 v[{d}:{d+3}], v[212:215], v[{112+4*jj}:{115+4*jj}], 0")
A("s_nop 1")
for jj in range(8):
    d = 144 + 4 * jj
    A(f"v_add_f32_dpp v{216+jj}, v{d+1}, v{d} row_shl:8 {DPPM}")
execmask(M_N8)
A("ds_write_b128 v14, v[216:219]")
A("ds_write_b128 v14, v[220:223] offset:16")
execall()
A("s_waitcnt lgkmcnt(0)")
A("s_barrier")
A(f"s_and_b32 s90, s{sW}, 6")
A("s_cmp_eq_u32 s90, 2")
A("s_cbranch_scc1 L_s8")
A(f"s_cmp_lg_u32 s{sW}, 7")
A("s_cbranch_scc1 L_fin")
for s in range(8):
    A(f"ds_read_b128 v[{144+4*s}:{147+4*s}], v6 offset:{L_RED + 1024*s}")
A(f"s_lshl_b32 s95, s{sR}, 3")
A(f"s_add_u32 s95, s95, s{sX}")
A("s_lshl_b32 s95, s95, 10")
A(f"s_add_u32 s95, s95, {W_H5B}")
sum_b128(8, 144, True)
A("v_cvt_pk_bf16_f32 v236, v144, v145")
A("v_cvt_pk_bf16_f32 v237, v146, v147")
A(f"buffer_store_dwordx4 v[236:239], v6, {srd(S_WS)}, s95 offen sc1")
A.stamp(11)
A("s_branch L_fin")

A.lab("L_F1")
A("s_cmp_lt_u32 s97, 54")
A("s_cbranch_scc0 L_fin")
A(f"s_cmp_lt_u32 s{sR}, 16")
A("s_cbranch_scc1 L_F1a")
A("s_sleep 4")
A(f"s_mul_i32 s91, s94, {32*1280}")
A(f"s_lshl_b32 s90, s{sW}, 8")
A("s_add_u32 s91, s91, s90")
A("s_add_u32 s90, s91, 5120")
for i in range(8):
    d = 212 + 4 * i if i < 4 else 192 + 4 * (i - 4)
    A(f"buffer_load_dwordx4 v[{d}:{d+3}], v247, {srd(S_W2)}, {'s91' if i < 4 else 's90'} offen offset:{1280*(i&3)} {opt.po}")
A.lab("L_F1a")
w1_loads()
A("s_waitcnt vmcnt(8)")
transpose(112, [212, 216, 220, 224, 192, 196, 200, 204], 4)
A("s_waitcnt vmcnt(0)")
A.stamp(2, 0)
transpose(80, [16 + 4 * i for i in range(8)], 4)
for i in range(4):
    A(f"v_mov_b32 v{48+i}, 0x3f803f80")
A("s_nop 1")
for jj in range(8):
    A(f"v_mfma_f32_16x16x32_bf16 v[{16+4*jj}:{19+4*jj}], v[48:51], v[{80+4*jj}:{83+4*jj}], 0")
A("s_nop 1")
dppsum([56 + jj for jj in range(8)], [16 + 4 * jj for jj in range(8)])
A("v_lshlrev_b32 v14, 5, v4")
A(f"s_lshl_b32 s90, s{sW}, 7")
A(f"s_add_u32 s90, s90, {L_CS}")
A("v_add_u32 v14, s90, v14")
A("s_mov_b64 exec, 15")
A("ds_write_b128 v14, v[56:59]")
A("ds_write_b128 v14, v[60:63] offset:16")
execall()
A("s_waitcnt lgkmcnt(0)")
A("s_barrier")
A.lab("L_s67")
A("v_lshrrev_b32 v14, 1, v7")
for s in range(5):
    A(f"ds_read_b64 v[{16+2*s}:{17+2*s}], v14 offset:{L_CS + 128*s}")
A("v_mul_u32_u24 v12, 2560, v3")
A("v_add_u32 v12, v12, v7")
A(f"s_mul_i32 s95, s{sX}, 10240")
A(f"s_lshl_b32 s90, s{sW}, 9")
A("s_add_u32 s95, s95, s90")
A(f"s_add_u32 s95, s95, {W_H5C}")
A("v_lshlrev_b32 v13, 1, v7")
A(f"s_add_u32 s90, s90, {L_RED2}")
A("v_add_u32 v13, s90, v13")
A("v_lshlrev_b32 v10, 3, v1")
A(f"s_lshl_b32 s90, s{sW}, 5")
A(f"s_add_u32 s90, s90, {L_RS}")
A("v_add_u32 v10, s90, v10")
A("v_lshl_add_u32 v14, v3, 7, v14")
A("v_lshlrev_b32 v11, 3, v3")
A("v_mul_u32_u24 v9, 2560, v1")
A("v_lshl_add_u32 v9, v2, 4, v9")
A("s_mul_i32 s96, s94, 10240")
A(f"s_lshl_b32 s90, s{sW}, 9")
A("s_add_u32 s96, s96, s90")
A(f"s_add_u32 s96, s96, {W_H6}")
A("s_waitcnt lgkmcnt(0)")
for s in range(1, 5):
    A(f"v_pk_add_f32 v[16:17], v[16:17], v[{16+2*s}:{17+2*s}]")
poll([f"buffer_load_dwordx4 v[208:211], v12, {srd(S_WS)}, s95 offen",
      f"buffer_load_dwordx4 v[212:215], v12, {srd(S_WS)}, s95 offen offset:256"], [210, 214], sleep=opt.lsleep)
A.stamp(10, 0)
A("v_mov_b32 v210, v212")
A("v_mov_b32 v211, v213")
A("s_nop 1")
A("v_mfma_f32_16x16x32_bf16 v[184:187], v[208:211], v[48:51], 0")
A("v_mfma_f32_16x16x32_bf16 v[188:191], v[208:211], v[208:211], 0")
for jj in range(8):
    d = 144 + 4 * jj
    A(f"v_mfma_f32_16x16x32_bf16 v[{d}:{d+3}], v[208:211], v[{80+4*jj}:{83+4*jj}], 0")
A("v_add_f32 v192, v184, v185")
A(f"v_add_f32_dpp v193, v189, v188 row_shl:1 {DPPM}")
A("v_add_f32 v194, v186, v187")
A("s_nop 0")
A(f"v_add_f32_dpp v193, v190, v193 row_shl:2 {DPPM}")
A("v_add_f32 v192, v192, v194")
A("s_nop 0")
A(f"v_add_f32_dpp v193, v191, v193 row_shl:3 {DPPM}")
execmask(0x1000010000100001)
A("ds_write_b64 v10, v[192:193]")
execall()
dppsum([176 + i for i in range(8)], [144 + 4 * i for i in range(8)])
execmask(M_N4)
A("ds_write_b128 v13, v[176:179]")
A("ds_write_b128 v13, v[180:183] offset:16")
execall()
A("s_waitcnt lgkmcnt(0)")
A("s_barrier")
for s in range(5):
    A(f"ds_read_b64 v[{160+2*s}:{161+2*s}], v11 offset:{L_RS + 32*s}")
for s in range(5):
    A(f"ds_read_b64 v[{144+2*s}:{145+2*s}], v14 offset:{L_RED2 + 512*s}")
A("s_waitcnt lgkmcnt(5)")
for s in range(1, 5):
    A(f"v_pk_add_f32 v[160:161], v[160:161], v[{160+2*s}:{161+2*s}]")
A(f"v_mul_f32 v160, {f32(1/640)}, v160")
A(f"v_mul_f32 v161, {f32(1/640)}, v161")
A("v_fma_f32 v161, -v160, v160, v161")
A("v_max_f32 v161, 0, v161")
A(f"v_add_f32 v161, {f32(1e-5)}, v161")
A("v_rsq_f32 v161, v161")
A("s_waitcnt lgkmcnt(0)")
for s in range(1, 5):
    A(f"v_pk_add_f32 v[144:145], v[144:145], v[{144+2*s}:{145+2*s}]")
A("v_fma_f32 v144, -v160, v16, v144")
A("v_fma_f32 v145, -v160, v17, v145")
A("v_mul_f32 v144, v144, v161")
A("v_mul_f32 v145, v145, v161")
A(f"v_mul_f32 v146, {f32(-math.log2(math.e))}, v144")
A(f"v_mul_f32 v147, {f32(-math.log2(math.e))}, v145")
A("v_exp_f32 v146, v146")
A("v_exp_f32 v147, v147")
A("s_nop 0")
A("v_add_f32 v146, 1.0, v146")
A("v_add_f32 v147, 1.0, v147")
A("v_rcp_f32 v146, v146")
A("v_rcp_f32 v147, v147")
A("s_nop 0")
A("v_mul_f32 v144, v144, v146")
A("v_mul_f32 v145, v145, v147")
A("v_cvt_pk_bf16_f32 v148, v144, v145")
A("s_nop 1")
for i in range(4):
    A(f"v_mov_b32_dpp v{208+i}, v148 quad_perm:[{i},{i},{i},{i}] {DPPM}")
A("s_nop 1")
for jj in range(8):
    d = 144 + 4 * jj
    A(f"v_mfma_f32_16x16x32_bf16 v[{d}:{d+3}], v[208:211], v[{112+4*jj}:{115+4*jj}], 0")
A("s_nop 3")
A("v_cvt_pk_bf16_f32 v232, v144, v148")
A("v_cvt_pk_bf16_f32 v233, v152, v156")
A(f"buffer_store_dwordx4 v[232:235], v9, {srd(S_WS)}, s96 offen sc1")
A("s_nop 1")
A("v_cvt_pk_bf16_f32 v236, v160, v164")
A("v_cvt_pk_bf16_f32 v237, v168, v172")
A(f"buffer_store_dwordx4 v[236:239], v9, {srd(S_WS)}, s96 offen offset:256 sc1")
A.stamp(11)

A.lab("L_fin")
if opt.dbgstamps:
    A("s_waitcnt vmcnt(0) lgkmcnt(0)")
    A("s_load_dwordx2 s[92:93], s[0:1], 80")
    A("s_mov_b32 s94, 256")
    A("s_mov_b32 s95, 0x00020000")
    A("v_mov_b32 v8, 0")
    A("s_waitcnt lgkmcnt(0)")
    A("s_mov_b64 exec, 1")
    A("s_not_b32 s90, s4")
    A("v_mov_b32 v9, s90")
    A("buffer_atomic_umax v9, v8, s[92:95], 0 offen offset:60")
    A(f"s_cmp_lt_u32 s{sR}, 16")
    for i in range(12):
        A(f"v_mov_b32 v9, s{4+2*i}")
        if i in (3, 4, 9):
            o2 = {3: 48, 4: 52, 9: 56}[i]
            A(f"s_cselect_b32 s91, {4*i}, {o2}")
            A(f"buffer_atomic_umax v9, v8, s[92:95], s91 offen")
        else:
            A(f"buffer_atomic_umax v9, v8, s[92:95], 0 offen offset:{4*i}")
    A("s_branch L_end")
if opt.stamps:
    A("s_waitcnt vmcnt(0) lgkmcnt(0)")
    A(f"s_lshl_b32 s90, s2, 3")
    A(f"s_add_u32 s90, s90, s{sW}")
    A("s_lshl_b32 s90, s90, 6")
    A(f"s_add_u32 s90, s90, {W_STAMP}")
    A("v_mov_b32 v8, 0")
    A("s_mov_b64 exec, 1")
    for i in range(12):
        A(f"v_mov_b32 v9, s{4+2*i}")
        A(f"buffer_store_dword v9, v8, {srd(S_WS)}, s90 offen offset:{4*i}")
    A(f"v_mov_b32 v9, s{sCNT}")
    A(f"buffer_store_dword v9, v8, {srd(S_WS)}, s90 offen offset:56")
    A(f"v_mov_b32 v9, s{sFAST}")
    A(f"buffer_store_dword v9, v8, {srd(S_WS)}, s90 offen offset:60")
A.lab("L_end")

body = "\n".join(A.l)
if opt.stamps:
    init = "\n".join(f"    s_mov_b32 s{4+2*i}, 0" for i in range(1, 12))
    body = init + "\n" + body
DOC = "; ---------------------------------------------------------------------------------------------\n;   r<16 : q, q_abs for (h, c-quarter)            -> Q   (16B granules {4 bf16, tag64}, sc1)\n;          mantissa bit of every value, removed again by the reader) + {max,sum,tag64} stats\n; ---------------------------------------------------------------------------------------------\n"
out = HDR + f"""; @launch grid=(256,1,1) block=(512,1,1) lds={LDS_BYTES}
{DOC}.amdgcn_target "amdgcn-amd-amdhsa--gfx950"
.text
.globl {NAME}_kernel
.p2align 8
.type {NAME}_kernel,@function
{NAME}_kernel:
{body}
    s_endpgm
L_codeend:
.section .rodata,"a"
.p2align 6
.amdhsa_kernel {NAME}_kernel
  .amdhsa_next_free_vgpr 256
  .amdhsa_next_free_sgpr 102
  .amdhsa_accum_offset 256
  .amdhsa_group_segment_fixed_size 0
  .amdhsa_kernarg_size 96
  .amdhsa_user_sgpr_count 2
  .amdhsa_user_sgpr_kernarg_segment_ptr 1
  .amdhsa_system_sgpr_workgroup_id_x 1
.end_amdhsa_kernel
"""
open(opt.o, "w").write(out)
print("wrote", opt.o, "lines", len(A.l), file=sys.stderr)
```

```python
import sys, re, argparse, math, struct

NAME = "sequential_preLN__compressed_kv_cla__dense_activation_silu__decode"
HDR = open(f"cdna_kernels/{NAME}.s.ref").read().split("; Override launch")[0]

ap = argparse.ArgumentParser()
ap.add_argument("-o", default=f"cdna_kernels/{NAME}.s")
ap.add_argument("--stamps", action="store_true")
ap.add_argument("--early", type=int, default=4)
ap.add_argument("--early67", type=int, default=16)
ap.add_argument("--pw", default="sc1")
ap.add_argument("--noh3bt", action="store_true")
ap.add_argument("--earlyA", type=int, default=4)
ap.add_argument("--nocodepf", action="store_true")
ap.add_argument("--nobar2", action="store_true")
ap.add_argument("--nouvpf", action="store_true")
ap.add_argument("--noukpf", action="store_true")
ap.add_argument("--kb0", type=int, default=2)
ap.add_argument("--kb", type=int, default=0)
ap.add_argument("--ka", type=int, default=0)
ap.add_argument("--kf", type=int, default=16)
ap.add_argument("--arev", action="store_true")
ap.add_argument("--grp", type=int, default=0)
ap.add_argument("--ntr0", type=int, default=32)
ap.add_argument("--padto", type=int, default=0)
ap.add_argument("--forceslow", action="store_true")
ap.add_argument("--wb", action="store_true")
ap.add_argument("--dbgstamps", action="store_true")
ap.add_argument("--b1", type=int, default=10)
ap.add_argument("--b2", type=int, default=6)
ap.add_argument("--noclean", action="store_true")
ap.add_argument("--pxor", type=int, default=0)
ap.add_argument("--hxor", type=int, default=0)
ap.add_argument("--uv", default="late")
ap.add_argument("--uvsplit", type=int, default=8)
ap.add_argument("--uvw", type=int, default=4)
ap.add_argument("--ssleep", type=int, default=0)
ap.add_argument("--pc", default="")
ap.add_argument("--pq", default="")
ap.add_argument("--pt", default="")
ap.add_argument("--po", default="nt")
ap.add_argument("--fwait", type=int, default=0)
ap.add_argument("--stearly", action="store_true")
ap.add_argument("--ilv", type=int, default=1)
ap.add_argument("--nv0", type=int, default=12)
ap.add_argument("--vdelay", type=int, default=0)
ap.add_argument("--d1", type=int, default=0)
ap.add_argument("--d2", type=int, default=0)
ap.add_argument("--noearlyF", action="store_true")
ap.add_argument("--stw", type=int, default=3)
ap.add_argument("--bdelay", type=int, default=0)
ap.add_argument("--bs", type=int, default=1)
ap.add_argument("--f2", type=int, default=2)
ap.add_argument("--spec", type=int, default=0)
ap.add_argument("--sd", type=int, default=0)
ap.add_argument("--ackn", type=int, default=-1)
ap.add_argument("--lsleep", type=int, default=0)
ap.add_argument("--nuk", type=int, default=4)
ap.add_argument("--tlb", type=int, default=1)
ap.add_argument("--qsleep", type=int, default=0)
opt = ap.parse_args()

W_EPOCH = 0x0
W_XT = 0x1000
W_H1 = 0x10000
W_H1B = 0x380000
W_H2 = 0x100000
W_ST3 = 0x140000
W_STX = 0x150000
W_H4 = 0x160000
W_H5B = 0x180000
W_H5C = 0x1A0000
W_H3B = 0x200000
W_H6 = 0x280000
W_H3A = 0x400000
W_STAMP = 0x800000
WS_SIZE = 0x1000000

ROWB = 1056
L_Q = 128 * ROWB
L_P = L_Q + 16 * ROWB
L_MX = L_P + 4096
L_SM = L_MX + 512
L_QV = L_SM + 512
L_QP = L_Q + 5376
L_XN = L_Q
LDS_BYTES = 163840
L_S1 = 0 * ROWB
L_RED = 0
L_RED2 = 16384
L_RS = 32768
L_CS = 33792
L_OS = 49152
L_UV = 73728

S_X, S_CKV, S_WQ, S_WUK, S_WUV, S_WO, S_W1, S_W2, S_OUT, S_WS = (28, 32, 36, 40, 44, 48, 52, 56, 60, 64)
sX, sR, sW = 68, 69, 70
sFAST = 71
sT0, sT1 = 72, 73
sPLO, sPHI = 74, 75
sCNT = 76
sH = 77
sTL = 3
POLL_LIMIT = 400000


def f32(x):
    return "0x%08x" % struct.unpack("<I", struct.pack("<f", x))[0]


class Asm:
    def __init__(self):
        self.l = []
        self.nlab = 0

    def __call__(self, s):
        m = re.search(r"offset:(\d+)", s)
        if m:
            lim = 65536 if s.lstrip().startswith("ds_") else 4096
            assert int(m.group(1)) < lim, s
        self.l.append("    " + s)

    def lab(self, n):
        self.l.append(n + ":")

    def newlab(self, p="L"):
        self.nlab += 1
        return f"{p}_{self.nlab}"

    def c(self, s):
        self.l.append("    ; " + s)

    def stamp(self, i, grp=None):
        if grp is not None and grp != opt.grp:
            return
        if opt.grp == 4 and grp != 4 and i not in (0, 7, 8):
            return
        if opt.grp == 8 and grp != 8 and i not in (0, 11):
            return
        if opt.stamps:
            self(f"s_memrealtime s[{4+2*i}:{5+2*i}]")


A = Asm()
DPPM = "row_mask:0xf bank_mask:0xf"


def srd(n):
    return f"s[{n}:{n+3}]"


def execmask(m):
    A(f"s_mov_b32 exec_lo, 0x{m & 0xffffffff:x}")
    A(f"s_mov_b32 exec_hi, 0x{m >> 32:x}")


def execall():
    A("s_mov_b64 exec, -1")


M_N4 = 0x000F000F000F000F
M_N8 = 0x00FF00FF00FF00FF


def store_local(instr):
    l1, l2 = A.newlab("Lsl"), A.newlab("Lsl")
    A(f"s_cmp_eq_u32 s{sFAST}, 0")
    A(f"s_cbranch_scc1 {l1}")
    for i in instr:
        A(i)
    A(f"s_branch {l2}")
    A.lab(l1)
    for i in instr:
        A(i + " sc1")
    A.lab(l2)


def poll(loads, tagregs, sleep=0, alt=None):
    lp = A.newlab("Lpoll")
    if alt:
        sr, sm, so_ = alt
        lf = A.newlab("Lpf")
        A(f"s_mov_b32 {sr}, {sm}")
        A(f"s_branch {lf}")
        A.lab(lp)
        A(f"s_and_b32 s98, s{sCNT}, 31")
        A("s_cmp_eq_u32 s98, 31")
        A(f"s_cselect_b32 {sr}, {so_}, {sm}")
        A.lab(lf)
    elif sleep:
        lf = A.newlab("Lpf")
        A(f"s_branch {lf}")
        A.lab(lp)
        A(f"s_sleep {sleep}")
        A.lab(lf)
    else:
        A.lab(lp)
    for i in loads:
        A(i + " sc1")
    A(f"s_add_u32 s{sCNT}, s{sCNT}, 1")
    A(f"s_cmp_gt_u32 s{sCNT}, {POLL_LIMIT}")
    A("s_cbranch_scc1 L_end")
    A("s_waitcnt vmcnt(0)")
    for k, t in enumerate(tagregs):
        if k == 0:
            A(f"v_cmp_ne_u64 vcc, s[{sT0}:{sT1}], v[{t}:{t+1}]")
        else:
            A(f"v_cmp_ne_u64 s[98:99], s[{sT0}:{sT1}], v[{t}:{t+1}]")
            A("s_or_b64 vcc, vcc, s[98:99]")
    A(f"s_cbranch_vccnz {lp}")


def transpose(dst, rows, ndw, dup=False):
    nr = len(rows) // 2
    st = 2 * nr if dup else nr
    for jj in range(2 * ndw):
        sel = sPHI if jj & 1 else sPLO
        for rep in range(2 if dup else 1):
            for p in range(nr):
                A(f"v_perm_b32 v{dst + jj*st + rep*nr + p}, v{rows[2*p+1] + (jj >> 1)}, v{rows[2*p] + (jj >> 1)}, s{sel}")


def dppsum(dsts, ds):
    assert len(dsts) >= 3
    for step in (1, 2, 3):
        for t, d in zip(dsts, ds):
            src1 = d if step == 1 else t
            A(f"v_add_f32_dpp v{t}, v{d+step}, v{src1} row_shl:{4*step} {DPPM}")


def unpack(dlo, dhi, s):
    A(f"v_lshlrev_b32 v{dlo}, 16, v{s}")
    A(f"v_and_b32 v{dhi}, 0xffff0000, v{s}")


def rowall(op, regs):
    for sh in (8, 4, 2, 1):
        if len(regs) < 3:
            A(f"s_nop {2 - len(regs)}")
        for r_ in regs:
            A(f"{op}_dpp v{r_}, v{r_}, v{r_} row_ror:{sh} {DPPM}")


def sum_b128(n, base, lds=False):
    st = 1
    while st < n:
        for s in range(0, n, 2 * st):
            if lds and st == 1:
                A(f"s_waitcnt lgkmcnt({n - s - 2})")
            x, y = base + 4 * s, base + 4 * (s + st)
            A(f"v_pk_add_f32 v[{x}:{x+1}], v[{x}:{x+1}], v[{y}:{y+1}]")
            A(f"v_pk_add_f32 v[{x+2}:{x+3}], v[{x+2}:{x+3}], v[{y+2}:{y+3}]")
        st *= 2


def tag_setup():
    A("s_waitcnt lgkmcnt(0)")
    A(f"s_mul_i32 s{sT0}, s82, 0x9E3779B1")
    A(f"s_add_u32 s{sT0}, s{sT0}, 0x7F4A7C15")
    A(f"s_mul_i32 s{sT1}, s83, 0x2C9277B5")
    A(f"s_add_u32 s{sT1}, s{sT1}, 0xAC564B05")


def xt_decide(t):
    A("s_getreg_b32 s84, hwreg(HW_REG_XCC_ID)")
    A("s_and_b32 s84, s84, 15")
    A(f"v_cmp_ne_u32 vcc, s84, v{t}")
    A("s_cmp_eq_u64 vcc, 0")
    A(f"s_cselect_b32 s{sFAST}, {0 if opt.forceslow else 1}, 0")


def ckv_dma(rows, k=None):
    for i in rows:
        st_ = 4 if opt.ilv else 1
        A(f"s_add_u32 m0, s81, {i*ROWB*st_}")
        A(f"s_add_u32 s86, s80, {i*1024*st_}")
        if k:
            A(f"s_waitcnt vmcnt({k-1})")
        A(f"buffer_load_dwordx4 v6, {srd(S_CKV)}, s86 offen {opt.pc} lds")


A.stamp(0)
if opt.padto:
    A("s_memrealtime s[4:5]")
A("s_cmp_ge_u32 s2, 256")
A("s_cbranch_scc1 L_end")
ptr = {S_X: 0, S_CKV: 8, S_WQ: 16, S_WUK: 24, S_WUV: 32, S_WO: 40, S_W1: 56, S_W2: 64, S_OUT: 72, S_WS: 88}
size = {S_X: 5120, S_CKV: 16777216, S_WQ: 5242880, S_WUK: 4194304, S_WUV: 4194304, S_WO: 5242880,
        S_W1: 2211840, S_W2: 2211840, S_OUT: 5120, S_WS: WS_SIZE}
for s_ in (S_WQ, S_X, S_CKV, S_WUK, S_WS):
    A(f"s_load_dwordx2 s[{s_}:{s_+1}], s[0:1], {ptr[s_]}")
A(f"s_lshr_b32 s{sR}, s2, 3")
A("v_lshrrev_b32 v1, 6, v0")
A("v_and_b32 v0, 63, v0")
A(f"v_readfirstlane_b32 s{sW}, v1")
A("v_lshlrev_b32 v6, 4, v0")
if not opt.nocodepf:
    A(f"s_cmp_lg_u32 s{sW}, 7")
    A("s_cbranch_scc1 L_nopf")
    A("s_getpc_b64 s[92:93]")
    A.lab("L_pc")
    A(f"s_lshl_b32 s90, s{sR}, 10")
    A("v_add_u32 v250, s90, v6")
    A("s_mov_b32 s94, L_codeend-L_pc-16")
    A("v_mov_b32 v251, s93")
    A("v_cmp_gt_u32 s[96:97], s94, v250")
    A("v_add_co_u32 v250, vcc, s92, v250")
    A("s_nop 1")
    A("v_addc_co_u32 v251, vcc, 0, v251, vcc")
    A("s_and_saveexec_b64 s[94:95], s[96:97]")
    A("s_cbranch_execz L_pfx")
    A("global_load_dwordx4 v[252:255], v[250:251], off")
    A.lab("L_pfx")
    A("s_mov_b64 exec, s[94:95]")
    A.lab("L_nopf")
for s_ in (S_WQ, S_X, S_CKV, S_WUK, S_WS):
    A(f"s_mov_b32 s{s_+2}, {size[s_]}")
    A(f"s_mov_b32 s{s_+3}, 0x00020000")
A(f"s_and_b32 s{sX}, s2, 7")
A(f"s_mov_b32 s{sPLO}, 0x05040100")
A(f"s_mov_b32 s{sPHI}, 0x07060302")
A(f"s_mov_b32 s{sCNT}, 0")
A(f"s_mov_b32 s{sFAST}, 0")
A(f"s_and_b32 s78, s{sR}, 3")
if opt.hxor:
    A(f"s_xor_b32 s78, s78, {opt.hxor}")
A(f"s_lshl_b32 s{sH}, s{sX}, 2")
A(f"s_add_u32 s{sH}, s{sH}, s78")
A(f"s_lshl_b32 s88, s{sH}, 8")
A("v_lshrrev_b32 v1, 4, v0")
A("v_and_b32 v2, 15, v0")
A("v_bfe_u32 v3, v0, 2, 2")
A("v_and_b32 v4, 3, v0")
A("v_lshrrev_b32 v5, 2, v0")
A("v_lshlrev_b32 v7, 6, v1")
A("v_lshl_add_u32 v7, v4, 4, v7")
A(f"s_bfe_u32 s79, s{sR}, 0x20002")
A("s_lshl_b32 s80, s79, 22")
A(f"s_lshl_b32 s81, s{sH}, 17")
A("s_add_u32 s80, s80, s81")
A(f"s_xor_b32 s{sTL}, s{sW}, 4")
A(f"s_cmp_lt_u32 s{sR}, 16")
A(f"s_cselect_b32 s{sTL}, s{sTL}, s{sW}")
if opt.ilv:
    A(f"s_and_b32 s81, s{sTL}, 4")
    A("s_lshl_b32 s81, s81, 4")
    A(f"s_and_b32 s90, s{sTL}, 3")
    A("s_add_u32 s81, s81, s90")
    A("s_lshl_b32 s90, s81, 10")
    A("s_add_u32 s80, s80, s90")
    A(f"s_mul_i32 s81, s81, {ROWB}")
else:
    A(f"s_lshl_b32 s81, s{sTL}, 14")
    A("s_add_u32 s80, s80, s81")
    A(f"s_mul_i32 s81, s{sTL}, {16*ROWB}")
A("s_mul_i32 s87, s79, 160")
A(f"s_lshl_b32 s90, s{sW}, 5")
A("s_add_u32 s87, s87, s90")
A("s_lshl_b32 s89, s87, 13")
A("s_add_u32 s89, s89, s88")
A("v_lshlrev_b32 v9, 16, v1")
A("v_lshl_add_u32 v9, v2, 4, v9")
A("v_lshl_add_u32 v10, v3, 15, v7")
A("s_lshl_b32 s91, s79, 7")
A(f"s_and_b32 s90, s{sW}, 3")
A("s_lshl_b32 s90, s90, 5")
A("s_add_u32 s91, s91, s90")
A("s_lshl_b32 s91, s91, 13")
A("s_add_u32 s91, s91, s88")
A(f"s_cmp_lt_u32 s{sR}, 16")
A.stamp(1, 8)
A("s_waitcnt lgkmcnt(0)")
A.stamp(2, 8)
A(f"s_load_dwordx2 s[82:83], s[{S_WS}:{S_WS+1}], {W_EPOCH}")
A("s_cbranch_scc0 L_frontB")


def xt_publish(t):
    A("s_getreg_b32 s84, hwreg(HW_REG_XCC_ID)")
    A("s_and_b32 s84, s84, 15")
    A(f"s_lshl_b32 s85, s{sX}, 9")
    A(f"s_add_u32 s85, s85, {W_XT}")
    A(f"s_lshl_b32 s86, s{sR}, 4")
    A(f"v_mov_b32 v{t}, s84")
    A(f"v_mov_b32 v{t+1}, 0")
    A(f"v_mov_b32 v{t+2}, s{sT0}")
    A(f"v_mov_b32 v{t+3}, s{sT1}")
    A("v_mov_b32 v12, s86")
    A("s_mov_b64 exec, 1")
    A(f"buffer_store_dwordx4 v[{t}:{t+3}], v12, {srd(S_WS)}, s85 offen sc1")
    execall()


def uk_loads(ts, dst=None):
    for t in ts:
        A(f"s_add_u32 s90, s91, {(16*(t>>2) + (t&3))*8192}")
        d = dst if dst is not None else 208 + 4 * t
        A(f"buffer_load_dwordx4 v[{d}:{d+3}], v10, {srd(S_WUK)}, s90 offen {opt.pq}")


A(f"s_cmp_gt_u32 s{sW}, 3")
A("s_cbranch_scc1 L_notS1")
RAW = 16
UK = 48
XA = 208


def wq_issue(j):
    for i in range(8):
        d = RAW + 32 * (j & 3) + 4 * i
        A(f"buffer_load_dwordx4 v[{d}:{d+3}], v9, {srd(S_WQ)}, s89 offen {opt.pq}")
        if i < 7:
            A("s_add_u32 s89, s89, 8192")
        if j == 0 and i == 3:
            A.stamp(3, 8)
            A("s_barrier")
            A.stamp(4, 8)
    if j < 4:
        A(f"s_add_u32 s89, s89, {(128-7)*8192}")
        A(f"s_sub_u32 s90, s89, {640*8192}")
        A(f"s_cmp_ge_u32 s89, {640*8192}")
        A("s_cselect_b32 s89, s90, s89")


def wq_proc(j):
    rw = RAW + 32 * (j & 3)
    xa = f"v[{XA+4*j}:{XA+4*j+3}]"
    for jj in range(8):
        sel = sPHI if jj & 1 else sPLO
        o = 176 + 4 * jj
        for p in range(4):
            A(f"v_perm_b32 v{o+p}, v{rw+4*(2*p+1)+(jj>>1)}, v{rw+4*(2*p)+(jj>>1)}, s{sel}")
        if jj >= 1:
            j1 = jj - 1
            c = "0" if j == 0 else f"v[{144+4*j1}:{147+4*j1}]"
            A(f"v_mfma_f32_16x16x32_bf16 v[{144+4*j1}:{147+4*j1}], {xa}, v[{176+4*j1}:{179+4*j1}], {c}")
    A("s_nop 0")
    c = "0" if j == 0 else "v[172:175]"
    A(f"v_mfma_f32_16x16x32_bf16 v[172:175], {xa}, v[204:207], {c}")


wq_issue(0)
wq_issue(1)
wq_issue(2)
A("v_mul_u32_u24 v8, 1296, v3")
A("v_lshl_add_u32 v8, v1, 4, v8")
A(f"v_add_u32 v8, {L_XN}, v8")
A("s_barrier")
for j in range(5):
    A("s_lshl_b32 s90, s87, 1")
    A("v_add_u32 v11, s90, v8")
    A(f"ds_read_b128 v[{XA+4*j}:{XA+4*j+3}], v11")
    if j < 4:
        A("s_add_u32 s87, s87, 128")
        A("s_sub_u32 s90, s87, 640")
        A("s_cmp_ge_u32 s87, 640")
        A("s_cselect_b32 s87, s90, s87")
wq_issue(3)
tag_setup()
A("s_waitcnt vmcnt(24)")
A.stamp(9, 7)
wq_proc(0)
wq_issue(4)
A("s_waitcnt vmcnt(24)")
wq_proc(1)
for t in range(8):
    uk_loads([t], UK + 4 * t)
A("s_barrier")
A("v_mul_u32_u24 v12, 576, v1")
A("v_lshl_add_u32 v12, v2, 5, v12")
A("v_lshl_add_u32 v12, v3, 4, v12")
A(f"s_mul_i32 s90, s{sW}, 2304")
A(f"s_add_u32 s90, s90, {L_QP}")
A("v_add_u32 v12, s90, v12")
A("s_waitcnt vmcnt(24)")
wq_proc(2)
A("v_mul_u32_u24 v11, 576, v4")
A("v_lshl_add_u32 v11, v5, 5, v11")
A("v_lshl_add_u32 v11, v1, 4, v11")
A(f"v_add_u32 v11, {L_QP}, v11")
A("v_bfe_u32 v8, v0, 2, 1")
A("v_bfe_u32 v13, v0, 3, 2")
A("v_lshlrev_b32 v14, 4, v4")
A("v_lshl_add_u32 v14, v8, 2, v14")
A("v_add_u32 v14, v14, v13")
A("v_lshlrev_b32 v14, 2, v14")
A("v_and_b32 v15, 7, v0")
A("v_lshlrev_b32 v15, 4, v15")
A("v_lshl_add_u32 v15, v13, 16, v15")
A(f"s_lshl_b32 s89, s{sH}, 11")
A("s_lshl_b32 s90, s79, 9")
A("s_add_u32 s89, s89, s90")
A(f"s_lshl_b32 s90, s{sW}, 7")
A("s_add_u32 s89, s89, s90")
A(f"s_add_u32 s89, s89, {W_H2}")
A("s_waitcnt vmcnt(16)")
wq_proc(3)
A("s_waitcnt vmcnt(8)")
A.stamp(1, 0)
A.stamp(1, 7)
wq_proc(4)
A("s_nop 4")
for jj in range(0, 8, 2):
    A(f"ds_write2_b32 v12, v{144+4*jj}, v{148+4*jj} offset0:{jj} offset1:{jj+1}")
A("s_waitcnt lgkmcnt(0)")
A.stamp(2)
A("s_barrier")
for s_ in range(4):
    A(f"ds_read_b128 v[{80+8*s_}:{83+8*s_}], v11 offset:{2304*s_}")
    A(f"ds_read_b128 v[{84+8*s_}:{87+8*s_}], v11 offset:{2304*s_+16}")
A(f"v_mov_b32 v22, s{sT0}")
A(f"v_mov_b32 v23, s{sT1}")
A("s_waitcnt lgkmcnt(4)")
for i in range(4):
    A(f"v_pk_add_f32 v[{80+2*i}:{81+2*i}], v[{80+2*i}:{81+2*i}], v[{88+2*i}:{89+2*i}]")
A("s_waitcnt lgkmcnt(0)")
for i in range(4):
    A(f"v_pk_add_f32 v[{96+2*i}:{97+2*i}], v[{96+2*i}:{97+2*i}], v[{104+2*i}:{105+2*i}]")
for i in range(4):
    A(f"v_pk_add_f32 v[{80+2*i}:{81+2*i}], v[{80+2*i}:{81+2*i}], v[{96+2*i}:{97+2*i}]")
for i in range(4):
    A(f"v_cvt_pk_bf16_f32 v{16+i}, v{80+2*i}, v{81+2*i}")
A("s_waitcnt vmcnt(0)")
A.stamp(3)
A("s_nop 0")
D = 144
for t in range(8):
    A(f"v_mfma_f32_16x16x32_bf16 v[{D+4*t}:{D+3+4*t}], v[{UK+4*t}:{UK+3+4*t}], v[16:19], 0")
A("s_nop 0")
for t in range(4):
    A(f"v_add_f32_dpp v{24+t}, v{D+4*t+1}, v{D+4*t} row_shl:4 row_mask:0xf bank_mask:0x1")
for t in range(4):
    A(f"v_add_f32_dpp v{24+t}, v{D+4*t+2}, v{24+t} row_shl:8 row_mask:0xf bank_mask:0x1")
for t in range(4):
    A(f"v_add_f32_dpp v{24+t}, v{D+4*t+3}, v{24+t} row_shl:12 row_mask:0xf bank_mask:0x1")
for t in range(4):
    d = D + 16 + 4 * t
    A(f"v_add_f32_dpp v{24+t}, v{d}, v{d+1} row_shr:4 row_mask:0xf bank_mask:0x2")
for t in range(4):
    A(f"v_add_f32_dpp v{24+t}, v{D+16+4*t+2}, v{24+t} row_shl:4 row_mask:0xf bank_mask:0x2")
for t in range(4):
    A(f"v_add_f32_dpp v{24+t}, v{D+16+4*t+3}, v{24+t} row_shl:8 row_mask:0xf bank_mask:0x2")
A("v_cvt_pk_bf16_f32 v28, v24, v25")
A("v_cvt_pk_bf16_f32 v29, v26, v27")
A("ds_bpermute_b32 v20, v14, v28")
A("ds_bpermute_b32 v21, v14, v29")
execmask(0xFFFFFFFF)
A("s_waitcnt lgkmcnt(0)")
A(f"buffer_store_dwordx4 v[20:23], v15, {srd(S_WS)}, s89 offen sc1")
execall()
A.stamp(4)
A("s_barrier")
ckv_dma(range(15, -1, -1))
A("s_branch L_qgather")

A.lab("L_notS1")
A(f"s_cmp_eq_u32 s{sW}, 5")
A("s_cbranch_scc0 L_w67")
A("v_mul_u32_u24 v8, 1280, v1")
A("v_lshl_add_u32 v8, v2, 4, v8")
for i in range(5):
    A(f"buffer_load_dwordx4 v[{16+4*i}:{19+4*i}], v8, {srd(S_X)}, 0 offen offset:{256*i}")
A("s_barrier")
A("v_mov_b32 v38, 0x3f803f80")
A("v_mov_b32 v36, 0")
A("v_mov_b32 v37, 0")
A("v_mul_u32_u24 v8, 1296, v1")
A("v_lshl_add_u32 v8, v2, 4, v8")
A(f"v_add_u32 v8, {L_XN}, v8")
A("s_waitcnt vmcnt(0)")
for i in range(20):
    A(f"v_dot2_f32_bf16 v36, v{16+i}, v38, v36")
    A(f"v_dot2_f32_bf16 v37, v{16+i}, v{16+i}, v37")
A("s_nop 1")
rowall("v_add_f32", [36, 37])
A(f"v_mul_f32 v36, {f32(1/640)}, v36")
A(f"v_mul_f32 v37, {f32(1/640)}, v37")
A("v_fma_f32 v37, -v36, v36, v37")
A("v_max_f32 v37, 0, v37")
A(f"v_add_f32 v37, {f32(1e-5)}, v37")
A("v_rsq_f32 v38, v37")
A("s_nop 0")
A("v_mul_f32 v36, -v36, v38")
for i in range(20):
    unpack(40, 41, 16 + i)
    A("v_pk_fma_f32 v[40:41], v[40:41], v[38:39], v[36:37] op_sel_hi:[1,0,0]")
    A(f"v_cvt_pk_bf16_f32 v{16+i}, v40, v41")
for i in range(5):
    A(f"ds_write_b128 v8, v[{16+4*i}:{19+4*i}] offset:{256*i}")
A("s_branch L_w567")
A.lab("L_w67")
A("s_barrier")
A.lab("L_w567")
tag_setup()
A("s_barrier")
A(f"s_cmp_eq_u32 s{sW}, 7")
A("s_cbranch_scc0 L_w56b")
xt_publish(20)
A.lab("L_w56b")
A("s_barrier")
ckv_dma(range(0, opt.b1))
A("s_barrier")
ckv_dma(range(opt.b1, opt.b1 + opt.b2))
A("s_barrier")
ckv_dma(range(opt.b1 + opt.b2, 16))
A("s_branch L_qgather")

A.lab("L_frontB")
A(f"s_and_b32 s92, s{sR}, 15")
A(f"s_lshl_b32 s93, s{sX}, 10")
A(f"s_cmp_gt_u32 s{sW}, 4")
A("s_cbranch_scc1 L_B2")
A("s_mul_i32 s89, s92, 5")
A(f"s_add_u32 s89, s89, s{sW}")
A("s_lshl_b32 s89, s89, 16")
A("s_add_u32 s89, s89, s93")
A("s_add_u32 s89, s89, 32768")
for i in range(4):
    A(f"buffer_load_dwordx4 v[16:19], v6, {srd(S_WQ)}, s89 offen {opt.pq}")
    if i < 3:
        A("s_add_u32 s89, s89, 8192")
A.lab("L_B2")
A.stamp(3, 8)
A("s_lshl_b32 s91, s92, 3")
A(f"s_add_u32 s91, s91, s{sW}")
A("s_lshl_b32 s91, s91, 15")
A("s_add_u32 s91, s91, s93")
A("s_barrier")
for i in range(opt.nuk):
    A(f"buffer_load_dwordx4 v[16:19], v6, {srd(S_WUK)}, s91 offen {opt.pq}")
    if i < 3:
        A("s_add_u32 s91, s91, 8192")
A.lab("L_B3")
A("s_barrier")
A.stamp(4, 8)
if opt.grp == 8:
    A("s_waitcnt vmcnt(3)")
    A.stamp(5, 8)
ckv_dma(range(16), opt.kb)
tag_setup()
A(f"s_cmp_lg_u32 s{sW}, 0")
A("s_cbranch_scc1 L_qgather")
xt_publish(40)
A(f"s_lshl_b32 s89, s{sH}, 2")
A("s_add_u32 s89, s89, s79")
A("s_lshl_b32 s89, s89, 11")
A(f"s_add_u32 s89, s89, {W_H3B}")
A(f"buffer_load_dwordx4 v[16:19], v6, {srd(S_WS)}, s89 offen sc1")
A(f"buffer_load_dwordx4 v[16:19], v6, {srd(S_WS)}, s89 offen offset:1024 sc1")
A(f"s_and_b32 s90, s{sR}, 15")
A("s_lshl_b32 s90, s90, 10")
A(f"s_lshl_b32 s89, s{sX}, 14")
A("s_add_u32 s89, s89, s90")
A(f"s_add_u32 s89, s89, {W_H4}")
A(f"buffer_load_dwordx4 v[16:19], v6, {srd(S_WS)}, s89 offen sc1")
A(f"s_mul_i32 s89, s{sX}, 10240")
A("s_min_u32 s90, s90, 9216")
A("s_add_u32 s89, s89, s90")
A(f"s_add_u32 s89, s89, {W_H5C}")
A(f"buffer_load_dwordx4 v[16:19], v6, {srd(S_WS)}, s89 offen sc1")
A("s_branch L_qgather")

A.lab("L_qgather")
for s_ in (S_WUV, S_WO, S_W1, S_W2, S_OUT):
    A(f"s_load_dwordx2 s[{s_}:{s_+1}], s[0:1], {ptr[s_]}")
    A(f"s_mov_b32 s{s_+2}, {size[s_]}")
    A(f"s_mov_b32 s{s_+3}, 0x00020000")
A("s_lshl_b32 s89, s79, 5")
A(f"s_and_b32 s90, s{sR}, 16")
A("s_add_u32 s89, s89, s90")
A(f"s_lshl_b32 s90, s{sW}, 1")
A("s_add_u32 s89, s89, s90")
A("s_lshl_b32 s89, s89, 11")
A(f"s_add_u32 s89, s89, {W_H2}")
A(f"s_lshl_b32 s85, s{sX}, 9")
A(f"s_add_u32 s85, s85, {W_XT}")
A("v_lshlrev_b32 v248, 4, v2")
A(f"v_add_u32 v248, {L_MX}, v248")
A(f"s_lshl_b32 s90, s{sW}, 2")
A("v_add_u32 v249, s90, v248")
A(f"s_sub_u32 s94, 15, s{sR}")
A(f"s_cmp_eq_u32 s{sR}, 31")
A("s_cselect_b32 s94, 6, s94")
A(f"s_cmp_eq_u32 s{sR}, 9")
A("s_cselect_b32 s94, 7, s94")
A("s_cmp_lt_u32 s94, 7")
A(f"s_mul_i32 s90, s{sX}, 7")
A("s_cselect_b32 s94, s94, 99")
A("s_add_u32 s100, s94, s90")
A(f"s_cmp_lt_u32 s{sW}, 5")
A("s_cselect_b32 s101, s100, 99")
A("v_lshrrev_b32 v10, 3, v0")
A("v_and_b32 v245, 0x70, v6")
A("v_mul_u32_u24 v244, 10240, v10")
A("v_add_u32 v244, v244, v245")
A("v_lshl_add_u32 v10, v10, 13, v245")
A("v_mul_u32_u24 v247, 10240, v1")
A("v_lshl_add_u32 v247, v2, 4, v247")
A(f"s_and_b32 s93, s{sR}, 8")
A("s_lshl_b32 s93, s93, 5")
A(f"s_and_b32 s90, s{sW}, 2")
A("s_lshl_b32 s90, s90, 6")
A("s_add_u32 s93, s93, s90")
A(f"s_and_b32 s90, s{sW}, 4")
A("s_lshl_b32 s90, s90, 4")
A("s_add_u32 s93, s93, s90")
A(f"s_and_b32 s90, s{sW}, 1")
A("s_lshl_b32 s90, s90, 3")
A("s_add_u32 s93, s93, s90")
A("s_lshl_b32 s93, s93, 13")
A("s_add_u32 s93, s93, s88")
A(f"s_and_b32 s90, s{sR}, 4")
A("s_lshl_b32 s90, s90, 5")
A("s_add_u32 s93, s93, s90")
A(f"s_and_b32 s82, s{sT0}, 0x3fffffff")
A(f"s_not_b32 s90, s{sT0}")
A("s_lshl_b32 s90, s90, 2")
A("s_and_b32 s90, s90, 0xc0000000")
A("s_or_b32 s82, s82, s90")
A("s_mov_b32 s83, 0x00010001")


def sym(dst, sh):
    A(f"v_lshrrev_b32 v{dst}, v{sh}, v246")
    A(f"v_lshlrev_b32 v15, 15, v{dst}")
    A(f"v_and_b32 v{dst}, 1, v{dst}")
    A(f"v_and_or_b32 v{dst}, v15, s84, v{dst}")


A("s_waitcnt vmcnt(16)")
A("v_mov_b32 v246, s82")
A("s_mov_b32 s84, 0x10000")
A("v_not_b32 v246, v246")
A("v_lshlrev_b32 v245, 3, v4")
for i in range(4):
    sym(252 + i, 245)
    if i < 3:
        A("v_add_u32 v245, 2, v245")
if opt.tlb:
    A(f"s_cmp_eq_u32 s{sTL}, 2")
    A("s_cbranch_scc0 L_ntl")
    A("v_lshlrev_b32 v15, 20, v0")
    A("v_add_u32 v15, 0xf8000, v15")
    A("s_waitcnt lgkmcnt(0)")
    A("s_mov_b64 exec, 0xff")
    A(f"buffer_load_dword v165, v15, {srd(S_WS)}, 0 offen")
    A("s_mov_b64 exec, 1")
    A(f"buffer_load_dword v165, v6, {srd(S_OUT)}, 0 offen")
    if opt.tlb > 1:
        A("s_mov_b64 exec, 0x1f")
        for sr in (S_WUV, S_WO, S_W1, S_W2):
            A(f"buffer_load_dword v165, v15, {srd(sr)}, 0 offen")
    execall()
    A.lab("L_ntl")
A.stamp(5, 7)
A("s_barrier")
ql = [f"buffer_load_dwordx4 v[{144+4*i}:{147+4*i}], v6, {srd(S_WS)}, s89 offen offset:{1024*i}" for i in range(4)]
qt = [146, 150, 154, 158]
for i in ql:
    A(i + " sc1")
A(f"v_mul_u32_u24 v12, {ROWB}, v2")
A("v_lshl_add_u32 v12, v1, 4, v12")
A(f"s_mul_i32 s90, s{sW}, {32*ROWB}")
A("v_add_u32 v11, s90, v12")
A(f"v_mul_u32_u24 v13, {ROWB}, v5")
A("v_lshl_add_u32 v13, v4, 3, v13")
A(f"s_and_b32 s94, s{sW}, 3")
A("s_lshl_b32 s90, s94, 8")
A("v_add_u32 v13, s90, v13")
A(f"v_add_u32 v14, {64*ROWB}, v13")
A("v_lshlrev_b32 v8, 3, v0")
A(f"s_mul_i32 s90, s{sW}, {2*ROWB}")
A(f"s_add_u32 s90, s90, {L_Q}")
A("v_add_u32 v8, s90, v8")
A(f"v_add_u32 v12, {L_Q}, v12")
A("s_waitcnt vmcnt(4) lgkmcnt(0)")
A.stamp(10, 7)
A("s_barrier")


def f_second(tag):
    if not opt.f2:
        return
    A(f"s_cmp_lt_u32 s{sR}, 16")
    A(f"s_cbranch_scc0 L_f2x{tag}")
    A("s_add_u32 s90, s91, 5120")
    A(f"s_cmp_lt_u32 s{sR}, 10")
    A(f"s_cbranch_scc0 L_f2b{tag}")
    for i in range(4):
        A(f"buffer_load_dwordx4 v[{192+4*i}:{195+4*i}], v244, {srd(S_WO)}, s90 offen offset:{1280*i} {opt.po}")
    A(f"s_branch L_f2x{tag}")
    A.lab(f"L_f2b{tag}")
    for i in range(4):
        A(f"buffer_load_dwordx4 v[{192+4*i}:{195+4*i}], v247, {srd(S_W2)}, s90 offen offset:{1280*i} {opt.po}")
    A.lab(f"L_f2x{tag}")


def s4_setup():
    A("v_and_b32 v76, 0x1ff, v6")
    poll([f"buffer_load_dwordx4 v[72:75], v76, {srd(S_WS)}, s85 offen"], [74])
    xt_decide(72)
    A("v_lshlrev_b32 v68, 11, v3")
    A("v_lshl_add_u32 v68, v1, 5, v68")
    A("v_and_b32 v69, 1, v0")
    A("v_lshl_add_u32 v68, v69, 4, v68")
    A(f"s_lshl_b32 s80, s{sH}, 13")
    A(f"s_and_b32 s90, s{sR}, 8")
    A("s_lshl_b32 s90, s90, 7")
    A("s_add_u32 s80, s80, s90")
    A(f"s_lshl_b32 s90, s{sW}, 7")
    A("s_add_u32 s80, s80, s90")
    A(f"s_add_u32 s80, s80, {W_H3B}")
    A("v_and_b32 v70, 7, v0")
    A("v_lshlrev_b32 v70, 5, v70")
    A("v_lshl_add_u32 v70, v1, 8, v70")
    A(f"s_lshl_b32 s90, s{sW}, 10")
    A(f"s_add_u32 s90, s90, {L_RED}")
    A("v_add_u32 v70, s90, v70")
    A("v_lshlrev_b32 v71, 11, v1")
    A("v_lshl_add_u32 v71, v2, 4, v71")
    A(f"s_lshl_b32 s81, s{sX}, 14")
    A(f"s_and_b32 s90, s{sR}, 8")
    A("s_lshl_b32 s90, s90, 10")
    A("s_add_u32 s81, s81, s90")
    A(f"s_and_b32 s90, s{sH}, 3")
    A("s_lshl_b32 s90, s90, 9")
    A("s_add_u32 s81, s81, s90")
    A(f"s_and_b32 s90, s{sR}, 4")
    A("s_lshl_b32 s90, s90, 6")
    A("s_add_u32 s81, s81, s90")
    A(f"s_add_u32 s81, s81, {W_H4}")
    transpose(80, [212, 216, 220, 224], 4)


def uv_loads():
    for e in range(4):
        A(f"buffer_load_dwordx4 v[{212+4*e}:{215+4*e}], v10, {srd(S_WUV)}, s93 offen {opt.po}")
        if e < 3:
            A(f"s_add_u32 s93, s93, {16*8192}")


A(f"s_cmp_lt_u32 s{sR}, 16")
A("s_cbranch_scc1 L_tlF")
A(f"s_cmp_lt_u32 s{sW}, {opt.uvw}")
A("s_cbranch_scc1 L_tlD")
uv_loads()
A("s_branch L_tlD")
A.lab("L_tlF")
A(f"s_cmp_lt_u32 s{sR}, 10")
A("s_cbranch_scc0 L_tlF2")
A(f"s_lshl_b32 s91, s{sX}, 3")
A(f"s_add_u32 s91, s91, s{sW}")
A(f"s_mul_i32 s91, s91, {64*1280}")
A(f"s_lshl_b32 s90, s{sR}, 7")
A("s_add_u32 s91, s91, s90")
for i in range(4):
    A(f"buffer_load_dwordx4 v[{212+4*i}:{215+4*i}], v244, {srd(S_WO)}, s91 offen offset:{1280*i} {opt.po}")
A("s_branch L_tlD")
A.lab("L_tlF2")
A(f"s_mul_i32 s91, s101, {32*1280}")
A(f"s_lshl_b32 s90, s{sW}, 8")
A("s_add_u32 s91, s91, s90")
for i in range(4):
    A(f"buffer_load_dwordx4 v[{212+4*i}:{215+4*i}], v247, {srd(S_W2)}, s91 offen offset:{1280*i} {opt.po}")
A.lab("L_tlD")
A(f"s_cmp_lt_u32 s{sW}, 4")
A("s_cbranch_scc0 L_opV")
for tl in range(2):
    for ks in range(16):
        d = 16 + 64 * tl + 4 * ks
        A(f"ds_read_b128 v[{d}:{d+3}], v11 offset:{16*ROWB*tl + 64*ks}")
A("s_branch L_opD")
A.lab("L_opV")
trl = []
for ks in range(4):
    for t in range(8):
        for hf in range(2):
            base = 14 if ks >= 2 else 13
            off = ((ks & 1) * 32 + 16 * hf) * ROWB + 32 * t
            d = 16 + (ks * 8 + t) * 4 + 2 * hf
            trl.append(f"ds_read_b64_tr_b16 v[{d}:{d+1}], v{base} offset:{off}")
for i in trl[:opt.nv0]:
    A(i)
A.lab("L_opD")
A(f"s_cmp_lt_u32 s{sR}, 16")
A("s_cbranch_scc1 L_qw4")
A(f"s_cmp_lt_u32 s{sW}, {opt.uvw}")
A("s_cbranch_scc0 L_qw4")
A("s_waitcnt vmcnt(0)")
A.lab("L_qw4")
A("s_waitcnt vmcnt(4)")
for k, t in enumerate(qt):
    if k == 0:
        A(f"v_cmp_ne_u64 vcc, s[{sT0}:{sT1}], v[{t}:{t+1}]")
    else:
        A(f"v_cmp_ne_u64 s[98:99], s[{sT0}:{sT1}], v[{t}:{t+1}]")
        A("s_or_b64 vcc, vcc, s[98:99]")
A("s_cbranch_vccz L_qok")
poll(ql, qt, sleep=opt.qsleep)
A.lab("L_qok")
A.stamp(6)
for i in range(4):
    A(f"ds_write_b64 v8, v[{144+4*i}:{145+4*i}] offset:{(i>>1)*ROWB + (i&1)*512}")
A("s_waitcnt lgkmcnt(0)")
A("s_barrier")
A(f"v_mov_b32 v234, s{sT0}")
A(f"v_mov_b32 v235, s{sT1}")
A(f"v_mov_b32 v238, s{sT0}")
A(f"v_mov_b32 v239, s{sT1}")
A(f"s_cmp_lt_u32 s{sW}, 4")
A("s_cbranch_scc0 L_V")
for ks in range(16):
    A(f"ds_read_b128 v[{144+4*ks}:{147+4*ks}], v12 offset:{64*ks}")
A(f"s_cmp_lt_u32 s{sR}, 16")
A("s_cbranch_scc1 L_nouv")
if opt.uvw:
    uv_loads()
A.lab("L_nouv")
S0, S1 = 228, 208
for ks in range(16):
    A(f"s_waitcnt lgkmcnt({15-ks})")
    for tl, S in ((0, S0), (1, S1)):
        c = "0" if ks == 0 else f"v[{S}:{S+3}]"
        d = 16 + 64 * tl + 4 * ks
        A(f"v_mfma_f32_16x16x32_bf16 v[{S}:{S+3}], v[{d}:{d+3}], v[{144+4*ks}:{147+4*ks}], {c}")
if opt.f2 == 1:
    f_second("k")
A(f"s_lshl_b32 s90, s{sW}, 10")
A(f"s_add_u32 s90, s90, {L_P}")
A("v_add_u32 v12, s90, v6")
A("s_nop 3")
A.stamp(7)
A(f"v_max3_f32 v232, v{S0}, v{S0+1}, v{S0+2}")
A("s_nop 0")
A(f"v_max3_f32 v233, v{S0+3}, v{S1}, v{S1+1}")
A(f"v_max3_f32 v232, v232, v{S1+2}, v{S1+3}")
A("v_max_f32 v232, v232, v233")
for sw in ("v_permlane16_swap_b32", "v_permlane32_swap_b32"):
    A("v_mov_b32 v233, v232")
    A("s_nop 1")
    A(f"{sw} v232, v233")
    A("s_nop 0")
    A("v_max_f32 v232, v232, v233")
A("ds_write_b32 v249, v232")
A("s_waitcnt lgkmcnt(0)")
A("s_barrier")
A.stamp(1, 4)
A("ds_read_b128 v[240:243], v248")
A("s_waitcnt lgkmcnt(0)")
A("v_max3_f32 v232, v240, v241, v242")
A("v_max_f32 v232, v232, v243")
SC = (128 ** -0.5) * math.log2(math.e)
A(f"v_mul_f32 v232, {f32(SC)}, v232")
A(f"s_mov_b32 s90, {f32(SC)}")
for S in (S0, S1):
    for i in range(4):
        A(f"v_fma_f32 v{S+i}, v{S+i}, s90, -v232")
for S in (S0, S1):
    for i in range(4):
        A(f"v_exp_f32 v{S+i}, v{S+i}")
A(f"v_cvt_pk_bf16_f32 v240, v{S0}, v{S0+1}")
A(f"v_cvt_pk_bf16_f32 v241, v{S0+2}, v{S0+3}")
A(f"v_cvt_pk_bf16_f32 v242, v{S1}, v{S1+1}")
A(f"v_cvt_pk_bf16_f32 v243, v{S1+2}, v{S1+3}")
A("ds_write_b128 v12, v[240:243]")
A("s_waitcnt lgkmcnt(0)")
A("s_barrier")
A(f"s_cmp_lg_u32 s{sW}, {opt.stw}")
A("s_cbranch_scc1 L_cbK")
A(f"v_add_u32 v11, {L_P}, v6")
for ks in range(4):
    A(f"ds_read_b128 v[{144+4*ks}:{147+4*ks}], v11 offset:{1024*ks}")
for i in range(4):
    A(f"v_mov_b32 v{240+i}, 0x3f803f80")
A("s_lshl_b32 s95, s79, 5")
A(f"s_and_b32 s90, s{sR}, 16")
A("s_add_u32 s95, s95, s90")
A("s_lshl_b32 s95, s95, 1")
A(f"s_add_u32 s95, s95, s{sH}")
A("s_lshl_b32 s95, s95, 8")
A(f"s_add_u32 s95, s95, {W_STX}")
for ks in range(4):
    A(f"s_waitcnt lgkmcnt({3-ks})")
    c = "0" if ks == 0 else "v[228:231]"
    A(f"v_mfma_f32_16x16x32_bf16 v[228:231], v[240:243], v[{144+4*ks}:{147+4*ks}], {c}")
A("s_nop 7")
A("v_mov_b32 v233, v228")
execmask(0xFFFF)
A(f"buffer_store_dwordx4 v[232:235], v6, {srd(S_WS)}, s95 offen sc1")
execall()
A("s_branch L_cbK")

A.lab("L_V")
if opt.f2 in (1, 2):
    f_second("v")
if opt.vdelay:
    A(f"s_sleep {opt.vdelay}")
for i in trl[opt.nv0:]:
    A(i)
A("v_lshlrev_b32 v13, 17, v1")
A("v_lshl_add_u32 v13, v2, 4, v13")
A("s_lshl_b32 s93, s79, 5")
A(f"s_and_b32 s90, s{sR}, 16")
A("s_add_u32 s93, s93, s90")
A("s_lshl_b32 s93, s93, 15")
A(f"s_lshl_b32 s90, s{sH}, 10")
A("s_add_u32 s93, s93, s90")
A("s_lshl_b32 s90, s94, 8")
A("s_add_u32 s93, s93, s90")
A(f"s_add_u32 s93, s93, {W_H3A}")
A(f"v_add_u32 v11, {L_P}, v6")
for i in range(4):
    A(f"v_xor_b32 v{208+i}, s83, v{252+i}")
A("s_barrier")
A("s_waitcnt lgkmcnt(0)")
A("s_barrier")
A.stamp(2, 4)
for ks in range(4):
    A(f"ds_read_b128 v[{144+4*ks}:{147+4*ks}], v11 offset:{1024*ks}")
for ks in range(4):
    A(f"s_waitcnt lgkmcnt({3-ks})")
    for t in range(8):
        c = "0" if ks == 0 else f"v[{160+4*t}:{163+4*t}]"
        bb = 16 + (ks * 8 + t) * 4
        A(f"v_mfma_f32_16x16x32_bf16 v[{160+4*t}:{163+4*t}], v[{144+4*ks}:{147+4*ks}], v[{bb}:{bb+3}], {c}")
A("s_nop 5")
A.stamp(3, 4)
for r_ in range(4):
    for i in range(4):
        A(f"v_perm_b32 v{16+4*r_+i}, v{164+8*i+r_}, v{160+8*i+r_}, s{sPHI}")
    for i in range(4):
        A(f"v_bfi_b32 v{16+4*r_+i}, s83, v{208+i}, v{16+4*r_+i}")
    A(f"buffer_store_dwordx4 v[{16+4*r_}:{19+4*r_}], v13, {srd(S_WS)}, s93 offen sc1")
    if r_ < 3:
        A("s_add_u32 s93, s93, 32768")
A.stamp(8)
if opt.ackn >= 0:
    A(f"s_waitcnt vmcnt({opt.ackn})")
if opt.bs:
    A("s_barrier")
s4_setup()
A("s_barrier")
A("s_branch L_cbd")

L_CB = L_OS
L_CM = L_OS + 8192
A.lab("L_cbK")
A("s_barrier")
s4_setup()
A("v_lshrrev_b32 v13, 5, v0")
A("v_and_b32 v9, 0x1ff, v6")
A("v_lshl_add_u32 v9, v13, 10, v9")
A("s_lshl_b32 s96, s79, 5")
A(f"s_add_u32 s96, s96, s{sH}")
A("s_lshl_b32 s96, s96, 15")
A(f"s_lshl_b32 s90, s{sW}, 13")
A("s_add_u32 s96, s96, s90")
A(f"s_and_b32 s90, s{sR}, 16")
A("s_lshl_b32 s90, s90, 5")
A("s_add_u32 s96, s96, s90")
A(f"s_add_u32 s96, s96, {W_H3A}")
A("s_add_u32 s92, s96, 4096")
A("v_lshl_add_u32 v12, v4, 1, v13")
A("v_lshlrev_b32 v12, 8, v12")
A("s_lshl_b32 s86, s79, 5")
A(f"s_and_b32 s90, s{sH}, 16")
A("s_add_u32 s86, s86, s90")
A("s_lshl_b32 s86, s86, 9")
A(f"s_lshl_b32 s90, s{sW}, 11")
A("s_add_u32 s86, s86, s90")
A(f"s_and_b32 s90, s{sH}, 15")
A("s_lshl_b32 s90, s90, 4")
A("s_add_u32 s86, s86, s90")
A(f"s_add_u32 s86, s86, {W_STX}")
A(f"s_lshl_b32 s90, s{sW}, 10")
A(f"s_add_u32 s90, s90, {L_CB}")
A("v_add_u32 v11, s90, v6")
A(f"s_lshl_b32 s90, s{sW}, 3")
A(f"s_add_u32 s90, s90, {L_CM}")
A("v_mov_b32 v8, s90")
A(f"v_add_u32 v65, {L_CB}, v6")
A(f"v_mov_b32 v66, {L_CM}")
A(f"s_lshl_b32 s93, s{sH}, 2")
A("s_add_u32 s93, s93, s79")
A("s_lshl_b32 s93, s93, 11")
A(f"s_and_b32 s90, s{sR}, 16")
A("s_lshl_b32 s90, s90, 6")
A("s_add_u32 s93, s93, s90")
A(f"s_add_u32 s93, s93, {W_H3B}")
for i in range(8):
    A(f"v_mov_b32 v{48+i}, 0")
A.stamp(6, 4)
bulk = [f"buffer_load_dwordx4 v[{32+4*i}:{35+4*i}], v9, {srd(S_WS)}, {'s96' if i < 2 else 's92'} offen offset:{2048*(i&1)} sc1" for i in range(4)]
stl = f"buffer_load_dwordx4 v[16:19], v12, {srd(S_WS)}, s86 offen"
if opt.spec:
    if opt.sd:
        A(f"s_sleep {opt.sd}")
    execmask(0x0000000F0000000F)
    A(stl + " sc1")
    execall()
    for i in bulk:
        A(i)
    A("s_waitcnt vmcnt(4)")
    execmask(0x0000000F0000000F)
    A(f"v_cmp_ne_u64 vcc, s[{sT0}:{sT1}], v[18:19]")
    A("s_cbranch_vccz L_stok")
    poll([stl], [18], sleep=opt.ssleep)
    if opt.bdelay:
        A(f"s_sleep {opt.bdelay}")
    A.lab("L_stok")
    execall()
else:
    execmask(0x0000000F0000000F)
    poll([stl], [18], sleep=opt.ssleep)
    execall()
    if opt.bdelay:
        A(f"s_sleep {opt.bdelay}")
    for i in bulk:
        A(i)
A.stamp(9, 4)
A.stamp(3, 0)


def all8(op, r_, t):
    for m in ("quad_perm:[1,0,3,2]", "quad_perm:[2,3,0,1]"):
        A("s_nop 1")
        A(f"{op}_dpp v{r_}, v{r_}, v{r_} {m} {DPPM}")
    A(f"v_mov_b32 v{t}, v{r_}")
    A("s_nop 1")
    A(f"v_permlane32_swap_b32 v{r_}, v{t}")
    A("s_nop 0")
    A(f"{op} v{r_}, v{r_}, v{t}")


A("v_mov_b32 v20, v16")
all8("v_max_f32", 20, 26)
A("v_sub_f32 v16, v16, v20")
A("v_exp_f32 v16, v16")
A("s_nop 0")
A("v_mul_f32 v21, v16, v17")
all8("v_add_f32", 21, 26)
A("s_mov_b64 exec, 1")
A("ds_write_b64 v8, v[20:21]")
execall()
A("v_mov_b32 v17, v16")
A("s_nop 1")
A("v_permlane16_swap_b32 v16, v17")
A("s_nop 1")
for i in range(4):
    A(f"v_mov_b32_dpp v{24+2*i}, v16 row_newbcast:{i} {DPPM}")


def take(i, lf):
    w_ = 32 + 4 * i
    for d in range(4):
        A(f"v_xor_b32 v{w_+d}, v{w_+d}, v{252+d}")
    A(f"v_bitop3_b32 v64, v{w_}, v{w_+1}, s83 bitop3:0x80")
    A(f"v_bitop3_b32 v64, v64, v{w_+2}, v{w_+3} bitop3:0x80")
    A("v_cmp_ne_u32 vcc, s83, v64")
    for d in range(4):
        unpack(56 + 2 * d, 57 + 2 * d, w_ + d)
    A(f"s_cbranch_vccnz {lf}")
    for d in range(4):
        A(f"v_pk_fma_f32 v[{48+2*d}:{49+2*d}], v[{56+2*d}:{57+2*d}], v[{24+2*i}:{25+2*i}], v[{48+2*d}:{49+2*d}] op_sel_hi:[1,0,1]")
    A(f"s_bitset0_b32 s94, {i}")
    A.lab(lf)


A("s_mov_b32 s94, 15")
for i in range(4):
    A(f"s_waitcnt vmcnt({3-i})")
    take(i, A.newlab("Ltk"))
A("s_cmp_eq_u32 s94, 0")
A("s_cbranch_scc1 L_bkx")
A.lab("L_bk0")
for i in range(4):
    l = A.newlab("Lrl")
    A(f"s_bitcmp1_b32 s94, {i}")
    A(f"s_cbranch_scc0 {l}")
    A(bulk[i])
    A.lab(l)
A(f"s_add_u32 s{sCNT}, s{sCNT}, 0x10000")
A(f"s_cmp_gt_u32 s{sCNT}, 0x7fff0000")
A("s_cbranch_scc1 L_end")
A("s_waitcnt vmcnt(0)")
for i in range(4):
    l = A.newlab("Ltk")
    A(f"s_bitcmp1_b32 s94, {i}")
    A(f"s_cbranch_scc0 {l}")
    take(i, l)
A("s_cmp_eq_u32 s94, 0")
A("s_cbranch_scc0 L_bk0")
A.lab("L_bkx")
A.stamp(10, 4)
A(f"s_lshr_b32 s97, s{sCNT}, 16")
A(f"s_and_b32 s{sCNT}, s{sCNT}, 0xffff")
for e in range(4):
    A(f"v_permlane32_swap_b32 v{48+e}, v{52+e}")
A("v_pk_add_f32 v[48:49], v[48:49], v[52:53]")
A("v_pk_add_f32 v[50:51], v[50:51], v[54:55]")
A("ds_write_b128 v11, v[48:51]")
A(f"s_cmp_lg_u32 s{sW}, 1")
A("s_waitcnt lgkmcnt(0)")
A("s_barrier")
A("s_cbranch_scc1 L_cbd")
A("ds_read_b128 v[16:19], v66")
A("ds_read_b128 v[20:23], v66 offset:16")
for i in range(4):
    A(f"ds_read_b128 v[{32+4*i}:{35+4*i}], v65 offset:{1024*i}")
A("s_waitcnt lgkmcnt(4)")
A("v_max3_f32 v24, v16, v18, v20")
A("v_max_f32 v24, v24, v22")
for i in range(4):
    A(f"v_sub_f32 v{16+2*i}, v{16+2*i}, v24")
for i in range(4):
    A(f"v_exp_f32 v{16+2*i}, v{16+2*i}")
A("v_mul_f32 v25, v16, v17")
A("v_fmac_f32 v25, v18, v19")
A("v_fmac_f32 v25, v20, v21")
A("v_fmac_f32 v25, v22, v23")
A("v_rcp_f32 v26, v25")
A("s_waitcnt lgkmcnt(0)")
for i in range(4):
    for hh in range(2):
        x = 32 + 4 * i + 2 * hh
        if i == 0:
            A(f"v_pk_mul_f32 v[{48+2*hh}:{49+2*hh}], v[{x}:{x+1}], v[16:17] op_sel_hi:[1,0]")
        else:
            A(f"v_pk_fma_f32 v[{48+2*hh}:{49+2*hh}], v[{x}:{x+1}], v[{16+2*i}:{17+2*i}], v[{48+2*hh}:{49+2*hh}] op_sel_hi:[1,0,1]")
A("v_pk_mul_f32 v[48:49], v[48:49], v[26:27] op_sel_hi:[1,0]")
A("v_pk_mul_f32 v[50:51], v[50:51], v[26:27] op_sel_hi:[1,0]")
A("v_cvt_pk_bf16_f32 v236, v48, v49")
A("v_cvt_pk_bf16_f32 v237, v50, v51")
store_local([f"buffer_store_dwordx4 v[236:239], v6, {srd(S_WS)}, s93 offen"])
A.stamp(5, 0)
A.stamp(11, 4)
A.lab("L_cbd")
A(f"s_cmp_lt_u32 s{sR}, 16")
A("s_cbranch_scc1 L_F")

poll([f"buffer_load_dwordx4 v[208:211], v68, {srd(S_WS)}, s80 offen"], [210])
A.stamp(9, 0)
for jj in range(8):
    d = 144 + 4 * jj
    A(f"v_mfma_f32_16x16x16_bf16 v[{d}:{d+3}], v[208:209], v[{80+2*jj}:{81+2*jj}], 0")
A("s_nop 1")
for jj in range(8):
    d = 144 + 4 * jj
    A(f"v_add_f32_dpp v{216+jj}, v{d+1}, v{d} row_shl:8 {DPPM}")
execmask(M_N8)
A("ds_write_b128 v70, v[216:219]")
A("ds_write_b128 v70, v[220:223] offset:16")
execall()
A("s_waitcnt lgkmcnt(0)")
A("s_barrier")
A(f"s_cmp_lg_u32 s{sW}, 7")
A("s_cbranch_scc1 L_clean")
for s_ in range(8):
    A(f"ds_read_b128 v[{144+4*s_}:{147+4*s_}], v6 offset:{L_RED + 1024*s_}")
sum_b128(8, 144, True)
A("v_cvt_pk_bf16_f32 v236, v144, v145")
A("v_cvt_pk_bf16_f32 v237, v146, v147")
store_local([f"buffer_store_dwordx4 v[236:239], v71, {srd(S_WS)}, s81 offen"])
A.stamp(10, 0)
A("s_branch L_fin")

A.lab("L_clean")
A("s_mov_b32 s94, s100")
A("s_mov_b32 s97, s101")
A(f"s_cmp_eq_u32 s{sR}, 31")
A("s_cbranch_scc1 L_F1")
A(f"s_cmp_lt_u32 s{sW}, 2")
A("s_cbranch_scc0 L_fin")

A.lab("L_red")
A(f"s_cmp_lt_u32 s{sR}, 26")
A("s_cbranch_scc0 L_fin")
A(f"s_and_b32 s94, s{sR}, 15")
A("v_and_b32 v12, 1, v1")
A("v_mul_u32_u24 v13, 1280, v12")
A("v_lshl_add_u32 v13, v2, 3, v13")
A("v_lshrrev_b32 v15, 5, v0")
A("v_lshl_add_u32 v13, v15, 2, v13")
A(f"s_mul_i32 s90, s{sW}, 2560")
A("s_lshl_b32 s93, s94, 7")
A("s_add_u32 s90, s90, s93")
A(f"buffer_load_dword v200, v13, {srd(S_X)}, s90 offen")
A("v_mul_u32_u24 v13, 2560, v12")
A("v_lshl_add_u32 v13, v2, 4, v13")
A(f"s_mul_i32 s96, s{sX}, 10240")
A(f"s_mul_i32 s90, s{sW}, 5120")
A("s_add_u32 s96, s96, s90")
A("s_lshl_b32 s90, s94, 8")
A("s_add_u32 s96, s96, s90")
A(f"s_add_u32 s96, s96, {W_H5C}")
A("v_and_b32 v14, 0x1ff, v6")
A("v_lshl_add_u32 v14, v15, 10, v14")
A("s_lshl_b32 s95, s94, 13")
A(f"s_lshl_b32 s90, s{sW}, 9")
A("s_add_u32 s95, s95, s90")
A(f"s_add_u32 s95, s95, {W_H5B}")
A("s_add_u32 s93, s95, 4096")
poll([f"buffer_load_dwordx4 v[{144+4*i}:{147+4*i}], v14, {srd(S_WS)}, {'s95' if i < 2 else 's93'} offen offset:{2048*(i&1)}" for i in range(4)],
     [146 + 4 * i for i in range(4)])
for i in range(4):
    unpack(160 + 4 * i, 161 + 4 * i, 144 + 4 * i)
    unpack(162 + 4 * i, 163 + 4 * i, 145 + 4 * i)
unpack(202, 203, 200)
sum_b128(4, 160)
A("s_nop 1")
A("v_permlane32_swap_b32 v160, v162")
A("v_permlane32_swap_b32 v161, v163")
A("s_nop 0")
A("v_pk_add_f32 v[160:161], v[160:161], v[162:163]")
A("v_pk_add_f32 v[160:161], v[160:161], v[202:203]")
A("v_cvt_pk_bf16_f32 v236, v160, v161")
A("v_cvt_pk_bf16_f32 v237, v160, v161")
A("s_nop 1")
A("v_permlane32_swap_b32 v236, v237")
execmask(0xFFFFFFFF)
store_local([f"buffer_store_dwordx4 v[236:239], v13, {srd(S_WS)}, s96 offen"])
execall()
A.stamp(11)
A("s_branch L_fin")

A.lab("L_s8")
A("s_lshl_b32 s94, s2, 1")
A(f"s_and_b32 s90, s{sW}, 1")
A("s_add_u32 s94, s94, s90")
A("s_mul_i32 s90, s94, 1639")
A("s_lshr_b32 s90, s90, 16")
A("s_mul_i32 s93, s90, 40")
A("s_sub_u32 s93, s94, s93")
A("s_lshr_b32 s95, s93, 3")
A("s_lshl_b32 s95, s95, 5")
A("s_bfe_u32 s96, s93, 0x10002")
A("s_add_u32 s95, s95, s96")
A("s_and_b32 s96, s93, 3")
A("s_lshl_b32 s96, s96, 3")
A("s_add_u32 s95, s95, s96")
A("v_mul_u32_u24 v12, 10240, v5")
A("v_lshl_add_u32 v12, v4, 4, v12")
A("s_lshl_b32 s78, s94, 6")
A(f"s_add_u32 s78, s78, {W_H6}")
A(f"s_add_u32 s79, s78, {16*10240}")
A(f"s_add_u32 s80, s78, {32*10240}")
A(f"s_add_u32 s81, s78, {48*10240}")
A("v_add_u32 v13, s81, v12")
A(f"s_lshl_b32 s82, s{sX}, 2")
A("s_add_u32 s82, s82, s90")
A("s_mul_i32 s82, s82, 160")
A("s_add_u32 s82, s82, s95")
A("s_lshl_b32 s82, s82, 4")
A(f"s_add_u32 s82, s82, {W_H5C}")
A("v_lshlrev_b32 v14, 5, v4")
A("v_add_u32 v14, s82, v14")
A("v_cmp_gt_u32 vcc, 6, v5")
A("s_nop 1")
A("v_cndmask_b32 v13, v14, v13, vcc")
A("s_mul_i32 s83, s90, 1280")
A("s_lshl_b32 s84, s95, 3")
A("s_add_u32 s83, s83, s84")
A("v_lshlrev_b32 v15, 4, v4")
A("v_lshl_add_u32 v15, v1, 1, v15")
s8l = [f"buffer_load_dwordx4 v[144:147], v12, {srd(S_WS)}, s78 offen",
       f"buffer_load_dwordx4 v[148:151], v12, {srd(S_WS)}, s79 offen",
       f"buffer_load_dwordx4 v[152:155], v12, {srd(S_WS)}, s80 offen",
       f"buffer_load_dwordx4 v[156:159], v13, {srd(S_WS)}, 0 offen"]
A("s_sleep 4")
for i in s8l:
    A(i + " sc1")
poll([f"buffer_load_dwordx4 v[164:167], v14, {srd(S_WS)}, 0 offen"], [166], sleep=2)
poll(s8l, [146, 150, 154, 158])
A("v_cmp_gt_u32 vcc, 7, v5")
A("s_nop 1")
A("v_cndmask_b32 v156, 0, v156, vcc")
A("v_cndmask_b32 v157, 0, v157, vcc")
for i in range(4):
    unpack(160 + 4 * i, 161 + 4 * i, 144 + 4 * i)
    unpack(162 + 4 * i, 163 + 4 * i, 145 + 4 * i)
sum_b128(4, 160)
A("s_nop 1")
A("v_permlane32_swap_b32 v160, v162")
A("v_permlane32_swap_b32 v161, v163")
A("s_nop 0")
A("v_pk_add_f32 v[160:161], v[160:161], v[162:163]")
A("s_nop 1")
A("v_permlane16_swap_b32 v160, v161")
A("s_nop 0")
A("v_add_f32 v160, v160, v161")
A("s_nop 1")
A(f"v_add_f32_dpp v160, v160, v160 row_ror:8 {DPPM}")
A("s_nop 1")
A(f"v_add_f32_dpp v160, v160, v160 row_ror:4 {DPPM}")
A("s_nop 0")
A("v_cvt_pk_bf16_f32 v160, v160, v160")
execmask(M_N4)
A(f"buffer_store_short v160, v15, {srd(S_OUT)}, s83 offen")
execall()
A("s_cmp_lg_u32 s94, 0")
A("s_cbranch_scc1 L_s8x")
A("v_mov_b32 v12, 0")
A("s_mov_b64 exec, 1")
A(f"buffer_store_dwordx2 v[238:239], v12, {srd(S_WS)}, 0 offen sc1")
execall()
A.lab("L_s8x")
if opt.padto:
    A.lab("L_pad")
    A("s_memrealtime s[6:7]")
    A("s_waitcnt lgkmcnt(0)")
    A("s_sub_u32 s6, s6, s4")
    A(f"s_cmp_lt_u32 s6, {opt.padto*100}")
    A("s_cbranch_scc1 L_pad")
A.stamp(11)
A("s_branch L_fin")

def w1_loads():
    A("v_mul_u32_u24 v15, 13824, v5")
    A("v_lshl_add_u32 v15, v4, 4, v15")
    A(f"s_mul_i32 s93, s{sW}, {128*3456}")
    A("s_lshl_b32 s90, s94, 6")
    A("s_add_u32 s93, s93, s90")
    for i in range(8):
        A(f"s_add_u32 s90, s93, {((i & 3) + 64*(i >> 2))*3456}")
        A(f"buffer_load_dwordx4 v[{16+4*i}:{19+4*i}], v15, {srd(S_W1)}, s90 offen {opt.pt}")


A.lab("L_F")
if opt.fwait:
    A("s_waitcnt vmcnt(0)")
    A.stamp(3, 5)
A("s_barrier")
if opt.fwait > 1:
    A(f"s_sleep {opt.fwait}")
A("s_waitcnt vmcnt(4)")
if opt.f2 == 2:
    A(f"s_cmp_lt_u32 s{sW}, 4")
    A("s_cbranch_scc0 L_f2xl")
    f_second("l")
if opt.f2 == 3:
    f_second("l")
A("s_mov_b32 s94, s100")
A("s_mov_b32 s97, s101")
A(f"s_cmp_lt_u32 s{sR}, 10")
A("s_cbranch_scc0 L_F1")
if opt.d1:
    A(f"s_sleep {opt.d1}")
if not opt.f2:
    A("s_add_u32 s90, s91, 5120")
    for i in range(4):
        A(f"buffer_load_dwordx4 v[{192+4*i}:{195+4*i}], v244, {srd(S_WO)}, s90 offen offset:{1280*i} {opt.po}")
A(f"s_lshl_b32 s90, s{sR}, 3")
A(f"s_add_u32 s90, s90, s{sW}")
A(f"s_mul_i32 s92, s{sX}, 7")
A("s_add_u32 s92, s92, 6")
A("s_cmp_lt_u32 s90, 40")
A("s_cbranch_scc0 L_hp2")
A("s_lshl_b32 s92, s92, 6")
A("v_mul_u32_u24 v15, 3456, v5")
A("v_lshl_add_u32 v15, v4, 4, v15")
A(f"s_mul_i32 s90, s90, {16*3456}")
A("s_add_u32 s90, s90, s92")
A(f"buffer_load_dwordx4 v[48:51], v15, {srd(S_W1)}, s90 offen")
A("s_branch L_s5")
A.lab("L_hp2")
A("s_sub_u32 s90, s90, 40")
A("s_lshl_b32 s90, s90, 10")
A(f"s_mul_i32 s92, s92, {32*1280}")
A("s_add_u32 s90, s90, s92")
A(f"buffer_load_dwordx4 v[48:51], v6, {srd(S_W2)}, s90 offen")
A.lab("L_s5")
A("s_waitcnt vmcnt(1)")
transpose(112, [212, 216, 220, 224, 192, 196, 200, 204], 4)
A("v_lshl_add_u32 v12, v3, 11, v7")
A(f"s_lshl_b32 s95, s{sX}, 14")
A(f"s_lshl_b32 s90, s{sW}, 8")
A("s_add_u32 s95, s95, s90")
A(f"s_add_u32 s95, s95, {W_H4}")
A("s_add_u32 s96, s95, 8192")
A("v_and_b32 v14, 7, v0")
A("v_lshlrev_b32 v14, 5, v14")
A("v_lshl_add_u32 v14, v1, 8, v14")
A(f"s_lshl_b32 s90, s{sW}, 10")
A(f"s_add_u32 s90, s90, {L_RED}")
A("v_add_u32 v14, s90, v14")
poll([f"buffer_load_dwordx4 v[208:211], v12, {srd(S_WS)}, s95 offen",
      f"buffer_load_dwordx4 v[212:215], v12, {srd(S_WS)}, s96 offen"], [210, 214], sleep=opt.lsleep)
A.stamp(9, 0)
unpack(216, 217, 208); unpack(218, 219, 209); unpack(220, 221, 212); unpack(222, 223, 213)
A("v_pk_add_f32 v[216:217], v[216:217], v[220:221]")
A("v_pk_add_f32 v[218:219], v[218:219], v[222:223]")
A("v_cvt_pk_bf16_f32 v208, v216, v217")
A("v_cvt_pk_bf16_f32 v209, v218, v219")
A("s_nop 1")
A(f"v_mov_b32_dpp v212, v208 quad_perm:[0,2,0,2] {DPPM}")
A(f"v_mov_b32_dpp v213, v209 quad_perm:[0,2,0,2] {DPPM}")
A(f"v_mov_b32_dpp v214, v208 quad_perm:[1,3,1,3] {DPPM}")
A(f"v_mov_b32_dpp v215, v209 quad_perm:[1,3,1,3] {DPPM}")
A("s_nop 1")
for jj in range(8):
    d = 144 + 4 * jj
    A(f"v_mfma_f32_16x16x32_bf16 v[{d}:{d+3}], v[212:215], v[{112+4*jj}:{115+4*jj}], 0")
A("s_nop 1")
for jj in range(8):
    d = 144 + 4 * jj
    A(f"v_add_f32_dpp v{216+jj}, v{d+1}, v{d} row_shl:8 {DPPM}")
execmask(M_N8)
A("ds_write_b128 v14, v[216:219]")
A("ds_write_b128 v14, v[220:223] offset:16")
execall()
A("s_waitcnt lgkmcnt(0)")
A("s_barrier")
A(f"s_and_b32 s90, s{sW}, 6")
A("s_cmp_eq_u32 s90, 2")
A("s_cbranch_scc1 L_s8")
A(f"s_cmp_lg_u32 s{sW}, 7")
A("s_cbranch_scc1 L_fin")
for s in range(8):
    A(f"ds_read_b128 v[{144+4*s}:{147+4*s}], v6 offset:{L_RED + 1024*s}")
A(f"s_lshl_b32 s95, s{sR}, 3")
A(f"s_add_u32 s95, s95, s{sX}")
A("s_lshl_b32 s95, s95, 10")
A(f"s_add_u32 s95, s95, {W_H5B}")
sum_b128(8, 144, True)
A("v_cvt_pk_bf16_f32 v236, v144, v145")
A("v_cvt_pk_bf16_f32 v237, v146, v147")
A(f"buffer_store_dwordx4 v[236:239], v6, {srd(S_WS)}, s95 offen sc1")
A.stamp(11)
A("s_branch L_fin")

A.lab("L_F1")
A("s_cmp_lt_u32 s97, 54")
A("s_cbranch_scc0 L_fin")
A(f"s_cmp_lt_u32 s{sR}, 16")
A("s_cbranch_scc1 L_F1a")
A("s_sleep 4")
A(f"s_mul_i32 s91, s94, {32*1280}")
A(f"s_lshl_b32 s90, s{sW}, 8")
A("s_add_u32 s91, s91, s90")
A("s_add_u32 s90, s91, 5120")
for i in range(8):
    d = 212 + 4 * i if i < 4 else 192 + 4 * (i - 4)
    A(f"buffer_load_dwordx4 v[{d}:{d+3}], v247, {srd(S_W2)}, {'s91' if i < 4 else 's90'} offen offset:{1280*(i&3)} {opt.po}")
A.lab("L_F1a")
w1_loads()
A("s_waitcnt vmcnt(8)")
transpose(112, [212, 216, 220, 224, 192, 196, 200, 204], 4)
A("s_waitcnt vmcnt(0)")
A.stamp(2, 0)
transpose(80, [16 + 4 * i for i in range(8)], 4)
for i in range(4):
    A(f"v_mov_b32 v{48+i}, 0x3f803f80")
A("s_nop 1")
for jj in range(8):
    A(f"v_mfma_f32_16x16x32_bf16 v[{16+4*jj}:{19+4*jj}], v[48:51], v[{80+4*jj}:{83+4*jj}], 0")
A("s_nop 1")
dppsum([56 + jj for jj in range(8)], [16 + 4 * jj for jj in range(8)])
A("v_lshlrev_b32 v14, 5, v4")
A(f"s_lshl_b32 s90, s{sW}, 7")
A(f"s_add_u32 s90, s90, {L_CS}")
A("v_add_u32 v14, s90, v14")
A("s_mov_b64 exec, 15")
A("ds_write_b128 v14, v[56:59]")
A("ds_write_b128 v14, v[60:63] offset:16")
execall()
A("s_waitcnt lgkmcnt(0)")
A("s_barrier")
A.lab("L_s67")
A("v_lshrrev_b32 v14, 1, v7")
for s in range(5):
    A(f"ds_read_b64 v[{16+2*s}:{17+2*s}], v14 offset:{L_CS + 128*s}")
A("v_mul_u32_u24 v12, 2560, v3")
A("v_add_u32 v12, v12, v7")
A(f"s_mul_i32 s95, s{sX}, 10240")
A(f"s_lshl_b32 s90, s{sW}, 9")
A("s_add_u32 s95, s95, s90")
A(f"s_add_u32 s95, s95, {W_H5C}")
A("v_lshlrev_b32 v13, 1, v7")
A(f"s_add_u32 s90, s90, {L_RED2}")
A("v_add_u32 v13, s90, v13")
A("v_lshlrev_b32 v10, 3, v1")
A(f"s_lshl_b32 s90, s{sW}, 5")
A(f"s_add_u32 s90, s90, {L_RS}")
A("v_add_u32 v10, s90, v10")
A("v_lshl_add_u32 v14, v3, 7, v14")
A("v_lshlrev_b32 v11, 3, v3")
A("v_mul_u32_u24 v9, 2560, v1")
A("v_lshl_add_u32 v9, v2, 4, v9")
A("s_mul_i32 s96, s94, 10240")
A(f"s_lshl_b32 s90, s{sW}, 9")
A("s_add_u32 s96, s96, s90")
A(f"s_add_u32 s96, s96, {W_H6}")
A("s_waitcnt lgkmcnt(0)")
for s in range(1, 5):
    A(f"v_pk_add_f32 v[16:17], v[16:17], v[{16+2*s}:{17+2*s}]")
poll([f"buffer_load_dwordx4 v[208:211], v12, {srd(S_WS)}, s95 offen",
      f"buffer_load_dwordx4 v[212:215], v12, {srd(S_WS)}, s95 offen offset:256"], [210, 214], sleep=opt.lsleep)
A.stamp(10, 0)
A("v_mov_b32 v210, v212")
A("v_mov_b32 v211, v213")
A("s_nop 1")
A("v_mfma_f32_16x16x32_bf16 v[184:187], v[208:211], v[48:51], 0")
A("v_mfma_f32_16x16x32_bf16 v[188:191], v[208:211], v[208:211], 0")
for jj in range(8):
    d = 144 + 4 * jj
    A(f"v_mfma_f32_16x16x32_bf16 v[{d}:{d+3}], v[208:211], v[{80+4*jj}:{83+4*jj}], 0")
A("v_add_f32 v192, v184, v185")
A(f"v_add_f32_dpp v193, v189, v188 row_shl:1 {DPPM}")
A("v_add_f32 v194, v186, v187")
A("s_nop 0")
A(f"v_add_f32_dpp v193, v190, v193 row_shl:2 {DPPM}")
A("v_add_f32 v192, v192, v194")
A("s_nop 0")
A(f"v_add_f32_dpp v193, v191, v193 row_shl:3 {DPPM}")
execmask(0x1000010000100001)
A("ds_write_b64 v10, v[192:193]")
execall()
dppsum([176 + i for i in range(8)], [144 + 4 * i for i in range(8)])
execmask(M_N4)
A("ds_write_b128 v13, v[176:179]")
A("ds_write_b128 v13, v[180:183] offset:16")
execall()
A("s_waitcnt lgkmcnt(0)")
A("s_barrier")
for s in range(5):
    A(f"ds_read_b64 v[{160+2*s}:{161+2*s}], v11 offset:{L_RS + 32*s}")
for s in range(5):
    A(f"ds_read_b64 v[{144+2*s}:{145+2*s}], v14 offset:{L_RED2 + 512*s}")
A("s_waitcnt lgkmcnt(5)")
for s in range(1, 5):
    A(f"v_pk_add_f32 v[160:161], v[160:161], v[{160+2*s}:{161+2*s}]")
A(f"v_mul_f32 v160, {f32(1/640)}, v160")
A(f"v_mul_f32 v161, {f32(1/640)}, v161")
A("v_fma_f32 v161, -v160, v160, v161")
A("v_max_f32 v161, 0, v161")
A(f"v_add_f32 v161, {f32(1e-5)}, v161")
A("v_rsq_f32 v161, v161")
A("s_waitcnt lgkmcnt(0)")
for s in range(1, 5):
    A(f"v_pk_add_f32 v[144:145], v[144:145], v[{144+2*s}:{145+2*s}]")
A("v_fma_f32 v144, -v160, v16, v144")
A("v_fma_f32 v145, -v160, v17, v145")
A("v_mul_f32 v144, v144, v161")
A("v_mul_f32 v145, v145, v161")
A(f"v_mul_f32 v146, {f32(-math.log2(math.e))}, v144")
A(f"v_mul_f32 v147, {f32(-math.log2(math.e))}, v145")
A("v_exp_f32 v146, v146")
A("v_exp_f32 v147, v147")
A("s_nop 0")
A("v_add_f32 v146, 1.0, v146")
A("v_add_f32 v147, 1.0, v147")
A("v_rcp_f32 v146, v146")
A("v_rcp_f32 v147, v147")
A("s_nop 0")
A("v_mul_f32 v144, v144, v146")
A("v_mul_f32 v145, v145, v147")
A("v_cvt_pk_bf16_f32 v148, v144, v145")
A("s_nop 1")
for i in range(4):
    A(f"v_mov_b32_dpp v{208+i}, v148 quad_perm:[{i},{i},{i},{i}] {DPPM}")
A("s_nop 1")
for jj in range(8):
    d = 144 + 4 * jj
    A(f"v_mfma_f32_16x16x32_bf16 v[{d}:{d+3}], v[208:211], v[{112+4*jj}:{115+4*jj}], 0")
A("s_nop 3")
A("v_cvt_pk_bf16_f32 v232, v144, v148")
A("v_cvt_pk_bf16_f32 v233, v152, v156")
A(f"buffer_store_dwordx4 v[232:235], v9, {srd(S_WS)}, s96 offen sc1")
A("s_nop 1")
A("v_cvt_pk_bf16_f32 v236, v160, v164")
A("v_cvt_pk_bf16_f32 v237, v168, v172")
A(f"buffer_store_dwordx4 v[236:239], v9, {srd(S_WS)}, s96 offen offset:256 sc1")
A.stamp(11)

A.lab("L_fin")
if opt.dbgstamps:
    A("s_waitcnt vmcnt(0) lgkmcnt(0)")
    A("s_load_dwordx2 s[92:93], s[0:1], 80")
    A("s_mov_b32 s94, 256")
    A("s_mov_b32 s95, 0x00020000")
    A("v_mov_b32 v8, 0")
    A("s_waitcnt lgkmcnt(0)")
    A("s_mov_b64 exec, 1")
    A("s_not_b32 s90, s4")
    A("v_mov_b32 v9, s90")
    A("buffer_atomic_umax v9, v8, s[92:95], 0 offen offset:60")
    A(f"s_cmp_lt_u32 s{sR}, 16")
    for i in range(12):
        A(f"v_mov_b32 v9, s{4+2*i}")
        if i in (3, 4, 9):
            o2 = {3: 48, 4: 52, 9: 56}[i]
            A(f"s_cselect_b32 s91, {4*i}, {o2}")
            A(f"buffer_atomic_umax v9, v8, s[92:95], s91 offen")
        else:
            A(f"buffer_atomic_umax v9, v8, s[92:95], 0 offen offset:{4*i}")
    A("s_branch L_end")
if opt.stamps:
    A("s_waitcnt vmcnt(0) lgkmcnt(0)")
    A(f"s_lshl_b32 s90, s2, 3")
    A(f"s_add_u32 s90, s90, s{sW}")
    A("s_lshl_b32 s90, s90, 6")
    A(f"s_add_u32 s90, s90, {W_STAMP}")
    A("v_mov_b32 v8, 0")
    A("s_mov_b64 exec, 1")
    for i in range(12):
        A(f"v_mov_b32 v9, s{4+2*i}")
        A(f"buffer_store_dword v9, v8, {srd(S_WS)}, s90 offen offset:{4*i}")
    A(f"v_mov_b32 v9, s{sCNT}")
    A(f"buffer_store_dword v9, v8, {srd(S_WS)}, s90 offen offset:56")
    A(f"v_mov_b32 v9, s{sFAST}")
    A(f"buffer_store_dword v9, v8, {srd(S_WS)}, s90 offen offset:60")
A.lab("L_end")

body = "\n".join(A.l)
if opt.stamps:
    init = "\n".join(f"    s_mov_b32 s{4+2*i}, 0" for i in range(1, 12))
    body = init + "\n" + body
out = HDR + f"""; @launch grid=(256,1,1) block=(512,1,1) lds={LDS_BYTES}
.amdgcn_target "amdgcn-amd-amdhsa--gfx950"
.text
.globl {NAME}_kernel
.p2align 8
.type {NAME}_kernel,@function
{NAME}_kernel:
{body}
    s_endpgm
L_codeend:
.section .rodata,"a"
.p2align 6
.amdhsa_kernel {NAME}_kernel
  .amdhsa_next_free_vgpr 256
  .amdhsa_next_free_sgpr 102
  .amdhsa_accum_offset 256
  .amdhsa_group_segment_fixed_size 0
  .amdhsa_kernarg_size 96
  .amdhsa_user_sgpr_count 2
  .amdhsa_user_sgpr_kernarg_segment_ptr 1
  .amdhsa_system_sgpr_workgroup_id_x 1
.end_amdhsa_kernel
"""
open(opt.o, "w").write(out)
print("wrote", opt.o, "lines", len(A.l), file=sys.stderr)
```
